```python
import torch

def _softmax(x, axis=-1):
    return torch.softmax(x, dim=axis)
def _gelu(x):
    return torch.nn.functional.gelu(x, approximate="tanh")
def _silu(x):
    return torch.nn.functional.silu(x)
def _sigmoid(x):
    return torch.sigmoid(x)
def _layernorm(x, axis=-1, eps=1e-5):
    m = x.mean(dim=axis, keepdim=True)
    v = x.var(dim=axis, keepdim=True, unbiased=False)
    return (x - m) / torch.sqrt(v + eps)
def _scatter_add(tgt, idx, src, axis=0):
    return tgt.clone().index_add_(axis, idx, src)
def _segment_sum(src, seg, n):
    out = torch.zeros((n,) + src.shape[1:], dtype=src.dtype)
    return out.index_add_(0, seg, src)
def _pad(x, pw):
    flat = tuple(v for pair in reversed(pw) for v in pair)
    return torch.nn.functional.pad(x, flat)

kernel_name = 'concat_heads__gqa_block_cached__gqa_block_cached__near_ridge'

def setup_inputs():

    _w = (lambda a: (lambda t: t.to(torch.bfloat16) if t.is_floating_point() else t)(torch.as_tensor(a)))
    def _A_setup():
        B, Sq, D = 32, 64, 448
        Hq, Hkv, Sk, Dh = 16, 8, 512, 256
        assert Hq % Hkv == 0, (Hq, Hkv)
        return {
            "x": _w((lambda *s: torch.randn(*s, dtype=torch.bfloat16) * 0.8)(B, Sq, D)),
            "k_cache": _w((lambda *s: torch.randn(*s, dtype=torch.bfloat16) * 0.8)(B, Hkv, Sk, Dh)),
            "v_cache": _w((lambda *s: torch.randn(*s, dtype=torch.bfloat16) * 0.05)(B, Hkv, Sk, Dh)),
            "wq": _w((lambda *s: torch.randn(*s, dtype=torch.bfloat16) * 0.8)(D, Hq * Dh) * (D ** -0.5)),
            "wo": _w((lambda *s: torch.randn(*s, dtype=torch.bfloat16) * 0.05)(Hq * Dh, D) * ((Hq * Dh) ** -0.5)),
        }
    _A_in = _A_setup()

    def _B_setup():
        B, Sq, D = 32, 64, 448
        Hq, Hkv, Sk, Dh = 16, 8, 512, 256
        assert Hq % Hkv == 0, (Hq, Hkv)
        return {
            "x": _w((lambda *s: torch.randn(*s, dtype=torch.bfloat16) * 0.8)(B, Sq, D)),
            "k_cache": _w((lambda *s: torch.randn(*s, dtype=torch.bfloat16) * 0.8)(B, Hkv, Sk, Dh)),
            "v_cache": _w((lambda *s: torch.randn(*s, dtype=torch.bfloat16) * 0.05)(B, Hkv, Sk, Dh)),
            "wq": _w((lambda *s: torch.randn(*s, dtype=torch.bfloat16) * 0.8)(D, Hq * Dh) * (D ** -0.5)),
            "wo": _w((lambda *s: torch.randn(*s, dtype=torch.bfloat16) * 0.05)(Hq * Dh, D) * ((Hq * Dh) ** -0.5)),
        }
    _B_in = _B_setup()

    return {
        "A_x": _A_in["x"],
        "A_k_cache": _A_in["k_cache"],
        "A_v_cache": _A_in["v_cache"],
        "A_wq": _A_in["wq"],
        "A_wo": _A_in["wo"],
        "B_x": _B_in["x"],
        "B_k_cache": _B_in["k_cache"],
        "B_v_cache": _B_in["v_cache"],
        "B_wq": _B_in["wq"],
        "B_wo": _B_in["wo"],
    }

def reference(A_x, A_k_cache, A_v_cache, A_wq, A_wo, B_x, B_k_cache, B_v_cache, B_wq, B_wo):
    def _A_ref(x, k_cache, v_cache, wq, wo):
        B, Sq, D = x.shape
        Hq, Dh = 16, 256
        Hkv = k_cache.shape[1]
        rep = Hq // Hkv
        q = (lambda x, *d: x.permute(*d))((x @ wq).reshape(B, Sq, Hq, Dh), 0, 2, 1, 3)
        k = (lambda x, n, axis: torch.repeat_interleave(x, n, dim=axis))(k_cache, rep, axis=1)
        v = (lambda x, n, axis: torch.repeat_interleave(x, n, dim=axis))(v_cache, rep, axis=1)
        scores = torch.einsum("bhqd,bhkd->bhqk", q, k) * (Dh ** -0.5)
        p = _softmax(scores, axis=-1)
        o = torch.einsum("bhqk,bhkd->bhqd", p, v)
        return (lambda x, *d: x.permute(*d))(o, 0, 2, 1, 3).reshape(B, Sq, Hq * Dh) @ wo

    def _B_ref(x, k_cache, v_cache, wq, wo):
        B, Sq, D = x.shape
        Hq, Dh = 16, 256
        Hkv = k_cache.shape[1]
        rep = Hq // Hkv
        q = (lambda x, *d: x.permute(*d))((x @ wq).reshape(B, Sq, Hq, Dh), 0, 2, 1, 3)
        k = (lambda x, n, axis: torch.repeat_interleave(x, n, dim=axis))(k_cache, rep, axis=1)
        v = (lambda x, n, axis: torch.repeat_interleave(x, n, dim=axis))(v_cache, rep, axis=1)
        scores = torch.einsum("bhqd,bhkd->bhqk", q, k) * (Dh ** -0.5)
        p = _softmax(scores, axis=-1)
        o = torch.einsum("bhqk,bhkd->bhqd", p, v)
        return (lambda x, *d: x.permute(*d))(o, 0, 2, 1, 3).reshape(B, Sq, Hq * Dh) @ wo

    a = _A_ref(A_x, A_k_cache, A_v_cache, A_wq, A_wo)
    b = _B_ref(B_x, B_k_cache, B_v_cache, B_wq, B_wo)
    return torch.concatenate([a, b], axis=-1)
```

```python
import sys, math

NAME = "concat_heads__gqa_block_cached__gqa_block_cached__near_ridge"
HEADER = open("cdna_kernels/%s.s.ref" % NAME).read().split("; Override launch")[0]

KV_SLOT = 33792
W_BASE = 2 * KV_SLOT
XO_BASE = W_BASE + 65536
X_SLOT = 8704
LDS_BYTES = XO_BASE + 2 * X_SLOT

S_X, S_K, S_V, S_WQ, S_WO, S_OUT, S_WS = 4, 8, 12, 16, 20, 24, 28
S_W = 60
S_B = 61
S_P = 62
S_BR = 63
S_T0, S_T1 = 64, 65
S_WLDS = 66
S_WCOL = 67
S_KLDS = 68
S_KG = 69
S_VG = 70
S_XLDS = 71
S_XG = 72
S_C = 73
S_THR = 74
S_ITEM = 75
S_CH = 76
S_RET = 78
S_STAMP = 80
S_SIDX = 82
S_WG = 83


class Em:
    def __init__(self):
        self.l = []
    def __call__(self, s):
        self.l.append(s)
    def lab(self, s):
        self.l.append(s + ":")
    def text(self):
        return "\n".join(self.l)


def vr(a, n=1):
    return f"v{a}" if n == 1 else f"v[{a}:{a+n-1}]"
def ar(a, n=1):
    return f"a{a}" if n == 1 else f"a[{a}:{a+n-1}]"
def sr(a, n=1):
    return f"s{a}" if n == 1 else f"s[{a}:{a+n-1}]"


class Gen:
    def __init__(self, prof=False, prioA=1, h0_at=1, fuse=False):
        self.e = Em()
        self.prof = prof
        self.prioA = prioA
        self.h0_at = h0_at
        self.fuse = fuse
        self.barA = []
        self.barB = {}

    def stamp(self, vreg):
        e = self.e
        if not self.prof:
            return
        e(f"s_memrealtime {sr(S_STAMP,2)}")
        e("s_waitcnt lgkmcnt(0)")
        e(f"s_mov_b32 m0, s{S_SIDX}")
        e(f"v_writelane_b32 v{vreg}, s{S_STAMP}, m0")
        e(f"s_add_u32 s{S_SIDX}, s{S_SIDX}, 1")

    def prologue(self):
        e = self.e
        e("s_cmp_ge_u32 s2, 256")
        e("s_cbranch_scc1 L_end")
        e("s_load_dwordx16 s[32:47], s[0:1], 0")
        e("s_load_dwordx8 s[48:55], s[0:1], 64")
        e("s_load_dwordx2 s[56:57], s[0:1], 96")
        e(f"v_lshrrev_b32 v1, 6, v0")
        e(f"s_mov_b32 s{S_WG}, s2")
        e(f"s_and_b32 s{S_P}, s2, 3")
        e(f"v_readfirstlane_b32 s3, v1")
        e(f"s_lshr_b32 s{S_B}, s2, 3")
        e(f"s_bfe_u32 s{S_BR}, s2, 0x10002")
        e(f"s_mov_b32 s{S_SIDX}, 0")
        e("v_and_b32 v0, 63, v0")
        e(f"s_and_b32 s{S_W}, s3, 3")
        e("s_waitcnt lgkmcnt(0)")
        e("s_bitcmp1_b32 s2, 2")
        e(f"s_cselect_b64 {sr(S_X,2)}, s[42:43], s[32:33]")
        e(f"s_cselect_b64 {sr(S_K,2)}, s[44:45], s[34:35]")
        e(f"s_cselect_b64 {sr(S_V,2)}, s[46:47], s[36:37]")
        e(f"s_cselect_b64 {sr(S_WQ,2)}, s[48:49], s[38:39]")
        e(f"s_cselect_b64 {sr(S_WO,2)}, s[50:51], s[40:41]")
        def addbase(srd, sreg):
            e(f"s_add_u32 s{srd}, s{srd}, s{sreg}")
            e(f"s_addc_u32 s{srd+1}, s{srd+1}, 0")
        e(f"s_mul_i32 s{S_T0}, s{S_B}, 57344")
        addbase(S_X, S_T0)
        e(f"s_lshl_b32 s{S_T0}, s{S_B}, 21")
        e(f"s_lshl_b32 s{S_T1}, s{S_P}, 19")
        e(f"s_add_u32 s{S_T0}, s{S_T0}, s{S_T1}")
        addbase(S_K, S_T0)
        addbase(S_V, S_T0)
        e(f"s_lshl_b32 s{S_T0}, s{S_P}, 11")
        addbase(S_WQ, S_T0)
        e(f"s_sub_u32 s{S_WQ+2}, 3670016, s{S_T0}")
        e(f"s_mul_i32 s{S_T0}, s{S_P}, 917504")
        addbase(S_WO, S_T0)
        e(f"s_mov_b32 s{S_X+2}, 57344")
        e(f"s_mov_b32 s{S_K+2}, 524288")
        e(f"s_mov_b32 s{S_V+2}, 524288")
        e(f"s_mov_b32 s{S_WO+2}, 917504")
        e(f"s_mov_b64 {sr(S_OUT,2)}, s[52:53]")
        e(f"s_mov_b32 s{S_OUT+2}, 3670016")
        e(f"s_mov_b64 {sr(S_WS,2)}, s[56:57]")
        e(f"s_mov_b32 s{S_WS+2}, 67108864")
        for s in (S_X, S_K, S_V, S_WQ, S_WO, S_OUT, S_WS):
            e(f"s_mov_b32 s{s+3}, 0x20000")
        e("s_cmp_ge_u32 s3, 4")
        e("s_cbranch_scc1 L_B")

    def tr_addr(self, dst, base_imm=None, base_sreg=None, t0=None, t1=None, t2=None):
        e = self.e
        e(f"v_bfe_u32 v{t0}, v0, 2, 3")
        e(f"v_lshrrev_b32 v{t1}, 5, v0")
        e(f"v_lshlrev_b32 v{t1}, 10, v{t1}")
        e(f"v_lshl_add_u32 v{t1}, v{t0}, 7, v{t1}")
        e(f"v_and_b32 v{t2}, 3, v0")
        e(f"v_lshl_add_u32 v{t1}, v{t2}, 3, v{t1}")
        if base_imm:
            e(f"v_add_u32 v{t1}, {base_imm}, v{t1}")
        if base_sreg is not None:
            e(f"v_add_u32 v{t1}, s{base_sreg}, v{t1}")
        e(f"v_lshrrev_b32 v{t0}, 1, v{t0}")
        for u in range(4):
            e(f"v_xor_b32 v{t2}, {u}, v{t0}")
            e(f"v_lshl_add_u32 v{dst+u}, v{t2}, 5, v{t1}")

    A_P = 0
    A_S = 128
    A_T = 144
    A_KA = 160
    A_VA = 161
    A_OW = 165
    A_QA = 166
    A_NM = 167
    A_L = 169
    A_TS = 171
    A_X0 = 173
    A_X1 = 174
    A_ST = 175
    A_LANE = 173

    def barA_(self, name, times=1):
        self.e("s_barrier")
        self.barA.append(name)
        self.stamp(self.A_ST)

    def k_read(self, f, slot, tile):
        s, mt = f >> 1, f & 1
        off = slot * KV_SLOT + tile * 16896 + mt * 8448 + s * 64
        self.e(f"ds_read_b128 {ar(64 + 4*(f % 4), 4)}, v{self.A_KA} offset:{off}")

    def v_read(self, f, slot):
        T, u = f >> 2, f & 3
        b = 64 + 4 * (f % 4)
        off = slot * KV_SLOT + T * 4096
        self.e(f"ds_read_b64_tr_b16 {ar(b,2)}, v{self.A_VA+u} offset:{off}")
        self.e(f"ds_read_b64_tr_b16 {ar(b+2,2)}, v{self.A_VA+u} offset:{off+2048}")

    def q_read(self):
        e = self.e
        for s in range(8):
            for cb in range(2):
                off = (s >> 2) * 16384 + cb * 4096 + (s & 3) * 1024
                e(f"ds_read_b128 {ar(8*s+4*cb,4)}, v{self.A_QA} offset:{off}")

    def xlane(self, op, x, t):
        e = self.e
        e(f"v_mov_b32 v{t}, v{x}")
        e("s_nop 1")
        e(f"v_permlane32_swap_b32 v{t}, v{x}")
        e("s_nop 1")
        e(f"{op} v{x}, v{x}, v{t}")
        e(f"v_mov_b32 v{t}, v{x}")
        e("s_nop 1")
        e(f"v_permlane16_swap_b32 v{t}, v{x}")
        e("s_nop 1")
        e(f"{op} v{x}, v{x}, v{t}")

    def tile_max(self, cb, dst, t):
        e = self.e
        S = self.A_S
        r = [S + 4*cb + k for k in range(4)] + [S + 8 + 4*cb + k for k in range(4)]
        e(f"v_max3_f32 v{dst}, v{r[0]}, v{r[1]}, v{r[2]}")
        e(f"v_max3_f32 v{dst}, v{dst}, v{r[3]}, v{r[4]}")
        e(f"v_max3_f32 v{dst}, v{dst}, v{r[5]}, v{r[6]}")
        e(f"v_max_f32 v{dst}, v{dst}, v{r[7]}")
        self.xlane("v_max_f32", dst, t)

    def softmax(self, T):
        e = self.e
        S, TT, P = self.A_S, self.A_T, self.A_P
        if T == 0:
            for cb in range(2):
                self.tile_max(cb, TT + cb, TT + 2)
                e(f"v_mul_f32 v{self.A_NM+cb}, s{S_C}, v{TT+cb}")
                e(f"v_sub_f32 v{self.A_NM+cb}, 0, v{self.A_NM+cb}")
                e(f"v_mov_b32 v{self.A_L+cb}, 0")
        e.lab(f"L_sm{T}")
        groups = [(0, 0), (0, 1), (1, 0), (1, 1)]
        def fma(gi):
            mt, cb = groups[gi]
            for r in range(4):
                e(f"v_fma_f32 v{TT+4*gi+r}, v{S+8*mt+4*cb+r}, s{S_C}, v{self.A_NM+cb}")
        def exp(gi):
            for r in range(4):
                e(f"v_exp_f32 v{TT+4*gi+r}, v{TT+4*gi+r}")
        def fin(gi):
            mt, cb = groups[gi]
            t = TT + 4*gi
            ts = self.A_TS + cb
            if mt == 0:
                e(f"v_add_f32 v{ts}, v{t}, v{t+1}")
            else:
                e(f"v_add_f32 v{ts}, v{ts}, v{t}")
                e(f"v_add_f32 v{ts}, v{ts}, v{t+1}")
            e(f"v_cvt_pk_bf16_f32 v{P+8*T+4*cb+2*mt}, v{t}, v{t+1}")
            e(f"v_add_f32 v{ts}, v{ts}, v{t+2}")
            e(f"v_cvt_pk_bf16_f32 v{P+8*T+4*cb+2*mt+1}, v{t+2}, v{t+3}")
            e(f"v_add_f32 v{ts}, v{ts}, v{t+3}")
        fma(0); fma(1); exp(0); fma(2); exp(1); fma(3); fin(0); exp(2); fin(1); exp(3); fin(2); fin(3)
        if T > 0:
            e(f"v_max_f32 v{TT}, v{self.A_TS}, v{self.A_TS+1}")
            e(f"v_cmp_lt_f32 vcc, s{S_THR}, v{TT}")
            e("s_nop 0")
            e(f"s_cbranch_vccz L_ok{T}")
            e(f"s_call_b64 {sr(S_RET,2)}, L_rescale")
            e(f"s_branch L_sm{T}")
            e.lab(f"L_ok{T}")
            e(f"s_mov_b32 s{S_THR}, 0x47800000")
        for cb in range(2):
            e(f"v_add_f32 v{self.A_L+cb}, v{self.A_L+cb}, v{self.A_TS+cb}")

    def rescale_routine(self):
        e = self.e
        TT, P = self.A_T, self.A_P
        e.lab("L_rescale")
        for cb in range(2):
            self.tile_max(cb, TT, TT + 2)
            e(f"v_fma_f32 v{TT}, v{TT}, s{S_C}, v{self.A_NM+cb}")
            e(f"v_ceil_f32 v{TT}, v{TT}")
            e(f"v_max_f32 v{TT}, 0, v{TT}")
            e(f"v_sub_f32 v{self.A_NM+cb}, v{self.A_NM+cb}, v{TT}")
            e(f"v_min_f32 v{TT}, 0x43800000, v{TT}")
            e(f"v_cvt_i32_f32 v{TT}, v{TT}")
            e(f"v_sub_u32 v{TT}, 0, v{TT}")
            e(f"v_ldexp_f32 v{self.A_L+cb}, v{self.A_L+cb}, v{TT}")
            for T in range(16):
                for k in range(4):
                    r = P + 8*T + 4*cb + k
                    e(f"v_lshlrev_b32 v{TT+4}, 16, v{r}")
                    e(f"v_and_b32 v{TT+5}, 0xffff0000, v{r}")
                    e(f"v_ldexp_f32 v{TT+4}, v{TT+4}, v{TT}")
                    e(f"v_ldexp_f32 v{TT+5}, v{TT+5}, v{TT}")
                    e(f"v_cvt_pk_bf16_f32 v{r}, v{TT+4}, v{TT+5}")
        e(f"s_mov_b32 s{S_THR}, 0x7f800000")
        e(f"s_setpc_b64 {sr(S_RET,2)}")

    def streamA(self):
        e = self.e
        KA, VA, OW, QA = self.A_KA, self.A_VA, self.A_OW, self.A_QA
        if self.prioA:
            e(f"s_setprio {self.prioA}")
        t = self.A_T
        e(f"s_cmp_eq_u32 s{S_W}, 0")
        e("s_cbranch_scc0 L_a_tx")
        self.touch_wq(0, t)
        e.lab("L_a_tx")
        e(f"v_lshlrev_b32 v{t+8}, 7, v0")
        e(f"s_lshl_b32 s{S_T0}, s{S_W}, 13")
        e(f"buffer_load_dword v{t+9}, v{t+8}, {sr(S_X,4)}, s{S_T0} offen")
        e(f"s_add_u32 s{S_T0}, s{S_T0}, 32768")
        e(f"buffer_load_dword v{t+10}, v{t+8}, {sr(S_X,4)}, s{S_T0} offen")
        a, b, c = t + 4, t + 5, t + 6
        e(f"v_bfe_u32 v{a}, v0, 1, 3")
        e(f"v_mul_u32_u24 v{KA}, 1056, v{a}")
        e(f"v_and_b32 v{a}, 1, v0")
        e(f"v_lshl_add_u32 v{KA}, v{a}, 9, v{KA}")
        e(f"v_lshrrev_b32 v{b}, 4, v0")
        e(f"v_xor_b32 v{b}, v{b}, v{a}")
        e(f"v_lshl_add_u32 v{KA}, v{b}, 4, v{KA}")
        self.tr_addr(VA, t0=a, t1=b, t2=c)
        e(f"s_lshr_b32 s{S_T0}, s{S_W}, 1")
        e(f"s_and_b32 s{S_T1}, s{S_W}, 1")
        e(f"s_lshl_b32 s3, s{S_T0}, 13")
        e(f"s_lshl_b32 s2, s{S_T1}, 11")
        e(f"s_add_u32 s3, s3, s2")
        e(f"s_add_u32 s3, s3, {XO_BASE}")
        e(f"v_lshl_add_u32 v{OW}, v0, 4, s3")
        e(f"s_lshl_b32 s3, s{S_T0}, 15")
        e(f"s_lshl_b32 s2, s{S_T1}, 13")
        e(f"s_add_u32 s3, s3, s2")
        e(f"s_add_u32 s3, s3, {W_BASE}")
        e(f"v_lshl_add_u32 v{QA}, v0, 4, s3")
        e(f"s_mov_b32 s{S_C}, 0x3db8aa3b")
        e(f"s_mov_b32 s{S_THR}, 0x47800000")
        e(f"s_mov_b32 s{S_ITEM}, 0")
        for h in range(7):
            self.barA_(f"HB{h}")
            if h == 3:
                e(f"s_cmp_eq_u32 s{S_W}, 0")
                e("s_cbranch_scc0 L_a_t2")
                self.touch_wq(1, t)
                e.lab("L_a_t2")
        e("s_waitcnt vmcnt(0)")
        self.barA_("QB1")
        self.q_read()
        e("s_waitcnt lgkmcnt(0)")
        self.barA_("KV0")
        for f in range(3):
            self.k_read(f, 0, 0)
        barA_pre = list(self.barA)
        self.barA = []
        e.lab("L_item")
        S = self.A_S
        for T in range(16):
            slot, tile = (T >> 1) & 1, T & 1
            for f in range(16):
                if f + 3 < 16:
                    self.k_read(f + 3, slot, tile)
                e(f"s_waitcnt lgkmcnt({min(3, 15 - f)})")
                if f == 15:
                    if tile == 1:
                        self.barA_("KV")
                    for g in range(3):
                        if T < 15:
                            self.k_read(g, ((T + 1) >> 1) & 1, (T + 1) & 1)
                        else:
                            self.v_read(g, 0)
                s, mt = f >> 1, f & 1
                for cb in range(2):
                    d = vr(S + 8*mt + 4*cb, 4)
                    e(f"v_mfma_f32_16x16x32_bf16 {d}, {ar(64+4*(f%4),4)}, {ar(8*s+4*cb,4)}, {d if s else 0}")
            e("s_nop 0" if T else "s_nop 7")
            self.softmax(T)
        TT = self.A_T
        for cb in range(2):
            self.xlane("v_add_f32", self.A_L + cb, self.A_X0)
            e(f"v_rcp_f32 v{self.A_L+cb}, v{self.A_L+cb}")
        barA_K = list(self.barA)
        self.barA = []
        e(f"s_mov_b32 s{S_CH}, 0")
        e.lab("L_chunk")
        O = self.A_S
        for half in range(2):
            if half == 1:
                e(f"s_or_b32 s{S_T0}, s{S_ITEM}, s{S_CH}")
                e(f"s_cbranch_scc1 L_noq2")
                self.q_read()
                e("s_waitcnt lgkmcnt(0)")
                e("s_barrier")
                self.stamp(self.A_ST)
                e.lab("L_noq2")
            for f in range(32):
                if f + 3 < 32:
                    self.v_read(f + 3, half)
                e(f"s_waitcnt lgkmcnt({2*min(3, 31 - f)})")
                if f == 31:
                    self.barA_("KV")
                    if half == 0:
                        for g in range(3):
                            self.v_read(g, 1)
                    else:
                        e(f"s_cmp_eq_u32 s{S_CH}, 3")
                        e("s_cbranch_scc1 L_nk")
                        for g in range(3):
                            self.v_read(g, 0)
                        e("s_branch L_nk2")
                        e.lab("L_nk")
                        for g in range(3):
                            self.k_read(g, 0, 0)
                        e.lab("L_nk2")
                T, u = f >> 2, f & 3
                Tg = 8*half + T
                for cb in range(2):
                    d = vr(O + 8*u + 4*cb, 4)
                    e(f"v_mfma_f32_16x16x32_bf16 {d}, {ar(64+4*(f%4),4)}, {vr(self.A_P+8*Tg+4*cb,4)}, {d if Tg else 0}")
        e("s_nop 7")
        for u in range(4):
            for cb in range(2):
                for r in range(4):
                    x = O + 8*u + 4*cb + r
                    e(f"v_mul_f32 v{x}, v{x}, v{self.A_L+cb}")
        for u2 in range(2):
            for cb in range(2):
                d = O + 16*u2 + 4*cb
                s1 = d + 8
                e(f"v_cvt_pk_bf16_f32 v{d}, v{d}, v{d+1}")
                e(f"v_cvt_pk_bf16_f32 v{d+1}, v{d+2}, v{d+3}")
                e(f"v_cvt_pk_bf16_f32 v{d+2}, v{s1}, v{s1+1}")
                e(f"v_cvt_pk_bf16_f32 v{d+3}, v{s1+2}, v{s1+3}")
                e(f"ds_write_b128 v{OW}, {vr(d,4)} offset:{u2*4096 + cb*1024}")
        e("s_waitcnt lgkmcnt(0)")
        self.barA_("OB")
        barA_C = list(self.barA)
        e(f"s_add_u32 s{S_CH}, s{S_CH}, 1")
        e(f"s_cmp_lt_u32 s{S_CH}, 4")
        e("s_cbranch_scc1 L_chunk")
        e(f"s_add_u32 s{S_ITEM}, s{S_ITEM}, 1")
        e(f"s_cmp_lt_u32 s{S_ITEM}, 2")
        e("s_cbranch_scc1 L_item")
        seq = list(barA_pre)
        for it in range(2):
            seq += barA_K
            for c in range(4):
                x = list(barA_C)
                if it == 0 and c == 0:
                    x.insert(1, "QB2")
                seq += x
        self.barA = seq
        if self.prof:
            self.stamp(self.A_ST)
            e(f"s_cmp_eq_u32 s{S_W}, 0")
            e("s_cbranch_scc0 L_end")
            self.prof_store(self.A_ST, 0, 0)
        e("s_endpgm")
        self.rescale_routine()

    def prof_store(self, vreg, role, tmp):
        e = self.e
        e(f"v_mbcnt_lo_u32_b32 v{tmp}, -1, 0")
        e(f"v_mbcnt_hi_u32_b32 v{tmp}, -1, v{tmp}")
        e(f"v_lshlrev_b32 v{tmp}, 2, v{tmp}")
        e(f"s_lshl_b32 s{S_T0}, s{S_WG}, 9")
        e(f"s_add_u32 s{S_T0}, s{S_T0}, {0x3000000 + role*256}")
        e(f"buffer_store_dword v{vreg}, v{tmp}, {sr(S_WS,4)}, s{S_T0} offen")
        e("s_waitcnt vmcnt(0)")

    def touch_wq(self, item, t):
        e = self.e
        e(f"v_lshrrev_b32 v{t}, 3, v0")
        e(f"v_lshlrev_b32 v{t}, 13, v{t}")
        e(f"v_and_b32 v{t+1}, 7, v0")
        e(f"v_lshl_add_u32 v{t}, v{t+1}, 7, v{t}")
        e(f"s_mul_i32 s{S_T0}, s{S_B}, {14*8192}")
        if item:
            e(f"s_add_u32 s{S_T0}, s{S_T0}, {item*1024}")
        e(f"buffer_load_dword v{t+1}, v{t}, {sr(S_WQ,4)}, s{S_T0} offen")
        e(f"s_add_u32 s{S_T0}, s{S_T0}, 65536")
        e(f"buffer_load_dword v{t+2}, v{t}, {sr(S_WQ,4)}, s{S_T0} offen")

    B_BF = 128
    B_WT = 160
    B_XR = 164
    B_OR = 165
    B_VWQ = 166
    B_VWO = 167
    B_VV = 168
    B_VK = 169
    B_VX = 170
    B_QW = 171
    B_T = 172
    B_ST = 175

    def setupB(self):
        e = self.e
        a, b, c = self.B_T, self.B_T + 1, self.B_T + 2
        e(f"s_lshl_b32 s{S_WLDS}, s{S_W}, 14")
        e(f"s_add_u32 s{S_WLDS}, s{S_WLDS}, {W_BASE}")
        e(f"s_lshl_b32 s{S_WCOL}, s{S_W}, 8")
        e(f"s_mul_i32 s{S_KLDS}, s{S_W}, {8*1056}")
        e(f"s_lshl_b32 s{S_KG}, s{S_W}, 13")
        e(f"s_lshl_b32 s{S_VG}, s{S_W}, 15")
        e(f"s_mul_i32 s{S_XLDS}, s{S_W}, {2*1088}")
        e(f"s_add_u32 s{S_XLDS}, s{S_XLDS}, {XO_BASE}")
        e(f"s_mul_i32 s{S_XG}, s{S_W}, {16*896}")
        e(f"v_lshrrev_b32 v{a}, 3, v0")
        e(f"v_bfe_u32 v{b}, v0, 4, 2")
        e(f"v_and_b32 v{c}, 7, v0")
        e(f"v_xor_b32 v{self.B_VX}, v{c}, v{b}")
        e(f"v_lshlrev_b32 v{self.B_VX}, 4, v{self.B_VX}")
        e(f"v_lshlrev_b32 v{b}, 1, v{b}")
        e(f"v_xor_b32 v{c}, v{c}, v{b}")
        e(f"v_lshlrev_b32 v{c}, 4, v{c}")
        e(f"v_mul_u32_u24 v{b}, 896, v{a}")
        e(f"v_add_u32 v{self.B_VX}, v{self.B_VX}, v{b}")
        e(f"v_add_u32 v{self.B_VWO}, v{c}, v{b}")
        e(f"v_lshl_add_u32 v{self.B_VV}, v{a}, 9, v{c}")
        e(f"v_and_b32 v{b}, 3, v{a}")
        e(f"v_lshl_add_u32 v{self.B_VWQ}, v{b}, 13, v{c}")
        e(f"v_lshrrev_b32 v{b}, 5, v0")
        e(f"v_lshl_add_u32 v{self.B_VWQ}, v{b}, 16, v{self.B_VWQ}")
        e(f"v_and_b32 v{c}, 31, v0")
        e(f"v_xor_b32 v{c}, v{c}, v{b}")
        e(f"v_lshlrev_b32 v{c}, 4, v{c}")
        e(f"v_lshl_add_u32 v{self.B_VK}, v{b}, 9, v{c}")

    def setupB2(self):
        e = self.e
        a, b, c = self.B_T, self.B_T + 1, self.B_T + 2
        self.tr_addr(self.B_WT, base_sreg=S_WLDS, t0=a, t1=b, t2=c)
        e(f"v_bfe_u32 v{a}, v0, 3, 1")
        e(f"v_mul_u32_u24 v{self.B_XR}, 1088, v{a}")
        e(f"v_and_b32 v{a}, 7, v0")
        e(f"v_lshl_add_u32 v{self.B_XR}, v{a}, 7, v{self.B_XR}")
        e(f"v_lshrrev_b32 v{a}, 1, v{a}")
        e(f"v_lshrrev_b32 v{b}, 4, v0")
        e(f"v_xor_b32 v{a}, v{a}, v{b}")
        e(f"v_lshl_add_u32 v{self.B_XR}, v{a}, 4, v{self.B_XR}")
        e(f"v_add_u32 v{self.B_XR}, {XO_BASE}, v{self.B_XR}")
        e(f"v_lshlrev_b32 v{self.B_OR}, 4, v0")
        e(f"v_add_u32 v{self.B_OR}, {XO_BASE}, v{self.B_OR}")
        e(f"v_lshrrev_b32 v{a}, 5, v0")
        e(f"v_lshlrev_b32 v{a}, 8, v{a}")
        e(f"v_and_b32 v{b}, 15, v0")
        e(f"v_lshl_add_u32 v{a}, v{b}, 4, v{a}")
        e(f"v_bfe_u32 v{b}, v0, 4, 1")
        e(f"v_lshl_add_u32 v{a}, v{b}, 3, v{a}")
        e(f"v_add_u32 v{self.B_QW}, s{S_WLDS}, v{a}")

    def dma(self, lds_s, lds_imm, g_s, g_imm, vaddr, srd, tag, nt=False):
        def emit():
            e = self.e
            e(f"s_add_u32 m0, s{lds_s}, {lds_imm}")
            e(f"s_add_u32 s{S_T0}, s{g_s}, {g_imm}")
            e(f"buffer_load_dwordx4 v{vaddr}, {sr(srd,4)}, s{S_T0} offen{' nt' if nt else ''} lds")
            self.vmq.append(tag)
        return emit

    def H_ops(self, n):
        item, ph = n >> 4, n & 15
        slot = n & 1
        ops = []
        for k in range(8):
            if ph < 8:
                ops.append(self.dma(S_KLDS, slot*KV_SLOT + k*1056, S_KG, item*262144 + ph*32768 + k*1024,
                                    self.B_VK, S_K, f"H{n}", nt=True))
            else:
                c, half = (ph - 8) >> 1, ph & 1
                ops.append(self.dma(S_KG, slot*KV_SLOT + k*1024, S_VG, item*262144 + half*131072 + k*4096 + c*128,
                                    self.B_VV, S_V, f"H{n}", nt=True))
        return ops

    def X_ops(self, xp, slot, tag):
        return [self.dma(S_XLDS, slot*X_SLOT + k*1088, S_XG, k*7168 + xp*128, self.B_VX, S_X, tag) for k in range(2)]

    def W_ops(self, wd, hs):
        ks, cbk = hs >> 1, hs & 1
        ops = []
        for t in range(2):
            for hh in range(2):
                l = hs*4096 + (2*t + hh)*1024
                if wd[0] == 'Q':
                    _, item, xp = wd
                    g = (32*(2*xp + ks) + 16*hh + 4*t)*8192 + item*1024 + cbk*128
                    ops.append(self.dma(S_WLDS, l, S_WCOL, g, self.B_VWQ, S_WQ, (wd, hs)))
                else:
                    _, item, c, j = wd
                    g = (item*512 + 256*j + 64*c + 32*ks + 16*t + 8*hh)*896 + cbk*128
                    ops.append(self.dma(S_WLDS, l, S_WCOL, g, self.B_VWO, S_WO, (wd, hs)))
        return ops

    def touch_wo_ops(self, item):
        def emit():
            e = self.e
            t = self.B_T
            e(f"v_min_u32 v{t}, 27, v{self.B_T+2}")
            e(f"v_lshlrev_b32 v{t}, 7, v{t}")
            e(f"s_mul_i32 s{S_T0}, s{S_B}, 14336")
            e(f"s_mul_i32 s{S_T1}, s{S_W}, 3584")
            e(f"s_add_u32 s{S_T0}, s{S_T0}, s{S_T1}")
            e(f"s_add_u32 s{S_T0}, s{S_T0}, {item*458752}")
            e(f"buffer_load_dword v{t+1}, v{t}, {sr(S_WO,4)}, s{S_T0} offen")
            self.vmq.append("touch")
        return [emit]

    def vmwait(self, need, extra=""):
        idx = -1
        for i, t in enumerate(self.vmq):
            if t in need:
                idx = i
        if idx < 0:
            if extra:
                self.e(f"s_waitcnt {extra}")
            return
        n = len(self.vmq) - 1 - idx
        assert n <= 63, n
        self.e(f"s_waitcnt vmcnt({n}) {extra}".rstrip())
        self.vmq = self.vmq[idx+1:]

    def barB_(self, name):
        self.e("s_barrier")
        self.barB[self.path].append(name)
        self.stamp(self.B_ST)

    def hs_list(self, wd):
        if wd[0] == 'O' and self.path == 'w3':
            return [0, 2]
        return [0, 1, 2, 3]

    def reads(self, wd, hs, i, xslot):
        ks, cbk = hs >> 1, hs & 1
        e = self.e
        ops = []
        if cbk == 0:
            for cb4 in range(4):
                d = vr(self.B_BF + 16*ks + 4*cb4, 4)
                if wd[0] == 'Q':
                    off = xslot*X_SLOT + cb4*2176 + ks*64
                    ops.append(lambda d=d, off=off: e(f"ds_read_b128 {d}, v{self.B_XR} offset:{off}"))
                else:
                    off = ((2*wd[3] + ks)*4 + cb4)*1024
                    ops.append(lambda d=d, off=off: e(f"ds_read_b128 {d}, v{self.B_OR} offset:{off}"))
        for u in range(4):
            for t in range(2):
                d = ar(16*(i & 1) + 4*u + 2*t, 2)
                off = hs*4096 + t*2048
                ops.append(lambda d=d, off=off, u=u: e(f"ds_read_b64_tr_b16 {d}, v{self.B_WT+u} offset:{off}"))
        return ops

    def compute(self, wd, xslot, zero, refill, early_ops):
        e = self.e
        hl = self.hs_list(wd)
        self.vmwait([(wd, hl[0])])
        for op in self.reads(wd, hl[0], 0, xslot):
            op()
        for op in early_ops:
            op()
        done_refill = set()
        for i, hs in enumerate(hl):
            ks, cbk = hs >> 1, hs & 1
            others = []
            if i + 1 < len(hl):
                self.vmwait([(wd, hl[i+1])], "lgkmcnt(0)")
                others += self.reads(wd, hl[i+1], i + 1, xslot)
            else:
                e("s_waitcnt lgkmcnt(0)")
            if refill is not None and hs in self.hs_list(refill):
                others += self.W_ops(refill, hs)
            k = 0
            for u in range(4):
                for cb4 in range(4):
                    d = vr(64*cbk + 16*u + 4*cb4, 4)
                    c = 0 if (zero and ks == 0) else d
                    e(f"v_mfma_f32_16x16x32_bf16 {d}, {ar(16*(i&1)+4*u,4)}, {vr(self.B_BF+16*ks+4*cb4,4)}, {c}")
                    if k < len(others):
                        others[k](); k += 1
            while k < len(others):
                others[k](); k += 1

    def q_write(self):
        e = self.e
        t = self.B_BF
        e("s_nop 7")
        n = 0
        for cbk in range(2):
            for u in range(4):
                for cb4 in range(4):
                    a = 64*cbk + 16*u + 4*cb4
                    d = t + 2*(n % 16); n += 1
                    e(f"v_cvt_pk_bf16_f32 v{d}, v{a}, v{a+1}")
                    e(f"v_cvt_pk_bf16_f32 v{d+1}, v{a+2}, v{a+3}")
                    off = (cb4*4 + 2*cbk + (u >> 1))*1024 + (u & 1)*512
                    e(f"ds_write_b64 v{self.B_QW}, {vr(d,2)} offset:{off}")
        e("s_waitcnt lgkmcnt(0)")

    def wdesc(self, n):
        if 1 <= n <= 7:
            return ('Q', 1, n - 1)
        if 10 <= n <= 17:
            return ('O', 0, (n - 10) >> 1, (n - 10) & 1)
        if 26 <= n <= 33:
            return ('O', 1, (n - 26) >> 1, (n - 26) & 1)
        return None

    def periodB(self, n):
        e = self.e
        wd = self.wdesc(n)
        nxt = self.wdesc(n + 1)
        if n <= 32:
            need = [f"H{n}", f"X1_{n-1}"]
            self.vmwait(need)
            self.barB_("KV0" if n == 0 else "KV")
        early = []
        if n in (6, 22):
            early += self.touch_wo_ops(0 if n == 6 else 1)
        if n + 1 <= 31:
            early += self.H_ops(n + 1)
        if nxt is not None and nxt[0] == 'Q':
            early += self.X_ops(nxt[2], (nxt[2] + 1) & 1, f"X1_{nxt[2]}")
        needOB = wd is not None and wd[0] == 'O' and wd[3] == 0
        if wd is None or needOB:
            for op in early:
                op()
            early = []
        if n == 8:
            self.q_write()
        if n == 9:
            self.barB_("QB2")
        if needOB:
            self.barB_("OB")
        if wd is None:
            if nxt is not None:
                for hs in self.hs_list(nxt):
                    for op in self.W_ops(nxt, hs):
                        op()
        else:
            zero = (wd[0] == 'Q' and wd[2] == 0) or (wd == ('O', 0, 0, 0))
            xslot = (wd[2] + 1) & 1 if wd[0] == 'Q' else 0
            self.compute(wd, xslot, zero, nxt, early)

    def epilogue_v1(self):
        e = self.e
        t = self.B_T
        e("s_nop 7")
        e(f"v_lshlrev_b32 v{t}, 4, v{self.B_T+2}")
        e(f"s_lshl_b32 s{S_T1}, s{S_WG}, 17")
        e(f"s_lshl_b32 s{S_T0}, s{S_W}, 15")
        e(f"s_add_u32 s{S_T1}, s{S_T1}, s{S_T0}")
        for cbk in range(1 if self.path == 'w3' else 2):
            for u in range(4):
                e(f"s_add_u32 s{S_T0}, s{S_T1}, {(cbk*4+u)*4096}")
                for cb4 in range(4):
                    e(f"buffer_store_dwordx4 {vr(64*cbk+16*u+4*cb4,4)}, v{t}, {sr(S_WS,4)}, s{S_T0} offen offset:{cb4*1024}")
        if self.prof:
            e("s_waitcnt vmcnt(0)")
            self.stamp(self.B_ST)
            if self.path == 'main':
                e(f"s_cmp_eq_u32 s{S_W}, 0")
                e("s_cbranch_scc0 L_end")
                self.prof_store(self.B_ST, 1, 0)
        e("s_endpgm")

    def streamB(self):
        e = self.e
        e.lab("L_B")
        self.vmq = []
        self.path = 'main'
        self.barB = {'main': [], 'w3': []}
        self.setupB()
        for op in self.X_ops(0, 0, "X0_0"):
            op()
        for hs in range(4):
            for op in self.W_ops(('Q', 0, 0), hs):
                op()
        self.setupB2()
        e(f"v_mov_b32 v{self.B_T+2}, v0")
        for h in range(7):
            self.vmwait([f"X0_{h}"])
            self.barB_(f"HB{h}")
            early = []
            if h == self.h0_at:
                early += self.H_ops(0)
            if h < 6:
                early += self.X_ops(h + 1, (h + 1) & 1, f"X0_{h+1}")
            self.compute(('Q', 0, h), h & 1, h == 0, ('Q', 0, h + 1) if h < 6 else None, early)
        self.q_write()
        self.barB_("QB1")
        for n in range(9):
            self.periodB(n)
        e(f"s_cmp_eq_u32 s{S_W}, 3")
        e("s_cbranch_scc1 L_B3")
        save = list(self.vmq)
        self.barB['w3'] = list(self.barB['main'])
        for n in range(9, 34):
            self.periodB(n)
        self.epilogue_v1()
        e.lab("L_B3")
        self.path = 'w3'
        self.vmq = save
        for n in range(9, 34):
            self.periodB(n)
        self.epilogue_v1()

    def reduce_kernel(self):
        e = self.e
        e(".globl red_kernel")
        e(".p2align 8")
        e(".type red_kernel,@function")
        e.lab("red_kernel")
        e("s_cmp_ge_u32 s2, 1792")
        e("s_cbranch_scc1 L_rend")
        e("s_load_dwordx2 s[4:5], s[0:1], 96")
        e("s_load_dwordx2 s[8:9], s[0:1], 80")
        e("s_mul_hi_u32 s12, s2, 153391690")
        e("s_mul_i32 s13, s12, 28")
        e("s_sub_u32 s13, s2, s13")
        e("s_and_b32 s14, s12, 1")
        e("s_lshr_b32 s15, s12, 1")
        e("s_lshl_b32 s16, s15, 3")
        e("s_lshl_b32 s17, s14, 2")
        e("s_add_u32 s16, s16, s17")
        e("s_lshl_b32 s16, s16, 17")
        e("s_lshl_b32 s17, s13, 12")
        e("s_add_u32 s16, s16, s17")
        e("v_lshlrev_b32 v1, 4, v0")
        e("s_mov_b32 s6, 67108864")
        e("s_mov_b32 s7, 0x20000")
        e("s_mov_b32 s10, 3670016")
        e("s_mov_b32 s11, 0x20000")
        e("s_waitcnt lgkmcnt(0)")
        for p in range(4):
            e(f"buffer_load_dwordx4 {vr(4+4*p,4)}, v1, s[4:7], s16 offen")
            e("s_add_u32 s16, s16, 131072")
        e("v_lshrrev_b32 v2, 6, v0")
        e("v_lshlrev_b32 v2, 4, v2")
        e("v_and_b32 v3, 15, v0")
        e("v_add_u32 v2, v2, v3")
        e("v_mul_u32_u24 v2, 1792, v2")
        e("v_bfe_u32 v3, v0, 4, 2")
        e("v_lshl_add_u32 v2, v3, 3, v2")
        e("s_mul_i32 s15, s15, 114688")
        e("s_mul_i32 s14, s14, 896")
        e("s_add_u32 s15, s15, s14")
        e("s_lshl_b32 s13, s13, 5")
        e("s_add_u32 s15, s15, s13")
        e("s_waitcnt vmcnt(0)")
        for r in range(4):
            e(f"v_add_f32 v{4+r}, v{4+r}, v{8+r}")
            e(f"v_add_f32 v{12+r}, v{12+r}, v{16+r}")
            e(f"v_add_f32 v{4+r}, v{4+r}, v{12+r}")
        e("v_cvt_pk_bf16_f32 v4, v4, v5")
        e("v_cvt_pk_bf16_f32 v5, v6, v7")
        e("buffer_store_dwordx2 v[4:5], v2, s[8:11], s15 offen")
        e.lab("L_rend")
        e("s_endpgm")

    def build(self):
        e = self.e
        out = [HEADER.rstrip()]
        out.append(f"; @launch kernel={NAME}_kernel grid=(256,1,1) block=(512,1,1) lds={LDS_BYTES}")
        out.append(f"; @launch kernel=red_kernel grid=(1792,1,1) block=(256,1,1) lds=0")
        out.append('.amdgcn_target "amdgcn-amd-amdhsa--gfx950"')
        out.append(".text")
        out.append(f".globl {NAME}_kernel")
        out.append(".p2align 8")
        out.append(f".type {NAME}_kernel,@function")
        out.append(f"{NAME}_kernel:")
        self.prologue()
        self.streamA()
        self.streamB()
        e.lab("L_end")
        e("s_endpgm")
        self.reduce_kernel()
        assert self.barA == self.barB['main'] == self.barB['w3'], (self.barA, self.barB)
        out.append(e.text())
        out.append('.section .rodata,"a"')
        def kd(name, v, s, acc):
            return f""".p2align 6
.amdhsa_kernel {name}
  .amdhsa_next_free_vgpr {v}
  .amdhsa_next_free_sgpr {s}
  .amdhsa_accum_offset {acc}
  .amdhsa_group_segment_fixed_size 0
  .amdhsa_kernarg_size 104
  .amdhsa_user_sgpr_count 2
  .amdhsa_user_sgpr_kernarg_segment_ptr 1
  .amdhsa_system_sgpr_workgroup_id_x 1
.end_amdhsa_kernel"""
        out.append(kd(f"{NAME}_kernel", 256, 96, 176))
        out.append(kd("red_kernel", 24, 32, 24))
        return "\n".join(out) + "\n"


if __name__ == "__main__":
    kw = {}
    path = None
    for a in sys.argv[1:]:
        if "=" in a:
            k, v = a.split("=")
            kw[k] = eval(v)
        else:
            path = a
    txt = Gen(**kw).build()
    open(path or f"cdna_kernels/{NAME}.s", "w").write(txt)
    print("lines", txt.count("\n"), "bytes", len(txt))
```

```python
import sys, math

NAME = "concat_heads__gqa_block_cached__gqa_block_cached__near_ridge"
HEADER = open("cdna_kernels/%s.s.ref" % NAME).read().split("; Override launch")[0]

KV_SLOT = 33792
W_BASE = KV_SLOT + 5 * 8704
XO_BASE = W_BASE + 65536
X_SLOT = 8704
FLAG_BASE = 0x2800000
LDS_BYTES = XO_BASE + 2 * X_SLOT

S_X, S_K, S_V, S_WQ, S_WO, S_OUT, S_WS = 4, 8, 12, 16, 20, 24, 28
S_W = 60
S_B = 61
S_P = 62
S_BR = 63
S_T0, S_T1 = 64, 65
S_WLDS = 66
S_WCOL = 67
S_KLDS = 68
S_KG = 69
S_VG = 70
S_VLB = 77
S_XLDS = 71
S_XG = 72
S_HK, S_HV, S_KL, S_VL, S_HVC = 66, 67, 68, 69, 70
S_HS = 32
S_HM, S_HGS = 36, 37
S_C = 73
S_THR = 74
S_ITEM = 75
S_CH = 76
S_RET = 78
S_STAMP = 80
S_SIDX = 82
S_WG = 83
S_DBG = 88
S_JUNK = 92


class Em:
    def __init__(self):
        self.l = []
    def __call__(self, s):
        self.l.append(s)
    def lab(self, s):
        self.l.append(s + ":")
    def text(self):
        return "\n".join(self.l)


def vr(a, n=1):
    return f"v{a}" if n == 1 else f"v[{a}:{a+n-1}]"
def ar(a, n=1):
    return f"a{a}" if n == 1 else f"a[{a}:{a+n-1}]"
def sr(a, n=1):
    return f"s{a}" if n == 1 else f"s[{a}:{a+n-1}]"


class Gen:
    def __init__(self, prof=False, prioA=1, npostQ=10, npostO=12, npre=6, fuse=True, pfl='sc1', f32=False, xnt=False, rin=0, nearlyQ=0, nearlyO=0, shift=1, lag=1, boost=2, hA=False, obf=26, obk=(1, 8), pre1=16, tailov=True, hint=True, wo1A=56, dyn=True, prioB=1, noH=False, noW=False, noSM=False, noBm=False, noAm=False, tnt=False):
        self.e = Em()
        self.prof = prof
        self.prioA = prioA
        self.npostQ, self.npostO, self.npre, self.pfl, self.f32 = npostQ, npostO, npre, pfl, f32
        self.fuse = fuse
        self.obk, self.pre1, self.tailov = obk, pre1, tailov
        self.dyn = dyn
        self.prioB = prioB if dyn else 0
        if dyn:
            prioA, boost = 2, (3 if boost else 0)
            self.prioA = 2
        self.wo1A = wo1A
        self.hA, self.obf, self.hint = hA, obf, hint
        self.lag, self.boost = lag, boost
        self.xnt, self.rin, self.nearlyQ, self.nearlyO, self.shift = xnt, rin, nearlyQ, nearlyO, shift
        self.noH, self.noW, self.noSM, self.noBm, self.noAm = noH, noW, noSM, noBm, noAm
        self.tfl = ' nt' if tnt else ''
        self.barA = []
        self.barB = {}
        self.st2 = {175: 174}
        self.namesB = []
        self.curn = -1
        self.fine = (3, 4, 12, 13, 14, 29)

    def stamp(self, vreg, name="."):
        e = self.e
        if not self.prof:
            return
        if self.prof in (4, 5) and not name.startswith('@'):
            return
        if self.prof == 4 and getattr(self, 'path', None) is not None:
            return
        if self.prof == 5 and getattr(self, 'path', None) is None:
            return
        if self.prof == 3 and (getattr(self, 'path', None) is None or not (name in ('.', 'HB-1', 'QB1-1', 'KV00', 'KV1', 'KV8', 'KV10', 'KV16', 'KV19', 'KV24', 'KV26', 'KV32', 'OB32'))):
            return
        if getattr(self, 'path', None) == 'main':
            self.namesB.append(name)
        e(f"s_memrealtime {sr(S_STAMP,2)}")
        e(f"s_memtime {sr(S_STAMP+4,2)}")
        e("s_waitcnt lgkmcnt(0)")
        e(f"s_mov_b32 m0, s{S_SIDX}")
        e(f"v_writelane_b32 v{vreg}, s{S_STAMP}, m0")
        e(f"v_writelane_b32 v{self.st2[vreg]}, s{S_STAMP+4}, m0")
        e(f"s_add_u32 s{S_SIDX}, s{S_SIDX}, 1")

    def prologue(self):
        e = self.e
        e("s_cmp_ge_u32 s2, 256")
        e("s_cbranch_scc1 L_end")
        e("s_load_dwordx16 s[32:47], s[0:1], 0")
        e("s_load_dwordx8 s[48:55], s[0:1], 64")
        e("s_load_dwordx2 s[56:57], s[0:1], 96")
        e(f"v_lshrrev_b32 v1, 6, v0")
        e(f"s_mov_b32 s{S_WG}, s2")
        e(f"s_and_b32 s{S_P}, s2, 3")
        e(f"v_readfirstlane_b32 s3, v1")
        e(f"s_lshr_b32 s{S_B}, s2, 3")
        e(f"s_bfe_u32 s{S_BR}, s2, 0x10002")
        e(f"s_mov_b32 s{S_SIDX}, 0")
        e("v_and_b32 v0, 63, v0")
        e(f"s_and_b32 s{S_W}, s3, 3")
        e("s_waitcnt lgkmcnt(0)")
        e("s_bitcmp1_b32 s2, 2")
        e(f"s_cselect_b64 {sr(S_X,2)}, s[42:43], s[32:33]")
        e(f"s_cselect_b64 {sr(S_K,2)}, s[44:45], s[34:35]")
        e(f"s_cselect_b64 {sr(S_V,2)}, s[46:47], s[36:37]")
        e(f"s_cselect_b64 {sr(S_WQ,2)}, s[48:49], s[38:39]")
        e(f"s_cselect_b64 {sr(S_WO,2)}, s[50:51], s[40:41]")
        def addbase(srd, sreg):
            e(f"s_add_u32 s{srd}, s{srd}, s{sreg}")
            e(f"s_addc_u32 s{srd+1}, s{srd+1}, 0")
        e(f"s_mul_i32 s{S_T0}, s{S_B}, 57344")
        addbase(S_X, S_T0)
        e(f"s_lshl_b32 s{S_T0}, s{S_B}, 21")
        e(f"s_lshl_b32 s{S_T1}, s{S_P}, 19")
        e(f"s_add_u32 s{S_T0}, s{S_T0}, s{S_T1}")
        addbase(S_K, S_T0)
        addbase(S_V, S_T0)
        e(f"s_lshl_b32 s{S_T0}, s{S_P}, 11")
        addbase(S_WQ, S_T0)
        e(f"s_sub_u32 s{S_WQ+2}, 3670016, s{S_T0}")
        e(f"s_mul_i32 s{S_T0}, s{S_P}, 917504")
        addbase(S_WO, S_T0)
        e(f"s_mov_b32 s{S_X+2}, 57344")
        e(f"s_mov_b32 s{S_K+2}, 524288")
        e(f"s_mov_b32 s{S_V+2}, 524288")
        e(f"s_mov_b32 s{S_WO+2}, 917504")
        e(f"s_mov_b64 {sr(S_OUT,2)}, s[52:53]")
        e(f"s_mov_b32 s{S_OUT+2}, 3670016")
        e(f"s_mov_b64 {sr(S_WS,2)}, s[56:57]")
        e(f"s_mov_b32 s{S_WS+2}, 67108864")
        e(f"s_mov_b64 {sr(S_DBG,2)}, s[54:55]")
        e(f"s_mov_b32 s{S_DBG+2}, 256")
        for s in (S_X, S_K, S_V, S_WQ, S_WO, S_OUT, S_WS, S_DBG):
            e(f"s_mov_b32 s{s+3}, 0x20000")
        e("s_cmp_lt_u32 s3, 4")
        e("s_cbranch_scc1 L_A")

    def tr_addr(self, dst, base_imm=None, base_sreg=None, t0=None, t1=None, t2=None):
        e = self.e
        e(f"v_bfe_u32 v{t0}, v0, 2, 3")
        e(f"v_lshrrev_b32 v{t1}, 5, v0")
        e(f"v_lshlrev_b32 v{t1}, 10, v{t1}")
        e(f"v_lshl_add_u32 v{t1}, v{t0}, 7, v{t1}")
        e(f"v_and_b32 v{t2}, 3, v0")
        e(f"v_lshl_add_u32 v{t1}, v{t2}, 3, v{t1}")
        if base_imm:
            e(f"v_add_u32 v{t1}, {base_imm}, v{t1}")
        if base_sreg is not None:
            e(f"v_add_u32 v{t1}, s{base_sreg}, v{t1}")
        e(f"v_lshrrev_b32 v{t0}, 1, v{t0}")
        for u in range(4):
            e(f"v_xor_b32 v{t2}, {u}, v{t0}")
            e(f"v_lshl_add_u32 v{dst+u}, v{t2}, 5, v{t1}")

    A_P = 0
    A_S = 128
    A_T = 144
    A_KA = 160
    A_VA = 161
    A_OW = 165
    A_VX = 165
    A_VK = 166
    A_VV = 167
    A_NM = 168
    A_L = 170
    A_TS = 172
    A_ST = 175

    def barA_(self, name, times=1):
        if self.prof == 2:
            self.stamp(self.A_ST)
        self.e("s_barrier")
        self.barA.append(name)
        if self.prof != 2:
            self.stamp(self.A_ST)

    def k_read(self, f, slot, tile):
        s, mt = f >> 1, f & 1
        off = slot * KV_SLOT + tile * 16896 + mt * 8448 + s * 64
        self.e(f"ds_read_b128 {ar(64 + 4*(f % 4), 4)}, v{self.A_KA} offset:{off}")

    def v_read(self, f, slot, parts=(0, 1)):
        T, u = f >> 2, f & 3
        b = 64 + 4 * (f % 4)
        off = slot * KV_SLOT + T * 4096
        for t in parts:
            self.e(f"ds_read_b64_tr_b16 {ar(b+2*t,2)}, v{self.A_VA+u} offset:{off+2048*t}")

    def lane16(self, dst, jsh, qsh, base):
        e = self.e
        e(f"v_mbcnt_lo_u32_b32 v{dst}, -1, 0")
        e(f"v_mbcnt_hi_u32_b32 v{dst}, -1, v{dst}")
        e(f"s_lshr_b32 s{S_T0}, s{S_W}, 1")
        e(f"s_and_b32 s{S_T1}, s{S_W}, 1")
        e(f"s_lshl_b32 s{S_T0}, s{S_T0}, {jsh}")
        e(f"s_lshl_b32 s{S_T1}, s{S_T1}, {qsh}")
        e(f"s_add_u32 s{S_T0}, s{S_T0}, s{S_T1}")
        e(f"s_add_u32 s{S_T0}, s{S_T0}, {base}")
        e(f"v_lshl_add_u32 v{dst}, v{dst}, 4, s{S_T0}")

    def q_read(self):
        e = self.e
        qa = self.A_TS
        self.lane16(qa, 15, 13, W_BASE)
        for s in range(8):
            for cb in range(2):
                off = (s >> 2) * 16384 + cb * 4096 + (s & 3) * 1024
                e(f"ds_read_b128 {ar(8*s+4*cb,4)}, v{qa} offset:{off}")

    def dma_voffs(self, VX, VK, VV, VWO, VWQ, a):
        e = self.e
        b, c, d = a + 1, a + 2, a + 3
        e(f"v_lshrrev_b32 v{a}, 3, v0")
        e(f"v_bfe_u32 v{b}, v0, 4, 2")
        e(f"v_and_b32 v{c}, 7, v0")
        e(f"v_xor_b32 v{VX}, v{c}, v{b}")
        e(f"v_lshlrev_b32 v{VX}, 4, v{VX}")
        e(f"v_mul_u32_u24 v{d}, 896, v{a}")
        e(f"v_add_u32 v{VX}, v{VX}, v{d}")
        yield
        e(f"v_lshlrev_b32 v{b}, 1, v{b}")
        e(f"v_xor_b32 v{c}, v{c}, v{b}")
        e(f"v_lshlrev_b32 v{c}, 4, v{c}")
        if VWO is not None:
            e(f"v_add_u32 v{VWO}, v{c}, v{d}")
        if VV is not None:
            e(f"v_lshl_add_u32 v{VV}, v{a}, 11, v{c}")
        e(f"v_lshrrev_b32 v{b}, 5, v0")
        if VWQ is not None:
            e(f"v_and_b32 v{d}, 3, v{a}")
            e(f"v_lshl_add_u32 v{VWQ}, v{d}, 13, v{c}")
            e(f"v_lshl_add_u32 v{VWQ}, v{b}, 16, v{VWQ}")
        e(f"v_and_b32 v{c}, 31, v0")
        e(f"v_xor_b32 v{c}, v{c}, v{b}")
        e(f"v_lshlrev_b32 v{c}, 4, v{c}")
        e(f"v_lshl_add_u32 v{VK}, v{b}, 11, v{c}")
        yield

    def A_Hops(self, kind, slot, gs, gimm):
        e = self.e
        ops = []
        if self.noH or not self.hA:
            return [lambda pre: None]*8
        for k in range(8):
            def op(pre, k=k):
                if kind == 'K':
                    if pre:
                        e(f"s_add_u32 m0, s{S_KL}, {slot*KV_SLOT + k*1056}")
                        e(f"s_add_u32 s{S_T0}, s{gs}, {gimm + k*4096}")
                    else:
                        e(f"buffer_load_dwordx4 v{self.A_VK}, {sr(S_K,4)}, s{S_T0} offen nt lds")
                elif kind == 'V':
                    if pre:
                        if k % 4 == 0:
                            e(f"s_add_u32 m0, s{S_VL}, {slot*KV_SLOT + k*1024}")
                        e(f"s_add_u32 s{S_T0}, s{gs}, {gimm + k*16384 - (k % 4)*1024}")
                    else:
                        e(f"buffer_load_dwordx4 v{self.A_VV}, {sr(S_V,4)}, s{S_T0} offen offset:{(k%4)*1024} nt lds")
                else:
                    if pre:
                        if k:
                            e(f"s_add_u32 m0, m0, s{S_HM}")
                            e(f"s_add_u32 s{S_T1}, s{S_T1}, s{S_HGS}")
                    else:
                        e(f"buffer_load_dwordx4 v{self.A_NM}, {sr(S_HS,4)}, s{S_T1} offen nt lds")
            ops.append(op)
        return ops

    def xlane(self, op, x, t):
        e = self.e
        e(f"v_mov_b32 v{t}, v{x}")
        e("s_nop 1")
        e(f"v_permlane32_swap_b32 v{t}, v{x}")
        e("s_nop 1")
        e(f"{op} v{x}, v{x}, v{t}")
        e(f"v_mov_b32 v{t}, v{x}")
        e("s_nop 1")
        e(f"v_permlane16_swap_b32 v{t}, v{x}")
        e("s_nop 1")
        e(f"{op} v{x}, v{x}, v{t}")

    def tile_max(self, cb, dst, t):
        e = self.e
        S = self.A_S
        r = [S + 4*cb + k for k in range(4)] + [S + 8 + 4*cb + k for k in range(4)]
        e(f"v_max3_f32 v{dst}, v{r[0]}, v{r[1]}, v{r[2]}")
        e(f"v_max3_f32 v{dst}, v{dst}, v{r[3]}, v{r[4]}")
        e(f"v_max3_f32 v{dst}, v{dst}, v{r[5]}, v{r[6]}")
        e(f"v_max_f32 v{dst}, v{dst}, v{r[7]}")
        self.xlane("v_max_f32", dst, t)

    def softmax(self, T):
        e = self.e
        S, TT, P = self.A_S, self.A_T, self.A_P
        if T == 0:
            for cb in range(2):
                self.tile_max(cb, TT + cb, TT + 2)
                e(f"v_mul_f32 v{self.A_NM+cb}, s{S_C}, v{TT+cb}")
                e(f"v_sub_f32 v{self.A_NM+cb}, 0, v{self.A_NM+cb}")
                e(f"v_mov_b32 v{self.A_L+cb}, 0")
        e.lab(f"L_sm{T}")
        groups = [(0, 0), (0, 1), (1, 0), (1, 1)]
        def fma(gi):
            mt, cb = groups[gi]
            for r in range(4):
                e(f"v_fma_f32 v{TT+4*gi+r}, v{S+8*mt+4*cb+r}, s{S_C}, v{self.A_NM+cb}")
        def exp(gi):
            for r in range(4):
                e(f"v_exp_f32 v{TT+4*gi+r}, v{TT+4*gi+r}")
        def fin(gi):
            mt, cb = groups[gi]
            t = TT + 4*gi
            ts = self.A_TS + cb
            if mt == 0:
                e(f"v_add_f32 v{ts}, v{t}, v{t+1}")
            else:
                e(f"v_add_f32 v{ts}, v{ts}, v{t}")
                e(f"v_add_f32 v{ts}, v{ts}, v{t+1}")
            e(f"v_cvt_pk_bf16_f32 v{P+8*T+4*cb+2*mt}, v{t}, v{t+1}")
            e(f"v_add_f32 v{ts}, v{ts}, v{t+2}")
            e(f"v_cvt_pk_bf16_f32 v{P+8*T+4*cb+2*mt+1}, v{t+2}, v{t+3}")
            e(f"v_add_f32 v{ts}, v{ts}, v{t+3}")
        fma(0); fma(1); exp(0); fma(2); exp(1); fma(3); fin(0); exp(2); fin(1); exp(3); fin(2); fin(3)
        if T > 0:
            e(f"v_max_f32 v{TT}, v{self.A_TS}, v{self.A_TS+1}")
            e(f"v_cmp_lt_f32 vcc, s{S_THR}, v{TT}")
            e("s_nop 0")
            e(f"s_cbranch_vccz L_ok{T}")
            e(f"s_call_b64 {sr(S_RET,2)}, L_rescale")
            e(f"s_branch L_sm{T}")
            e.lab(f"L_ok{T}")
            e(f"s_mov_b32 s{S_THR}, 0x47800000")
        for cb in range(2):
            e(f"v_add_f32 v{self.A_L+cb}, v{self.A_L+cb}, v{self.A_TS+cb}")

    def rescale_routine(self):
        e = self.e
        TT, P = self.A_T, self.A_P
        e.lab("L_rescale")
        for cb in range(2):
            self.tile_max(cb, TT, TT + 2)
            e(f"v_fma_f32 v{TT}, v{TT}, s{S_C}, v{self.A_NM+cb}")
            e(f"v_ceil_f32 v{TT}, v{TT}")
            e(f"v_max_f32 v{TT}, 0, v{TT}")
            e(f"v_sub_f32 v{self.A_NM+cb}, v{self.A_NM+cb}, v{TT}")
            e(f"v_min_f32 v{TT}, 0x43800000, v{TT}")
            e(f"v_cvt_i32_f32 v{TT}, v{TT}")
            e(f"v_sub_u32 v{TT}, 0, v{TT}")
            e(f"v_ldexp_f32 v{self.A_L+cb}, v{self.A_L+cb}, v{TT}")
            for T in range(16):
                for k in range(4):
                    r = P + 8*T + 4*cb + k
                    e(f"v_lshlrev_b32 v{TT+4}, 16, v{r}")
                    e(f"v_and_b32 v{TT+5}, 0xffff0000, v{r}")
                    e(f"v_ldexp_f32 v{TT+4}, v{TT+4}, v{TT}")
                    e(f"v_ldexp_f32 v{TT+5}, v{TT+5}, v{TT}")
                    e(f"v_cvt_pk_bf16_f32 v{r}, v{TT+4}, v{TT+5}")
        e(f"s_mov_b32 s{S_THR}, 0x7f800000")
        e(f"s_setpc_b64 {sr(S_RET,2)}")

    def streamA(self):
        e = self.e
        KA, VA, OW = self.A_KA, self.A_VA, self.A_OW
        self.stamp(self.A_ST)
        if self.prioA:
            e(f"s_setprio {self.prioA}")
        t = self.A_T
        self.stouch_wq(0, 0, 56, 1)
        a, b, c = t + 4, t + 5, t + 6
        e(f"v_bfe_u32 v{a}, v0, 1, 3")
        e(f"v_mul_u32_u24 v{KA}, 1056, v{a}")
        e(f"v_and_b32 v{a}, 1, v0")
        e(f"v_lshl_add_u32 v{KA}, v{a}, 9, v{KA}")
        e(f"v_lshrrev_b32 v{b}, 4, v0")
        e(f"v_xor_b32 v{b}, v{b}, v{a}")
        e(f"v_lshl_add_u32 v{KA}, v{b}, 4, v{KA}")
        self.tr_addr(VA, t0=a, t1=b, t2=c)
        for _ in self.dma_voffs(self.A_VX, self.A_VK, self.A_VV, None, None, t + 8):
            pass
        e(f"s_lshl_b32 s{S_HK}, s{S_W}, 15")
        e(f"s_lshl_b32 s{S_HV}, s{S_W}, 9")
        e(f"s_mul_i32 s{S_KL}, s{S_W}, {8*1056}")
        e(f"s_lshl_b32 s{S_VL}, s{S_W}, 13")
        e(f"s_mul_i32 s{S_XLDS}, s{S_W}, {2*1088}")
        e(f"s_mul_i32 s{S_XG}, s{S_W}, {16*896}")
        e(f"s_mov_b32 s{S_C}, 0x3db8aa3b")
        e(f"s_mov_b32 s{S_THR}, 0x47800000")
        e(f"s_mov_b32 s{S_ITEM}, 0")
        self.stouch_wq(1, 0, self.pre1, 1)
        self.barA_("HB")
        self.stouch_wq(1, self.pre1, 56, 1)
        self.stouch_wo(0, 0, 56)
        self.stouch_wo(1, 0, self.wo1A)

        self.barA_("QB1")
        self.q_read()
        e("s_waitcnt lgkmcnt(0)")
        self.barA_("KV0")
        for f in range(3):
            self.k_read(f, 0, 0)
        barA_pre = list(self.barA)
        self.barA = []
        e.lab("L_item")
        if self.dyn:
            e(f"s_setprio {self.prioA}")
        S = self.A_S
        for T in range(16):
            slot, tile = (T >> 1) & 1, T & 1
            ph = T >> 1
            hops = []
            if tile == 0:
                hops = self.A_Hops('K', slot ^ 1, S_HK, ((ph + 1) >> 2)*131072 + ((ph + 1) & 3)*512) if ph < 7 else self.A_Hops('V', 0, S_HV, 0)
            e("s_waitcnt lgkmcnt(2)" if T else ("s_waitcnt lgkmcnt(2)"))
            for f in range(16):
                s, mt = f >> 1, f & 1
                d0, d1 = vr(S + 8*mt, 4), vr(S + 8*mt + 4, 4)
                if hops and f % 2 == 0:
                    hops[f >> 1](True)
                if not self.noAm:
                    e(f"v_mfma_f32_16x16x32_bf16 {d0}, {ar(64+4*(f%4),4)}, {ar(8*s,4)}, {d0 if s else 0}")
                if f + 3 < 16:
                    self.k_read(f + 3, slot, tile)
                elif tile == 0:
                    self.k_read(f + 3 - 16, slot, 1)
                if not self.noAm:
                    e(f"v_mfma_f32_16x16x32_bf16 {d1}, {ar(64+4*(f%4),4)}, {ar(8*s+4,4)}, {d1 if s else 0}")
                if hops and f % 2 == 0:
                    hops[f >> 1](False)
                if (T, f) == self.obk:
                    e(f"s_cmp_eq_u32 s{S_ITEM}, 0")
                    e("s_cbranch_scc1 L_nobk")
                    e("s_barrier")
                    self.stamp(self.A_ST)
                    e.lab("L_nobk")
                if f < 15:
                    n_out = 2 if (tile == 0 or f + 3 < 16) else 14 - f
                    if tile == 1 and f == 14:
                        e("s_waitcnt vmcnt(0) lgkmcnt(0)" if self.hA else "s_waitcnt lgkmcnt(0)")
                        self.barA_("KV")
                        for g in range(3):
                            if T < 15:
                                self.k_read(g, slot ^ 1, 0)
                            else:
                                self.v_read(g, 0)
                    else:
                        e(f"s_waitcnt lgkmcnt({n_out})")
            if tile == 0 and ph < 7 and self.hA:
                e(f"s_cmp_eq_u32 s{S_ITEM}, 0")
                e(f"s_cbranch_scc0 L_nox{ph}")
                for k in range(2):
                    e(f"s_add_u32 m0, s{S_XLDS}, {self.xloc(1, ph) + k*1088}")
                    e(f"s_add_u32 s{S_T0}, s{S_XG}, {k*7168 + ph*128}")
                    e(f"buffer_load_dwordx4 v{self.A_VX}, {sr(S_X,4)}, s{S_T0} offen lds")
                if ph == 0:
                    e("s_barrier")
                    self.stamp(self.A_ST)
                e.lab(f"L_nox{ph}")
            if self.dyn:
                e("s_setprio 0")
            e("s_nop 1" if T else "s_nop 7")
            if not self.noSM:
                self.softmax(T)
            if self.dyn and T < 15:
                e(f"s_setprio {self.prioA}")
        TT = self.A_T
        for cb in range(2):
            self.xlane("v_add_f32", self.A_L + cb, TT)
            e(f"v_rcp_f32 v{self.A_L+cb}, v{self.A_L+cb}")
        self.lane16(OW, 13, 11, XO_BASE)
        barA_K = list(self.barA)
        self.barA = []
        e(f"s_mov_b32 s{S_CH}, 0")
        e(f"s_mov_b32 s{S_HVC}, s{S_HV}")
        e.lab("L_chunk")
        if self.dyn:
            e(f"s_setprio {self.prioA}")
        O = self.A_S
        for half in range(2):
            if half == 1:
                e(f"s_or_b32 s{S_T0}, s{S_ITEM}, s{S_CH}")
                e(f"s_cbranch_scc1 L_noq2")
                self.q_read()
                e.lab("L_noq2")
                if self.hA:
                    e(f"s_movk_i32 s{S_HM}, 1024")
                    e(f"s_movk_i32 s{S_HGS}, 16384")
                    e(f"s_cmp_eq_u32 s{S_CH}, 3")
                    e(f"s_cselect_b64 {sr(S_HS,2)}, {sr(S_K,2)}, {sr(S_V,2)}")
                    e(f"s_cselect_b32 s{S_HM}, 1056, s{S_HM}")
                    e(f"s_cselect_b32 s{S_HGS}, 4096, s{S_HGS}")
                    e(f"s_cselect_b32 m0, s{S_KL}, s{S_VL}")
                    e(f"s_cselect_b64 vcc, -1, 0")
                    e(f"s_add_u32 s{S_T0}, s{S_HK}, 262144")
                    e(f"s_add_u32 s{S_T1}, s{S_HVC}, 128")
                    e(f"v_cndmask_b32 v{self.A_NM}, v{self.A_VV}, v{self.A_VK}, vcc")
                    e(f"s_cmp_eq_u32 s{S_CH}, 3")
                    e(f"s_cselect_b32 s{S_T1}, s{S_T0}, s{S_T1}")
                    e(f"s_mov_b32 s{S_HS+2}, 524288")
                    e(f"s_mov_b32 s{S_HS+3}, 0x20000")
                hops = self.A_Hops('G', 0, None, None)
            else:
                hops = self.A_Hops('V', 1, S_HVC, 131072)
            e("s_waitcnt lgkmcnt(4)")
            for f in range(32):
                T, u = f >> 2, f & 3
                Tg = 8*half + T
                d0, d1 = vr(O + 8*u, 4), vr(O + 8*u + 4, 4)
                if f < 16 and f % 2 == 0:
                    hops[f >> 1](True)
                if not self.noAm:
                    e(f"v_mfma_f32_16x16x32_bf16 {d0}, {ar(64+4*(f%4),4)}, {vr(self.A_P+8*Tg,4)}, {d0 if Tg else 0}")
                if f + 3 < 32:
                    self.v_read(f + 3, half, (0,))
                if not self.noAm:
                    e(f"v_mfma_f32_16x16x32_bf16 {d1}, {ar(64+4*(f%4),4)}, {vr(self.A_P+8*Tg+4,4)}, {d1 if Tg else 0}")
                if f + 3 < 32:
                    self.v_read(f + 3, half, (1,))
                if f < 16 and f % 2 == 0:
                    hops[f >> 1](False)
                if half == 0 and f == self.obf:
                    e(f"s_cmp_eq_u32 s{S_CH}, 0")
                    e("s_cbranch_scc1 L_nobv")
                    self.stamp(self.A_ST, '@')
                    e("s_barrier")
                    self.stamp(self.A_ST, '@')
                    self.stamp(self.A_ST)
                    e.lab("L_nobv")
                if half == 1 and f == (15 if self.hA else 4):
                    e(f"s_cmp_eq_u32 s{S_CH}, 0")
                    e("s_cbranch_scc0 L_nqb")
                    e("s_barrier")
                    self.stamp(self.A_ST)
                    e.lab("L_nqb")
                if f == 30:
                    e("s_waitcnt vmcnt(0) lgkmcnt(0)" if self.hA else "s_waitcnt lgkmcnt(0)")
                    self.stamp(self.A_ST, '@')
                    self.barA_("KV")
                    self.stamp(self.A_ST, '@')
                    if half == 0:
                        for g in range(3):
                            self.v_read(g, 1)
                    else:
                        e(f"s_cmp_eq_u32 s{S_CH}, 3")
                        e("s_cbranch_scc1 L_nk")
                        for g in range(3):
                            self.v_read(g, 0)
                        e("s_branch L_nk2")
                        e.lab("L_nk")
                        for g in range(3):
                            self.k_read(g, 0, 0)
                        e.lab("L_nk2")
                elif f < 30:
                    e(f"s_waitcnt lgkmcnt({2*min(2, 30 - f)})")
        if self.dyn:
            e("s_setprio 0")
        e("s_nop 7")
        for u in range(4):
            for cb in range(2):
                for r in range(4):
                    x = O + 8*u + 4*cb + r
                    e(f"v_mul_f32 v{x}, v{x}, v{self.A_L+cb}")
        for u2 in range(2):
            for cb in range(2):
                d = O + 16*u2 + 4*cb
                s1 = d + 8
                e(f"v_cvt_pk_bf16_f32 v{d}, v{d}, v{d+1}")
                e(f"v_cvt_pk_bf16_f32 v{d+1}, v{d+2}, v{d+3}")
                e(f"v_cvt_pk_bf16_f32 v{d+2}, v{s1}, v{s1+1}")
                e(f"v_cvt_pk_bf16_f32 v{d+3}, v{s1+2}, v{s1+3}")
                e(f"ds_write_b128 v{OW}, {vr(d,4)} offset:{u2*4096 + cb*1024}")
        barA_C = list(self.barA)
        e(f"s_add_u32 s{S_HVC}, s{S_HVC}, 128")
        e(f"s_add_u32 s{S_CH}, s{S_CH}, 1")
        e(f"s_cmp_lt_u32 s{S_CH}, 4")
        e("s_cbranch_scc1 L_chunk")
        e(f"s_add_u32 s{S_HK}, s{S_HK}, 262144")
        e(f"s_add_u32 s{S_HV}, s{S_HV}, 262144")
        e(f"s_add_u32 s{S_ITEM}, s{S_ITEM}, 1")
        e(f"s_cmp_lt_u32 s{S_ITEM}, 2")
        e("s_cbranch_scc1 L_item")
        seq = list(barA_pre)
        for it in range(2):
            seq += (["HX"] if it == 0 and self.hA else []) + (["OB"] if it == 1 else []) + barA_K
            for c in range(4):
                x = list(barA_C)
                if c == 0:
                    x.insert(1, "QB2")
                else:
                    x.insert(0, "OB")
                seq += x
        e("s_waitcnt lgkmcnt(0)")
        self.barA_("OB")
        self.barA = seq + ["OB"]
        if self.prof:
            self.stamp(self.A_ST)
            e(f"s_cmp_eq_u32 s{S_W}, 0")
            e("s_cbranch_scc0 L_end")
            self.prof_store(self.A_ST, 0, 0)
        e("s_endpgm")
        self.rescale_routine()

    def prof_store(self, vreg, role, tmp):
        e = self.e
        e(f"v_mbcnt_lo_u32_b32 v{tmp}, -1, 0")
        e(f"v_mbcnt_hi_u32_b32 v{tmp}, -1, v{tmp}")
        e(f"v_lshlrev_b32 v{tmp}, 2, v{tmp}")
        e(f"s_lshl_b32 s{S_T0}, s{S_WG}, 9")
        e(f"s_add_u32 s{S_T0}, s{S_T0}, {0x3000000 + role*256}")
        e(f"buffer_store_dword v{vreg}, v{tmp}, {sr(S_WS,4)}, s{S_T0} offen")
        e(f"s_add_u32 s{S_T0}, s{S_T0}, 0x200000")
        e(f"buffer_store_dword v{self.st2[vreg]}, v{tmp}, {sr(S_WS,4)}, s{S_T0} offen")
        e("s_waitcnt vmcnt(0)")

    def stouch_wq(self, item, k0, k1, step):
        e = self.e
        e(f"s_lshl_b32 s{S_T0}, s{S_W}, 14")
        e(f"s_lshr_b32 s{S_T1}, s{S_B}, 4")
        e(f"s_lshl_b32 s{S_T1}, s{S_T1}, 13")
        e(f"s_add_u32 s{S_T0}, s{S_T0}, s{S_T1}")
        e(f"s_and_b32 s{S_T1}, s{S_B}, 15")
        e(f"s_lshl_b32 s{S_T1}, s{S_T1}, 6")
        e(f"s_add_u32 s{S_T0}, s{S_T0}, s{S_T1}")
        cur = 0
        for k in range(k0, k1, step):
            if k // 8 != cur:
                e(f"s_add_u32 s{S_T0}, s{S_T0}, {(k // 8 - cur)*8*65536}")
                cur = k // 8
            e(f"s_buffer_load_dword s{S_JUNK + k % 4}, {sr(S_WQ,4)}, s{S_T0} offset:{(k % 8)*65536 + item*1024}")

    def stouch_wo(self, item, k0, k1):
        e = self.e
        e(f"s_lshl_b32 s{S_T0}, s{S_W}, 11")
        e(f"s_lshl_b32 s{S_T1}, s{S_B}, 6")
        e(f"s_add_u32 s{S_T0}, s{S_T0}, s{S_T1}")
        for k in range(k0, k1):
            e(f"s_buffer_load_dword s{S_JUNK + k % 4}, {sr(S_WO,4)}, s{S_T0} offset:{k*8192 + item*458752}")

    B_OR = 128
    B_TMP = 132
    B_BF = 32
    B_WT = 160
    B_XR = 164
    B_XR0 = 165
    B_VWQ = 166
    B_VWO = 167
    B_VV = 168
    B_VK = 169
    B_VX = 170
    B_QW = 171
    B_LANE = 172
    B_FIN, B_FOUT, B_FAI, B_FAO = 148, 149, 150, 151
    B_VWQ4 = 152
    B_VWO4 = 156
    B_ST = 175

    def setupB(self):
        e = self.e
        e(f"s_mul_i32 s{S_XLDS}, s{S_W}, {2*1088}")
        e(f"s_mul_i32 s{S_XG}, s{S_W}, {16*896}")
        g = self.dma_voffs(self.B_VX, self.B_VK, self.B_VV, self.B_VWO4, self.B_VWQ4, self.B_TMP)
        next(g)
        e(f"v_and_b32 v{self.B_FAO}, 3, v0")
        e(f"v_lshlrev_b32 v{self.B_FAI}, 2, v{self.B_FAO}")
        e(f"s_lshl_b32 s{S_T0}, s{S_WG}, 7")
        e(f"s_add_u32 s{S_T0}, s{S_T0}, {FLAG_BASE}")
        e(f"v_add_u32 v{self.B_FAI}, s{S_T0}, v{self.B_FAI}")
        e(f"s_mul_i32 s{S_T1}, s{S_P}, 124")
        e(f"s_sub_u32 s{S_T0}, s{S_T0}, s{S_T1}")
        e(f"v_lshl_add_u32 v{self.B_FAO}, v{self.B_FAO}, 7, s{S_T0}")
        e(f"buffer_load_dword v{self.B_FIN}, v{self.B_FAI}, {sr(S_WS,4)}, 0 offen sc1")
        e(f"buffer_load_dword v{self.B_FOUT}, v{self.B_FAO}, {sr(S_WS,4)}, 0 offen sc1")
        self.vmq += ["F", "F"]
        for xp in range(7):
            for op in self.X_ops(xp, self.xloc(0, xp), "X0"):
                op()
        e(f"s_lshl_b32 s{S_WLDS}, s{S_W}, 14")
        e(f"s_add_u32 s{S_WLDS}, s{S_WLDS}, {W_BASE}")
        e(f"s_lshl_b32 s{S_WCOL}, s{S_W}, 8")
        e(f"s_mul_i32 s{S_KLDS}, s{S_W}, {8*1056}")
        e(f"s_lshl_b32 s{S_KG}, s{S_W}, 15")
        e(f"s_lshl_b32 s{S_VG}, s{S_W}, 9")
        e(f"s_lshl_b32 s{S_VLB}, s{S_W}, 13")
        next(g)
        for pc in range(1, 4):
            e(f"v_add_u32 v{self.B_VWQ4+pc}, {(16*(pc & 1) + 4*(pc >> 1))*8192 - 1024*pc}, v{self.B_VWQ4}")

    def setupB2(self):
        e = self.e
        a, b, c = self.B_TMP, self.B_TMP + 1, self.B_TMP + 2
        self.tr_addr(self.B_WT, base_sreg=S_WLDS, t0=a, t1=b, t2=c)
        e(f"v_bfe_u32 v{a}, v0, 3, 1")
        e(f"v_mul_u32_u24 v{self.B_XR0}, 1088, v{a}")
        e(f"v_and_b32 v{a}, 7, v0")
        e(f"v_lshl_add_u32 v{self.B_XR0}, v{a}, 7, v{self.B_XR0}")
        e(f"v_lshrrev_b32 v{a}, 1, v{a}")
        e(f"v_lshrrev_b32 v{b}, 4, v0")
        e(f"v_xor_b32 v{a}, v{a}, v{b}")
        e(f"v_lshl_add_u32 v{self.B_XR0}, v{a}, 4, v{self.B_XR0}")
        e(f"v_add_u32 v{self.B_XR}, {XO_BASE}, v{self.B_XR0}")
        e(f"v_add_u32 v{self.B_XR0}, {KV_SLOT}, v{self.B_XR0}")
        for rb in range(4):
            e(f"s_add_u32 s{S_T0}, s{S_P}, {rb}")
            e(f"s_and_b32 s{S_T0}, s{S_T0}, 3")
            e(f"s_lshl_b32 s{S_T0}, s{S_T0}, 10")
            e(f"s_add_u32 s{S_T0}, s{S_T0}, {XO_BASE}")
            e(f"v_lshl_add_u32 v{self.B_OR+rb}, v0, 4, s{S_T0}")
        e(f"v_lshrrev_b32 v{a}, 5, v0")
        e(f"v_lshlrev_b32 v{a}, 8, v{a}")
        e(f"v_and_b32 v{b}, 15, v0")
        e(f"v_lshl_add_u32 v{a}, v{b}, 4, v{a}")
        e(f"v_bfe_u32 v{b}, v0, 4, 1")
        e(f"v_lshl_add_u32 v{a}, v{b}, 3, v{a}")
        e(f"v_add_u32 v{self.B_QW}, s{S_WLDS}, v{a}")
        e(f"v_mov_b32 v{self.B_LANE}, v0")
        for pc in range(1, 4):
            e(f"v_add_u32 v{self.B_VWO4+pc}, {(16*(pc >> 1) + 8*(pc & 1))*896 - 1024*pc}, v{self.B_VWO4}")

    def xloc(self, item, xp):
        if item == 1:
            return XO_BASE + (xp & 1) * X_SLOT
        if xp < 5:
            return KV_SLOT + xp * X_SLOT
        return XO_BASE + (xp - 5) * X_SLOT

    def dma(self, lds_s, lds_imm, g_s, g_imm, vaddr, srd, tag, nt=False):
        def emit():
            e = self.e
            e(f"s_add_u32 m0, s{lds_s}, {lds_imm}")
            e(f"s_add_u32 s{S_T0}, s{g_s}, {g_imm}")
            e(f"buffer_load_dwordx4 v{vaddr}, {sr(srd,4)}, s{S_T0} offen{' nt' if nt else ''} lds")
            self.vmq.append(tag)
        return emit

    def H_ops(self, n):
        item, ph = n >> 4, n & 15
        slot = n & 1
        ops = []
        if self.noH:
            return ops
        for k in range(8):
            if ph < 8:
                ops.append(self.dma(S_KLDS, slot*KV_SLOT + k*1056, S_KG, item*262144 + (ph >> 2)*131072 + (ph & 3)*512 + k*4096,
                                    self.B_VK, S_K, f"H{n}", nt=True))
            else:
                c, half = (ph - 8) >> 1, ph & 1
                ops.append(self.dma(S_VLB, slot*KV_SLOT + k*1024, S_VG, item*262144 + half*131072 + k*16384 + c*128,
                                    self.B_VV, S_V, f"H{n}", nt=True))
        return ops

    def X_ops(self, xp, loc, tag):
        return [self.dma(S_XLDS, loc + k*1088, S_XG, k*7168 + xp*128, self.B_VX, S_X, tag, nt=self.xnt) for k in range(2)]

    def W_ops(self, wd, hs):
        ks, cbk = hs >> 1, hs & 1
        ops = []
        if self.noW and wd[:2] != ('Q', 0):
            return ops
        if wd[0] == 'Q':
            _, item, xp = wd
            g = 32*(2*xp + ks)*8192 + item*1024 + cbk*128
            vb, srd = self.B_VWQ4, S_WQ
        else:
            _, item, c, j = wd
            g = (item*512 + 256*j + 64*c + 32*ks)*896 + cbk*128
            vb, srd = self.B_VWO4, S_WO
        for pc in range(4):
            def emit(pc=pc):
                e = self.e
                if pc == 0:
                    e(f"s_add_u32 m0, s{S_WLDS}, {hs*4096}")
                    e(f"s_add_u32 s{S_T0}, s{S_WCOL}, {g}")
                e(f"buffer_load_dwordx4 v{vb+pc}, {sr(srd,4)}, s{S_T0} offen offset:{pc*1024} lds")
                self.vmq.append((wd, hs))
            ops.append(emit)
        return ops

    def vmwait(self, need, extra=""):
        idx = -1
        for i, t in enumerate(self.vmq):
            if t in need:
                idx = i
        if idx < 0:
            if extra:
                self.e(f"s_waitcnt {extra}")
            return
        n = len(self.vmq) - 1 - idx
        assert n <= 63, n
        self.e(f"s_waitcnt vmcnt({n}) {extra}".rstrip())
        self.vmq = self.vmq[idx+1:]

    def barB_(self, name):
        sel = 10 <= self.curn <= 16 or 26 <= self.curn <= 32
        if sel:
            self.stamp(self.B_ST, f"@a{name}{self.curn}")
        self.e("s_barrier")
        if sel:
            self.stamp(self.B_ST, f"@{name}{self.curn}")
        self.barB[self.path].append(name)
        if self.prof != 2 or self.curn in self.fine or self.curn - 1 in self.fine:
            self.stamp(self.B_ST, name + str(self.curn))

    def hs_list(self, wd):
        if wd[0] == 'O' and self.path == 'w3':
            return [0, 2]
        return [0, 1, 2, 3]

    def bf_reads(self, wd, hs):
        ks = hs >> 1
        e = self.e
        ops = []
        for cb4 in range(4):
            d = ar(self.B_BF + 16*ks + 4*cb4, 4)
            if wd[0] == 'Q':
                loc = self.xloc(wd[1], wd[2])
                reg = self.B_XR if loc >= XO_BASE else self.B_XR0
                off = (loc - XO_BASE if loc >= XO_BASE else loc - KV_SLOT) + cb4*2176 + ks*64
            else:
                reg = self.B_OR + cb4
                off = (2*wd[3] + ks)*4096
            ops.append(lambda d=d, off=off, reg=reg: e(f"ds_read_b128 {d}, v{reg} offset:{off}"))
        return ops

    def w_reads(self, hs, i):
        e = self.e
        ops = []
        for u in range(4):
            for t in range(2):
                d = ar(16*(i & 1) + 4*u + 2*t, 2)
                off = hs*4096 + t*2048
                ops.append(lambda d=d, off=off, u=u: e(f"ds_read_b64_tr_b16 {d}, v{self.B_WT+u} offset:{off}"))
        return ops

    @staticmethod
    def needs_ob(st):
        wd, hs = st
        return wd[0] == 'O' and wd[3] == 0 and hs == 0

    @staticmethod
    def bf_preloaded(st):
        wd, hs = st
        return wd[0] == 'O' and wd[3] == 1 and hs == 2

    def run_steps(self, steps, per_step, after=None, upfront=()):
        e = self.e
        if self.boost:
            e(f"s_setprio {self.boost}")
        self.vmwait([steps[0]])
        for op in self.w_reads(steps[0][1], 0):
            op()
        if self.needs_ob(steps[0]):
            for op in upfront:
                op()
            upfront = ()
            self.barB_("OB")
        if not self.bf_preloaded(steps[0]):
            for op in self.bf_reads(*steps[0]):
                op()
        for op in upfront:
            op()
        if self.boost:
            e(f"s_setprio {self.prioB}")
        for i, (wd, hs) in enumerate(steps):
            ks, cbk = hs >> 1, hs & 1
            others = []
            nx = steps[i+1] if i + 1 < len(steps) else None
            if nx:
                self.vmwait([nx], "lgkmcnt(0)")
                if (nx[1] & 1) == 0 and not self.needs_ob(nx):
                    others += self.bf_reads(*nx)
                others += self.w_reads(nx[1], i + 1)
            else:
                e("s_waitcnt lgkmcnt(0)")
                if after is not None and self.bf_preloaded(after):
                    others += self.bf_reads(*after)
            if self.prof == 2 and self.curn in self.fine:
                self.stamp(self.B_ST, f"s{i}")
            others += per_step(i)
            zero = ks == 0 and ((wd[0] == 'Q' and wd[2] == 0) or wd == ('O', 0, 0, 0))
            k = 0
            for u in range(4):
                for cb4 in range(4):
                    d = vr(64*cbk + 16*u + 4*cb4, 4)
                    if not (self.noBm and wd[:2] != ('Q', 0)):
                        e(f"v_mfma_f32_16x16x32_bf16 {d}, {ar(16*(i&1)+4*u,4)}, {ar(self.B_BF+16*ks+4*cb4,4)}, {0 if zero else d}")
                    if k < len(others):
                        others[k](); k += 1
            while k < len(others):
                others[k](); k += 1
            if nx and self.needs_ob(nx):
                if self.boost:
                    e(f"s_setprio {self.boost}")
                self.barB_("OB")
                for op in self.bf_reads(*nx):
                    op()
                if self.boost:
                    e(f"s_setprio {self.prioB}")
        if after is not None and self.bf_preloaded(after):
            e("s_waitcnt lgkmcnt(0)")

    def q_write(self):
        e = self.e
        t = self.B_TMP
        e("s_nop 7")
        n = 0
        for cbk in range(2):
            for u in range(4):
                for cb4 in range(4):
                    a = 64*cbk + 16*u + 4*cb4
                    d = t + 2*(n % 8); n += 1
                    e(f"v_cvt_pk_bf16_f32 v{d}, v{a}, v{a+1}")
                    e(f"v_cvt_pk_bf16_f32 v{d+1}, v{a+2}, v{a+3}")
                    off = (cb4*4 + 2*cbk + (u >> 1))*1024 + (u & 1)*512
                    e(f"ds_write_b64 v{self.B_QW}, {vr(d,2)} offset:{off}")
        e("s_waitcnt lgkmcnt(0)")

    def sched(self, n):
        cbks = (0,) if self.path == 'w3' else (0, 1)
        if 1 <= n <= 7:
            return [(('Q', 1, n - 1), hs) for hs in range(4)]
        r = []
        for item, base in ((0, 10), (1, 26)):
            for kap in range(16):
                per = base + (kap + self.shift) // 2
                if min(per, 32) == n:
                    r += [(('O', item, kap >> 2, (kap >> 1) & 1), 2*(kap & 1) + cbk) for cbk in cbks]
        return r

    def periodB(self, n):
        e = self.e
        self.curn = n
        steps = self.sched(n)
        nxt = self.sched(n + 1) if n < 32 else []
        self.vmwait([f"H{n}", f"X1_{n-1}"])
        self.barB_("KV0" if n == 0 else "KV")
        if n == 0 and self.hA:
            self.barB_("HX")
        hx = []
        if not self.hA:
            if n + 1 <= 31:
                hx += self.H_ops(n + 1)
            if n <= 6:
                hx += self.X_ops(n, self.xloc(1, n), f"X1_{n}")
        if not steps:
            for op in hx:
                op()
        if n == 8:
            self.q_write()
        if n in (9, 25):
            self.barB_("QB2")
        if 19 <= n <= 24:
            ks = [self.wo1A + ((56 - self.wo1A)*k)//6 for k in range(7)]
            self.stouch_wo(1, ks[n - 19], ks[n - 18])
        if n == 31:
            nxt_load = nxt[:len({hs for _, hs in nxt})]
        else:
            nxt_load = nxt
        todo = list(nxt_load)
        if steps:
            early = [self.nearlyQ if steps[0][0][0] == 'Q' else self.nearlyO]
            def per(i):
                if n == 32:
                    rest = [st for st in steps[i+1:] if st[1] == steps[i][1]]
                    return self.W_ops(*rest[0]) if rest else []
                free = {hs for _, hs in steps[:i+1-self.lag]} | ({0, 1, 2, 3} - {hs for _, hs in steps})
                r = []
                if inter and i < 2:
                    nh = (len(hx) + 1)//2 if (i == 0 and len(steps) > 2) else len(hx)
                    r += hx[:nh]
                    del hx[:nh]
                while todo and todo[0][1] in free and (early[0] > 0 or i >= self.rin):
                    r += self.W_ops(*todo.pop(0))
                    early[0] -= 1
                return r
            inter = self.hint and self.bf_preloaded(steps[0])
            self.run_steps(steps, per, nxt[0] if nxt else None, [] if inter else hx)
        if self.prof == 2 and self.curn in self.fine:
            self.stamp(self.B_ST, "E")
        for st in todo:
            for op in self.W_ops(*st):
                op()
        if self.prof == 2 and self.curn in self.fine:
            self.stamp(self.B_ST, "P")

    def epilogue_v1(self):
        e = self.e
        t = self.B_TMP
        e("s_nop 7")
        e(f"v_lshlrev_b32 v{t}, 4, v{self.B_LANE}")
        e(f"s_lshl_b32 s{S_T1}, s{S_WG}, 17")
        e(f"s_lshl_b32 s{S_T0}, s{S_W}, 15")
        e(f"s_add_u32 s{S_T1}, s{S_T1}, s{S_T0}")
        for cbk in range(1 if self.path == 'w3' else 2):
            for u in range(4):
                e(f"s_add_u32 s{S_T0}, s{S_T1}, {(cbk*4+u)*4096}")
                for cb4 in range(4):
                    e(f"buffer_store_dwordx4 {vr(64*cbk+16*u+4*cb4,4)}, v{t}, {sr(S_WS,4)}, s{S_T0} offen offset:{cb4*1024}")

    def epilogue_fused(self):
        e = self.e
        t = self.B_TMP
        L16, OA = t, t + 1
        D = t + 4
        ncbk = 1 if self.path == 'w3' else 2
        sfx = self.path
        fl = self.pfl
        slot = 32768 if self.f32 else 16384
        wsz = slot // 4
        self.stamp(self.B_ST)
        e(f"v_lshlrev_b32 v{L16}, 4, v{self.B_LANE}")
        e(f"s_and_b32 s{S_T1}, s{S_WG}, 0xfc")
        e(f"s_mul_i32 s{S_T1}, s{S_T1}, {4*slot}")
        e(f"s_mul_i32 s{S_T0}, s{S_W}, {wsz}")
        e(f"s_add_u32 s{S_T1}, s{S_T1}, s{S_T0}")
        e(f"s_mul_i32 s2, s{S_P}, {slot}")
        e(f"s_add_u32 s2, s2, s{S_T1}")
        e("s_nop 1")
        n = 0
        for rb in (1, 2, 3):
            e(f"s_add_u32 s{S_T0}, s{S_P}, {rb}")
            e(f"s_and_b32 s{S_T0}, s{S_T0}, 3")
            e(f"s_mul_i32 s{S_T0}, s{S_T0}, {4*slot}")
            e(f"s_add_u32 s{S_T0}, s{S_T0}, s2")
            for cbk in range(ncbk):
                if self.f32:
                    if cbk:
                        e(f"s_add_u32 s{S_T0}, s{S_T0}, 4096")
                    for u in range(4):
                        e(f"buffer_store_dwordx4 {vr(64*cbk+16*u+4*rb,4)}, v{L16}, {sr(S_WS,4)}, s{S_T0} offen offset:{u*1024} {fl}")
                else:
                    for u2 in range(2):
                        d = D + 4*(n % 3); n += 1
                        a0 = 64*cbk + 32*u2 + 4*rb
                        e(f"v_cvt_pk_bf16_f32 v{d}, v{a0}, v{a0+1}")
                        e(f"v_cvt_pk_bf16_f32 v{d+1}, v{a0+2}, v{a0+3}")
                        e(f"v_cvt_pk_bf16_f32 v{d+2}, v{a0+16}, v{a0+17}")
                        e(f"v_cvt_pk_bf16_f32 v{d+3}, v{a0+18}, v{a0+19}")
                        e(f"buffer_store_dwordx4 {vr(d,4)}, v{L16}, {sr(S_WS,4)}, s{S_T0} offen offset:{(2*cbk+u2)*1024} {fl}")
        e(f"v_and_b32 v{OA}, 15, v{self.B_LANE}")
        e(f"v_mul_u32_u24 v{OA}, 1792, v{OA}")
        e(f"v_lshrrev_b32 v{t+2}, 4, v{self.B_LANE}")
        e(f"v_lshl_add_u32 v{OA}, v{t+2}, 3, v{OA}")
        e("s_waitcnt vmcnt(0)")
        e("s_barrier")
        self.stamp(self.B_ST)
        if self.path == 'main':
            e(f"s_cmp_eq_u32 s{S_W}, 0")
            e("s_cbranch_scc0 L_nopoll")
            e(f"v_add_u32 v{self.B_FOUT}, 1, v{self.B_FOUT}")
            e("s_mov_b64 exec, 15")
            e(f"buffer_store_dword v{self.B_FOUT}, v{self.B_FAO}, {sr(S_WS,4)}, 0 offen sc1")
            e(f"s_mov_b32 s{S_CH}, 0")
            e.lab("L_poll")
            e(f"buffer_load_dword v{t+2}, v{self.B_FAI}, {sr(S_WS,4)}, 0 offen sc1")
            e(f"s_add_u32 s{S_CH}, s{S_CH}, 1")
            e("s_waitcnt vmcnt(0)")
            e(f"v_cmp_eq_u32 vcc, v{t+2}, v{self.B_FIN}")
            e("s_nop 0")
            e("s_cbranch_vccz L_polled")
            e(f"s_cmp_lt_u32 s{S_CH}, 0x20000")
            e("s_cbranch_scc1 L_poll")
            e.lab("L_polled")
            e("s_mov_b64 exec, -1")
            e.lab("L_nopoll")
        e("s_barrier")
        self.stamp(self.B_ST)
        e(f"s_mul_i32 s2, s{S_P}, {4*slot}")
        e(f"s_add_u32 s2, s2, s{S_T1}")
        for rb in (1, 2, 3):
            e(f"s_add_u32 s{S_T0}, s{S_P}, {rb}")
            e(f"s_and_b32 s{S_T0}, s{S_T0}, 3")
            e(f"s_mul_i32 s{S_T0}, s{S_T0}, {slot}")
            e(f"s_add_u32 s{S_T0}, s{S_T0}, s2")
            for cbk in range(ncbk):
                if self.f32:
                    if cbk:
                        e(f"s_add_u32 s{S_T0}, s{S_T0}, 4096")
                    for u in range(4):
                        e(f"buffer_load_dwordx4 {vr(64*cbk+16*u+4*rb,4)}, v{L16}, {sr(S_WS,4)}, s{S_T0} offen offset:{u*1024} sc1")
                else:
                    for u2 in range(2):
                        e(f"buffer_load_dwordx4 {vr(64*cbk+32*u2+4*rb,4)}, v{L16}, {sr(S_WS,4)}, s{S_T0} offen offset:{(2*cbk+u2)*1024} sc1")
        e(f"s_mul_i32 s2, s{S_B}, {64*1792}")
        e(f"s_mul_i32 s3, s{S_P}, {16*1792}")
        e(f"s_add_u32 s2, s2, s3")
        e(f"s_mul_i32 s3, s{S_BR}, 896")
        e(f"s_add_u32 s2, s2, s3")
        e(f"s_add_u32 s2, s2, s{S_WCOL}")
        e("s_waitcnt vmcnt(0)")
        for cbk in range(ncbk):
            for u in range(4):
                a = 64*cbk + 16*u
                for rb in (1, 2, 3):
                    if self.f32:
                        for r in range(4):
                            e(f"v_add_f32 v{a+r}, v{a+r}, v{a+4*rb+r}")
                    else:
                        src = 64*cbk + 32*(u >> 1) + 4*rb + 2*(u & 1)
                        for h in range(2):
                            e(f"v_lshlrev_b32 v{D}, 16, v{src+h}")
                            e(f"v_and_b32 v{D+1}, 0xffff0000, v{src+h}")
                            e(f"v_add_f32 v{a+2*h}, v{a+2*h}, v{D}")
                            e(f"v_add_f32 v{a+2*h+1}, v{a+2*h+1}, v{D+1}")
                e(f"v_cvt_pk_bf16_f32 v{a}, v{a}, v{a+1}")
                e(f"v_cvt_pk_bf16_f32 v{a+1}, v{a+2}, v{a+3}")
                e(f"buffer_store_dwordx2 {vr(a,2)}, v{OA}, {sr(S_OUT,4)}, s2 offen offset:{cbk*128+u*32}")

    def endB(self):
        e = self.e
        if self.fuse:
            self.epilogue_fused()
        else:
            self.epilogue_v1()
        if self.prof:
            e("s_waitcnt vmcnt(0)")
            self.stamp(self.B_ST)
            if self.path == 'main':
                e(f"s_cmp_eq_u32 s{S_W}, 0")
                e("s_cbranch_scc0 L_end")
                self.prof_store(self.B_ST, 1, 0)
        e("s_endpgm")

    def streamB(self):
        e = self.e
        e.lab("L_B")
        self.vmq = []
        self.deferred = []
        self.path = 'main'
        self.barB = {'main': [], 'w3': []}
        self.setupB()
        for hs in range(4):
            for op in self.W_ops(('Q', 0, 0), hs):
                op()
        self.setupB2()
        self.stamp(self.B_ST)
        self.vmwait(["X0"])
        self.barB_("HB")
        steps = [(('Q', 0, h), hs) for h in range(7) for hs in range(4)]
        H0 = self.H_ops(0)
        def per(i):
            if i % 4 == 3 and self.prof != 2:
                self.stamp(self.B_ST, f"h{i}")
            if i + 4 < 28:
                return self.W_ops(*steps[i + 4])
            return H0[2*(i - 24):2*(i - 24) + 2]
        self.run_steps(steps, per)
        self.q_write()
        self.barB_("QB1")
        for n in range(9):
            self.periodB(n)
        e(f"s_cmp_eq_u32 s{S_W}, 3")
        e("s_cbranch_scc1 L_B3")
        save = list(self.vmq)
        assert not self.deferred
        self.barB['w3'] = list(self.barB['main'])
        for n in range(9, 33):
            self.periodB(n)
        self.endB()
        e.lab("L_B3")
        self.path = 'w3'
        self.vmq = save
        self.deferred = []
        for n in range(9, 33):
            self.periodB(n)
        self.endB()

    def reduce_kernel(self):
        e = self.e
        e(".globl red_kernel")
        e(".p2align 8")
        e(".type red_kernel,@function")
        e.lab("red_kernel")
        e("s_cmp_ge_u32 s2, 1792")
        e("s_cbranch_scc1 L_rend")
        e("s_load_dwordx2 s[4:5], s[0:1], 96")
        e("s_load_dwordx2 s[8:9], s[0:1], 80")
        e("s_mul_hi_u32 s12, s2, 153391690")
        e("s_mul_i32 s13, s12, 28")
        e("s_sub_u32 s13, s2, s13")
        e("s_and_b32 s14, s12, 1")
        e("s_lshr_b32 s15, s12, 1")
        e("s_lshl_b32 s16, s15, 3")
        e("s_lshl_b32 s17, s14, 2")
        e("s_add_u32 s16, s16, s17")
        e("s_lshl_b32 s16, s16, 17")
        e("s_lshl_b32 s17, s13, 12")
        e("s_add_u32 s16, s16, s17")
        e("v_lshlrev_b32 v1, 4, v0")
        e("s_mov_b32 s6, 67108864")
        e("s_mov_b32 s7, 0x20000")
        e("s_mov_b32 s10, 3670016")
        e("s_mov_b32 s11, 0x20000")
        e("s_waitcnt lgkmcnt(0)")
        for p in range(4):
            e(f"buffer_load_dwordx4 {vr(4+4*p,4)}, v1, s[4:7], s16 offen")
            e("s_add_u32 s16, s16, 131072")
        e("v_lshrrev_b32 v2, 6, v0")
        e("v_lshlrev_b32 v2, 4, v2")
        e("v_and_b32 v3, 15, v0")
        e("v_add_u32 v2, v2, v3")
        e("v_mul_u32_u24 v2, 1792, v2")
        e("v_bfe_u32 v3, v0, 4, 2")
        e("v_lshl_add_u32 v2, v3, 3, v2")
        e("s_mul_i32 s15, s15, 114688")
        e("s_mul_i32 s14, s14, 896")
        e("s_add_u32 s15, s15, s14")
        e("s_lshl_b32 s13, s13, 5")
        e("s_add_u32 s15, s15, s13")
        e("s_waitcnt vmcnt(0)")
        for r in range(4):
            e(f"v_add_f32 v{4+r}, v{4+r}, v{8+r}")
            e(f"v_add_f32 v{12+r}, v{12+r}, v{16+r}")
            e(f"v_add_f32 v{4+r}, v{4+r}, v{12+r}")
        e("v_cvt_pk_bf16_f32 v4, v4, v5")
        e("v_cvt_pk_bf16_f32 v5, v6, v7")
        e("buffer_store_dwordx2 v[4:5], v2, s[8:11], s15 offen")
        e.lab("L_rend")
        e("s_endpgm")

    def build(self):
        e = self.e
        out = [HEADER.rstrip()]
        if self.fuse:
            out.append(f"; @launch grid=(256,1,1) block=(512,1,1) lds={LDS_BYTES}")
        else:
            out.append(f"; @launch kernel={NAME}_kernel grid=(256,1,1) block=(512,1,1) lds={LDS_BYTES}")
            out.append(f"; @launch kernel=red_kernel grid=(1792,1,1) block=(256,1,1) lds=0")
        out.append('.amdgcn_target "amdgcn-amd-amdhsa--gfx950"')
        out.append(".text")
        out.append(f".globl {NAME}_kernel")
        out.append(".p2align 8")
        out.append(f".type {NAME}_kernel,@function")
        out.append(f"{NAME}_kernel:")
        self.prologue()
        self.streamB()
        self.path = None
        e.lab("L_A")
        self.streamA()
        e.lab("L_end")
        e("s_endpgm")
        if not self.fuse:
            self.reduce_kernel()
        assert self.barA == self.barB['main'] == self.barB['w3'], (self.barA, self.barB)
        if self.prof:
            out.insert(1, f"; NST {44 if self.prof == 4 else len(self.barA)+2} {len(self.namesB)} " + " ".join(self.namesB))
        out.append(e.text())
        out.append('.section .rodata,"a"')
        def kd(name, v, s, acc):
            return f""".p2align 6
.amdhsa_kernel {name}
  .amdhsa_next_free_vgpr {v}
  .amdhsa_next_free_sgpr {s}
  .amdhsa_accum_offset {acc}
  .amdhsa_group_segment_fixed_size 0
  .amdhsa_kernarg_size 104
  .amdhsa_user_sgpr_count 2
  .amdhsa_user_sgpr_kernarg_segment_ptr 1
  .amdhsa_system_sgpr_workgroup_id_x 1
.end_amdhsa_kernel"""
        out.append(kd(f"{NAME}_kernel", 256, 96, 176))
        if not self.fuse:
            out.append(kd("red_kernel", 24, 32, 24))
        return "\n".join(out) + "\n"


if __name__ == "__main__":
    kw = {}
    path = None
    for a in sys.argv[1:]:
        if "=" in a:
            k, v = a.split("=")
            kw[k] = eval(v)
        else:
            path = a
    txt = Gen(**kw).build()
    open(path or f"cdna_kernels/{NAME}.s", "w").write(txt)
    print("lines", txt.count("\n"), "bytes", len(txt))
```

```python
import sys, math

NAME = "concat_heads__gqa_block_cached__gqa_block_cached__near_ridge"
HEADER = open("cdna_kernels/%s.s.ref" % NAME).read().split("; Override launch")[0]

KV_SLOT = 33792
W_BASE = KV_SLOT + 5 * 8704
XO_BASE = W_BASE + 65536
X_SLOT = 8704
FLAG_BASE = 0x2800000
LDS_BYTES = XO_BASE + 2 * X_SLOT

S_X, S_K, S_V, S_WQ, S_WO, S_OUT, S_WS = 4, 8, 12, 16, 20, 24, 28
S_W = 60
S_B = 61
S_P = 62
S_BR = 63
S_T0, S_T1 = 64, 65
S_WLDS = 66
S_WCOL = 67
S_KLDS = 68
S_KG = 69
S_VG = 70
S_KR, S_VC, S_WR = 32, 36, 40
S_VLB = 77
S_XLDS = 71
S_XG = 72
S_HK, S_HV, S_KL, S_VL, S_HVC = 66, 67, 68, 69, 70
S_HS = 32
S_HM, S_HGS = 36, 37
S_C = 73
S_THR = 74
S_ITEM = 75
S_CH = 76
S_RET = 78
S_STAMP = 80
S_SIDX = 82
S_WG = 83
S_DBG = 88
S_JUNK = 92


class Em:
    def __init__(self):
        self.l = []
    def __call__(self, s):
        self.l.append(s)
    def lab(self, s):
        self.l.append(s + ":")
    def text(self):
        return "\n".join(self.l)


def vr(a, n=1):
    return f"v{a}" if n == 1 else f"v[{a}:{a+n-1}]"
def ar(a, n=1):
    return f"a{a}" if n == 1 else f"a[{a}:{a+n-1}]"
def sr(a, n=1):
    return f"s{a}" if n == 1 else f"s[{a}:{a+n-1}]"


class Gen:
    def __init__(self, prof=False, prioA=1, npostQ=10, npostO=12, npre=6, fuse=True, pfl='sc1', f32=False, xnt=False, rin=0, nearlyQ=0, nearlyO=0, shift=1, lag=1, boost=2, hA=False, obf=26, obk=(1, 8), pre1=40, tailov=True, dropr=(0, 99), vt0=1, vto=False, xpromo=False, early=True, pre2=90, bto=False, hto=(), rot=True, hdef=None, spread=True, pre_rd=True, qov=True, x2nt=False, wq0nt=False, tp1=20, lfl='sc1', ofl='', drop=0, hint=True, wo1A=56, dyn=True, prioB=1, noH=False, noW=False, noSM=False, noBm=False, noAm=False, tnt=False):
        self.e = Em()
        self.prof = prof
        self.prioA = prioA
        self.npostQ, self.npostO, self.npre, self.pfl, self.f32 = npostQ, npostO, npre, pfl, f32
        self.fuse = fuse
        self.hdef, self.spread, self.pre_rd, self.qov = hdef, spread, pre_rd, qov
        if hdef is not None:
            vto, hto = False, (1,)
        self.hto, self.rot = hto, rot
        self.bto, self.x2nt, self.wq0nt, self.tp1 = bto, x2nt, wq0nt, tp1
        self.early, self.pre2 = early, pre2
        self.xpromo = xpromo
        self.vt0, self.vto, self.lfl, self.ofl = vt0, vto, lfl, ofl
        self.drop = drop
        self.dropr = dropr
        self.obk, self.pre1, self.tailov = obk, pre1, tailov
        self.dyn = dyn
        self.prioB = prioB if dyn else 0
        if dyn:
            prioA, boost = 2, (3 if boost else 0)
            self.prioA = 2
        self.wo1A = wo1A
        self.hA, self.obf, self.hint = hA, obf, hint
        self.lag, self.boost = lag, boost
        self.xnt, self.rin, self.nearlyQ, self.nearlyO, self.shift = xnt, rin, nearlyQ, nearlyO, shift
        self.noH, self.noW, self.noSM, self.noBm, self.noAm = noH, noW, noSM, noBm, noAm
        self.tfl = ' nt' if tnt else ''
        self.barA = []
        self.barB = {}
        self.st2 = {175: 174}
        self.namesB = []
        self.curn = -1
        self.wpre = None
        self.fine = (3, 4, 12, 13, 14, 29)

    def stamp(self, vreg, name="."):
        e = self.e
        if not self.prof:
            return
        if self.prof in (4, 5) and not name.startswith('@'):
            return
        if self.prof == 4 and getattr(self, 'path', None) is not None:
            return
        if self.prof == 5 and getattr(self, 'path', None) is None:
            return
        if self.prof == 6 and (getattr(self, 'path', None) is None or not (name.startswith('KV') or name in ('.', 'HB-1', 'QB1-1'))):
            return
        if self.prof == 7 and (getattr(self, 'path', None) is None or name not in ('.', 'KV00', 'KV8', 'KV16', 'KV24', 'KV32')):
            return
        if self.prof == 3 and (getattr(self, 'path', None) is None or not (name in ('.', 'HB-1', 'HB2-1', 'QB1-1', 'KV00', 'KV1', 'KV8', 'KV10', 'KV16', 'KV19', 'KV24', 'KV26', 'KV32', 'OB32'))):
            return
        if getattr(self, 'path', None) == 'main':
            self.namesB.append(name)
        e(f"s_memrealtime {sr(S_STAMP,2)}")
        e(f"s_memtime {sr(S_STAMP+4,2)}")
        e("s_waitcnt lgkmcnt(0)")
        e(f"s_mov_b32 m0, s{S_SIDX}")
        e(f"v_writelane_b32 v{vreg}, s{S_STAMP}, m0")
        e(f"v_writelane_b32 v{self.st2[vreg]}, s{S_STAMP+4}, m0")
        e(f"s_add_u32 s{S_SIDX}, s{S_SIDX}, 1")

    def prologue(self):
        e = self.e
        e("s_cmp_ge_u32 s2, 256")
        e("s_cbranch_scc1 L_end")
        e("s_load_dwordx16 s[32:47], s[0:1], 0")
        e("s_load_dwordx8 s[48:55], s[0:1], 64")
        e("s_load_dwordx2 s[56:57], s[0:1], 96")
        e(f"v_lshrrev_b32 v1, 6, v0")
        e(f"s_mov_b32 s{S_WG}, s2")
        e(f"s_and_b32 s{S_P}, s2, 3")
        e(f"v_readfirstlane_b32 s3, v1")
        e(f"s_lshr_b32 s{S_B}, s2, 3")
        e(f"s_bfe_u32 s{S_BR}, s2, 0x10002")
        e(f"s_mov_b32 s{S_SIDX}, 0")
        e("v_and_b32 v0, 63, v0")
        e(f"s_and_b32 s{S_W}, s3, 3")
        e("s_waitcnt lgkmcnt(0)")
        e("s_bitcmp1_b32 s2, 2")
        e(f"s_cselect_b64 {sr(S_X,2)}, s[42:43], s[32:33]")
        e(f"s_cselect_b64 {sr(S_K,2)}, s[44:45], s[34:35]")
        e(f"s_cselect_b64 {sr(S_V,2)}, s[46:47], s[36:37]")
        e(f"s_cselect_b64 {sr(S_WQ,2)}, s[48:49], s[38:39]")
        e(f"s_cselect_b64 {sr(S_WO,2)}, s[50:51], s[40:41]")
        def addbase(srd, sreg):
            e(f"s_add_u32 s{srd}, s{srd}, s{sreg}")
            e(f"s_addc_u32 s{srd+1}, s{srd+1}, 0")
        e(f"s_mul_i32 s{S_T0}, s{S_B}, 57344")
        addbase(S_X, S_T0)
        e(f"s_lshl_b32 s{S_T0}, s{S_B}, 21")
        e(f"s_lshl_b32 s{S_T1}, s{S_P}, 19")
        e(f"s_add_u32 s{S_T0}, s{S_T0}, s{S_T1}")
        addbase(S_K, S_T0)
        addbase(S_V, S_T0)
        e(f"s_lshl_b32 s{S_T0}, s{S_P}, 11")
        addbase(S_WQ, S_T0)
        e(f"s_sub_u32 s{S_WQ+2}, 3670016, s{S_T0}")
        e(f"s_mul_i32 s{S_T0}, s{S_P}, 917504")
        addbase(S_WO, S_T0)
        e(f"s_mov_b32 s{S_X+2}, 57344")
        e(f"s_mov_b32 s{S_K+2}, 524288")
        e(f"s_mov_b32 s{S_V+2}, 524288")
        e(f"s_mov_b32 s{S_WO+2}, 917504")
        e(f"s_mov_b64 {sr(S_OUT,2)}, s[52:53]")
        e(f"s_mov_b32 s{S_OUT+2}, 3670016")
        e(f"s_mov_b64 {sr(S_WS,2)}, s[56:57]")
        e(f"s_mov_b32 s{S_WS+2}, 67108864")
        e(f"s_mov_b64 {sr(S_DBG,2)}, s[54:55]")
        e(f"s_mov_b32 s{S_DBG+2}, 256")
        for s in (S_X, S_K, S_V, S_WQ, S_WO, S_OUT, S_WS, S_DBG):
            e(f"s_mov_b32 s{s+3}, 0x20000")
        e("s_cmp_lt_u32 s3, 4")
        e("s_cbranch_scc1 L_A")

    def tr_addr(self, dst, base_imm=None, base_sreg=None, t0=None, t1=None, t2=None):
        e = self.e
        e(f"v_bfe_u32 v{t0}, v0, 2, 3")
        e(f"v_lshrrev_b32 v{t1}, 5, v0")
        e(f"v_lshlrev_b32 v{t1}, 10, v{t1}")
        e(f"v_lshl_add_u32 v{t1}, v{t0}, 7, v{t1}")
        e(f"v_and_b32 v{t2}, 3, v0")
        e(f"v_lshl_add_u32 v{t1}, v{t2}, 3, v{t1}")
        if base_imm:
            e(f"v_add_u32 v{t1}, {base_imm}, v{t1}")
        if base_sreg is not None:
            e(f"v_add_u32 v{t1}, s{base_sreg}, v{t1}")
        e(f"v_lshrrev_b32 v{t0}, 1, v{t0}")
        for u in range(4):
            e(f"v_xor_b32 v{t2}, {u}, v{t0}")
            e(f"v_lshl_add_u32 v{dst+u}, v{t2}, 5, v{t1}")

    A_P = 0
    A_S = 128
    A_T = 144
    A_KA = 160
    A_VA = 161
    A_OW = 165
    A_VX = 165
    A_VK = 166
    A_VV = 167
    A_NM = 168
    A_L = 170
    A_TS = 172
    A_ST = 175

    def barA_(self, name, times=1):
        if self.prof == 2:
            self.stamp(self.A_ST)
        self.e("s_barrier")
        self.barA.append(name)
        if self.prof != 2:
            self.stamp(self.A_ST)

    def k_read(self, f, slot, tile):
        s, mt = f >> 1, f & 1
        off = slot * KV_SLOT + tile * 16896 + mt * 8448 + s * 64
        self.e(f"ds_read_b128 {ar(64 + 4*(f % 4), 4)}, v{self.A_KA} offset:{off}")

    def v_read(self, f, slot, parts=(0, 1)):
        T, u = f >> 2, f & 3
        b = 64 + 4 * (f % 4)
        off = slot * KV_SLOT + T * 4096
        for t in parts:
            self.e(f"ds_read_b64_tr_b16 {ar(b+2*t,2)}, v{self.A_VA+u} offset:{off+2048*t}")

    def lane16(self, dst, jsh, qsh, base):
        e = self.e
        e(f"v_mbcnt_lo_u32_b32 v{dst}, -1, 0")
        e(f"v_mbcnt_hi_u32_b32 v{dst}, -1, v{dst}")
        e(f"s_lshr_b32 s{S_T0}, s{S_W}, 1")
        e(f"s_and_b32 s{S_T1}, s{S_W}, 1")
        e(f"s_lshl_b32 s{S_T0}, s{S_T0}, {jsh}")
        e(f"s_lshl_b32 s{S_T1}, s{S_T1}, {qsh}")
        e(f"s_add_u32 s{S_T0}, s{S_T0}, s{S_T1}")
        e(f"s_add_u32 s{S_T0}, s{S_T0}, {base}")
        e(f"v_lshl_add_u32 v{dst}, v{dst}, 4, s{S_T0}")

    def q_read(self):
        e = self.e
        qa = self.A_TS
        self.lane16(qa, 15, 13, W_BASE)
        for s in range(8):
            for cb in range(2):
                off = (s >> 2) * 16384 + cb * 4096 + (s & 3) * 1024
                e(f"ds_read_b128 {ar(8*s+4*cb,4)}, v{qa} offset:{off}")

    def dma_voffs(self, VX, VK, VV, VWO, VWQ, a):
        e = self.e
        b, c, d = a + 1, a + 2, a + 3
        e(f"v_lshrrev_b32 v{a}, 3, v0")
        e(f"v_bfe_u32 v{b}, v0, 4, 2")
        e(f"v_and_b32 v{c}, 7, v0")
        e(f"v_xor_b32 v{VX}, v{c}, v{b}")
        e(f"v_lshlrev_b32 v{VX}, 4, v{VX}")
        e(f"v_mul_u32_u24 v{d}, 896, v{a}")
        e(f"v_add_u32 v{VX}, v{VX}, v{d}")
        yield
        e(f"v_lshlrev_b32 v{b}, 1, v{b}")
        e(f"v_xor_b32 v{c}, v{c}, v{b}")
        e(f"v_lshlrev_b32 v{c}, 4, v{c}")
        if VWO is not None:
            e(f"v_add_u32 v{VWO}, v{c}, v{d}")
        if VV is not None:
            e(f"v_lshl_add_u32 v{VV}, v{a}, 11, v{c}")
        e(f"v_lshrrev_b32 v{b}, 5, v0")
        if VWQ is not None:
            e(f"v_and_b32 v{d}, 3, v{a}")
            e(f"v_lshl_add_u32 v{VWQ}, v{d}, 13, v{c}")
            e(f"v_lshl_add_u32 v{VWQ}, v{b}, 16, v{VWQ}")
        e(f"v_and_b32 v{c}, 31, v0")
        e(f"v_xor_b32 v{c}, v{c}, v{b}")
        e(f"v_lshlrev_b32 v{c}, 4, v{c}")
        e(f"v_lshl_add_u32 v{VK}, v{b}, 11, v{c}")
        yield

    def A_Hops(self, kind, slot, gs, gimm):
        e = self.e
        ops = []
        if self.noH or not self.hA:
            return [lambda pre: None]*8
        for k in range(8):
            def op(pre, k=k):
                if kind == 'K':
                    if pre:
                        e(f"s_add_u32 m0, s{S_KL}, {slot*KV_SLOT + k*1056}")
                        e(f"s_add_u32 s{S_T0}, s{gs}, {gimm + k*4096}")
                    else:
                        e(f"buffer_load_dwordx4 v{self.A_VK}, {sr(S_K,4)}, s{S_T0} offen nt lds")
                elif kind == 'V':
                    if pre:
                        if k % 4 == 0:
                            e(f"s_add_u32 m0, s{S_VL}, {slot*KV_SLOT + k*1024}")
                        e(f"s_add_u32 s{S_T0}, s{gs}, {gimm + k*16384 - (k % 4)*1024}")
                    else:
                        e(f"buffer_load_dwordx4 v{self.A_VV}, {sr(S_V,4)}, s{S_T0} offen offset:{(k%4)*1024} nt lds")
                else:
                    if pre:
                        if k:
                            e(f"s_add_u32 m0, m0, s{S_HM}")
                            e(f"s_add_u32 s{S_T1}, s{S_T1}, s{S_HGS}")
                    else:
                        e(f"buffer_load_dwordx4 v{self.A_NM}, {sr(S_HS,4)}, s{S_T1} offen nt lds")
            ops.append(op)
        return ops

    def xlane(self, op, x, t):
        e = self.e
        e(f"v_mov_b32 v{t}, v{x}")
        e("s_nop 1")
        e(f"v_permlane32_swap_b32 v{t}, v{x}")
        e("s_nop 1")
        e(f"{op} v{x}, v{x}, v{t}")
        e(f"v_mov_b32 v{t}, v{x}")
        e("s_nop 1")
        e(f"v_permlane16_swap_b32 v{t}, v{x}")
        e("s_nop 1")
        e(f"{op} v{x}, v{x}, v{t}")

    def tile_max(self, cb, dst, t):
        e = self.e
        S = self.A_S
        r = [S + 4*cb + k for k in range(4)] + [S + 8 + 4*cb + k for k in range(4)]
        e(f"v_max3_f32 v{dst}, v{r[0]}, v{r[1]}, v{r[2]}")
        e(f"v_max3_f32 v{dst}, v{dst}, v{r[3]}, v{r[4]}")
        e(f"v_max3_f32 v{dst}, v{dst}, v{r[5]}, v{r[6]}")
        e(f"v_max_f32 v{dst}, v{dst}, v{r[7]}")
        self.xlane("v_max_f32", dst, t)

    def softmax(self, T):
        e = self.e
        S, TT, P = self.A_S, self.A_T, self.A_P
        if T == 0:
            for cb in range(2):
                self.tile_max(cb, TT + cb, TT + 2)
                e(f"v_mul_f32 v{self.A_NM+cb}, s{S_C}, v{TT+cb}")
                e(f"v_sub_f32 v{self.A_NM+cb}, 0, v{self.A_NM+cb}")
                e(f"v_mov_b32 v{self.A_L+cb}, 0")
        e.lab(f"L_sm{T}")
        groups = [(0, 0), (0, 1), (1, 0), (1, 1)]
        def fma(gi):
            mt, cb = groups[gi]
            for r in range(4):
                e(f"v_fma_f32 v{TT+4*gi+r}, v{S+8*mt+4*cb+r}, s{S_C}, v{self.A_NM+cb}")
        def exp(gi):
            for r in range(4):
                e(f"v_exp_f32 v{TT+4*gi+r}, v{TT+4*gi+r}")
        def fin(gi):
            mt, cb = groups[gi]
            t = TT + 4*gi
            ts = self.A_TS + cb
            if mt == 0:
                e(f"v_add_f32 v{ts}, v{t}, v{t+1}")
            else:
                e(f"v_add_f32 v{ts}, v{ts}, v{t}")
                e(f"v_add_f32 v{ts}, v{ts}, v{t+1}")
            e(f"v_cvt_pk_bf16_f32 v{P+8*T+4*cb+2*mt}, v{t}, v{t+1}")
            e(f"v_add_f32 v{ts}, v{ts}, v{t+2}")
            e(f"v_cvt_pk_bf16_f32 v{P+8*T+4*cb+2*mt+1}, v{t+2}, v{t+3}")
            e(f"v_add_f32 v{ts}, v{ts}, v{t+3}")
        fma(0); fma(1); exp(0); fma(2); exp(1); fma(3); fin(0); exp(2); fin(1); exp(3); fin(2); fin(3)
        if T > 0:
            e(f"v_max_f32 v{TT}, v{self.A_TS}, v{self.A_TS+1}")
            e(f"v_cmp_lt_f32 vcc, s{S_THR}, v{TT}")
            e("s_nop 0")
            e(f"s_cbranch_vccz L_ok{T}")
            e(f"s_call_b64 {sr(S_RET,2)}, L_rescale")
            e(f"s_branch L_sm{T}")
            e.lab(f"L_ok{T}")
            e(f"s_mov_b32 s{S_THR}, 0x47800000")
        for cb in range(2):
            e(f"v_add_f32 v{self.A_L+cb}, v{self.A_L+cb}, v{self.A_TS+cb}")

    def rescale_routine(self):
        e = self.e
        TT, P = self.A_T, self.A_P
        e.lab("L_rescale")
        for cb in range(2):
            self.tile_max(cb, TT, TT + 2)
            e(f"v_fma_f32 v{TT}, v{TT}, s{S_C}, v{self.A_NM+cb}")
            e(f"v_ceil_f32 v{TT}, v{TT}")
            e(f"v_max_f32 v{TT}, 0, v{TT}")
            e(f"v_sub_f32 v{self.A_NM+cb}, v{self.A_NM+cb}, v{TT}")
            e(f"v_min_f32 v{TT}, 0x43800000, v{TT}")
            e(f"v_cvt_i32_f32 v{TT}, v{TT}")
            e(f"v_sub_u32 v{TT}, 0, v{TT}")
            e(f"v_ldexp_f32 v{self.A_L+cb}, v{self.A_L+cb}, v{TT}")
            for T in range(16):
                for k in range(4):
                    r = P + 8*T + 4*cb + k
                    e(f"v_lshlrev_b32 v{TT+4}, 16, v{r}")
                    e(f"v_and_b32 v{TT+5}, 0xffff0000, v{r}")
                    e(f"v_ldexp_f32 v{TT+4}, v{TT+4}, v{TT}")
                    e(f"v_ldexp_f32 v{TT+5}, v{TT+5}, v{TT}")
                    e(f"v_cvt_pk_bf16_f32 v{r}, v{TT+4}, v{TT+5}")
        e(f"s_mov_b32 s{S_THR}, 0x7f800000")
        e(f"s_setpc_b64 {sr(S_RET,2)}")

    def streamA(self):
        e = self.e
        KA, VA, OW = self.A_KA, self.A_VA, self.A_OW
        self.stamp(self.A_ST)
        if self.prioA:
            e(f"s_setprio {self.prioA}")
        t = self.A_T
        e(f"v_min_u32 v{t+12}, 27, v0")
        e(f"s_mul_i32 s{S_T0}, s{S_W}, 28")
        e(f"v_add_u32 v{t+12}, s{S_T0}, v{t+12}")
        if self.vt0:
            e(f"v_lshlrev_b32 v{t+13}, 15, v{t+12}")
            e(f"s_lshr_b32 s{S_T0}, s{S_B}, 3")
            e(f"s_lshl_b32 s{S_T0}, s{S_T0}, 13")
            e(f"s_and_b32 s{S_T1}, s{S_B}, 7")
            e(f"s_lshl_b32 s{S_T1}, s{S_T1}, 7")
            e(f"s_add_u32 s{S_T0}, s{S_T0}, s{S_T1}")
            e(f"buffer_load_dword v{t+14}, v{t+13}, {sr(S_WQ,4)}, s{S_T0} offen{' nt' if self.vt0 == 2 else ''}")
        else:
            self.stouch_wq(0, 0, 56, 1)
        a, b, c = t + 4, t + 5, t + 6
        e(f"v_bfe_u32 v{a}, v0, 1, 3")
        e(f"v_mul_u32_u24 v{KA}, 1056, v{a}")
        e(f"v_and_b32 v{a}, 1, v0")
        e(f"v_lshl_add_u32 v{KA}, v{a}, 9, v{KA}")
        e(f"v_lshrrev_b32 v{b}, 4, v0")
        e(f"v_xor_b32 v{b}, v{b}, v{a}")
        e(f"v_lshl_add_u32 v{KA}, v{b}, 4, v{KA}")
        self.tr_addr(VA, t0=a, t1=b, t2=c)
        for _ in self.dma_voffs(self.A_VX, self.A_VK, self.A_VV, None, None, t + 8):
            pass
        e(f"s_lshl_b32 s{S_HK}, s{S_W}, 15")
        e(f"s_lshl_b32 s{S_HV}, s{S_W}, 9")
        e(f"s_mul_i32 s{S_KL}, s{S_W}, {8*1056}")
        e(f"s_lshl_b32 s{S_VL}, s{S_W}, 13")
        e(f"s_mul_i32 s{S_XLDS}, s{S_W}, {2*1088}")
        e(f"s_mul_i32 s{S_XG}, s{S_W}, {16*896}")
        e(f"s_mov_b32 s{S_C}, 0x3db8aa3b")
        e(f"s_mov_b32 s{S_THR}, 0x47800000")
        e(f"s_mov_b32 s{S_ITEM}, 0")
        segs = [('q', 56)]
        if 0 not in self.hto:
            segs.append(('o0', 56))
        if not self.vto and not self.bto and 1 not in self.hto:
            segs.append(('o1', self.wo1A))
        def touch_range(a, b):
            pos = 0
            for kind, n in segs:
                lo, hi = max(a - pos, 0), min(b - pos, n)
                if lo < hi:
                    if kind == 'q':
                        self.stouch_wq(1, lo, hi, 1)
                    else:
                        self.stouch_wo(int(kind[1]), lo, hi)
                pos += n
        touch_range(0, self.pre1)
        self.barA_("HB")
        if self.early:
            touch_range(self.pre1, self.pre2)
            self.barA_("HB2")
            touch_range(self.pre2, 999)
        else:
            touch_range(self.pre1, 999)
        e("s_waitcnt vmcnt(0)")
        if self.xpromo:
            e(f"v_lshlrev_b32 v{t+13}, 7, v0")
            e(f"s_lshl_b32 s{S_T0}, s{S_W}, 13")
            e(f"buffer_load_dword v{t+14}, v{t+13}, {sr(S_X,4)}, s{S_T0} offen")
            e(f"s_add_u32 s{S_T0}, s{S_T0}, 32768")
            e(f"buffer_load_dword v{t+15}, v{t+13}, {sr(S_X,4)}, s{S_T0} offen")
            e("s_waitcnt vmcnt(0)")
        e(f"v_lshlrev_b32 v{self.A_VK}, 12, v{t+12}")
        e(f"s_lshl_b32 s{S_HK}, s{S_B}, 7")
        e(f"s_add_u32 s{S_HK}, s{S_HK}, 458752")
        self.barA_("QB1")
        if self.vto:
            e(f"buffer_load_dword v{self.A_VV}, v{self.A_VK}, {sr(S_WO,4)}, s{S_HK} offen nt")
        self.q_read()
        e("s_waitcnt lgkmcnt(0)")
        self.barA_("KV0")
        for f in range(3):
            self.k_read(f, 0, 0)
        barA_pre = list(self.barA)
        self.barA = []
        e.lab("L_item")
        if self.dyn:
            e(f"s_setprio {self.prioA}")
        S = self.A_S
        for T in range(16):
            slot, tile = (T >> 1) & 1, T & 1
            ph = T >> 1
            hops = []
            if T == 2 and self.vto:
                e(f"s_cmp_eq_u32 s{S_ITEM}, 0")
                e("s_cbranch_scc0 L_nopromo")
                e(f"buffer_load_dword v{self.A_VV}, v{self.A_VK}, {sr(S_WO,4)}, s{S_HK} offen")
                e.lab("L_nopromo")
            if tile == 0:
                hops = self.A_Hops('K', slot ^ 1, S_HK, ((ph + 1) >> 2)*131072 + ((ph + 1) & 3)*512) if ph < 7 else self.A_Hops('V', 0, S_HV, 0)
            e("s_waitcnt lgkmcnt(2)" if T else ("s_waitcnt lgkmcnt(2)"))
            for f in range(16):
                s, mt = f >> 1, f & 1
                d0, d1 = vr(S + 8*mt, 4), vr(S + 8*mt + 4, 4)
                if hops and f % 2 == 0:
                    hops[f >> 1](True)
                if not self.noAm:
                    e(f"v_mfma_f32_16x16x32_bf16 {d0}, {ar(64+4*(f%4),4)}, {ar(8*s,4)}, {d0 if s else 0}")
                if f + 3 < 16:
                    self.k_read(f + 3, slot, tile)
                elif tile == 0:
                    self.k_read(f + 3 - 16, slot, 1)
                if not self.noAm:
                    e(f"v_mfma_f32_16x16x32_bf16 {d1}, {ar(64+4*(f%4),4)}, {ar(8*s+4,4)}, {d1 if s else 0}")
                if hops and f % 2 == 0:
                    hops[f >> 1](False)
                if (T, f) == self.obk and not self.spread:
                    e(f"s_cmp_eq_u32 s{S_ITEM}, 0")
                    e("s_cbranch_scc1 L_nobk")
                    e("s_barrier")
                    self.stamp(self.A_ST)
                    e.lab("L_nobk")
                if f < 15:
                    n_out = 2 if (tile == 0 or f + 3 < 16) else 14 - f
                    if tile == 1 and f == 14:
                        e("s_waitcnt vmcnt(0) lgkmcnt(0)" if self.hA else "s_waitcnt lgkmcnt(0)")
                        self.barA_("KV")
                        for g in range(3):
                            if T < 15:
                                self.k_read(g, slot ^ 1, 0)
                            else:
                                self.v_read(g, 0)
                    else:
                        e(f"s_waitcnt lgkmcnt({n_out})")
            if tile == 0 and ph < 7 and self.hA:
                e(f"s_cmp_eq_u32 s{S_ITEM}, 0")
                e(f"s_cbranch_scc0 L_nox{ph}")
                for k in range(2):
                    e(f"s_add_u32 m0, s{S_XLDS}, {self.xloc(1, ph) + k*1088}")
                    e(f"s_add_u32 s{S_T0}, s{S_XG}, {k*7168 + ph*128}")
                    e(f"buffer_load_dwordx4 v{self.A_VX}, {sr(S_X,4)}, s{S_T0} offen lds")
                if ph == 0:
                    e("s_barrier")
                    self.stamp(self.A_ST)
                e.lab(f"L_nox{ph}")
            if self.dyn:
                e("s_setprio 0")
            e("s_nop 1" if T else "s_nop 7")
            if not self.noSM:
                self.softmax(T)
            if self.dyn and T < 15:
                e(f"s_setprio {self.prioA}")
        TT = self.A_T
        for cb in range(2):
            self.xlane("v_add_f32", self.A_L + cb, TT)
            e(f"v_rcp_f32 v{self.A_L+cb}, v{self.A_L+cb}")
        self.lane16(OW, 13, 11, XO_BASE)
        barA_K = list(self.barA)
        self.barA = []
        e(f"s_mov_b32 s{S_CH}, 0")
        e(f"s_mov_b32 s{S_HVC}, s{S_HV}")
        e.lab("L_chunk")
        if self.dyn:
            e(f"s_setprio {self.prioA}")
        O = self.A_S
        for half in range(2):
            if half == 1:
                e(f"s_or_b32 s{S_T0}, s{S_ITEM}, s{S_CH}")
                e(f"s_cbranch_scc1 L_noq2")
                self.q_read()
                e.lab("L_noq2")
                if self.hA:
                    e(f"s_movk_i32 s{S_HM}, 1024")
                    e(f"s_movk_i32 s{S_HGS}, 16384")
                    e(f"s_cmp_eq_u32 s{S_CH}, 3")
                    e(f"s_cselect_b64 {sr(S_HS,2)}, {sr(S_K,2)}, {sr(S_V,2)}")
                    e(f"s_cselect_b32 s{S_HM}, 1056, s{S_HM}")
                    e(f"s_cselect_b32 s{S_HGS}, 4096, s{S_HGS}")
                    e(f"s_cselect_b32 m0, s{S_KL}, s{S_VL}")
                    e(f"s_cselect_b64 vcc, -1, 0")
                    e(f"s_add_u32 s{S_T0}, s{S_HK}, 262144")
                    e(f"s_add_u32 s{S_T1}, s{S_HVC}, 128")
                    e(f"v_cndmask_b32 v{self.A_NM}, v{self.A_VV}, v{self.A_VK}, vcc")
                    e(f"s_cmp_eq_u32 s{S_CH}, 3")
                    e(f"s_cselect_b32 s{S_T1}, s{S_T0}, s{S_T1}")
                    e(f"s_mov_b32 s{S_HS+2}, 524288")
                    e(f"s_mov_b32 s{S_HS+3}, 0x20000")
                hops = self.A_Hops('G', 0, None, None)
            else:
                hops = self.A_Hops('V', 1, S_HVC, 131072)
            e("s_waitcnt lgkmcnt(4)")
            for f in range(32):
                T, u = f >> 2, f & 3
                Tg = 8*half + T
                d0, d1 = vr(O + 8*u, 4), vr(O + 8*u + 4, 4)
                if f < 16 and f % 2 == 0:
                    hops[f >> 1](True)
                if not self.noAm:
                    e(f"v_mfma_f32_16x16x32_bf16 {d0}, {ar(64+4*(f%4),4)}, {vr(self.A_P+8*Tg,4)}, {d0 if Tg else 0}")
                if f + 3 < 32:
                    self.v_read(f + 3, half, (0,))
                if not self.noAm:
                    e(f"v_mfma_f32_16x16x32_bf16 {d1}, {ar(64+4*(f%4),4)}, {vr(self.A_P+8*Tg+4,4)}, {d1 if Tg else 0}")
                if f + 3 < 32:
                    self.v_read(f + 3, half, (1,))
                if f < 16 and f % 2 == 0:
                    hops[f >> 1](False)
                if half == 0 and f == self.obf:
                    e(f"s_cmp_eq_u32 s{S_CH}, 0")
                    e("s_cbranch_scc1 L_nobv")
                    self.stamp(self.A_ST, '@')
                    e("s_barrier")
                    self.stamp(self.A_ST, '@')
                    self.stamp(self.A_ST)
                    e.lab("L_nobv")
                if half == 1 and f == (15 if self.hA else 4):
                    e(f"s_cmp_eq_u32 s{S_CH}, 0")
                    e("s_cbranch_scc0 L_nqb")
                    e("s_barrier")
                    self.stamp(self.A_ST)
                    e.lab("L_nqb")
                if f == 30:
                    e("s_waitcnt vmcnt(0) lgkmcnt(0)" if self.hA else "s_waitcnt lgkmcnt(0)")
                    self.stamp(self.A_ST, '@')
                    self.barA_("KV")
                    self.stamp(self.A_ST, '@')
                    if half == 0:
                        for g in range(3):
                            self.v_read(g, 1)
                    else:
                        e(f"s_cmp_eq_u32 s{S_CH}, 3")
                        e("s_cbranch_scc1 L_nk")
                        for g in range(3):
                            self.v_read(g, 0)
                        e("s_branch L_nk2")
                        e.lab("L_nk")
                        for g in range(3):
                            self.k_read(g, 0, 0)
                        e.lab("L_nk2")
                elif f < 30:
                    e(f"s_waitcnt lgkmcnt({2*min(2, 30 - f)})")
        if self.dyn:
            e("s_setprio 0")
        e("s_nop 7")
        for u in range(4):
            for cb in range(2):
                for r in range(4):
                    x = O + 8*u + 4*cb + r
                    e(f"v_mul_f32 v{x}, v{x}, v{self.A_L+cb}")
        for u2 in range(2):
            for cb in range(2):
                d = O + 16*u2 + 4*cb
                s1 = d + 8
                e(f"v_cvt_pk_bf16_f32 v{d}, v{d}, v{d+1}")
                e(f"v_cvt_pk_bf16_f32 v{d+1}, v{d+2}, v{d+3}")
                e(f"v_cvt_pk_bf16_f32 v{d+2}, v{s1}, v{s1+1}")
                e(f"v_cvt_pk_bf16_f32 v{d+3}, v{s1+2}, v{s1+3}")
                e(f"ds_write_b128 v{OW}, {vr(d,4)} offset:{u2*4096 + cb*1024}")
        barA_C = list(self.barA)
        e(f"s_add_u32 s{S_HVC}, s{S_HVC}, 128")
        e(f"s_add_u32 s{S_CH}, s{S_CH}, 1")
        e(f"s_cmp_lt_u32 s{S_CH}, 4")
        e("s_cbranch_scc1 L_chunk")
        e(f"s_add_u32 s{S_HK}, s{S_HK}, 262144")
        e(f"s_add_u32 s{S_HV}, s{S_HV}, 262144")
        e(f"s_add_u32 s{S_ITEM}, s{S_ITEM}, 1")
        e(f"s_cmp_lt_u32 s{S_ITEM}, 2")
        e("s_cbranch_scc1 L_item")
        seq = list(barA_pre)
        for it in range(2):
            seq += (["HX"] if it == 0 and self.hA else []) + (["OB"] if it == 1 and not self.spread else []) + barA_K
            for c in range(4):
                x = list(barA_C)
                if c == 0:
                    x.insert(1, "QB2")
                else:
                    x.insert(0, "OB")
                seq += x
        e("s_waitcnt lgkmcnt(0)")
        self.barA_("OB")
        self.barA = seq + ["OB"]
        if self.prof:
            self.stamp(self.A_ST)
            e(f"s_cmp_eq_u32 s{S_W}, 0")
            e("s_cbranch_scc0 L_end")
            self.prof_store(self.A_ST, 0, 0)
        e("s_endpgm")
        self.rescale_routine()

    def prof_store(self, vreg, role, tmp):
        e = self.e
        e(f"v_mbcnt_lo_u32_b32 v{tmp}, -1, 0")
        e(f"v_mbcnt_hi_u32_b32 v{tmp}, -1, v{tmp}")
        e(f"v_lshlrev_b32 v{tmp}, 2, v{tmp}")
        e(f"s_lshl_b32 s{S_T0}, s{S_WG}, 9")
        e(f"s_add_u32 s{S_T0}, s{S_T0}, {0x3000000 + role*256}")
        e(f"buffer_store_dword v{vreg}, v{tmp}, {sr(S_WS,4)}, s{S_T0} offen")
        e(f"s_add_u32 s{S_T0}, s{S_T0}, 0x200000")
        e(f"buffer_store_dword v{self.st2[vreg]}, v{tmp}, {sr(S_WS,4)}, s{S_T0} offen")
        e("s_waitcnt vmcnt(0)")

    def stouch_wq(self, item, k0, k1, step):
        e = self.e
        if k0 >= k1:
            return
        e(f"s_lshl_b32 s{S_T0}, s{S_W}, 14")
        e(f"s_lshr_b32 s{S_T1}, s{S_B}, 4")
        e(f"s_lshl_b32 s{S_T1}, s{S_T1}, 13")
        e(f"s_add_u32 s{S_T0}, s{S_T0}, s{S_T1}")
        e(f"s_and_b32 s{S_T1}, s{S_B}, 15")
        e(f"s_lshl_b32 s{S_T1}, s{S_T1}, 6")
        e(f"s_add_u32 s{S_T0}, s{S_T0}, s{S_T1}")
        cur = 0
        for k in range(k0, k1, step):
            if k // 8 != cur:
                e(f"s_add_u32 s{S_T0}, s{S_T0}, {(k // 8 - cur)*8*65536}")
                cur = k // 8
            e(f"s_buffer_load_dword s{S_JUNK + k % 4}, {sr(S_WQ,4)}, s{S_T0} offset:{(k % 8)*65536 + item*1024}")

    def stouch_wo(self, item, k0, k1):
        e = self.e
        e(f"s_lshl_b32 s{S_T0}, s{S_W}, 11")
        e(f"s_lshl_b32 s{S_T1}, s{S_B}, 6")
        e(f"s_add_u32 s{S_T0}, s{S_T0}, s{S_T1}")
        for k in range(k0, k1):
            e(f"s_buffer_load_dword s{S_JUNK + k % 4}, {sr(S_WO,4)}, s{S_T0} offset:{k*8192 + item*458752}")

    B_OR = 128
    B_TMP = 132
    B_BF = 32
    B_WT = 160
    B_XR = 164
    B_XR0 = 165
    B_VWQ = 166
    B_VWO = 167
    B_VV = 168
    B_VK = 169
    B_VX = 170
    B_QW = 171
    B_LANE = 172
    B_TA, B_TD = 166, 167
    B_FIN, B_FOUT, B_FAI, B_FAO = 148, 149, 150, 151
    B_VWQ4 = 152
    B_VWO4 = 156
    B_ST = 175

    def setupB(self):
        e = self.e
        e(f"s_mul_i32 s{S_XLDS}, s{S_W}, {2*1088}")
        e(f"s_mul_i32 s{S_XG}, s{S_W}, {16*896}")
        g = self.dma_voffs(self.B_VX, self.B_VK, self.B_VV, self.B_VWO4, self.B_VWQ4, self.B_TMP)
        next(g)
        e(f"v_and_b32 v{self.B_FAO}, 3, v0")
        e(f"v_lshlrev_b32 v{self.B_FAI}, 2, v{self.B_FAO}")
        e(f"s_lshl_b32 s{S_T0}, s{S_WG}, 7")
        e(f"s_add_u32 s{S_T0}, s{S_T0}, {FLAG_BASE}")
        e(f"v_add_u32 v{self.B_FAI}, s{S_T0}, v{self.B_FAI}")
        e(f"s_mul_i32 s{S_T1}, s{S_P}, 124")
        e(f"s_sub_u32 s{S_T0}, s{S_T0}, s{S_T1}")
        e(f"v_lshl_add_u32 v{self.B_FAO}, v{self.B_FAO}, 7, s{S_T0}")
        e(f"buffer_load_dword v{self.B_FIN}, v{self.B_FAI}, {sr(S_WS,4)}, 0 offen sc1")
        e(f"buffer_load_dword v{self.B_FOUT}, v{self.B_FAO}, {sr(S_WS,4)}, 0 offen sc1")
        self.vmq += ["F", "F"]
        for xp in range(2 if self.early else 7):
            for op in self.X_ops(xp, self.xloc(0, xp), "X0", self.xnt):
                op()
        e(f"s_lshl_b32 s{S_WLDS}, s{S_W}, 14")
        e(f"s_add_u32 s{S_WLDS}, s{S_WLDS}, {W_BASE}")
        e(f"s_lshl_b32 s{S_WCOL}, s{S_W}, 8")
        e(f"s_mul_i32 s{S_KLDS}, s{S_W}, {8*1056}")
        e(f"s_lshl_b32 s{S_KG}, s{S_W}, 15")
        r1, r2 = 44, 45
        if self.rot:
            e(f"s_and_b32 s{r1}, s{S_B}, 3")
            e(f"s_bfe_u32 s{r2}, s{S_B}, 0x20002")
        else:
            e(f"s_mov_b32 s{r1}, 0")
            e(f"s_mov_b32 s{r2}, 0")
        e(f"s_add_u32 s{S_VG}, s{S_W}, s{r1}")
        e(f"s_and_b32 s{S_VG}, s{S_VG}, 3")
        e(f"s_lshl_b32 s{S_VG}, s{S_VG}, 9")
        for r in range(4):
            e(f"s_add_u32 s{S_T0}, s{r1}, {r}")
            e(f"s_and_b32 s{S_T0}, s{S_T0}, 3")
            e(f"s_lshl_b32 s{S_T0}, s{S_T0}, 9")
            e(f"s_add_u32 s{S_KR+r}, s{S_KG}, s{S_T0}")
            e(f"s_add_u32 s{S_T0}, s{r2}, {r}")
            e(f"s_and_b32 s{S_T0}, s{S_T0}, 3")
            e(f"s_lshl_b32 s{S_T1}, s{S_T0}, 7")
            e(f"s_add_u32 s{S_VC+r}, s{S_VG}, s{S_T1}")
            e(f"s_mul_i32 s{S_T1}, s{S_T0}, {64*896}")
            e(f"s_add_u32 s{S_WR+r}, s{S_WCOL}, s{S_T1}")
        e(f"s_lshl_b32 s{S_VLB}, s{S_W}, 13")
        next(g)
        for pc in range(1, 4):
            e(f"v_add_u32 v{self.B_VWQ4+pc}, {(16*(pc & 1) + 4*(pc >> 1))*8192 - 1024*pc}, v{self.B_VWQ4}")

    def setupB2(self):
        e = self.e
        a, b, c = self.B_TMP, self.B_TMP + 1, self.B_TMP + 2
        self.tr_addr(self.B_WT, base_sreg=S_WLDS, t0=a, t1=b, t2=c)
        e(f"v_bfe_u32 v{a}, v0, 3, 1")
        e(f"v_mul_u32_u24 v{self.B_XR0}, 1088, v{a}")
        e(f"v_and_b32 v{a}, 7, v0")
        e(f"v_lshl_add_u32 v{self.B_XR0}, v{a}, 7, v{self.B_XR0}")
        e(f"v_lshrrev_b32 v{a}, 1, v{a}")
        e(f"v_lshrrev_b32 v{b}, 4, v0")
        e(f"v_xor_b32 v{a}, v{a}, v{b}")
        e(f"v_lshl_add_u32 v{self.B_XR0}, v{a}, 4, v{self.B_XR0}")
        e(f"v_add_u32 v{self.B_XR}, {XO_BASE}, v{self.B_XR0}")
        e(f"v_add_u32 v{self.B_XR0}, {KV_SLOT}, v{self.B_XR0}")
        for rb in range(4):
            e(f"s_add_u32 s{S_T0}, s{S_P}, {rb}")
            e(f"s_and_b32 s{S_T0}, s{S_T0}, 3")
            e(f"s_lshl_b32 s{S_T0}, s{S_T0}, 10")
            e(f"s_add_u32 s{S_T0}, s{S_T0}, {XO_BASE}")
            e(f"v_lshl_add_u32 v{self.B_OR+rb}, v0, 4, s{S_T0}")
        e(f"v_lshrrev_b32 v{a}, 5, v0")
        e(f"v_lshlrev_b32 v{a}, 8, v{a}")
        e(f"v_and_b32 v{b}, 15, v0")
        e(f"v_lshl_add_u32 v{a}, v{b}, 4, v{a}")
        e(f"v_bfe_u32 v{b}, v0, 4, 1")
        e(f"v_lshl_add_u32 v{a}, v{b}, 3, v{a}")
        e(f"v_add_u32 v{self.B_QW}, s{S_WLDS}, v{a}")
        e(f"v_mov_b32 v{self.B_LANE}, v0")
        e(f"v_min_u32 v{self.B_TA}, 27, v0")
        e(f"s_mul_i32 s{S_T0}, s{S_W}, 28")
        e(f"v_add_u32 v{self.B_TA}, s{S_T0}, v{self.B_TA}")
        e(f"v_lshlrev_b32 v{self.B_TA}, 12, v{self.B_TA}")
        e(f"s_lshl_b32 s{S_T0}, s{S_B}, 7")
        e(f"v_add_u32 v{self.B_TA}, s{S_T0}, v{self.B_TA}")
        for pc in range(1, 4):
            e(f"v_add_u32 v{self.B_VWO4+pc}, {(16*(pc >> 1) + 8*(pc & 1))*896 - 1024*pc}, v{self.B_VWO4}")

    def xloc(self, item, xp):
        if item == 1:
            return XO_BASE + (xp & 1) * X_SLOT
        if xp < 5:
            return KV_SLOT + xp * X_SLOT
        return XO_BASE + (xp - 5) * X_SLOT

    def dma(self, lds_s, lds_imm, g_s, g_imm, vaddr, srd, tag, nt=False):
        def emit():
            e = self.e
            e(f"s_add_u32 m0, s{lds_s}, {lds_imm}")
            e(f"s_add_u32 s{S_T0}, s{g_s}, {g_imm}")
            e(f"buffer_load_dwordx4 v{vaddr}, {sr(srd,4)}, s{S_T0} offen{' nt' if nt else ''} lds")
            self.vmq.append(tag)
        return emit

    def H_ops(self, n):
        item, ph = n >> 4, n & 15
        slot = n & 1
        ops = []
        if self.noH:
            return ops
        for k in range(8):
            if ph < 8:
                ops.append(self.dma(S_KLDS, slot*KV_SLOT + k*1056, S_KR + (ph & 3), item*262144 + (ph >> 2)*131072 + k*4096,
                                    self.B_VK, S_K, f"H{n}", nt=True))
            else:
                c, half = (ph - 8) >> 1, ph & 1
                ops.append(self.dma(S_VLB, slot*KV_SLOT + k*1024, S_VC + c, item*262144 + half*131072 + k*16384,
                                    self.B_VV, S_V, f"H{n}", nt=True))
        return ops

    def X_ops(self, xp, loc, tag, nt=False):
        return [self.dma(S_XLDS, loc + k*1088, S_XG, k*7168 + xp*128, self.B_VX, S_X, tag, nt=nt) for k in range(2)]

    def W_ops(self, wd, hs):
        ks, cbk = hs >> 1, hs & 1
        ops = []
        if self.noW and wd[:2] != ('Q', 0):
            return ops
        if wd[0] == 'Q':
            _, item, xp = wd
            g = 32*(2*xp + ks)*8192 + item*1024 + cbk*128
            vb, srd, gs = self.B_VWQ4, S_WQ, S_WCOL
        else:
            _, item, c, j = wd
            g = (item*512 + 256*j + 32*ks)*896 + cbk*128
            vb, srd, gs = self.B_VWO4, S_WO, S_WR + c
        for pc in range(4):
            def emit(pc=pc):
                e = self.e
                if pc == 0:
                    e(f"s_add_u32 m0, s{S_WLDS}, {hs*4096}")
                    e(f"s_add_u32 s{S_T0}, s{gs}, {g}")
                e(f"buffer_load_dwordx4 v{vb+pc}, {sr(srd,4)}, s{S_T0} offen offset:{pc*1024}{' nt' if self.wq0nt and wd[:2] == ('Q', 0) else ''} lds")
                self.vmq.append((wd, hs))
            ops.append(emit)
        return ops

    def wo_touch(self, nt):
        ops = []
        for item in self.hto:
            def tch(item=item):
                self.e(f"s_mov_b32 s{S_T0}, {item*458752}")
                self.e(f"buffer_load_dword v{self.B_TD}, v{self.B_TA}, {sr(S_WO,4)}, s{S_T0} offen{' nt' if nt else ''}")
                self.vmq.append("T")
            ops.append(tch)
        return ops

    def vmwait(self, need, extra=""):
        idx = -1
        for i, t in enumerate(self.vmq):
            if t in need:
                idx = i
        if idx < 0:
            if extra:
                self.e(f"s_waitcnt {extra}")
            return
        n = len(self.vmq) - 1 - idx
        assert n <= 63, n
        self.e(f"s_waitcnt vmcnt({n}) {extra}".rstrip())
        self.vmq = self.vmq[idx+1:]

    def barB_(self, name):
        sel = 10 <= self.curn <= 16 or 26 <= self.curn <= 32
        if sel:
            self.stamp(self.B_ST, f"@a{name}{self.curn}")
        self.e("s_barrier")
        if sel:
            self.stamp(self.B_ST, f"@{name}{self.curn}")
        self.barB[self.path].append(name)
        if self.prof != 2 or self.curn in self.fine or self.curn - 1 in self.fine:
            self.stamp(self.B_ST, name + str(self.curn))

    def hs_list(self, wd):
        if wd[0] == 'O' and self.path == 'w3':
            return [0, 2]
        return [0, 1, 2, 3]

    def bf_reads(self, wd, hs):
        ks = hs >> 1
        e = self.e
        ops = []
        for cb4 in range(4):
            d = ar(self.B_BF + 16*ks + 4*cb4, 4)
            if wd[0] == 'Q':
                loc = self.xloc(wd[1], wd[2])
                reg = self.B_XR if loc >= XO_BASE else self.B_XR0
                off = (loc - XO_BASE if loc >= XO_BASE else loc - KV_SLOT) + cb4*2176 + ks*64
            else:
                reg = self.B_OR + cb4
                off = (2*wd[3] + ks)*4096
            ops.append(lambda d=d, off=off, reg=reg: e(f"ds_read_b128 {d}, v{reg} offset:{off}"))
        return ops

    def w_reads(self, hs, i):
        e = self.e
        ops = []
        for u in range(4):
            for t in range(2):
                d = ar(16*(i & 1) + 4*u + 2*t, 2)
                off = hs*4096 + t*2048
                ops.append(lambda d=d, off=off, u=u: e(f"ds_read_b64_tr_b16 {d}, v{self.B_WT+u} offset:{off}"))
        return ops

    def needs_ob(self, st):
        wd, hs = st
        if self.spread and wd[:3] == ('O', 0, 3):
            return False
        return wd[0] == 'O' and wd[3] == 0 and hs == 0

    @staticmethod
    def bf_preloaded(st):
        wd, hs = st
        return wd[0] == 'O' and wd[3] == 1 and hs == 2

    def run_steps(self, steps, per_step, after=None, upfront=()):
        e = self.e
        if self.boost:
            e(f"s_setprio {self.boost}")
        if self.wpre != steps[0]:
            self.vmwait([steps[0]])
            for op in self.w_reads(steps[0][1], 0):
                op()
        if self.needs_ob(steps[0]):
            for op in upfront:
                op()
            upfront = ()
            self.barB_("OB")
        if not self.bf_preloaded(steps[0]):
            for op in self.bf_reads(*steps[0]):
                op()
        for op in upfront:
            op()
        if self.boost:
            e(f"s_setprio {self.prioB}")
        for i, (wd, hs) in enumerate(steps):
            ks, cbk = hs >> 1, hs & 1
            others = []
            nx = steps[i+1] if i + 1 < len(steps) else None
            if nx:
                self.vmwait([nx], "lgkmcnt(0)")
                if (nx[1] & 1) == 0 and not self.needs_ob(nx):
                    others += self.bf_reads(*nx)
                others += self.w_reads(nx[1], i + 1)
            else:
                e("s_waitcnt lgkmcnt(0)")
                if after is not None and self.bf_preloaded(after):
                    others += self.bf_reads(*after)
            if self.prof == 2 and self.curn in self.fine:
                self.stamp(self.B_ST, f"s{i}")
            others += per_step(i)
            zero = ks == 0 and ((wd[0] == 'Q' and wd[2] == 0) or wd == ('O', 0, 0, 0))
            k = 0
            for u in range(4):
                for cb4 in range(4):
                    d = vr(64*cbk + 16*u + 4*cb4, 4)
                    if not (self.noBm and wd[:2] != ('Q', 0)):
                        e(f"v_mfma_f32_16x16x32_bf16 {d}, {ar(16*(i&1)+4*u,4)}, {ar(self.B_BF+16*ks+4*cb4,4)}, {0 if zero else d}")
                    if k < len(others):
                        others[k](); k += 1
            while k < len(others):
                others[k](); k += 1
            if nx and self.needs_ob(nx):
                if self.boost:
                    e(f"s_setprio {self.boost}")
                self.barB_("OB")
                for op in self.bf_reads(*nx):
                    op()
                if self.boost:
                    e(f"s_setprio {self.prioB}")
        if after is not None and self.bf_preloaded(after):
            e("s_waitcnt lgkmcnt(0)")

    def q_ops(self, cbk):
        e = self.e
        t = self.B_TMP
        ops = []
        for u in range(4):
            for cb4 in range(4):
                def op(u=u, cb4=cb4):
                    a = 64*cbk + 16*u + 4*cb4
                    d = t + 2*((4*u + cb4) % 8)
                    e(f"v_cvt_pk_bf16_f32 v{d}, v{a}, v{a+1}")
                    e(f"v_cvt_pk_bf16_f32 v{d+1}, v{a+2}, v{a+3}")
                    off = (cb4*4 + 2*cbk + (u >> 1))*1024 + (u & 1)*512
                    e(f"ds_write_b64 v{self.B_QW}, {vr(d,2)} offset:{off}")
                ops.append(op)
        return ops

    def q_write(self, cbks=(0, 1)):
        e = self.e
        if cbks == (0, 1):
            e("s_nop 7")
        for cbk in cbks:
            for op in self.q_ops(cbk):
                op()
        e("s_waitcnt lgkmcnt(0)")

    def sched(self, n):
        r = self.sched0(n)
        if self.drop and n < 32 and len(r) == 4 and self.dropr[0] <= n <= self.dropr[1]:
            if self.drop == 1:
                r = [r[0], r[2], r[3]] if r[0][0][0] == 'O' else r[:3]
            else:
                r = [r[0], r[2]]
        return r

    def sched0(self, n):
        cbks = (0,) if self.path == 'w3' else (0, 1)
        if 1 <= n <= 7:
            return [(('Q', 1, n - 1), hs) for hs in range(4)]
        r = []
        for item, base in ((0, 10), (1, 26)):
            for kap in range(16):
                per = base + (kap + self.shift) // 2
                if self.spread and item == 0 and kap >= 12:
                    per = 17 + (kap - 12)
                if min(per, 32) == n:
                    r += [(('O', item, kap >> 2, (kap >> 1) & 1), 2*(kap & 1) + cbk) for cbk in cbks]
        return r

    def periodB(self, n):
        e = self.e
        self.curn = n
        steps = self.sched(n)
        nxt = self.sched(n + 1) if n < 32 else []
        self.vmwait([f"H{n}", f"X1_{n-1}"])
        self.barB_("KV0" if n == 0 else "KV")
        if n == 0 and self.hA:
            self.barB_("HX")
        hx = []
        if self.bto and n == self.tp1:
            def tch():
                e(f"s_mov_b32 s{S_T0}, 458752")
                e(f"buffer_load_dword v{self.B_TD}, v{self.B_TA}, {sr(S_WO,4)}, s{S_T0} offen nt")
                e("s_waitcnt vmcnt(0)")
                self.vmq.clear()
                e(f"buffer_load_dword v{self.B_TD}, v{self.B_TA}, {sr(S_WO,4)}, s{S_T0} offen")
                self.vmq.append("T")
            hx.append(tch)
        if not self.hA:
            if n + 1 <= 31:
                hx += self.H_ops(n + 1)
            if n <= 6:
                hx += self.X_ops(n, self.xloc(1, n), f"X1_{n}", self.x2nt)
        if not steps:
            for op in hx:
                op()
        if n == 8:
            self.q_write()
        if n in (9, 25):
            self.barB_("QB2")
        if 19 <= n <= 24 and not self.bto and 1 not in self.hto:
            ks = [self.wo1A + ((56 - self.wo1A)*k)//6 for k in range(7)]
            self.stouch_wo(1, ks[n - 19], ks[n - 18])
        if n == 31:
            nxt_load = nxt[:len({hs for _, hs in nxt})]
        else:
            nxt_load = nxt
        todo = list(nxt_load)
        if steps:
            early = [self.nearlyQ if steps[0][0][0] == 'Q' else self.nearlyO]
            def per(i):
                if n == 32:
                    rest = [st for st in steps[i+1:] if st[1] == steps[i][1]]
                    if self.tailov and self.path == 'main' and i == len(steps) - 2:
                        return [self.pub_setup]
                    if self.tailov and self.path == 'main' and i == len(steps) - 1:
                        return [lambda: None]*3 + self.pub_ops(0)
                    return self.W_ops(*rest[0]) if rest else []
                free = {hs for _, hs in steps[:i+1-self.lag]} | ({0, 1, 2, 3} - {hs for _, hs in steps})
                r = []
                if inter and i < 2:
                    nh = (len(hx) + 1)//2 if (i == 0 and len(steps) > 2) else len(hx)
                    r += hx[:nh]
                    del hx[:nh]
                while todo and todo[0][1] in free and (early[0] > 0 or i >= self.rin):
                    r += self.W_ops(*todo.pop(0))
                    early[0] -= 1
                return r
            inter = self.hint and self.bf_preloaded(steps[0])
            self.run_steps(steps, per, nxt[0] if nxt else None, [] if inter else hx)
        if self.prof == 2 and self.curn in self.fine:
            self.stamp(self.B_ST, "E")
        for st in todo:
            for op in self.W_ops(*st):
                op()
        if self.prof == 2 and self.curn in self.fine:
            self.stamp(self.B_ST, "P")
        if self.pre_rd and nxt and self.bf_preloaded(nxt[0]):
            self.vmwait([f"H{n+1}", nxt[0]])
            for op in self.w_reads(nxt[0][1], 0):
                op()
            self.wpre = nxt[0]

    def epilogue_v1(self):
        e = self.e
        t = self.B_TMP
        e("s_nop 7")
        e(f"v_lshlrev_b32 v{t}, 4, v{self.B_LANE}")
        e(f"s_lshl_b32 s{S_T1}, s{S_WG}, 17")
        e(f"s_lshl_b32 s{S_T0}, s{S_W}, 15")
        e(f"s_add_u32 s{S_T1}, s{S_T1}, s{S_T0}")
        for cbk in range(1 if self.path == 'w3' else 2):
            for u in range(4):
                e(f"s_add_u32 s{S_T0}, s{S_T1}, {(cbk*4+u)*4096}")
                for cb4 in range(4):
                    e(f"buffer_store_dwordx4 {vr(64*cbk+16*u+4*cb4,4)}, v{t}, {sr(S_WS,4)}, s{S_T0} offen offset:{cb4*1024}")

    def pub_setup(self):
        e = self.e
        slot = 32768 if self.f32 else 16384
        e(f"v_lshlrev_b32 v{self.B_TMP}, 4, v{self.B_LANE}")
        e(f"s_and_b32 s{S_T1}, s{S_WG}, 0xfc")
        e(f"s_mul_i32 s{S_T1}, s{S_T1}, {4*slot}")
        e(f"s_mul_i32 s{S_T0}, s{S_W}, {slot // 4}")
        e(f"s_add_u32 s{S_T1}, s{S_T1}, s{S_T0}")
        e(f"s_mul_i32 s2, s{S_P}, {slot}")
        e(f"s_add_u32 s2, s2, s{S_T1}")
        for rb in (1, 2, 3):
            e(f"s_add_u32 s{S_T0}, s{S_P}, {rb}")
            e(f"s_and_b32 s{S_T0}, s{S_T0}, 3")
            e(f"s_mul_i32 s{S_T0}, s{S_T0}, {4*slot}")
            e(f"s_add_u32 s{S_KR+rb}, s{S_T0}, s2")

    def pub_ops(self, cbk):
        e = self.e
        L16, D, fl = self.B_TMP, self.B_TMP + 4, self.pfl
        ops = []
        if self.f32:
            for u in range(4):
                for rb in (1, 2, 3):
                    def op(u=u, rb=rb):
                        e(f"s_add_u32 s{S_T0}, s{S_KR+rb}, {cbk*4096}")
                        e(f"buffer_store_dwordx4 {vr(64*cbk+16*u+4*rb,4)}, v{L16}, {sr(S_WS,4)}, s{S_T0} offen offset:{u*1024} {fl}")
                    ops.append(op)
            return ops
        n = 0
        for u2 in range(2):
            for rb in (1, 2, 3):
                d = D + 4*(n % 3); n += 1
                a0 = 64*cbk + 32*u2 + 4*rb
                ops.append(lambda d=d, a0=a0: (e(f"v_cvt_pk_bf16_f32 v{d}, v{a0}, v{a0+1}"), e(f"v_cvt_pk_bf16_f32 v{d+1}, v{a0+2}, v{a0+3}")))
                ops.append(lambda d=d, a0=a0, rb=rb, u2=u2: (e(f"v_cvt_pk_bf16_f32 v{d+2}, v{a0+16}, v{a0+17}"), e(f"v_cvt_pk_bf16_f32 v{d+3}, v{a0+18}, v{a0+19}"),
                           e(f"buffer_store_dwordx4 {vr(d,4)}, v{L16}, {sr(S_WS,4)}, s{S_KR+rb} offen offset:{(2*cbk+u2)*1024} {fl}")))
        return ops

    def epilogue_fused(self):
        e = self.e
        t = self.B_TMP
        L16, OA = t, t + 1
        D = t + 4
        ncbk = 1 if self.path == 'w3' else 2
        slot = 32768 if self.f32 else 16384
        self.stamp(self.B_ST)
        ov = self.tailov and ncbk == 2
        if not ov:
            self.pub_setup()
        e("s_nop 7")
        for cbk in range(1 if ov else 0, ncbk):
            for op in self.pub_ops(cbk):
                op()
        e(f"v_and_b32 v{OA}, 15, v{self.B_LANE}")
        e(f"v_mul_u32_u24 v{OA}, 1792, v{OA}")
        e(f"v_lshrrev_b32 v{t+2}, 4, v{self.B_LANE}")
        e(f"v_lshl_add_u32 v{OA}, v{t+2}, 3, v{OA}")
        e("s_waitcnt vmcnt(0)")
        e("s_barrier")
        self.stamp(self.B_ST)
        if self.path == 'main':
            e(f"s_cmp_eq_u32 s{S_W}, 0")
            e("s_cbranch_scc0 L_nopoll")
            e(f"v_add_u32 v{self.B_FOUT}, 1, v{self.B_FOUT}")
            e("s_mov_b64 exec, 15")
            e(f"buffer_store_dword v{self.B_FOUT}, v{self.B_FAO}, {sr(S_WS,4)}, 0 offen sc1")
            e(f"s_mov_b32 s{S_CH}, 0")
            e.lab("L_poll")
            e(f"buffer_load_dword v{t+2}, v{self.B_FAI}, {sr(S_WS,4)}, 0 offen sc1")
            e(f"s_add_u32 s{S_CH}, s{S_CH}, 1")
            e("s_waitcnt vmcnt(0)")
            e(f"v_cmp_eq_u32 vcc, v{t+2}, v{self.B_FIN}")
            e("s_nop 0")
            e("s_cbranch_vccz L_polled")
            e(f"s_cmp_lt_u32 s{S_CH}, 0x20000")
            e("s_cbranch_scc1 L_poll")
            e.lab("L_polled")
            e("s_mov_b64 exec, -1")
            e.lab("L_nopoll")
        e("s_barrier")
        self.stamp(self.B_ST)
        e(f"s_mul_i32 s2, s{S_P}, {4*slot}")
        e(f"s_add_u32 s2, s2, s{S_T1}")
        for rb in (1, 2, 3):
            e(f"s_add_u32 s{S_T0}, s{S_P}, {rb}")
            e(f"s_and_b32 s{S_T0}, s{S_T0}, 3")
            e(f"s_mul_i32 s{S_T0}, s{S_T0}, {slot}")
            e(f"s_add_u32 s{S_T0}, s{S_T0}, s2")
            for cbk in range(ncbk):
                if self.f32:
                    if cbk:
                        e(f"s_add_u32 s{S_T0}, s{S_T0}, 4096")
                    for u in range(4):
                        e(f"buffer_load_dwordx4 {vr(64*cbk+16*u+4*rb,4)}, v{L16}, {sr(S_WS,4)}, s{S_T0} offen offset:{u*1024} {self.lfl}")
                else:
                    for u2 in range(2):
                        e(f"buffer_load_dwordx4 {vr(64*cbk+32*u2+4*rb,4)}, v{L16}, {sr(S_WS,4)}, s{S_T0} offen offset:{(2*cbk+u2)*1024} {self.lfl}")
        e(f"s_mul_i32 s2, s{S_B}, {64*1792}")
        e(f"s_mul_i32 s3, s{S_P}, {16*1792}")
        e(f"s_add_u32 s2, s2, s3")
        e(f"s_mul_i32 s3, s{S_BR}, 896")
        e(f"s_add_u32 s2, s2, s3")
        e(f"s_add_u32 s2, s2, s{S_WCOL}")
        e("s_waitcnt vmcnt(0)")
        for cbk in range(ncbk):
            for u in range(4):
                a = 64*cbk + 16*u
                for rb in (1, 2, 3):
                    if self.f32:
                        for r in range(4):
                            e(f"v_add_f32 v{a+r}, v{a+r}, v{a+4*rb+r}")
                    else:
                        src = 64*cbk + 32*(u >> 1) + 4*rb + 2*(u & 1)
                        for h in range(2):
                            e(f"v_lshlrev_b32 v{D+2*h}, 16, v{src+h}")
                            e(f"v_and_b32 v{D+2*h+1}, 0xffff0000, v{src+h}")
                        e(f"v_pk_add_f32 {vr(a,2)}, {vr(a,2)}, {vr(D,2)}")
                        e(f"v_pk_add_f32 {vr(a+2,2)}, {vr(a+2,2)}, {vr(D+2,2)}")
                e(f"v_cvt_pk_bf16_f32 v{a}, v{a}, v{a+1}")
                e(f"v_cvt_pk_bf16_f32 v{a+1}, v{a+2}, v{a+3}")
                e(f"buffer_store_dwordx2 {vr(a,2)}, v{OA}, {sr(S_OUT,4)}, s2 offen offset:{cbk*128+u*32} {self.ofl}".rstrip())

    def endB(self):
        e = self.e
        if self.fuse:
            self.epilogue_fused()
        else:
            self.epilogue_v1()
        if self.prof:
            e("s_waitcnt vmcnt(0)")
            self.stamp(self.B_ST)
            if self.path == 'main':
                e(f"s_cmp_eq_u32 s{S_W}, 0")
                e("s_cbranch_scc0 L_end")
                self.prof_store(self.B_ST, 1, 0)
        e("s_endpgm")

    def streamB(self):
        e = self.e
        e.lab("L_B")
        self.vmq = []
        self.deferred = []
        self.path = 'main'
        self.barB = {'main': [], 'w3': []}
        self.stamp(self.B_ST)
        self.setupB()
        for hs in range(4):
            for op in self.W_ops(('Q', 0, 0), hs):
                op()
        self.setupB2()
        if self.early:
            for xp in range(2, 7):
                for op in self.X_ops(xp, self.xloc(0, xp), "X0b", self.xnt):
                    op()
        self.stamp(self.B_ST)
        self.vmwait(["X0"])
        self.barB_("HB")
        steps = [(('Q', 0, h), hs) for h in range(7) for hs in range(4)]
        H0 = self.H_ops(0)
        def per(i):
            if i % 4 == 3 and self.prof != 2:
                self.stamp(self.B_ST, f"h{i}")
            if i == 6 and self.early:
                assert "X0b" not in self.vmq
                return self.W_ops(*steps[i + 4]) + [lambda: self.barB_("HB2")]
            if i + 4 < 28:
                return self.W_ops(*steps[i + 4])
            if self.hdef is not None:
                tt = self.wo_touch(False)
                return (tt if self.hdef == i else []) + H0[2*(i - 24):2*(i - 24) + 2] + (tt if self.hdef == i + 1 == 28 else [])
            return (self.wo_touch(True) if i == 24 else []) + H0[2*(i - 24):2*(i - 24) + 2]
        def per2(i):
            return per(i) + (self.q_ops(0) if self.qov and i == 27 else [])
        self.run_steps(steps, per2)
        self.q_write((1,) if self.qov else (0, 1))
        for op in (self.wo_touch(False) if self.hdef is None else []):
            op()
        self.barB_("QB1")
        for n in range(9):
            self.periodB(n)
        e(f"s_cmp_eq_u32 s{S_W}, 3")
        e("s_cbranch_scc1 L_B3")
        save = list(self.vmq)
        assert not self.deferred
        self.barB['w3'] = list(self.barB['main'])
        for n in range(9, 33):
            self.periodB(n)
        self.endB()
        e.lab("L_B3")
        self.path = 'w3'
        self.vmq = save
        self.deferred = []
        for n in range(9, 33):
            self.periodB(n)
        self.endB()

    def reduce_kernel(self):
        e = self.e
        e(".globl red_kernel")
        e(".p2align 8")
        e(".type red_kernel,@function")
        e.lab("red_kernel")
        e("s_cmp_ge_u32 s2, 1792")
        e("s_cbranch_scc1 L_rend")
        e("s_load_dwordx2 s[4:5], s[0:1], 96")
        e("s_load_dwordx2 s[8:9], s[0:1], 80")
        e("s_mul_hi_u32 s12, s2, 153391690")
        e("s_mul_i32 s13, s12, 28")
        e("s_sub_u32 s13, s2, s13")
        e("s_and_b32 s14, s12, 1")
        e("s_lshr_b32 s15, s12, 1")
        e("s_lshl_b32 s16, s15, 3")
        e("s_lshl_b32 s17, s14, 2")
        e("s_add_u32 s16, s16, s17")
        e("s_lshl_b32 s16, s16, 17")
        e("s_lshl_b32 s17, s13, 12")
        e("s_add_u32 s16, s16, s17")
        e("v_lshlrev_b32 v1, 4, v0")
        e("s_mov_b32 s6, 67108864")
        e("s_mov_b32 s7, 0x20000")
        e("s_mov_b32 s10, 3670016")
        e("s_mov_b32 s11, 0x20000")
        e("s_waitcnt lgkmcnt(0)")
        for p in range(4):
            e(f"buffer_load_dwordx4 {vr(4+4*p,4)}, v1, s[4:7], s16 offen")
            e("s_add_u32 s16, s16, 131072")
        e("v_lshrrev_b32 v2, 6, v0")
        e("v_lshlrev_b32 v2, 4, v2")
        e("v_and_b32 v3, 15, v0")
        e("v_add_u32 v2, v2, v3")
        e("v_mul_u32_u24 v2, 1792, v2")
        e("v_bfe_u32 v3, v0, 4, 2")
        e("v_lshl_add_u32 v2, v3, 3, v2")
        e("s_mul_i32 s15, s15, 114688")
        e("s_mul_i32 s14, s14, 896")
        e("s_add_u32 s15, s15, s14")
        e("s_lshl_b32 s13, s13, 5")
        e("s_add_u32 s15, s15, s13")
        e("s_waitcnt vmcnt(0)")
        for r in range(4):
            e(f"v_add_f32 v{4+r}, v{4+r}, v{8+r}")
            e(f"v_add_f32 v{12+r}, v{12+r}, v{16+r}")
            e(f"v_add_f32 v{4+r}, v{4+r}, v{12+r}")
        e("v_cvt_pk_bf16_f32 v4, v4, v5")
        e("v_cvt_pk_bf16_f32 v5, v6, v7")
        e("buffer_store_dwordx2 v[4:5], v2, s[8:11], s15 offen")
        e.lab("L_rend")
        e("s_endpgm")

    def build(self):
        e = self.e
        out = [HEADER.rstrip()]
        if self.fuse:
            out.append(f"; @launch grid=(256,1,1) block=(512,1,1) lds={LDS_BYTES}")
        else:
            out.append(f"; @launch kernel={NAME}_kernel grid=(256,1,1) block=(512,1,1) lds={LDS_BYTES}")
            out.append(f"; @launch kernel=red_kernel grid=(1792,1,1) block=(256,1,1) lds=0")
        out.append('.amdgcn_target "amdgcn-amd-amdhsa--gfx950"')
        out.append(".text")
        out.append(f".globl {NAME}_kernel")
        out.append(".p2align 8")
        out.append(f".type {NAME}_kernel,@function")
        out.append(f"{NAME}_kernel:")
        self.prologue()
        self.streamB()
        self.path = None
        e.lab("L_A")
        self.streamA()
        e.lab("L_end")
        e("s_endpgm")
        if not self.fuse:
            self.reduce_kernel()
        assert self.barA == self.barB['main'] == self.barB['w3'], (self.barA, self.barB)
        if self.prof:
            out.insert(1, f"; NST {44 if self.prof == 4 else len(self.barA)+2} {len(self.namesB)} " + " ".join(self.namesB))
        out.append(e.text())
        out.append('.section .rodata,"a"')
        def kd(name, v, s, acc):
            return f""".p2align 6
.amdhsa_kernel {name}
  .amdhsa_next_free_vgpr {v}
  .amdhsa_next_free_sgpr {s}
  .amdhsa_accum_offset {acc}
  .amdhsa_group_segment_fixed_size 0
  .amdhsa_kernarg_size 104
  .amdhsa_user_sgpr_count 2
  .amdhsa_user_sgpr_kernarg_segment_ptr 1
  .amdhsa_system_sgpr_workgroup_id_x 1
.end_amdhsa_kernel"""
        out.append(kd(f"{NAME}_kernel", 256, 96, 176))
        if not self.fuse:
            out.append(kd("red_kernel", 24, 32, 24))
        return "\n".join(out) + "\n"


if __name__ == "__main__":
    kw = {}
    path = None
    for a in sys.argv[1:]:
        if "=" in a:
            k, v = a.split("=")
            kw[k] = eval(v)
        else:
            path = a
    txt = Gen(**kw).build()
    open(path or f"cdna_kernels/{NAME}.s", "w").write(txt)
    print("lines", txt.count("\n"), "bytes", len(txt))
```

```python
import sys, math

NAME = "concat_heads__gqa_block_cached__gqa_block_cached__near_ridge"
HEADER = open("cdna_kernels/%s.s.ref" % NAME).read().split("; Override launch")[0]

KV_SLOT = 33792
W_BASE = KV_SLOT + 5 * 8704
XO_BASE = W_BASE + 65536
X_SLOT = 8704
FLAG_BASE = 0x2800000
LDS_BYTES = XO_BASE + 2 * X_SLOT

S_X, S_K, S_V, S_WQ, S_WO, S_OUT, S_WS = 4, 8, 12, 16, 20, 24, 28
S_W = 60
S_B = 61
S_P = 62
S_BR = 63
S_T0, S_T1 = 64, 65
S_WLDS = 66
S_WCOL = 67
S_KLDS = 68
S_KG = 69
S_VG = 70
S_KR, S_VC, S_WR = 32, 36, 40
S_VLB = 77
S_XLDS = 71
S_XG = 72
S_HK, S_HV, S_KL, S_VL, S_HVC = 66, 67, 68, 69, 70
S_HS = 32
S_HM, S_HGS = 36, 37
S_C = 73
S_THR = 74
S_ITEM = 75
S_CH = 76
S_RET = 78
S_STAMP = 80
S_SIDX = 82
S_WG = 83
S_DBG = 88
S_JUNK = 92


class Em:
    def __init__(self):
        self.l = []
    def __call__(self, s):
        self.l.append(s)
    def lab(self, s):
        self.l.append(s + ":")
    def text(self):
        return "\n".join(self.l)


def vr(a, n=1):
    return f"v{a}" if n == 1 else f"v[{a}:{a+n-1}]"
def ar(a, n=1):
    return f"a{a}" if n == 1 else f"a[{a}:{a+n-1}]"
def sr(a, n=1):
    return f"s{a}" if n == 1 else f"s[{a}:{a+n-1}]"


class Gen:
    def __init__(self, prof=False, prioA=1, npostQ=10, npostO=12, npre=6, fuse=True, pfl='sc1', f32=False, xnt=False, rin=0, nearlyQ=0, nearlyO=0, shift=1, lag=1, boost=2, hA=False, obf=26, obk=(1, 8), pre1=40, tailov=True, dropr=(0, 99), vt0=1, vto=False, xpromo=False, early=True, pre2=90, bto=False, hto=(), rot=True, qcnt=(3,3,3,3,3,3,3,3,4), o1cnt=(3,3,3,3,3,3,3,3,2,2,2,2), o2cnt=(2,4,4,4,4,4), obe=3, h1h=False, pre3=150, nolt=False, hdef=None, spread=True, pre_rd=True, qov=True, x2nt=True, wq0nt=False, tp1=20, lfl='sc1', ofl='', drop=0, hint=True, wo1A=56, dyn=True, prioB=1, noH=False, noW=False, noSM=False, noBm=False, noAm=False, tnt=False):
        self.e = Em()
        self.prof = prof
        self.prioA = prioA
        self.npostQ, self.npostO, self.npre, self.pfl, self.f32 = npostQ, npostO, npre, pfl, f32
        self.fuse = fuse
        self.qcnt, self.o1cnt, self.o2cnt, self.obe = qcnt, o1cnt, o2cnt, obe
        self.make_sched()
        self.h1h, self.pre3 = h1h, pre3
        self.nolt = nolt
        self.hdef, self.spread, self.pre_rd, self.qov = hdef, spread, pre_rd, qov
        if hdef is not None:
            vto, hto = False, (1,)
        self.hto, self.rot = hto, rot
        self.bto, self.x2nt, self.wq0nt, self.tp1 = bto, x2nt, wq0nt, tp1
        self.early, self.pre2 = early, pre2
        self.xpromo = xpromo
        self.vt0, self.vto, self.lfl, self.ofl = vt0, vto, lfl, ofl
        self.drop = drop
        self.dropr = dropr
        self.obk, self.pre1, self.tailov = obk, pre1, tailov
        self.dyn = dyn
        self.prioB = prioB if dyn else 0
        if dyn:
            prioA, boost = 2, (3 if boost else 0)
            self.prioA = 2
        self.wo1A = wo1A
        self.hA, self.obf, self.hint = hA, obf, hint
        self.lag, self.boost = lag, boost
        self.xnt, self.rin, self.nearlyQ, self.nearlyO, self.shift = xnt, rin, nearlyQ, nearlyO, shift
        self.noH, self.noW, self.noSM, self.noBm, self.noAm = noH, noW, noSM, noBm, noAm
        self.tfl = ' nt' if tnt else ''
        self.barA = []
        self.barB = {}
        self.st2 = {175: 174}
        self.namesB = []
        self.curn = -1
        self.wpre = None
        self.bfl = set()
        self.fine = (3, 4, 12, 13, 14, 29)

    def stamp(self, vreg, name="."):
        e = self.e
        if not self.prof:
            return
        if self.prof in (4, 5) and not name.startswith('@'):
            return
        if self.prof == 4 and getattr(self, 'path', None) is not None:
            return
        if self.prof == 5 and getattr(self, 'path', None) is None:
            return
        if self.prof == 6 and (getattr(self, 'path', None) is None or not (name.startswith('KV') or name in ('.', 'HB-1', 'QB1-1'))):
            return
        if self.prof == 7 and (getattr(self, 'path', None) is None or name not in ('.', 'KV00', 'KV8', 'KV16', 'KV24', 'KV32')):
            return
        if self.prof == 3 and (getattr(self, 'path', None) is None or not (name in ('.', 'HB-1', 'HB2-1', 'QB1-1', 'KV00', 'KV1', 'KV8', 'KV10', 'KV16', 'KV19', 'KV24', 'KV26', 'KV32', 'OB32'))):
            return
        if getattr(self, 'path', None) == 'main':
            self.namesB.append(name)
        e(f"s_memrealtime {sr(S_STAMP,2)}")
        e(f"s_memtime {sr(S_STAMP+4,2)}")
        e("s_waitcnt lgkmcnt(0)")
        e(f"s_mov_b32 m0, s{S_SIDX}")
        e(f"v_writelane_b32 v{vreg}, s{S_STAMP}, m0")
        e(f"v_writelane_b32 v{self.st2[vreg]}, s{S_STAMP+4}, m0")
        e(f"s_add_u32 s{S_SIDX}, s{S_SIDX}, 1")

    def prologue(self):
        e = self.e
        e("s_cmp_ge_u32 s2, 256")
        e("s_cbranch_scc1 L_end")
        e("s_load_dwordx16 s[32:47], s[0:1], 0")
        e("s_load_dwordx8 s[48:55], s[0:1], 64")
        e("s_load_dwordx2 s[56:57], s[0:1], 96")
        e(f"v_lshrrev_b32 v1, 6, v0")
        e(f"s_mov_b32 s{S_WG}, s2")
        e(f"s_and_b32 s{S_P}, s2, 3")
        e(f"v_readfirstlane_b32 s3, v1")
        e(f"s_lshr_b32 s{S_B}, s2, 3")
        e(f"s_bfe_u32 s{S_BR}, s2, 0x10002")
        e(f"s_mov_b32 s{S_SIDX}, 0")
        e("v_and_b32 v0, 63, v0")
        e(f"s_and_b32 s{S_W}, s3, 3")
        e("s_waitcnt lgkmcnt(0)")
        e("s_bitcmp1_b32 s2, 2")
        e(f"s_cselect_b64 {sr(S_X,2)}, s[42:43], s[32:33]")
        e(f"s_cselect_b64 {sr(S_K,2)}, s[44:45], s[34:35]")
        e(f"s_cselect_b64 {sr(S_V,2)}, s[46:47], s[36:37]")
        e(f"s_cselect_b64 {sr(S_WQ,2)}, s[48:49], s[38:39]")
        e(f"s_cselect_b64 {sr(S_WO,2)}, s[50:51], s[40:41]")
        def addbase(srd, sreg):
            e(f"s_add_u32 s{srd}, s{srd}, s{sreg}")
            e(f"s_addc_u32 s{srd+1}, s{srd+1}, 0")
        e(f"s_mul_i32 s{S_T0}, s{S_B}, 57344")
        addbase(S_X, S_T0)
        e(f"s_lshl_b32 s{S_T0}, s{S_B}, 21")
        e(f"s_lshl_b32 s{S_T1}, s{S_P}, 19")
        e(f"s_add_u32 s{S_T0}, s{S_T0}, s{S_T1}")
        addbase(S_K, S_T0)
        addbase(S_V, S_T0)
        e(f"s_lshl_b32 s{S_T0}, s{S_P}, 11")
        addbase(S_WQ, S_T0)
        e(f"s_sub_u32 s{S_WQ+2}, 3670016, s{S_T0}")
        e(f"s_mul_i32 s{S_T0}, s{S_P}, 917504")
        addbase(S_WO, S_T0)
        e(f"s_mov_b32 s{S_X+2}, 57344")
        e(f"s_mov_b32 s{S_K+2}, 524288")
        e(f"s_mov_b32 s{S_V+2}, 524288")
        e(f"s_mov_b32 s{S_WO+2}, 917504")
        e(f"s_mov_b64 {sr(S_OUT,2)}, s[52:53]")
        e(f"s_mov_b32 s{S_OUT+2}, 3670016")
        e(f"s_mov_b64 {sr(S_WS,2)}, s[56:57]")
        e(f"s_mov_b32 s{S_WS+2}, 67108864")
        e(f"s_mov_b64 {sr(S_DBG,2)}, s[54:55]")
        e(f"s_mov_b32 s{S_DBG+2}, 256")
        for s in (S_X, S_K, S_V, S_WQ, S_WO, S_OUT, S_WS, S_DBG):
            e(f"s_mov_b32 s{s+3}, 0x20000")
        e("s_cmp_lt_u32 s3, 4")
        e("s_cbranch_scc1 L_A")

    def tr_addr(self, dst, base_imm=None, base_sreg=None, t0=None, t1=None, t2=None):
        e = self.e
        e(f"v_bfe_u32 v{t0}, v0, 2, 3")
        e(f"v_lshrrev_b32 v{t1}, 5, v0")
        e(f"v_lshlrev_b32 v{t1}, 10, v{t1}")
        e(f"v_lshl_add_u32 v{t1}, v{t0}, 7, v{t1}")
        e(f"v_and_b32 v{t2}, 3, v0")
        e(f"v_lshl_add_u32 v{t1}, v{t2}, 3, v{t1}")
        if base_imm:
            e(f"v_add_u32 v{t1}, {base_imm}, v{t1}")
        if base_sreg is not None:
            e(f"v_add_u32 v{t1}, s{base_sreg}, v{t1}")
        e(f"v_lshrrev_b32 v{t0}, 1, v{t0}")
        for u in range(4):
            e(f"v_xor_b32 v{t2}, {u}, v{t0}")
            e(f"v_lshl_add_u32 v{dst+u}, v{t2}, 5, v{t1}")

    A_P = 0
    A_S = 128
    A_T = 144
    A_KA = 160
    A_VA = 161
    A_OW = 165
    A_VX = 165
    A_VK = 166
    A_VV = 167
    A_NM = 168
    A_L = 170
    A_TS = 172
    A_ST = 175

    def barA_(self, name, times=1):
        if self.prof == 2:
            self.stamp(self.A_ST)
        self.e("s_barrier")
        self.barA.append(name)
        if self.prof != 2:
            self.stamp(self.A_ST)

    def k_read(self, f, slot, tile):
        s, mt = f >> 1, f & 1
        off = slot * KV_SLOT + tile * 16896 + mt * 8448 + s * 64
        self.e(f"ds_read_b128 {ar(64 + 4*(f % 4), 4)}, v{self.A_KA} offset:{off}")

    def v_read(self, f, slot, parts=(0, 1)):
        T, u = f >> 2, f & 3
        b = 64 + 4 * (f % 4)
        off = slot * KV_SLOT + T * 4096
        for t in parts:
            self.e(f"ds_read_b64_tr_b16 {ar(b+2*t,2)}, v{self.A_VA+u} offset:{off+2048*t}")

    def lane16(self, dst, jsh, qsh, base):
        e = self.e
        e(f"v_mbcnt_lo_u32_b32 v{dst}, -1, 0")
        e(f"v_mbcnt_hi_u32_b32 v{dst}, -1, v{dst}")
        e(f"s_lshr_b32 s{S_T0}, s{S_W}, 1")
        e(f"s_and_b32 s{S_T1}, s{S_W}, 1")
        e(f"s_lshl_b32 s{S_T0}, s{S_T0}, {jsh}")
        e(f"s_lshl_b32 s{S_T1}, s{S_T1}, {qsh}")
        e(f"s_add_u32 s{S_T0}, s{S_T0}, s{S_T1}")
        e(f"s_add_u32 s{S_T0}, s{S_T0}, {base}")
        e(f"v_lshl_add_u32 v{dst}, v{dst}, 4, s{S_T0}")

    def q_read(self):
        e = self.e
        qa = self.A_TS
        self.lane16(qa, 15, 13, W_BASE)
        for s in range(8):
            for cb in range(2):
                off = (s >> 2) * 16384 + cb * 4096 + (s & 3) * 1024
                e(f"ds_read_b128 {ar(8*s+4*cb,4)}, v{qa} offset:{off}")

    def dma_voffs(self, VX, VK, VV, VWO, VWQ, a):
        e = self.e
        b, c, d = a + 1, a + 2, a + 3
        e(f"v_lshrrev_b32 v{a}, 3, v0")
        e(f"v_bfe_u32 v{b}, v0, 4, 2")
        e(f"v_and_b32 v{c}, 7, v0")
        e(f"v_xor_b32 v{VX}, v{c}, v{b}")
        e(f"v_lshlrev_b32 v{VX}, 4, v{VX}")
        e(f"v_mul_u32_u24 v{d}, 896, v{a}")
        e(f"v_add_u32 v{VX}, v{VX}, v{d}")
        yield
        e(f"v_lshlrev_b32 v{b}, 1, v{b}")
        e(f"v_xor_b32 v{c}, v{c}, v{b}")
        e(f"v_lshlrev_b32 v{c}, 4, v{c}")
        if VWO is not None:
            e(f"v_add_u32 v{VWO}, v{c}, v{d}")
        if VV is not None:
            e(f"v_lshl_add_u32 v{VV}, v{a}, 11, v{c}")
        e(f"v_lshrrev_b32 v{b}, 5, v0")
        if VWQ is not None:
            e(f"v_and_b32 v{d}, 3, v{a}")
            e(f"v_lshl_add_u32 v{VWQ}, v{d}, 13, v{c}")
            e(f"v_lshl_add_u32 v{VWQ}, v{b}, 16, v{VWQ}")
        e(f"v_and_b32 v{c}, 31, v0")
        e(f"v_xor_b32 v{c}, v{c}, v{b}")
        e(f"v_lshlrev_b32 v{c}, 4, v{c}")
        e(f"v_lshl_add_u32 v{VK}, v{b}, 11, v{c}")
        yield

    def A_Hops(self, kind, slot, gs, gimm):
        e = self.e
        ops = []
        if self.noH or not self.hA:
            return [lambda pre: None]*8
        for k in range(8):
            def op(pre, k=k):
                if kind == 'K':
                    if pre:
                        e(f"s_add_u32 m0, s{S_KL}, {slot*KV_SLOT + k*1056}")
                        e(f"s_add_u32 s{S_T0}, s{gs}, {gimm + k*4096}")
                    else:
                        e(f"buffer_load_dwordx4 v{self.A_VK}, {sr(S_K,4)}, s{S_T0} offen nt lds")
                elif kind == 'V':
                    if pre:
                        if k % 4 == 0:
                            e(f"s_add_u32 m0, s{S_VL}, {slot*KV_SLOT + k*1024}")
                        e(f"s_add_u32 s{S_T0}, s{gs}, {gimm + k*16384 - (k % 4)*1024}")
                    else:
                        e(f"buffer_load_dwordx4 v{self.A_VV}, {sr(S_V,4)}, s{S_T0} offen offset:{(k%4)*1024} nt lds")
                else:
                    if pre:
                        if k:
                            e(f"s_add_u32 m0, m0, s{S_HM}")
                            e(f"s_add_u32 s{S_T1}, s{S_T1}, s{S_HGS}")
                    else:
                        e(f"buffer_load_dwordx4 v{self.A_NM}, {sr(S_HS,4)}, s{S_T1} offen nt lds")
            ops.append(op)
        return ops

    def xlane(self, op, x, t):
        e = self.e
        e(f"v_mov_b32 v{t}, v{x}")
        e("s_nop 1")
        e(f"v_permlane32_swap_b32 v{t}, v{x}")
        e("s_nop 1")
        e(f"{op} v{x}, v{x}, v{t}")
        e(f"v_mov_b32 v{t}, v{x}")
        e("s_nop 1")
        e(f"v_permlane16_swap_b32 v{t}, v{x}")
        e("s_nop 1")
        e(f"{op} v{x}, v{x}, v{t}")

    def tile_max(self, cb, dst, t):
        e = self.e
        S = self.A_S
        r = [S + 4*cb + k for k in range(4)] + [S + 8 + 4*cb + k for k in range(4)]
        e(f"v_max3_f32 v{dst}, v{r[0]}, v{r[1]}, v{r[2]}")
        e(f"v_max3_f32 v{dst}, v{dst}, v{r[3]}, v{r[4]}")
        e(f"v_max3_f32 v{dst}, v{dst}, v{r[5]}, v{r[6]}")
        e(f"v_max_f32 v{dst}, v{dst}, v{r[7]}")
        self.xlane("v_max_f32", dst, t)

    def softmax(self, T):
        e = self.e
        S, TT, P = self.A_S, self.A_T, self.A_P
        if T == 0:
            for cb in range(2):
                self.tile_max(cb, TT + cb, TT + 2)
                e(f"v_mul_f32 v{self.A_NM+cb}, s{S_C}, v{TT+cb}")
                e(f"v_sub_f32 v{self.A_NM+cb}, 0, v{self.A_NM+cb}")
                e(f"v_mov_b32 v{self.A_L+cb}, 0")
        e.lab(f"L_sm{T}")
        groups = [(0, 0), (0, 1), (1, 0), (1, 1)]
        def fma(gi):
            mt, cb = groups[gi]
            for r in range(4):
                e(f"v_fma_f32 v{TT+4*gi+r}, v{S+8*mt+4*cb+r}, s{S_C}, v{self.A_NM+cb}")
        def exp(gi):
            for r in range(4):
                e(f"v_exp_f32 v{TT+4*gi+r}, v{TT+4*gi+r}")
        def fin(gi):
            mt, cb = groups[gi]
            t = TT + 4*gi
            ts = self.A_TS + cb
            if mt == 0:
                e(f"v_add_f32 v{ts}, v{t}, v{t+1}")
            else:
                e(f"v_add_f32 v{ts}, v{ts}, v{t}")
                e(f"v_add_f32 v{ts}, v{ts}, v{t+1}")
            e(f"v_cvt_pk_bf16_f32 v{P+8*T+4*cb+2*mt}, v{t}, v{t+1}")
            e(f"v_add_f32 v{ts}, v{ts}, v{t+2}")
            e(f"v_cvt_pk_bf16_f32 v{P+8*T+4*cb+2*mt+1}, v{t+2}, v{t+3}")
            e(f"v_add_f32 v{ts}, v{ts}, v{t+3}")
        fma(0); fma(1); exp(0); fma(2); exp(1); fma(3); fin(0); exp(2); fin(1); exp(3); fin(2); fin(3)
        if T > 0:
            e(f"v_max_f32 v{TT}, v{self.A_TS}, v{self.A_TS+1}")
            e(f"v_cmp_lt_f32 vcc, s{S_THR}, v{TT}")
            e("s_nop 0")
            e(f"s_cbranch_vccz L_ok{T}")
            e(f"s_call_b64 {sr(S_RET,2)}, L_rescale")
            e(f"s_branch L_sm{T}")
            e.lab(f"L_ok{T}")
            e(f"s_mov_b32 s{S_THR}, 0x47800000")
        for cb in range(2):
            e(f"v_add_f32 v{self.A_L+cb}, v{self.A_L+cb}, v{self.A_TS+cb}")

    def rescale_routine(self):
        e = self.e
        TT, P = self.A_T, self.A_P
        e.lab("L_rescale")
        for cb in range(2):
            self.tile_max(cb, TT, TT + 2)
            e(f"v_fma_f32 v{TT}, v{TT}, s{S_C}, v{self.A_NM+cb}")
            e(f"v_ceil_f32 v{TT}, v{TT}")
            e(f"v_max_f32 v{TT}, 0, v{TT}")
            e(f"v_sub_f32 v{self.A_NM+cb}, v{self.A_NM+cb}, v{TT}")
            e(f"v_min_f32 v{TT}, 0x43800000, v{TT}")
            e(f"v_cvt_i32_f32 v{TT}, v{TT}")
            e(f"v_sub_u32 v{TT}, 0, v{TT}")
            e(f"v_ldexp_f32 v{self.A_L+cb}, v{self.A_L+cb}, v{TT}")
            for T in range(16):
                for k in range(4):
                    r = P + 8*T + 4*cb + k
                    e(f"v_lshlrev_b32 v{TT+4}, 16, v{r}")
                    e(f"v_and_b32 v{TT+5}, 0xffff0000, v{r}")
                    e(f"v_ldexp_f32 v{TT+4}, v{TT+4}, v{TT}")
                    e(f"v_ldexp_f32 v{TT+5}, v{TT+5}, v{TT}")
                    e(f"v_cvt_pk_bf16_f32 v{r}, v{TT+4}, v{TT+5}")
        e(f"s_mov_b32 s{S_THR}, 0x7f800000")
        e(f"s_setpc_b64 {sr(S_RET,2)}")

    def streamA(self):
        e = self.e
        KA, VA, OW = self.A_KA, self.A_VA, self.A_OW
        self.stamp(self.A_ST)
        if self.prioA:
            e(f"s_setprio {self.prioA}")
        t = self.A_T
        e(f"v_and_b32 v{t+12}, 31, v0")
        e(f"v_min_u32 v{t+12}, 27, v{t+12}")
        e(f"s_mul_i32 s{S_T0}, s{S_W}, 28")
        e(f"v_add_u32 v{t+12}, s{S_T0}, v{t+12}")
        if self.vt0:
            e(f"v_lshlrev_b32 v{t+13}, 15, v{t+12}")
            if self.vt0 == 3:
                e(f"v_lshrrev_b32 v{t+14}, 5, v0")
                e(f"v_lshl_add_u32 v{t+13}, v{t+14}, 10, v{t+13}")
            e(f"s_lshr_b32 s{S_T0}, s{S_B}, 3")
            e(f"s_lshl_b32 s{S_T0}, s{S_T0}, 13")
            e(f"s_and_b32 s{S_T1}, s{S_B}, 7")
            e(f"s_lshl_b32 s{S_T1}, s{S_T1}, 7")
            e(f"s_add_u32 s{S_T0}, s{S_T0}, s{S_T1}")
            e(f"buffer_load_dword v{t+14}, v{t+13}, {sr(S_WQ,4)}, s{S_T0} offen{' nt' if self.vt0 == 2 else ''}")
        else:
            self.stouch_wq(0, 0, 56, 1)
        a, b, c = t + 4, t + 5, t + 6
        e(f"v_bfe_u32 v{a}, v0, 1, 3")
        e(f"v_mul_u32_u24 v{KA}, 1056, v{a}")
        e(f"v_and_b32 v{a}, 1, v0")
        e(f"v_lshl_add_u32 v{KA}, v{a}, 9, v{KA}")
        e(f"v_lshrrev_b32 v{b}, 4, v0")
        e(f"v_xor_b32 v{b}, v{b}, v{a}")
        e(f"v_lshl_add_u32 v{KA}, v{b}, 4, v{KA}")
        self.tr_addr(VA, t0=a, t1=b, t2=c)
        for _ in self.dma_voffs(self.A_VX, self.A_VK, self.A_VV, None, None, t + 8):
            pass
        e(f"s_lshl_b32 s{S_HK}, s{S_W}, 15")
        e(f"s_lshl_b32 s{S_HV}, s{S_W}, 9")
        e(f"s_mul_i32 s{S_KL}, s{S_W}, {8*1056}")
        e(f"s_lshl_b32 s{S_VL}, s{S_W}, 13")
        e(f"s_mul_i32 s{S_XLDS}, s{S_W}, {2*1088}")
        e(f"s_mul_i32 s{S_XG}, s{S_W}, {16*896}")
        e(f"s_mov_b32 s{S_C}, 0x3db8aa3b")
        e(f"s_mov_b32 s{S_THR}, 0x47800000")
        e(f"s_mov_b32 s{S_ITEM}, 0")
        segs = [('q', 56)] if self.vt0 != 3 else []
        if 0 not in self.hto:
            segs.append(('o0', 56))
        if not self.vto and not self.bto and 1 not in self.hto:
            segs.append(('o1', self.wo1A))
        def touch_range(a, b):
            pos = 0
            for kind, n in segs:
                lo, hi = max(a - pos, 0), min(b - pos, n)
                if lo < hi:
                    if kind == 'q':
                        self.stouch_wq(1, lo, hi, 1)
                    else:
                        self.stouch_wo(int(kind[1]), lo, hi)
                pos += n
        touch_range(0, self.pre1)
        self.barA_("HB")
        if self.early:
            touch_range(self.pre1, self.pre2)
            self.barA_("HB2")
            if self.h1h:
                touch_range(self.pre2, self.pre3)
                self.barA_("HB3")
                touch_range(self.pre3, 999)
            else:
                touch_range(self.pre2, 999)
        else:
            touch_range(self.pre1, 999)
        e("s_waitcnt vmcnt(0)")
        if self.xpromo:
            e(f"v_lshlrev_b32 v{t+13}, 7, v0")
            e(f"s_lshl_b32 s{S_T0}, s{S_W}, 13")
            e(f"buffer_load_dword v{t+14}, v{t+13}, {sr(S_X,4)}, s{S_T0} offen")
            e(f"s_add_u32 s{S_T0}, s{S_T0}, 32768")
            e(f"buffer_load_dword v{t+15}, v{t+13}, {sr(S_X,4)}, s{S_T0} offen")
            e("s_waitcnt vmcnt(0)")
        e(f"v_lshlrev_b32 v{self.A_VK}, 12, v{t+12}")
        e(f"s_lshl_b32 s{S_HK}, s{S_B}, 7")
        e(f"s_add_u32 s{S_HK}, s{S_HK}, 458752")
        self.barA_("QB1")
        if self.vto:
            e(f"buffer_load_dword v{self.A_VV}, v{self.A_VK}, {sr(S_WO,4)}, s{S_HK} offen nt")
        self.q_read()
        e("s_waitcnt lgkmcnt(0)")
        self.barA_("KV0")
        for f in range(3):
            self.k_read(f, 0, 0)
        barA_pre = list(self.barA)
        self.barA = []
        e.lab("L_item")
        if self.dyn:
            e(f"s_setprio {self.prioA}")
        S = self.A_S
        for T in range(16):
            slot, tile = (T >> 1) & 1, T & 1
            ph = T >> 1
            hops = []
            if T == 2 and self.vto:
                e(f"s_cmp_eq_u32 s{S_ITEM}, 0")
                e("s_cbranch_scc0 L_nopromo")
                e(f"buffer_load_dword v{self.A_VV}, v{self.A_VK}, {sr(S_WO,4)}, s{S_HK} offen")
                e.lab("L_nopromo")
            if tile == 0:
                hops = self.A_Hops('K', slot ^ 1, S_HK, ((ph + 1) >> 2)*131072 + ((ph + 1) & 3)*512) if ph < 7 else self.A_Hops('V', 0, S_HV, 0)
            e("s_waitcnt lgkmcnt(2)" if T else ("s_waitcnt lgkmcnt(2)"))
            for f in range(16):
                s, mt = f >> 1, f & 1
                d0, d1 = vr(S + 8*mt, 4), vr(S + 8*mt + 4, 4)
                if hops and f % 2 == 0:
                    hops[f >> 1](True)
                if not self.noAm:
                    e(f"v_mfma_f32_16x16x32_bf16 {d0}, {ar(64+4*(f%4),4)}, {ar(8*s,4)}, {d0 if s else 0}")
                if f + 3 < 16:
                    self.k_read(f + 3, slot, tile)
                elif tile == 0:
                    self.k_read(f + 3 - 16, slot, 1)
                if not self.noAm:
                    e(f"v_mfma_f32_16x16x32_bf16 {d1}, {ar(64+4*(f%4),4)}, {ar(8*s+4,4)}, {d1 if s else 0}")
                if hops and f % 2 == 0:
                    hops[f >> 1](False)
                if (T, f) == ((0, self.obe) if self.ob.get(16) == 'early' else self.obk) and 16 in self.ob:
                    e(f"s_cmp_eq_u32 s{S_ITEM}, 0")
                    e("s_cbranch_scc1 L_nobk")
                    e("s_barrier")
                    self.stamp(self.A_ST)
                    e.lab("L_nobk")
                if f < 15:
                    n_out = 2 if (tile == 0 or f + 3 < 16) else 14 - f
                    if tile == 1 and f == 14:
                        e("s_waitcnt vmcnt(0) lgkmcnt(0)" if self.hA else "s_waitcnt lgkmcnt(0)")
                        self.barA_("KV")
                        for g in range(3):
                            if T < 15:
                                self.k_read(g, slot ^ 1, 0)
                            else:
                                self.v_read(g, 0)
                    else:
                        e(f"s_waitcnt lgkmcnt({n_out})")
            if tile == 0 and ph < 7 and self.hA:
                e(f"s_cmp_eq_u32 s{S_ITEM}, 0")
                e(f"s_cbranch_scc0 L_nox{ph}")
                for k in range(2):
                    e(f"s_add_u32 m0, s{S_XLDS}, {self.xloc(1, ph) + k*1088}")
                    e(f"s_add_u32 s{S_T0}, s{S_XG}, {k*7168 + ph*128}")
                    e(f"buffer_load_dwordx4 v{self.A_VX}, {sr(S_X,4)}, s{S_T0} offen lds")
                if ph == 0:
                    e("s_barrier")
                    self.stamp(self.A_ST)
                e.lab(f"L_nox{ph}")
            if self.dyn:
                e("s_setprio 0")
            e("s_nop 1" if T else "s_nop 7")
            if not self.noSM:
                self.softmax(T)
            if self.dyn and T < 15:
                e(f"s_setprio {self.prioA}")
        TT = self.A_T
        for cb in range(2):
            self.xlane("v_add_f32", self.A_L + cb, TT)
            e(f"v_rcp_f32 v{self.A_L+cb}, v{self.A_L+cb}")
        self.lane16(OW, 13, 11, XO_BASE)
        barA_K = list(self.barA)
        self.barA = []
        e(f"s_mov_b32 s{S_CH}, 0")
        e(f"s_mov_b32 s{S_HVC}, s{S_HV}")
        e.lab("L_chunk")
        if self.dyn:
            e(f"s_setprio {self.prioA}")
        O = self.A_S
        for half in range(2):
            if half == 1:
                e(f"s_or_b32 s{S_T0}, s{S_ITEM}, s{S_CH}")
                e(f"s_cbranch_scc1 L_noq2")
                self.q_read()
                e.lab("L_noq2")
                if self.hA:
                    e(f"s_movk_i32 s{S_HM}, 1024")
                    e(f"s_movk_i32 s{S_HGS}, 16384")
                    e(f"s_cmp_eq_u32 s{S_CH}, 3")
                    e(f"s_cselect_b64 {sr(S_HS,2)}, {sr(S_K,2)}, {sr(S_V,2)}")
                    e(f"s_cselect_b32 s{S_HM}, 1056, s{S_HM}")
                    e(f"s_cselect_b32 s{S_HGS}, 4096, s{S_HGS}")
                    e(f"s_cselect_b32 m0, s{S_KL}, s{S_VL}")
                    e(f"s_cselect_b64 vcc, -1, 0")
                    e(f"s_add_u32 s{S_T0}, s{S_HK}, 262144")
                    e(f"s_add_u32 s{S_T1}, s{S_HVC}, 128")
                    e(f"v_cndmask_b32 v{self.A_NM}, v{self.A_VV}, v{self.A_VK}, vcc")
                    e(f"s_cmp_eq_u32 s{S_CH}, 3")
                    e(f"s_cselect_b32 s{S_T1}, s{S_T0}, s{S_T1}")
                    e(f"s_mov_b32 s{S_HS+2}, 524288")
                    e(f"s_mov_b32 s{S_HS+3}, 0x20000")
                hops = self.A_Hops('G', 0, None, None)
            else:
                hops = self.A_Hops('V', 1, S_HVC, 131072)
            e("s_waitcnt lgkmcnt(4)")
            for f in range(32):
                T, u = f >> 2, f & 3
                Tg = 8*half + T
                d0, d1 = vr(O + 8*u, 4), vr(O + 8*u + 4, 4)
                if f < 16 and f % 2 == 0:
                    hops[f >> 1](True)
                if not self.noAm:
                    e(f"v_mfma_f32_16x16x32_bf16 {d0}, {ar(64+4*(f%4),4)}, {vr(self.A_P+8*Tg,4)}, {d0 if Tg else 0}")
                if f + 3 < 32:
                    self.v_read(f + 3, half, (0,))
                if not self.noAm:
                    e(f"v_mfma_f32_16x16x32_bf16 {d1}, {ar(64+4*(f%4),4)}, {vr(self.A_P+8*Tg+4,4)}, {d1 if Tg else 0}")
                if f + 3 < 32:
                    self.v_read(f + 3, half, (1,))
                if f < 16 and f % 2 == 0:
                    hops[f >> 1](False)
                for kind, pos in (('early', self.obe), ('late', self.obf)):
                    mask = sum(1 << (4*it + cc) for it in range(2) for cc in range(1, 4) if self.ob.get(8 + 2*cc + 16*it) == kind)
                    if half == 0 and f == pos and mask:
                        e(f"s_lshl2_add_u32 s{S_T0}, s{S_ITEM}, s{S_CH}")
                        e(f"s_bitcmp1_b32 {mask}, s{S_T0}")
                        e(f"s_cbranch_scc0 L_nob{kind}")
                        e("s_barrier")
                        self.stamp(self.A_ST)
                        e.lab(f"L_nob{kind}")
                if half == 1 and f == (15 if self.hA else 4):
                    e(f"s_cmp_eq_u32 s{S_CH}, 0")
                    e("s_cbranch_scc0 L_nqb")
                    e("s_barrier")
                    self.stamp(self.A_ST)
                    e.lab("L_nqb")
                if f == 30:
                    e("s_waitcnt vmcnt(0) lgkmcnt(0)" if self.hA else "s_waitcnt lgkmcnt(0)")
                    self.stamp(self.A_ST, '@')
                    self.barA_("KV")
                    self.stamp(self.A_ST, '@')
                    if half == 0:
                        for g in range(3):
                            self.v_read(g, 1)
                    else:
                        e(f"s_cmp_eq_u32 s{S_CH}, 3")
                        e("s_cbranch_scc1 L_nk")
                        for g in range(3):
                            self.v_read(g, 0)
                        e("s_branch L_nk2")
                        e.lab("L_nk")
                        for g in range(3):
                            self.k_read(g, 0, 0)
                        e.lab("L_nk2")
                elif f < 30:
                    e(f"s_waitcnt lgkmcnt({2*min(2, 30 - f)})")
        if self.dyn:
            e("s_setprio 0")
        e("s_nop 7")
        for u in range(4):
            for cb in range(2):
                for r in range(4):
                    x = O + 8*u + 4*cb + r
                    e(f"v_mul_f32 v{x}, v{x}, v{self.A_L+cb}")
        for u2 in range(2):
            for cb in range(2):
                d = O + 16*u2 + 4*cb
                s1 = d + 8
                e(f"v_cvt_pk_bf16_f32 v{d}, v{d}, v{d+1}")
                e(f"v_cvt_pk_bf16_f32 v{d+1}, v{d+2}, v{d+3}")
                e(f"v_cvt_pk_bf16_f32 v{d+2}, v{s1}, v{s1+1}")
                e(f"v_cvt_pk_bf16_f32 v{d+3}, v{s1+2}, v{s1+3}")
                e(f"ds_write_b128 v{OW}, {vr(d,4)} offset:{u2*4096 + cb*1024}")
        barA_C = list(self.barA)
        e(f"s_add_u32 s{S_HVC}, s{S_HVC}, 128")
        e(f"s_add_u32 s{S_CH}, s{S_CH}, 1")
        e(f"s_cmp_lt_u32 s{S_CH}, 4")
        e("s_cbranch_scc1 L_chunk")
        e(f"s_add_u32 s{S_HK}, s{S_HK}, 262144")
        e(f"s_add_u32 s{S_HV}, s{S_HV}, 262144")
        e(f"s_add_u32 s{S_ITEM}, s{S_ITEM}, 1")
        e(f"s_cmp_lt_u32 s{S_ITEM}, 2")
        e("s_cbranch_scc1 L_item")
        seq = list(barA_pre)
        for it in range(2):
            seq += (["HX"] if it == 0 and self.hA else []) + (["OB"] if it == 1 and 16 in self.ob else []) + barA_K
            for c in range(4):
                x = list(barA_C)
                if c == 0:
                    x.insert(1, "QB2")
                elif 8 + 2*c + 16*it in self.ob:
                    x.insert(0, "OB")
                seq += x
        e("s_waitcnt lgkmcnt(0)")
        self.barA_("OB")
        self.barA = seq + ["OB"]
        if self.prof:
            self.stamp(self.A_ST)
            e(f"s_cmp_eq_u32 s{S_W}, 0")
            e("s_cbranch_scc0 L_end")
            self.prof_store(self.A_ST, 0, 0)
        e("s_endpgm")
        self.rescale_routine()

    def prof_store(self, vreg, role, tmp):
        e = self.e
        e(f"v_mbcnt_lo_u32_b32 v{tmp}, -1, 0")
        e(f"v_mbcnt_hi_u32_b32 v{tmp}, -1, v{tmp}")
        e(f"v_lshlrev_b32 v{tmp}, 2, v{tmp}")
        e(f"s_lshl_b32 s{S_T0}, s{S_WG}, 9")
        e(f"s_add_u32 s{S_T0}, s{S_T0}, {0x3000000 + role*256}")
        e(f"buffer_store_dword v{vreg}, v{tmp}, {sr(S_WS,4)}, s{S_T0} offen")
        e(f"s_add_u32 s{S_T0}, s{S_T0}, 0x200000")
        e(f"buffer_store_dword v{self.st2[vreg]}, v{tmp}, {sr(S_WS,4)}, s{S_T0} offen")
        e("s_waitcnt vmcnt(0)")

    def stouch_wq(self, item, k0, k1, step):
        e = self.e
        if k0 >= k1:
            return
        e(f"s_lshl_b32 s{S_T0}, s{S_W}, 14")
        e(f"s_lshr_b32 s{S_T1}, s{S_B}, 4")
        e(f"s_lshl_b32 s{S_T1}, s{S_T1}, 13")
        e(f"s_add_u32 s{S_T0}, s{S_T0}, s{S_T1}")
        e(f"s_and_b32 s{S_T1}, s{S_B}, 15")
        e(f"s_lshl_b32 s{S_T1}, s{S_T1}, 6")
        e(f"s_add_u32 s{S_T0}, s{S_T0}, s{S_T1}")
        cur = 0
        for k in range(k0, k1, step):
            if k // 8 != cur:
                e(f"s_add_u32 s{S_T0}, s{S_T0}, {(k // 8 - cur)*8*65536}")
                cur = k // 8
            e(f"s_buffer_load_dword s{S_JUNK + k % 4}, {sr(S_WQ,4)}, s{S_T0} offset:{(k % 8)*65536 + item*1024}")

    def stouch_wo(self, item, k0, k1):
        e = self.e
        e(f"s_lshl_b32 s{S_T0}, s{S_W}, 11")
        e(f"s_lshl_b32 s{S_T1}, s{S_B}, 6")
        e(f"s_add_u32 s{S_T0}, s{S_T0}, s{S_T1}")
        for k in range(k0, k1):
            e(f"s_buffer_load_dword s{S_JUNK + k % 4}, {sr(S_WO,4)}, s{S_T0} offset:{k*8192 + item*458752}")

    B_OR = 128
    B_TMP = 132
    B_BF = 32
    B_WT = 160
    B_XR = 164
    B_XR0 = 165
    B_VWQ = 166
    B_VWO = 167
    B_VV = 168
    B_VK = 169
    B_VX = 170
    B_QW = 171
    B_LANE = 172
    B_TA, B_TD = 166, 167
    B_FIN, B_FOUT, B_FAI, B_FAO = 148, 149, 150, 151
    B_VWQ4 = 152
    B_VWO4 = 156
    B_ST = 175

    def setupB(self):
        e = self.e
        e(f"s_mul_i32 s{S_XLDS}, s{S_W}, {2*1088}")
        e(f"s_mul_i32 s{S_XG}, s{S_W}, {16*896}")
        g = self.dma_voffs(self.B_VX, self.B_VK, self.B_VV, self.B_VWO4, self.B_VWQ4, self.B_TMP)
        next(g)
        e(f"v_and_b32 v{self.B_FAO}, 3, v0")
        e(f"v_lshlrev_b32 v{self.B_FAI}, 2, v{self.B_FAO}")
        e(f"s_lshl_b32 s{S_T0}, s{S_WG}, 7")
        e(f"s_add_u32 s{S_T0}, s{S_T0}, {FLAG_BASE}")
        e(f"v_add_u32 v{self.B_FAI}, s{S_T0}, v{self.B_FAI}")
        e(f"s_mul_i32 s{S_T1}, s{S_P}, 124")
        e(f"s_sub_u32 s{S_T0}, s{S_T0}, s{S_T1}")
        e(f"v_lshl_add_u32 v{self.B_FAO}, v{self.B_FAO}, 7, s{S_T0}")
        e(f"buffer_load_dword v{self.B_FIN}, v{self.B_FAI}, {sr(S_WS,4)}, 0 offen sc1")
        e(f"buffer_load_dword v{self.B_FOUT}, v{self.B_FAO}, {sr(S_WS,4)}, 0 offen sc1")
        self.vmq += ["F", "F"]
        for xp in range(2 if self.early else 7):
            for op in self.X_ops(xp, self.xloc(0, xp), "X0", self.xnt):
                op()
        e(f"s_lshl_b32 s{S_WLDS}, s{S_W}, 14")
        e(f"s_add_u32 s{S_WLDS}, s{S_WLDS}, {W_BASE}")
        e(f"s_lshl_b32 s{S_WCOL}, s{S_W}, 8")
        e(f"s_mul_i32 s{S_KLDS}, s{S_W}, {8*1056}")
        e(f"s_lshl_b32 s{S_KG}, s{S_W}, 15")
        r1, r2 = 44, 45
        if self.rot:
            e(f"s_and_b32 s{r1}, s{S_B}, 3")
            e(f"s_bfe_u32 s{r2}, s{S_B}, 0x20002")
        else:
            e(f"s_mov_b32 s{r1}, 0")
            e(f"s_mov_b32 s{r2}, 0")
        e(f"s_add_u32 s{S_VG}, s{S_W}, s{r1}")
        e(f"s_and_b32 s{S_VG}, s{S_VG}, 3")
        e(f"s_lshl_b32 s{S_VG}, s{S_VG}, 9")
        for r in range(4):
            e(f"s_add_u32 s{S_T0}, s{r1}, {r}")
            e(f"s_and_b32 s{S_T0}, s{S_T0}, 3")
            e(f"s_lshl_b32 s{S_T0}, s{S_T0}, 9")
            e(f"s_add_u32 s{S_KR+r}, s{S_KG}, s{S_T0}")
            e(f"s_add_u32 s{S_T0}, s{r2}, {r}")
            e(f"s_and_b32 s{S_T0}, s{S_T0}, 3")
            e(f"s_lshl_b32 s{S_T1}, s{S_T0}, 7")
            e(f"s_add_u32 s{S_VC+r}, s{S_VG}, s{S_T1}")
            e(f"s_mul_i32 s{S_T1}, s{S_T0}, {64*896}")
            e(f"s_add_u32 s{S_WR+r}, s{S_WCOL}, s{S_T1}")
        e(f"s_lshl_b32 s{S_VLB}, s{S_W}, 13")
        next(g)
        for pc in range(1, 4):
            e(f"v_add_u32 v{self.B_VWQ4+pc}, {(16*(pc & 1) + 4*(pc >> 1))*8192 - 1024*pc}, v{self.B_VWQ4}")

    def setupB2(self):
        e = self.e
        a, b, c = self.B_TMP, self.B_TMP + 1, self.B_TMP + 2
        self.tr_addr(self.B_WT, base_sreg=S_WLDS, t0=a, t1=b, t2=c)
        e(f"v_bfe_u32 v{a}, v0, 3, 1")
        e(f"v_mul_u32_u24 v{self.B_XR0}, 1088, v{a}")
        e(f"v_and_b32 v{a}, 7, v0")
        e(f"v_lshl_add_u32 v{self.B_XR0}, v{a}, 7, v{self.B_XR0}")
        e(f"v_lshrrev_b32 v{a}, 1, v{a}")
        e(f"v_lshrrev_b32 v{b}, 4, v0")
        e(f"v_xor_b32 v{a}, v{a}, v{b}")
        e(f"v_lshl_add_u32 v{self.B_XR0}, v{a}, 4, v{self.B_XR0}")
        e(f"v_add_u32 v{self.B_XR}, {XO_BASE}, v{self.B_XR0}")
        e(f"v_add_u32 v{self.B_XR0}, {KV_SLOT}, v{self.B_XR0}")
        for rb in range(4):
            e(f"s_add_u32 s{S_T0}, s{S_P}, {rb}")
            e(f"s_and_b32 s{S_T0}, s{S_T0}, 3")
            e(f"s_lshl_b32 s{S_T0}, s{S_T0}, 10")
            e(f"s_add_u32 s{S_T0}, s{S_T0}, {XO_BASE}")
            e(f"v_lshl_add_u32 v{self.B_OR+rb}, v0, 4, s{S_T0}")
        e(f"v_lshrrev_b32 v{a}, 5, v0")
        e(f"v_lshlrev_b32 v{a}, 8, v{a}")
        e(f"v_and_b32 v{b}, 15, v0")
        e(f"v_lshl_add_u32 v{a}, v{b}, 4, v{a}")
        e(f"v_bfe_u32 v{b}, v0, 4, 1")
        e(f"v_lshl_add_u32 v{a}, v{b}, 3, v{a}")
        e(f"v_add_u32 v{self.B_QW}, s{S_WLDS}, v{a}")
        e(f"v_mov_b32 v{self.B_LANE}, v0")
        e(f"v_min_u32 v{self.B_TA}, 27, v0")
        e(f"s_mul_i32 s{S_T0}, s{S_W}, 28")
        e(f"v_add_u32 v{self.B_TA}, s{S_T0}, v{self.B_TA}")
        e(f"v_lshlrev_b32 v{self.B_TA}, 12, v{self.B_TA}")
        e(f"s_lshl_b32 s{S_T0}, s{S_B}, 7")
        e(f"v_add_u32 v{self.B_TA}, s{S_T0}, v{self.B_TA}")
        for pc in range(1, 4):
            e(f"v_add_u32 v{self.B_VWO4+pc}, {(16*(pc >> 1) + 8*(pc & 1))*896 - 1024*pc}, v{self.B_VWO4}")

    def xloc(self, item, xp):
        if xp == 0 and (item == 0 or self.qcnt[0]):
            return KV_SLOT + 4 * X_SLOT
        if item == 1:
            return XO_BASE + (xp & 1) * X_SLOT
        if xp < 5:
            return KV_SLOT + (xp - 1) * X_SLOT
        return XO_BASE + (xp - 5) * X_SLOT

    def dma(self, lds_s, lds_imm, g_s, g_imm, vaddr, srd, tag, nt=False):
        def emit():
            e = self.e
            e(f"s_add_u32 m0, s{lds_s}, {lds_imm}")
            e(f"s_add_u32 s{S_T0}, s{g_s}, {g_imm}")
            e(f"buffer_load_dwordx4 v{vaddr}, {sr(srd,4)}, s{S_T0} offen{' nt' if nt else ''} lds")
            self.vmq.append(tag)
        return emit

    def H_ops(self, n):
        item, ph = n >> 4, n & 15
        slot = n & 1
        ops = []
        if self.noH:
            return ops
        for k in range(8):
            if ph < 8:
                ops.append(self.dma(S_KLDS, slot*KV_SLOT + k*1056, S_KR + (ph & 3), item*262144 + (ph >> 2)*131072 + k*4096,
                                    self.B_VK, S_K, f"H{n}", nt=True))
            else:
                c, half = (ph - 8) >> 1, ph & 1
                ops.append(self.dma(S_VLB, slot*KV_SLOT + k*1024, S_VC + c, item*262144 + half*131072 + k*16384,
                                    self.B_VV, S_V, f"H{n}", nt=True))
        return ops

    def X_ops(self, xp, loc, tag, nt=False):
        return [self.dma(S_XLDS, loc + k*1088, S_XG, k*7168 + xp*128, self.B_VX, S_X, tag, nt=nt) for k in range(2)]

    def W_ops(self, wd, hs):
        ks, cbk = hs >> 1, hs & 1
        ops = []
        if self.noW and wd[:2] != ('Q', 0):
            return ops
        if wd[0] == 'Q':
            _, item, xp = wd
            g = 32*(2*xp + ks)*8192 + item*1024 + cbk*128
            vb, srd, gs = self.B_VWQ4, S_WQ, S_WCOL
        else:
            _, item, c, j = wd
            g = (item*512 + 256*j + 32*ks)*896 + cbk*128
            vb, srd, gs = self.B_VWO4, S_WO, S_WR + c
        for pc in range(4):
            def emit(pc=pc):
                e = self.e
                if pc == 0:
                    e(f"s_add_u32 m0, s{S_WLDS}, {hs*4096}")
                    e(f"s_add_u32 s{S_T0}, s{gs}, {g}")
                e(f"buffer_load_dwordx4 v{vb+pc}, {sr(srd,4)}, s{S_T0} offen offset:{pc*1024}{' nt' if self.wq0nt and wd[:2] == ('Q', 0) else ''} lds")
                self.vmq.append((wd, hs))
            ops.append(emit)
        return ops

    def wo_touch(self, nt):
        ops = []
        for item in self.hto:
            def tch(item=item):
                self.e(f"s_mov_b32 s{S_T0}, {item*458752}")
                self.e(f"buffer_load_dword v{self.B_TD}, v{self.B_TA}, {sr(S_WO,4)}, s{S_T0} offen{' nt' if nt else ''}")
                self.vmq.append("T")
            ops.append(tch)
        return ops

    def vmwait(self, need, extra=""):
        idx = -1
        for i, t in enumerate(self.vmq):
            if t in need:
                idx = i
        if idx < 0:
            if extra:
                self.e(f"s_waitcnt {extra}")
            return
        n = len(self.vmq) - 1 - idx
        assert n <= 63, n
        self.e(f"s_waitcnt vmcnt({n}) {extra}".rstrip())
        self.vmq = self.vmq[idx+1:]

    def barB_(self, name):
        sel = 10 <= self.curn <= 16 or 26 <= self.curn <= 32
        if sel:
            self.stamp(self.B_ST, f"@a{name}{self.curn}")
        self.e("s_barrier")
        if sel:
            self.stamp(self.B_ST, f"@{name}{self.curn}")
        self.barB[self.path].append(name)
        if self.prof != 2 or self.curn in self.fine or self.curn - 1 in self.fine:
            self.stamp(self.B_ST, name + str(self.curn))

    def hs_list(self, wd):
        if wd[0] == 'O' and self.path == 'w3':
            return [0, 2]
        return [0, 1, 2, 3]

    @staticmethod
    def kid(st):
        wd, hs = st
        return (wd[0], wd[1], 2*wd[2] + (hs >> 1)) if wd[0] == 'Q' else ('O', wd[1], 4*wd[2] + 2*wd[3] + (hs >> 1))

    def make_sched(self):
        P = {n: [] for n in range(34)}
        def fill(seq, base, cnt):
            k = 0
            for i, c in enumerate(cnt):
                P[base + i] += seq[k:k + c]
                k += c
            return seq[k:]
        assert not fill([(('Q', 1, xp), hs) for xp in range(7) for hs in range(4)], 0, self.qcnt)
        oseq = lambda it: [(('O', it, k >> 2, (k >> 1) & 1), 2*(k & 1) + cbk) for k in range(16) for cbk in range(2)]
        assert not fill(oseq(0), 10, self.o1cnt)
        P[32] = fill(oseq(1), 26, self.o2cnt)
        self.P = P
        self.ob = {}
        for it, base in ((0, 10), (1, 26)):
            for c in range(4):
                wp = base + 2*c
                use = [i for i, (wd, hs) in enumerate(P[wp]) if wd[:3] == ('O', it, c)]
                for n in range(wp):
                    assert not any(wd[:3] == ('O', it, c) for wd, hs in P[n])
                if use:
                    self.ob[wp] = 'early' if use[0] == 0 else 'late'
        self.xfirst = {}
        for n in range(9):
            for wd, hs in P[n]:
                self.xfirst.setdefault(wd[2], n)

    def sched(self, n):
        return [st for st in self.P[n] if not (self.path == 'w3' and st[0][0] == 'O' and st[1] & 1)]

    def bf_reads(self, st):
        wd, hs = st
        k = self.kid(st)
        if k in self.bfl:
            return []
        self.bfl.add(k)
        ks = hs >> 1
        e = self.e
        ops = []
        for cb4 in range(4):
            d = ar(self.B_BF + 16*(k[2] % 3) + 4*cb4, 4)
            if wd[0] == 'Q':
                loc = self.xloc(wd[1], wd[2])
                reg = self.B_XR if loc >= XO_BASE else self.B_XR0
                off = (loc - XO_BASE if loc >= XO_BASE else loc - KV_SLOT) + cb4*2176 + ks*64
            else:
                reg = self.B_OR + cb4
                off = (2*wd[3] + ks)*4096
            ops.append(lambda d=d, off=off, reg=reg: e(f"ds_read_b128 {d}, v{reg} offset:{off}"))
        return ops

    def w_reads(self, hs, i):
        e = self.e
        ops = []
        for u in range(4):
            for t in range(2):
                d = ar(16*(i & 1) + 4*u + 2*t, 2)
                off = hs*4096 + t*2048
                ops.append(lambda d=d, off=off, u=u: e(f"ds_read_b64_tr_b16 {d}, v{self.B_WT+u} offset:{off}"))
        return ops

    def needs_ob(self, st):
        wd, hs = st
        return wd[0] == 'O' and wd[3] == 0 and hs == 0 and self.curn == (10, 26)[wd[1]] + 2*wd[2]

    def run_steps(self, steps, per_step, preload=(), upfront=()):
        e = self.e
        if self.boost:
            e(f"s_setprio {self.boost}")
        if self.wpre != steps[0]:
            self.vmwait([steps[0]])
            for op in self.w_reads(steps[0][1], 0):
                op()
        if self.needs_ob(steps[0]):
            for op in upfront:
                op()
            upfront = ()
            self.barB_("OB")
        for op in self.bf_reads(steps[0]):
            op()
        for op in upfront:
            op()
        if self.boost:
            e(f"s_setprio {self.prioB}")
        late = []
        for i, (wd, hs) in enumerate(steps):
            ks, cbk = hs >> 1, hs & 1
            kb = self.kid(steps[i])[2] % 3
            others = []
            nx = steps[i+1] if i + 1 < len(steps) else None
            if nx:
                self.vmwait([nx], "lgkmcnt(0)")
                if not self.needs_ob(nx):
                    others += self.bf_reads(nx)
                others += self.w_reads(nx[1], i + 1)
            else:
                e("s_waitcnt lgkmcnt(0)")
                for st in preload:
                    if self.kid(st)[2] % 3 != kb:
                        others += self.bf_reads(st)
                    else:
                        late += self.bf_reads(st)
            others += per_step(i)
            zero = ks == 0 and ((wd[0] == 'Q' and wd[2] == 0) or wd == ('O', 0, 0, 0))
            k = 0
            for u in range(4):
                for cb4 in range(4):
                    d = vr(64*cbk + 16*u + 4*cb4, 4)
                    if not (self.noBm and wd[:2] != ('Q', 0)):
                        e(f"v_mfma_f32_16x16x32_bf16 {d}, {ar(16*(i&1)+4*u,4)}, {ar(self.B_BF+16*kb+4*cb4,4)}, {0 if zero else d}")
                    if k < len(others):
                        others[k](); k += 1
            while k < len(others):
                others[k](); k += 1
            if nx and self.needs_ob(nx):
                if self.boost:
                    e(f"s_setprio {self.boost}")
                self.barB_("OB")
                for op in self.bf_reads(nx):
                    op()
                if self.boost:
                    e(f"s_setprio {self.prioB}")
        for op in late:
            op()

    def q_ops(self, cbk):
        e = self.e
        t = self.B_TMP
        ops = []
        for u in range(4):
            for cb4 in range(4):
                def op(u=u, cb4=cb4):
                    a = 64*cbk + 16*u + 4*cb4
                    d = t + 2*((4*u + cb4) % 8)
                    e(f"v_cvt_pk_bf16_f32 v{d}, v{a}, v{a+1}")
                    e(f"v_cvt_pk_bf16_f32 v{d+1}, v{a+2}, v{a+3}")
                    off = (cb4*4 + 2*cbk + (u >> 1))*1024 + (u & 1)*512
                    e(f"ds_write_b64 v{self.B_QW}, {vr(d,2)} offset:{off}")
                ops.append(op)
        return ops

    def q_write(self, cbks=(0, 1)):
        e = self.e
        if cbks == (0, 1):
            e("s_nop 7")
        for cbk in cbks:
            for op in self.q_ops(cbk):
                op()
        e("s_waitcnt lgkmcnt(0)")

    def periodB(self, n):
        e = self.e
        self.curn = n
        steps = self.sched(n)
        nxt = self.sched(n + 1) if n < 32 else []
        self.vmwait([f"H{n}"] + [f"X1_{xp}" for xp, m in self.xfirst.items() if m == n])
        self.barB_("KV0" if n == 0 else "KV")
        hx = []
        if n + 1 <= 31 and not (n == 0 and self.h1h):
            hx += self.H_ops(n + 1)
        for xp, m in self.xfirst.items():
            if m == n + 1:
                hx += self.X_ops(xp, self.xloc(1, xp), f"X1_{xp}", self.x2nt)
        if n == 0:
            for st in steps:
                for op in self.W_ops(*st):
                    op()
        if not steps:
            for op in hx:
                op()
        if n == 8 and not steps:
            self.q_write()
        if n in (9, 25):
            self.barB_("QB2")
        todo = list(nxt[:len({hs for _, hs in nxt})])
        pre = []
        for it, base in ((0, 10), (1, 26)):
            for c in range(4):
                if n + 1 == (base + 2*c + 2 if c < 3 else (26 if it == 0 else -1)):
                    rest = [st for m in range(n + 1, 33) for st in self.sched(m) if st[0][:3] == ('O', it, c) and not st[1] & 1]
                    pre += rest
        if steps:
            def per(i):
                if n == 32:
                    rest = [st for st in steps[i+1:] if st[1] == steps[i][1]]
                    if self.tailov and self.path == 'main' and i == len(steps) - 2:
                        return [self.pub_setup]
                    if self.tailov and self.path == 'main' and i == len(steps) - 1:
                        return [lambda: None]*3 + self.pub_ops(0)
                    return self.W_ops(*rest[0]) if rest else []
                free = {hs for _, hs in steps[:i+1-self.lag]} | ({0, 1, 2, 3} - {hs for _, hs in steps})
                r = []
                if inter and i < 2:
                    nh = (len(hx) + 1)//2 if (i == 0 and len(steps) > 2) else len(hx)
                    r += hx[:nh]
                    del hx[:nh]
                while todo and todo[0][1] in free and i >= self.rin:
                    r += self.W_ops(*todo.pop(0))
                if n == 8 and i == len(steps) - 1:
                    r += self.q_ops(0)
                return r
            a_epi = n in (10, 12, 14, 16, 26, 28, 30)
            inter = self.hint and a_epi and not self.needs_ob(steps[0])
            last_k = self.kid(steps[-1])
            newk = [self.kid(st) for st in pre if self.kid(st) not in self.bfl and self.kid(st) not in map(self.kid, steps)]
            live = {self.kid(st) for m in range(n + 1, 33) for st in self.sched(m) if self.kid(st) in self.bfl or self.kid(st) in map(self.kid, steps)}
            bufs = [k[2] % 3 for k in newk] + [k[2] % 3 for k in live]
            assert len(bufs) == len(set(bufs)), (n, newk, live)
            self.run_steps(steps, per, pre, [] if inter else hx)
            if n == 8:
                self.q_write((1,))
        else:
            assert all(self.kid(st) in self.bfl for st in pre)
        for st in todo:
            for op in self.W_ops(*st):
                op()
        if pre:
            e("s_waitcnt lgkmcnt(0)")
        if self.pre_rd and nxt and n + 1 in (12, 14, 16, 28, 30, 32) and self.kid(nxt[0]) in self.bfl:
            self.vmwait([f"H{n+1}", nxt[0]])
            for op in self.w_reads(nxt[0][1], 0):
                op()
            self.wpre = nxt[0]

    def epilogue_v1(self):
        e = self.e
        t = self.B_TMP
        e("s_nop 7")
        e(f"v_lshlrev_b32 v{t}, 4, v{self.B_LANE}")
        e(f"s_lshl_b32 s{S_T1}, s{S_WG}, 17")
        e(f"s_lshl_b32 s{S_T0}, s{S_W}, 15")
        e(f"s_add_u32 s{S_T1}, s{S_T1}, s{S_T0}")
        for cbk in range(1 if self.path == 'w3' else 2):
            for u in range(4):
                e(f"s_add_u32 s{S_T0}, s{S_T1}, {(cbk*4+u)*4096}")
                for cb4 in range(4):
                    e(f"buffer_store_dwordx4 {vr(64*cbk+16*u+4*cb4,4)}, v{t}, {sr(S_WS,4)}, s{S_T0} offen offset:{cb4*1024}")

    def pub_setup(self):
        e = self.e
        slot = 32768 if self.f32 else 16384
        e(f"v_lshlrev_b32 v{self.B_TMP}, 4, v{self.B_LANE}")
        e(f"s_and_b32 s{S_T1}, s{S_WG}, 0xfc")
        e(f"s_mul_i32 s{S_T1}, s{S_T1}, {4*slot}")
        e(f"s_mul_i32 s{S_T0}, s{S_W}, {slot // 4}")
        e(f"s_add_u32 s{S_T1}, s{S_T1}, s{S_T0}")
        e(f"s_mul_i32 s2, s{S_P}, {slot}")
        e(f"s_add_u32 s2, s2, s{S_T1}")
        for rb in (1, 2, 3):
            e(f"s_add_u32 s{S_T0}, s{S_P}, {rb}")
            e(f"s_and_b32 s{S_T0}, s{S_T0}, 3")
            e(f"s_mul_i32 s{S_T0}, s{S_T0}, {4*slot}")
            e(f"s_add_u32 s{S_KR+rb}, s{S_T0}, s2")

    def pub_ops(self, cbk):
        e = self.e
        L16, D, fl = self.B_TMP, self.B_TMP + 4, self.pfl
        ops = []
        if self.f32:
            for u in range(4):
                for rb in (1, 2, 3):
                    def op(u=u, rb=rb):
                        e(f"s_add_u32 s{S_T0}, s{S_KR+rb}, {cbk*4096}")
                        e(f"buffer_store_dwordx4 {vr(64*cbk+16*u+4*rb,4)}, v{L16}, {sr(S_WS,4)}, s{S_T0} offen offset:{u*1024} {fl}")
                    ops.append(op)
            return ops
        n = 0
        for u2 in range(2):
            for rb in (1, 2, 3):
                d = D + 4*(n % 3); n += 1
                a0 = 64*cbk + 32*u2 + 4*rb
                ops.append(lambda d=d, a0=a0: (e(f"v_cvt_pk_bf16_f32 v{d}, v{a0}, v{a0+1}"), e(f"v_cvt_pk_bf16_f32 v{d+1}, v{a0+2}, v{a0+3}")))
                ops.append(lambda d=d, a0=a0, rb=rb, u2=u2: (e(f"v_cvt_pk_bf16_f32 v{d+2}, v{a0+16}, v{a0+17}"), e(f"v_cvt_pk_bf16_f32 v{d+3}, v{a0+18}, v{a0+19}"),
                           e(f"buffer_store_dwordx4 {vr(d,4)}, v{L16}, {sr(S_WS,4)}, s{S_KR+rb} offen offset:{(2*cbk+u2)*1024} {fl}")))
        return ops

    def epilogue_fused(self):
        e = self.e
        t = self.B_TMP
        L16, OA = t, t + 1
        D = t + 4
        ncbk = 1 if self.path == 'w3' else 2
        slot = 32768 if self.f32 else 16384
        self.stamp(self.B_ST)
        ov = self.tailov and ncbk == 2
        if not ov:
            self.pub_setup()
        e("s_nop 7")
        for cbk in range(1 if ov else 0, ncbk):
            for op in self.pub_ops(cbk):
                op()
        e(f"v_and_b32 v{OA}, 15, v{self.B_LANE}")
        e(f"v_mul_u32_u24 v{OA}, 1792, v{OA}")
        e(f"v_lshrrev_b32 v{t+2}, 4, v{self.B_LANE}")
        e(f"v_lshl_add_u32 v{OA}, v{t+2}, 3, v{OA}")
        e("s_waitcnt vmcnt(0)")
        e("s_barrier")
        self.stamp(self.B_ST)
        if self.path == 'main':
            e(f"s_cmp_eq_u32 s{S_W}, 0")
            e("s_cbranch_scc0 L_nopoll")
            e(f"v_add_u32 v{self.B_FOUT}, 1, v{self.B_FOUT}")
            e("s_mov_b64 exec, 15")
            e(f"buffer_store_dword v{self.B_FOUT}, v{self.B_FAO}, {sr(S_WS,4)}, 0 offen sc1")
            e(f"s_mov_b32 s{S_CH}, 0")
            e.lab("L_poll")
            e(f"buffer_load_dword v{t+2}, v{self.B_FAI}, {sr(S_WS,4)}, 0 offen sc1")
            e(f"s_add_u32 s{S_CH}, s{S_CH}, 1")
            e("s_waitcnt vmcnt(0)")
            e(f"v_cmp_eq_u32 vcc, v{t+2}, v{self.B_FIN}")
            e("s_nop 0")
            e("s_cbranch_vccz L_polled")
            e(f"s_cmp_lt_u32 s{S_CH}, 0x20000")
            e("s_cbranch_scc1 L_poll")
            e.lab("L_polled")
            e("s_mov_b64 exec, -1")
            e.lab("L_nopoll")
        e("s_barrier")
        self.stamp(self.B_ST)
        e(f"s_mul_i32 s2, s{S_P}, {4*slot}")
        e(f"s_add_u32 s2, s2, s{S_T1}")
        for rb in (1, 2, 3):
            e(f"s_add_u32 s{S_T0}, s{S_P}, {rb}")
            e(f"s_and_b32 s{S_T0}, s{S_T0}, 3")
            e(f"s_mul_i32 s{S_T0}, s{S_T0}, {slot}")
            e(f"s_add_u32 s{S_T0}, s{S_T0}, s2")
            for cbk in range(ncbk):
                if self.f32:
                    if cbk:
                        e(f"s_add_u32 s{S_T0}, s{S_T0}, 4096")
                    for u in range(4):
                        e(f"buffer_load_dwordx4 {vr(64*cbk+16*u+4*rb,4)}, v{L16}, {sr(S_WS,4)}, s{S_T0} offen offset:{u*1024} {self.lfl}")
                else:
                    for u2 in range(2):
                        e(f"buffer_load_dwordx4 {vr(64*cbk+32*u2+4*rb,4)}, v{L16}, {sr(S_WS,4)}, s{S_T0} offen offset:{(2*cbk+u2)*1024} {self.lfl}")
        e(f"s_mul_i32 s2, s{S_B}, {64*1792}")
        e(f"s_mul_i32 s3, s{S_P}, {16*1792}")
        e(f"s_add_u32 s2, s2, s3")
        e(f"s_mul_i32 s3, s{S_BR}, 896")
        e(f"s_add_u32 s2, s2, s3")
        e(f"s_add_u32 s2, s2, s{S_WCOL}")
        e("s_waitcnt vmcnt(0)")
        for cbk in range(ncbk):
            for u in range(4):
                a = 64*cbk + 16*u
                for rb in (1, 2, 3):
                    if self.f32:
                        for r in range(4):
                            e(f"v_add_f32 v{a+r}, v{a+r}, v{a+4*rb+r}")
                    else:
                        src = 64*cbk + 32*(u >> 1) + 4*rb + 2*(u & 1)
                        for h in range(2):
                            e(f"v_lshlrev_b32 v{D+2*h}, 16, v{src+h}")
                            e(f"v_and_b32 v{D+2*h+1}, 0xffff0000, v{src+h}")
                        e(f"v_pk_add_f32 {vr(a,2)}, {vr(a,2)}, {vr(D,2)}")
                        e(f"v_pk_add_f32 {vr(a+2,2)}, {vr(a+2,2)}, {vr(D+2,2)}")
                e(f"v_cvt_pk_bf16_f32 v{a}, v{a}, v{a+1}")
                e(f"v_cvt_pk_bf16_f32 v{a+1}, v{a+2}, v{a+3}")
                e(f"buffer_store_dwordx2 {vr(a,2)}, v{OA}, {sr(S_OUT,4)}, s2 offen offset:{cbk*128+u*32} {self.ofl}".rstrip())

    def endB(self):
        e = self.e
        if self.fuse:
            self.epilogue_fused()
        else:
            self.epilogue_v1()
        if self.prof:
            e("s_waitcnt vmcnt(0)")
            self.stamp(self.B_ST)
            if self.path == 'main':
                e(f"s_cmp_eq_u32 s{S_W}, 0")
                e("s_cbranch_scc0 L_end")
                self.prof_store(self.B_ST, 1, 0)
        e("s_endpgm")

    def streamB(self):
        e = self.e
        e.lab("L_B")
        self.vmq = []
        self.deferred = []
        self.path = 'main'
        self.barB = {'main': [], 'w3': []}
        self.stamp(self.B_ST)
        self.setupB()
        for hs in range(4):
            for op in self.W_ops(('Q', 0, 0), hs):
                op()
        self.setupB2()
        if self.early:
            for xp in range(2, 7):
                for op in self.X_ops(xp, self.xloc(0, xp), "X0b", self.xnt):
                    op()
        self.stamp(self.B_ST)
        self.vmwait(["X0"])
        self.barB_("HB")
        steps = [(('Q', 0, h), hs) for h in range(7) for hs in range(4)]
        H0 = self.H_ops(0)
        if self.h1h:
            assert self.early and self.hdef is None and not self.hto
            H0 = H0 + self.H_ops(1)
        def per(i):
            if i % 4 == 3 and self.prof != 2:
                self.stamp(self.B_ST, f"h{i}")
            if i == 6 and self.early:
                assert "X0b" not in self.vmq
                return self.W_ops(*steps[i + 4]) + [lambda: self.barB_("HB2")]
            if i == 23 and self.h1h:
                return self.W_ops(*steps[i + 4]) + [lambda: self.barB_("HB3")]
            if i >= 24 and self.h1h:
                return H0[4*(i - 24):4*(i - 24) + 4]
            if i + 4 < 28:
                return self.W_ops(*steps[i + 4])
            if self.hdef is not None:
                tt = self.wo_touch(False)
                return (tt if self.hdef == i else []) + H0[2*(i - 24):2*(i - 24) + 2] + (tt if self.hdef == i + 1 == 28 else [])
            return (self.wo_touch(True) if i == 24 else []) + H0[2*(i - 24):2*(i - 24) + 2]
        def per2(i):
            return per(i) + (self.q_ops(0) if self.qov and i == 27 else [])
        self.run_steps(steps, per2)
        self.q_write((1,) if self.qov else (0, 1))
        for op in (self.wo_touch(False) if self.hdef is None else []):
            op()
        self.barB_("QB1")
        for n in range(9):
            self.periodB(n)
        e(f"s_cmp_eq_u32 s{S_W}, 3")
        e("s_cbranch_scc1 L_B3")
        save = list(self.vmq)
        save_bfl = set(self.bfl)
        assert not self.deferred
        self.barB['w3'] = list(self.barB['main'])
        for n in range(9, 33):
            self.periodB(n)
        self.endB()
        e.lab("L_B3")
        self.path = 'w3'
        self.vmq = save
        self.bfl = save_bfl
        self.wpre = None
        self.deferred = []
        for n in range(9, 33):
            self.periodB(n)
        self.endB()

    def reduce_kernel(self):
        e = self.e
        e(".globl red_kernel")
        e(".p2align 8")
        e(".type red_kernel,@function")
        e.lab("red_kernel")
        e("s_cmp_ge_u32 s2, 1792")
        e("s_cbranch_scc1 L_rend")
        e("s_load_dwordx2 s[4:5], s[0:1], 96")
        e("s_load_dwordx2 s[8:9], s[0:1], 80")
        e("s_mul_hi_u32 s12, s2, 153391690")
        e("s_mul_i32 s13, s12, 28")
        e("s_sub_u32 s13, s2, s13")
        e("s_and_b32 s14, s12, 1")
        e("s_lshr_b32 s15, s12, 1")
        e("s_lshl_b32 s16, s15, 3")
        e("s_lshl_b32 s17, s14, 2")
        e("s_add_u32 s16, s16, s17")
        e("s_lshl_b32 s16, s16, 17")
        e("s_lshl_b32 s17, s13, 12")
        e("s_add_u32 s16, s16, s17")
        e("v_lshlrev_b32 v1, 4, v0")
        e("s_mov_b32 s6, 67108864")
        e("s_mov_b32 s7, 0x20000")
        e("s_mov_b32 s10, 3670016")
        e("s_mov_b32 s11, 0x20000")
        e("s_waitcnt lgkmcnt(0)")
        for p in range(4):
            e(f"buffer_load_dwordx4 {vr(4+4*p,4)}, v1, s[4:7], s16 offen")
            e("s_add_u32 s16, s16, 131072")
        e("v_lshrrev_b32 v2, 6, v0")
        e("v_lshlrev_b32 v2, 4, v2")
        e("v_and_b32 v3, 15, v0")
        e("v_add_u32 v2, v2, v3")
        e("v_mul_u32_u24 v2, 1792, v2")
        e("v_bfe_u32 v3, v0, 4, 2")
        e("v_lshl_add_u32 v2, v3, 3, v2")
        e("s_mul_i32 s15, s15, 114688")
        e("s_mul_i32 s14, s14, 896")
        e("s_add_u32 s15, s15, s14")
        e("s_lshl_b32 s13, s13, 5")
        e("s_add_u32 s15, s15, s13")
        e("s_waitcnt vmcnt(0)")
        for r in range(4):
            e(f"v_add_f32 v{4+r}, v{4+r}, v{8+r}")
            e(f"v_add_f32 v{12+r}, v{12+r}, v{16+r}")
            e(f"v_add_f32 v{4+r}, v{4+r}, v{12+r}")
        e("v_cvt_pk_bf16_f32 v4, v4, v5")
        e("v_cvt_pk_bf16_f32 v5, v6, v7")
        e("buffer_store_dwordx2 v[4:5], v2, s[8:11], s15 offen")
        e.lab("L_rend")
        e("s_endpgm")

    def build(self):
        e = self.e
        out = [HEADER.rstrip()]
        if self.fuse:
            out.append(f"; @launch grid=(256,1,1) block=(512,1,1) lds={LDS_BYTES}")
        else:
            out.append(f"; @launch kernel={NAME}_kernel grid=(256,1,1) block=(512,1,1) lds={LDS_BYTES}")
            out.append(f"; @launch kernel=red_kernel grid=(1792,1,1) block=(256,1,1) lds=0")
        out.append('.amdgcn_target "amdgcn-amd-amdhsa--gfx950"')
        out.append(".text")
        out.append(f".globl {NAME}_kernel")
        out.append(".p2align 8")
        out.append(f".type {NAME}_kernel,@function")
        out.append(f"{NAME}_kernel:")
        self.prologue()
        self.streamB()
        self.path = None
        e.lab("L_A")
        self.streamA()
        e.lab("L_end")
        e("s_endpgm")
        if not self.fuse:
            self.reduce_kernel()
        assert self.barA == self.barB['main'] == self.barB['w3'], (self.barA, self.barB)
        if self.prof:
            out.insert(1, f"; NST {44 if self.prof == 4 else len(self.barA)+2} {len(self.namesB)} " + " ".join(self.namesB))
        out.append(e.text())
        out.append('.section .rodata,"a"')
        def kd(name, v, s, acc):
            return f""".p2align 6
.amdhsa_kernel {name}
  .amdhsa_next_free_vgpr {v}
  .amdhsa_next_free_sgpr {s}
  .amdhsa_accum_offset {acc}
  .amdhsa_group_segment_fixed_size 0
  .amdhsa_kernarg_size 104
  .amdhsa_user_sgpr_count 2
  .amdhsa_user_sgpr_kernarg_segment_ptr 1
  .amdhsa_system_sgpr_workgroup_id_x 1
.end_amdhsa_kernel"""
        out.append(kd(f"{NAME}_kernel", 256, 96, 176))
        if not self.fuse:
            out.append(kd("red_kernel", 24, 32, 24))
        return "\n".join(out) + "\n"


if __name__ == "__main__":
    kw = {}
    path = None
    for a in sys.argv[1:]:
        if "=" in a:
            k, v = a.split("=")
            kw[k] = eval(v)
        else:
            path = a
    txt = Gen(**kw).build()
    open(path or f"cdna_kernels/{NAME}.s", "w").write(txt)
    print("lines", txt.count("\n"), "bytes", len(txt))
```

```python
import sys, math

NAME = "concat_heads__gqa_block_cached__gqa_block_cached__near_ridge"
HEADER = open("cdna_kernels/%s.s.ref" % NAME).read().split("; Override launch")[0]

KV_SLOT = 33792
W_BASE = KV_SLOT + 5 * 8704
XO_BASE = W_BASE + 65536
X_SLOT = 8704
FLAG_BASE = 0x2800000
LDS_BYTES = XO_BASE + 2 * X_SLOT

S_X, S_K, S_V, S_WQ, S_WO, S_OUT, S_WS = 4, 8, 12, 16, 20, 24, 28
S_W = 60
S_B = 61
S_P = 62
S_BR = 63
S_T0, S_T1 = 64, 65
S_WLDS = 66
S_WCOL = 67
S_KLDS = 68
S_KG = 69
S_VG = 70
S_KR, S_VC, S_WR = 32, 36, 40
S_VLB = 77
S_XLDS = 71
S_XG = 72
S_HK, S_HV, S_KL, S_VL, S_HVC = 66, 67, 68, 69, 70
S_HS = 32
S_HM, S_HGS = 36, 37
S_C = 73
S_THR = 74
S_ITEM = 75
S_CH = 76
S_RET = 78
S_STAMP = 80
S_SIDX = 82
S_WG = 83
S_DBG = 88
S_JUNK = 92


class Em:
    def __init__(self):
        self.l = []
    def __call__(self, s):
        self.l.append(s)
    def lab(self, s):
        self.l.append(s + ":")
    def text(self):
        return "\n".join(self.l)


def vr(a, n=1):
    return f"v{a}" if n == 1 else f"v[{a}:{a+n-1}]"
def ar(a, n=1):
    return f"a{a}" if n == 1 else f"a[{a}:{a+n-1}]"
def sr(a, n=1):
    return f"s{a}" if n == 1 else f"s[{a}:{a+n-1}]"


class Gen:
    def __init__(self, prof=False, prioA=1, npostQ=10, npostO=12, npre=6, fuse=True, pfl='sc1', f32=False, xnt=False, rin=0, nearlyQ=0, nearlyO=0, shift=1, lag=1, boost=2, hA=False, obf=26, obk=(1, 8), pre1=40, tailov=True, dropr=(0, 99), vt0=1, vto=False, xpromo=False, early=True, pre2=90, bto=False, hto=(), rot=True, ctouch=True, qcnt=(2,3,3,4,3,3,4,3,3), o1cnt=(2,4,2,4,2,4,2,3,3,2,2,2), o2cnt=(2,4,4,4,4,4), obe=3, h1h=False, pre3=150, nolt=False, hdef=None, spread=True, pre_rd=True, qov=True, x2nt=True, wq0nt=False, tp1=20, lfl='sc1', ofl='', drop=0, hint=True, wo1A=56, dyn=True, prioB=1, noH=False, noW=False, noSM=False, noBm=False, noAm=False, tnt=False):
        self.e = Em()
        self.prof = prof
        self.prioA = prioA
        self.npostQ, self.npostO, self.npre, self.pfl, self.f32 = npostQ, npostO, npre, pfl, f32
        self.fuse = fuse
        self.ctouch = ctouch
        self.qcnt, self.o1cnt, self.o2cnt, self.obe = qcnt, o1cnt, o2cnt, obe
        self.make_sched()
        self.h1h, self.pre3 = h1h, pre3
        self.nolt = nolt
        self.hdef, self.spread, self.pre_rd, self.qov = hdef, spread, pre_rd, qov
        if hdef is not None:
            vto, hto = False, (1,)
        self.hto, self.rot = hto, rot
        self.bto, self.x2nt, self.wq0nt, self.tp1 = bto, x2nt, wq0nt, tp1
        self.early, self.pre2 = early, pre2
        self.xpromo = xpromo
        self.vt0, self.vto, self.lfl, self.ofl = vt0, vto, lfl, ofl
        self.drop = drop
        self.dropr = dropr
        self.obk, self.pre1, self.tailov = obk, pre1, tailov
        self.dyn = dyn
        self.prioB = prioB if dyn else 0
        if dyn:
            prioA, boost = 2, (3 if boost else 0)
            self.prioA = 2
        self.wo1A = wo1A
        self.hA, self.obf, self.hint = hA, obf, hint
        self.lag, self.boost = lag, boost
        self.xnt, self.rin, self.nearlyQ, self.nearlyO, self.shift = xnt, rin, nearlyQ, nearlyO, shift
        self.noH, self.noW, self.noSM, self.noBm, self.noAm = noH, noW, noSM, noBm, noAm
        self.tfl = ' nt' if tnt else ''
        self.barA = []
        self.barB = {}
        self.st2 = {175: 174}
        self.namesB = []
        self.curn = -1
        self.wpre = None
        self.bfl = set()
        self.fine = (3, 4, 12, 13, 14, 29)

    def stamp(self, vreg, name="."):
        e = self.e
        if not self.prof:
            return
        if self.prof in (4, 5) and not name.startswith('@'):
            return
        if self.prof == 4 and getattr(self, 'path', None) is not None:
            return
        if self.prof == 5 and getattr(self, 'path', None) is None:
            return
        if self.prof == 6 and (getattr(self, 'path', None) is None or not (name.startswith('KV') or name in ('.', 'HB-1', 'QB1-1'))):
            return
        if self.prof == 7 and (getattr(self, 'path', None) is None or name not in ('.', 'KV00', 'KV8', 'KV16', 'KV24', 'KV32')):
            return
        if self.prof == 8 and (getattr(self, 'path', None) is None or not (name[0] in '.hHQ' or name in ('KV00', 'KV1', 'KV2', 'KV32'))):
            return
        if self.prof == 3 and (getattr(self, 'path', None) is None or not (name in ('.', 'HB-1', 'HB2-1', 'QB1-1', 'KV00', 'KV1', 'KV8', 'KV10', 'KV16', 'KV19', 'KV24', 'KV26', 'KV32', 'OB32'))):
            return
        if getattr(self, 'path', None) == 'main':
            self.namesB.append(name)
        e(f"s_memrealtime {sr(S_STAMP,2)}")
        e(f"s_memtime {sr(S_STAMP+4,2)}")
        e("s_waitcnt lgkmcnt(0)")
        e(f"s_mov_b32 m0, s{S_SIDX}")
        e(f"v_writelane_b32 v{vreg}, s{S_STAMP}, m0")
        e(f"v_writelane_b32 v{self.st2[vreg]}, s{S_STAMP+4}, m0")
        e(f"s_add_u32 s{S_SIDX}, s{S_SIDX}, 1")

    def prologue(self):
        e = self.e
        e("s_cmp_ge_u32 s2, 256")
        e("s_cbranch_scc1 L_end")
        e("s_load_dwordx16 s[32:47], s[0:1], 0")
        e("s_load_dwordx8 s[48:55], s[0:1], 64")
        e("s_load_dwordx2 s[56:57], s[0:1], 96")
        e(f"v_lshrrev_b32 v1, 6, v0")
        e(f"s_mov_b32 s{S_WG}, s2")
        e(f"s_and_b32 s{S_P}, s2, 3")
        e(f"v_readfirstlane_b32 s3, v1")
        e(f"s_lshr_b32 s{S_B}, s2, 3")
        e(f"s_bfe_u32 s{S_BR}, s2, 0x10002")
        e(f"s_mov_b32 s{S_SIDX}, 0")
        e("v_and_b32 v0, 63, v0")
        e(f"s_and_b32 s{S_W}, s3, 3")
        if self.ctouch:
            e(f"s_cmp_eq_u32 s3, 1")
            e("s_cbranch_scc0 L_noct")
            e(f"s_getpc_b64 s[58:59]")
            e.lab("L_pc")
            e(f"s_sub_u32 s58, s58, L_pc-{NAME}_kernel")
            e(f"s_subb_u32 s59, s59, 0")
            e(f"v_lshl_add_u32 v2, v0, 5, s{S_B}")
            e(f"v_lshlrev_b32 v2, 7, v2")
            e(f"v_min_u32 v2, L_end-{NAME}_kernel, v2")
            e(f"v_mov_b32 v3, s59")
            e(f"v_add_co_u32 v2, vcc, s58, v2")
            e("s_nop 1")
            e(f"v_addc_co_u32 v3, vcc, 0, v3, vcc")
            e(f"global_load_dword v4, v[2:3], off")
            e.lab("L_noct")
        e("s_waitcnt lgkmcnt(0)")
        e("s_bitcmp1_b32 s2, 2")
        e(f"s_cselect_b64 {sr(S_X,2)}, s[42:43], s[32:33]")
        e(f"s_cselect_b64 {sr(S_K,2)}, s[44:45], s[34:35]")
        e(f"s_cselect_b64 {sr(S_V,2)}, s[46:47], s[36:37]")
        e(f"s_cselect_b64 {sr(S_WQ,2)}, s[48:49], s[38:39]")
        e(f"s_cselect_b64 {sr(S_WO,2)}, s[50:51], s[40:41]")
        def addbase(srd, sreg):
            e(f"s_add_u32 s{srd}, s{srd}, s{sreg}")
            e(f"s_addc_u32 s{srd+1}, s{srd+1}, 0")
        e(f"s_mul_i32 s{S_T0}, s{S_B}, 57344")
        addbase(S_X, S_T0)
        e(f"s_lshl_b32 s{S_T0}, s{S_B}, 21")
        e(f"s_lshl_b32 s{S_T1}, s{S_P}, 19")
        e(f"s_add_u32 s{S_T0}, s{S_T0}, s{S_T1}")
        addbase(S_K, S_T0)
        addbase(S_V, S_T0)
        e(f"s_lshl_b32 s{S_T0}, s{S_P}, 11")
        addbase(S_WQ, S_T0)
        e(f"s_sub_u32 s{S_WQ+2}, 3670016, s{S_T0}")
        e(f"s_mul_i32 s{S_T0}, s{S_P}, 917504")
        addbase(S_WO, S_T0)
        e(f"s_mov_b32 s{S_X+2}, 57344")
        e(f"s_mov_b32 s{S_K+2}, 524288")
        e(f"s_mov_b32 s{S_V+2}, 524288")
        e(f"s_mov_b32 s{S_WO+2}, 917504")
        e(f"s_mov_b64 {sr(S_OUT,2)}, s[52:53]")
        e(f"s_mov_b32 s{S_OUT+2}, 3670016")
        e(f"s_mov_b64 {sr(S_WS,2)}, s[56:57]")
        e(f"s_mov_b32 s{S_WS+2}, 67108864")
        e(f"s_mov_b64 {sr(S_DBG,2)}, s[54:55]")
        e(f"s_mov_b32 s{S_DBG+2}, 256")
        for s in (S_X, S_K, S_V, S_WQ, S_WO, S_OUT, S_WS, S_DBG):
            e(f"s_mov_b32 s{s+3}, 0x20000")
        e("s_cmp_lt_u32 s3, 4")
        e("s_cbranch_scc1 L_A")

    def tr_addr(self, dst, base_imm=None, base_sreg=None, t0=None, t1=None, t2=None):
        e = self.e
        e(f"v_bfe_u32 v{t0}, v0, 2, 3")
        e(f"v_lshrrev_b32 v{t1}, 5, v0")
        e(f"v_lshlrev_b32 v{t1}, 10, v{t1}")
        e(f"v_lshl_add_u32 v{t1}, v{t0}, 7, v{t1}")
        e(f"v_and_b32 v{t2}, 3, v0")
        e(f"v_lshl_add_u32 v{t1}, v{t2}, 3, v{t1}")
        if base_imm:
            e(f"v_add_u32 v{t1}, {base_imm}, v{t1}")
        if base_sreg is not None:
            e(f"v_add_u32 v{t1}, s{base_sreg}, v{t1}")
        e(f"v_lshrrev_b32 v{t0}, 1, v{t0}")
        for u in range(4):
            e(f"v_xor_b32 v{t2}, {u}, v{t0}")
            e(f"v_lshl_add_u32 v{dst+u}, v{t2}, 5, v{t1}")

    A_P = 0
    A_S = 128
    A_T = 144
    A_KA = 160
    A_VA = 161
    A_OW = 165
    A_VX = 165
    A_VK = 166
    A_VV = 167
    A_NM = 168
    A_L = 170
    A_TS = 172
    A_ST = 175

    def barA_(self, name, times=1):
        if self.prof == 2:
            self.stamp(self.A_ST)
        self.e("s_barrier")
        self.barA.append(name)
        if self.prof != 2:
            self.stamp(self.A_ST)

    def k_read(self, f, slot, tile):
        s, mt = f >> 1, f & 1
        off = slot * KV_SLOT + tile * 16896 + mt * 8448 + s * 64
        self.e(f"ds_read_b128 {ar(64 + 4*(f % 4), 4)}, v{self.A_KA} offset:{off}")

    def v_read(self, f, slot, parts=(0, 1)):
        T, u = f >> 2, f & 3
        b = 64 + 4 * (f % 4)
        off = slot * KV_SLOT + T * 4096
        for t in parts:
            self.e(f"ds_read_b64_tr_b16 {ar(b+2*t,2)}, v{self.A_VA+u} offset:{off+2048*t}")

    def lane16(self, dst, jsh, qsh, base):
        e = self.e
        e(f"v_mbcnt_lo_u32_b32 v{dst}, -1, 0")
        e(f"v_mbcnt_hi_u32_b32 v{dst}, -1, v{dst}")
        e(f"s_lshr_b32 s{S_T0}, s{S_W}, 1")
        e(f"s_and_b32 s{S_T1}, s{S_W}, 1")
        e(f"s_lshl_b32 s{S_T0}, s{S_T0}, {jsh}")
        e(f"s_lshl_b32 s{S_T1}, s{S_T1}, {qsh}")
        e(f"s_add_u32 s{S_T0}, s{S_T0}, s{S_T1}")
        e(f"s_add_u32 s{S_T0}, s{S_T0}, {base}")
        e(f"v_lshl_add_u32 v{dst}, v{dst}, 4, s{S_T0}")

    def q_read(self):
        e = self.e
        qa = self.A_TS
        self.lane16(qa, 15, 13, W_BASE)
        for s in range(8):
            for cb in range(2):
                off = (s >> 2) * 16384 + cb * 4096 + (s & 3) * 1024
                e(f"ds_read_b128 {ar(8*s+4*cb,4)}, v{qa} offset:{off}")

    def dma_voffs(self, VX, VK, VV, VWO, VWQ, a):
        e = self.e
        b, c, d = a + 1, a + 2, a + 3
        e(f"v_lshrrev_b32 v{a}, 3, v0")
        e(f"v_bfe_u32 v{b}, v0, 4, 2")
        e(f"v_and_b32 v{c}, 7, v0")
        e(f"v_xor_b32 v{VX}, v{c}, v{b}")
        e(f"v_lshlrev_b32 v{VX}, 4, v{VX}")
        e(f"v_mul_u32_u24 v{d}, 896, v{a}")
        e(f"v_add_u32 v{VX}, v{VX}, v{d}")
        yield
        e(f"v_lshlrev_b32 v{b}, 1, v{b}")
        e(f"v_xor_b32 v{c}, v{c}, v{b}")
        e(f"v_lshlrev_b32 v{c}, 4, v{c}")
        if VWO is not None:
            e(f"v_add_u32 v{VWO}, v{c}, v{d}")
        if VV is not None:
            e(f"v_lshl_add_u32 v{VV}, v{a}, 11, v{c}")
        e(f"v_lshrrev_b32 v{b}, 5, v0")
        if VWQ is not None:
            e(f"v_and_b32 v{d}, 3, v{a}")
            e(f"v_lshl_add_u32 v{VWQ}, v{d}, 13, v{c}")
            e(f"v_lshl_add_u32 v{VWQ}, v{b}, 16, v{VWQ}")
        e(f"v_and_b32 v{c}, 31, v0")
        e(f"v_xor_b32 v{c}, v{c}, v{b}")
        e(f"v_lshlrev_b32 v{c}, 4, v{c}")
        e(f"v_lshl_add_u32 v{VK}, v{b}, 11, v{c}")
        yield

    def A_Hops(self, kind, slot, gs, gimm):
        e = self.e
        ops = []
        if self.noH or not self.hA:
            return [lambda pre: None]*8
        for k in range(8):
            def op(pre, k=k):
                if kind == 'K':
                    if pre:
                        e(f"s_add_u32 m0, s{S_KL}, {slot*KV_SLOT + k*1056}")
                        e(f"s_add_u32 s{S_T0}, s{gs}, {gimm + k*4096}")
                    else:
                        e(f"buffer_load_dwordx4 v{self.A_VK}, {sr(S_K,4)}, s{S_T0} offen nt lds")
                elif kind == 'V':
                    if pre:
                        if k % 4 == 0:
                            e(f"s_add_u32 m0, s{S_VL}, {slot*KV_SLOT + k*1024}")
                        e(f"s_add_u32 s{S_T0}, s{gs}, {gimm + k*16384 - (k % 4)*1024}")
                    else:
                        e(f"buffer_load_dwordx4 v{self.A_VV}, {sr(S_V,4)}, s{S_T0} offen offset:{(k%4)*1024} nt lds")
                else:
                    if pre:
                        if k:
                            e(f"s_add_u32 m0, m0, s{S_HM}")
                            e(f"s_add_u32 s{S_T1}, s{S_T1}, s{S_HGS}")
                    else:
                        e(f"buffer_load_dwordx4 v{self.A_NM}, {sr(S_HS,4)}, s{S_T1} offen nt lds")
            ops.append(op)
        return ops

    def xlane(self, op, x, t):
        e = self.e
        e(f"v_mov_b32 v{t}, v{x}")
        e("s_nop 1")
        e(f"v_permlane32_swap_b32 v{t}, v{x}")
        e("s_nop 1")
        e(f"{op} v{x}, v{x}, v{t}")
        e(f"v_mov_b32 v{t}, v{x}")
        e("s_nop 1")
        e(f"v_permlane16_swap_b32 v{t}, v{x}")
        e("s_nop 1")
        e(f"{op} v{x}, v{x}, v{t}")

    def tile_max(self, cb, dst, t):
        e = self.e
        S = self.A_S
        r = [S + 4*cb + k for k in range(4)] + [S + 8 + 4*cb + k for k in range(4)]
        e(f"v_max3_f32 v{dst}, v{r[0]}, v{r[1]}, v{r[2]}")
        e(f"v_max3_f32 v{dst}, v{dst}, v{r[3]}, v{r[4]}")
        e(f"v_max3_f32 v{dst}, v{dst}, v{r[5]}, v{r[6]}")
        e(f"v_max_f32 v{dst}, v{dst}, v{r[7]}")
        self.xlane("v_max_f32", dst, t)

    def softmax(self, T):
        e = self.e
        S, TT, P = self.A_S, self.A_T, self.A_P
        if T == 0:
            for cb in range(2):
                self.tile_max(cb, TT + cb, TT + 2)
                e(f"v_mul_f32 v{self.A_NM+cb}, s{S_C}, v{TT+cb}")
                e(f"v_sub_f32 v{self.A_NM+cb}, 0, v{self.A_NM+cb}")
                e(f"v_mov_b32 v{self.A_L+cb}, 0")
        e.lab(f"L_sm{T}")
        groups = [(0, 0), (0, 1), (1, 0), (1, 1)]
        def fma(gi):
            mt, cb = groups[gi]
            for r in range(4):
                e(f"v_fma_f32 v{TT+4*gi+r}, v{S+8*mt+4*cb+r}, s{S_C}, v{self.A_NM+cb}")
        def exp(gi):
            for r in range(4):
                e(f"v_exp_f32 v{TT+4*gi+r}, v{TT+4*gi+r}")
        def fin(gi):
            mt, cb = groups[gi]
            t = TT + 4*gi
            ts = self.A_TS + cb
            if mt == 0:
                e(f"v_add_f32 v{ts}, v{t}, v{t+1}")
            else:
                e(f"v_add_f32 v{ts}, v{ts}, v{t}")
                e(f"v_add_f32 v{ts}, v{ts}, v{t+1}")
            e(f"v_cvt_pk_bf16_f32 v{P+8*T+4*cb+2*mt}, v{t}, v{t+1}")
            e(f"v_add_f32 v{ts}, v{ts}, v{t+2}")
            e(f"v_cvt_pk_bf16_f32 v{P+8*T+4*cb+2*mt+1}, v{t+2}, v{t+3}")
            e(f"v_add_f32 v{ts}, v{ts}, v{t+3}")
        fma(0); fma(1); exp(0); fma(2); exp(1); fma(3); fin(0); exp(2); fin(1); exp(3); fin(2); fin(3)
        if T > 0:
            e(f"v_max_f32 v{TT}, v{self.A_TS}, v{self.A_TS+1}")
            e(f"v_cmp_lt_f32 vcc, s{S_THR}, v{TT}")
            e("s_nop 0")
            e(f"s_cbranch_vccz L_ok{T}")
            e(f"s_call_b64 {sr(S_RET,2)}, L_rescale")
            e(f"s_branch L_sm{T}")
            e.lab(f"L_ok{T}")
            e(f"s_mov_b32 s{S_THR}, 0x47800000")
        for cb in range(2):
            e(f"v_add_f32 v{self.A_L+cb}, v{self.A_L+cb}, v{self.A_TS+cb}")

    def rescale_routine(self):
        e = self.e
        TT, P = self.A_T, self.A_P
        e.lab("L_rescale")
        for cb in range(2):
            self.tile_max(cb, TT, TT + 2)
            e(f"v_fma_f32 v{TT}, v{TT}, s{S_C}, v{self.A_NM+cb}")
            e(f"v_ceil_f32 v{TT}, v{TT}")
            e(f"v_max_f32 v{TT}, 0, v{TT}")
            e(f"v_sub_f32 v{self.A_NM+cb}, v{self.A_NM+cb}, v{TT}")
            e(f"v_min_f32 v{TT}, 0x43800000, v{TT}")
            e(f"v_cvt_i32_f32 v{TT}, v{TT}")
            e(f"v_sub_u32 v{TT}, 0, v{TT}")
            e(f"v_ldexp_f32 v{self.A_L+cb}, v{self.A_L+cb}, v{TT}")
            for T in range(16):
                for k in range(4):
                    r = P + 8*T + 4*cb + k
                    e(f"v_lshlrev_b32 v{TT+4}, 16, v{r}")
                    e(f"v_and_b32 v{TT+5}, 0xffff0000, v{r}")
                    e(f"v_ldexp_f32 v{TT+4}, v{TT+4}, v{TT}")
                    e(f"v_ldexp_f32 v{TT+5}, v{TT+5}, v{TT}")
                    e(f"v_cvt_pk_bf16_f32 v{r}, v{TT+4}, v{TT+5}")
        e(f"s_mov_b32 s{S_THR}, 0x7f800000")
        e(f"s_setpc_b64 {sr(S_RET,2)}")

    def streamA(self):
        e = self.e
        KA, VA, OW = self.A_KA, self.A_VA, self.A_OW
        self.stamp(self.A_ST)
        if self.prioA:
            e(f"s_setprio {self.prioA}")
        t = self.A_T
        e(f"v_and_b32 v{t+12}, 31, v0")
        e(f"v_min_u32 v{t+12}, 27, v{t+12}")
        e(f"s_mul_i32 s{S_T0}, s{S_W}, 28")
        e(f"v_add_u32 v{t+12}, s{S_T0}, v{t+12}")
        if self.vt0:
            e(f"v_lshlrev_b32 v{t+13}, 15, v{t+12}")
            if self.vt0 == 3:
                e(f"v_lshrrev_b32 v{t+14}, 5, v0")
                e(f"v_lshl_add_u32 v{t+13}, v{t+14}, 10, v{t+13}")
            e(f"s_lshr_b32 s{S_T0}, s{S_B}, 3")
            e(f"s_lshl_b32 s{S_T0}, s{S_T0}, 13")
            e(f"s_and_b32 s{S_T1}, s{S_B}, 7")
            e(f"s_lshl_b32 s{S_T1}, s{S_T1}, 7")
            e(f"s_add_u32 s{S_T0}, s{S_T0}, s{S_T1}")
            e(f"buffer_load_dword v{t+14}, v{t+13}, {sr(S_WQ,4)}, s{S_T0} offen{' nt' if self.vt0 == 2 else ''}")
        else:
            self.stouch_wq(0, 0, 56, 1)
        a, b, c = t + 4, t + 5, t + 6
        e(f"v_bfe_u32 v{a}, v0, 1, 3")
        e(f"v_mul_u32_u24 v{KA}, 1056, v{a}")
        e(f"v_and_b32 v{a}, 1, v0")
        e(f"v_lshl_add_u32 v{KA}, v{a}, 9, v{KA}")
        e(f"v_lshrrev_b32 v{b}, 4, v0")
        e(f"v_xor_b32 v{b}, v{b}, v{a}")
        e(f"v_lshl_add_u32 v{KA}, v{b}, 4, v{KA}")
        self.tr_addr(VA, t0=a, t1=b, t2=c)
        for _ in self.dma_voffs(self.A_VX, self.A_VK, self.A_VV, None, None, t + 8):
            pass
        e(f"s_lshl_b32 s{S_HK}, s{S_W}, 15")
        e(f"s_lshl_b32 s{S_HV}, s{S_W}, 9")
        e(f"s_mul_i32 s{S_KL}, s{S_W}, {8*1056}")
        e(f"s_lshl_b32 s{S_VL}, s{S_W}, 13")
        e(f"s_mul_i32 s{S_XLDS}, s{S_W}, {2*1088}")
        e(f"s_mul_i32 s{S_XG}, s{S_W}, {16*896}")
        e(f"s_mov_b32 s{S_C}, 0x3db8aa3b")
        e(f"s_mov_b32 s{S_THR}, 0x47800000")
        e(f"s_mov_b32 s{S_ITEM}, 0")
        segs = [('q', 56)] if self.vt0 != 3 else []
        if 0 not in self.hto:
            segs.append(('o0', 56))
        if not self.vto and not self.bto and 1 not in self.hto:
            segs.append(('o1', self.wo1A))
        def touch_range(a, b):
            pos = 0
            for kind, n in segs:
                lo, hi = max(a - pos, 0), min(b - pos, n)
                if lo < hi:
                    if kind == 'q':
                        self.stouch_wq(1, lo, hi, 1)
                    else:
                        self.stouch_wo(int(kind[1]), lo, hi)
                pos += n
        touch_range(0, self.pre1)
        self.barA_("HB")
        if self.early:
            touch_range(self.pre1, self.pre2)
            self.barA_("HB2")
            if self.h1h:
                touch_range(self.pre2, self.pre3)
                self.barA_("HB3")
                touch_range(self.pre3, 999)
            else:
                touch_range(self.pre2, 999)
        else:
            touch_range(self.pre1, 999)
        e("s_waitcnt vmcnt(0)")
        if self.xpromo:
            e(f"v_lshlrev_b32 v{t+13}, 7, v0")
            e(f"s_lshl_b32 s{S_T0}, s{S_W}, 13")
            e(f"buffer_load_dword v{t+14}, v{t+13}, {sr(S_X,4)}, s{S_T0} offen")
            e(f"s_add_u32 s{S_T0}, s{S_T0}, 32768")
            e(f"buffer_load_dword v{t+15}, v{t+13}, {sr(S_X,4)}, s{S_T0} offen")
            e("s_waitcnt vmcnt(0)")
        e(f"v_lshlrev_b32 v{self.A_VK}, 12, v{t+12}")
        e(f"s_lshl_b32 s{S_HK}, s{S_B}, 7")
        e(f"s_add_u32 s{S_HK}, s{S_HK}, 458752")
        self.barA_("QB1")
        if self.vto:
            e(f"buffer_load_dword v{self.A_VV}, v{self.A_VK}, {sr(S_WO,4)}, s{S_HK} offen nt")
        self.q_read()
        e("s_waitcnt lgkmcnt(0)")
        self.barA_("KV0")
        for f in range(3):
            self.k_read(f, 0, 0)
        barA_pre = list(self.barA)
        self.barA = []
        e.lab("L_item")
        if self.dyn:
            e(f"s_setprio {self.prioA}")
        S = self.A_S
        for T in range(16):
            slot, tile = (T >> 1) & 1, T & 1
            ph = T >> 1
            hops = []
            if T == 2 and self.vto:
                e(f"s_cmp_eq_u32 s{S_ITEM}, 0")
                e("s_cbranch_scc0 L_nopromo")
                e(f"buffer_load_dword v{self.A_VV}, v{self.A_VK}, {sr(S_WO,4)}, s{S_HK} offen")
                e.lab("L_nopromo")
            if tile == 0:
                hops = self.A_Hops('K', slot ^ 1, S_HK, ((ph + 1) >> 2)*131072 + ((ph + 1) & 3)*512) if ph < 7 else self.A_Hops('V', 0, S_HV, 0)
            e("s_waitcnt lgkmcnt(2)" if T else ("s_waitcnt lgkmcnt(2)"))
            for f in range(16):
                s, mt = f >> 1, f & 1
                d0, d1 = vr(S + 8*mt, 4), vr(S + 8*mt + 4, 4)
                if hops and f % 2 == 0:
                    hops[f >> 1](True)
                if not self.noAm:
                    e(f"v_mfma_f32_16x16x32_bf16 {d0}, {ar(64+4*(f%4),4)}, {ar(8*s,4)}, {d0 if s else 0}")
                if f + 3 < 16:
                    self.k_read(f + 3, slot, tile)
                elif tile == 0:
                    self.k_read(f + 3 - 16, slot, 1)
                if not self.noAm:
                    e(f"v_mfma_f32_16x16x32_bf16 {d1}, {ar(64+4*(f%4),4)}, {ar(8*s+4,4)}, {d1 if s else 0}")
                if hops and f % 2 == 0:
                    hops[f >> 1](False)
                if (T, f) == ((0, self.obe) if self.ob.get(16) == 'early' else self.obk) and 16 in self.ob:
                    e(f"s_cmp_eq_u32 s{S_ITEM}, 0")
                    e("s_cbranch_scc1 L_nobk")
                    e("s_barrier")
                    self.stamp(self.A_ST)
                    e.lab("L_nobk")
                if f < 15:
                    n_out = 2 if (tile == 0 or f + 3 < 16) else 14 - f
                    if tile == 1 and f == 14:
                        e("s_waitcnt vmcnt(0) lgkmcnt(0)" if self.hA else "s_waitcnt lgkmcnt(0)")
                        self.barA_("KV")
                        for g in range(3):
                            if T < 15:
                                self.k_read(g, slot ^ 1, 0)
                            else:
                                self.v_read(g, 0)
                    else:
                        e(f"s_waitcnt lgkmcnt({n_out})")
            if tile == 0 and ph < 7 and self.hA:
                e(f"s_cmp_eq_u32 s{S_ITEM}, 0")
                e(f"s_cbranch_scc0 L_nox{ph}")
                for k in range(2):
                    e(f"s_add_u32 m0, s{S_XLDS}, {self.xloc(1, ph) + k*1088}")
                    e(f"s_add_u32 s{S_T0}, s{S_XG}, {k*7168 + ph*128}")
                    e(f"buffer_load_dwordx4 v{self.A_VX}, {sr(S_X,4)}, s{S_T0} offen lds")
                if ph == 0:
                    e("s_barrier")
                    self.stamp(self.A_ST)
                e.lab(f"L_nox{ph}")
            if self.dyn:
                e("s_setprio 0")
            e("s_nop 1" if T else "s_nop 7")
            if not self.noSM:
                self.softmax(T)
            if self.dyn and T < 15:
                e(f"s_setprio {self.prioA}")
        TT = self.A_T
        for cb in range(2):
            self.xlane("v_add_f32", self.A_L + cb, TT)
            e(f"v_rcp_f32 v{self.A_L+cb}, v{self.A_L+cb}")
        self.lane16(OW, 13, 11, XO_BASE)
        barA_K = list(self.barA)
        self.barA = []
        e(f"s_mov_b32 s{S_CH}, 0")
        e(f"s_mov_b32 s{S_HVC}, s{S_HV}")
        e.lab("L_chunk")
        if self.dyn:
            e(f"s_setprio {self.prioA}")
        O = self.A_S
        for half in range(2):
            if half == 1:
                e(f"s_or_b32 s{S_T0}, s{S_ITEM}, s{S_CH}")
                e(f"s_cbranch_scc1 L_noq2")
                self.q_read()
                e.lab("L_noq2")
                if self.hA:
                    e(f"s_movk_i32 s{S_HM}, 1024")
                    e(f"s_movk_i32 s{S_HGS}, 16384")
                    e(f"s_cmp_eq_u32 s{S_CH}, 3")
                    e(f"s_cselect_b64 {sr(S_HS,2)}, {sr(S_K,2)}, {sr(S_V,2)}")
                    e(f"s_cselect_b32 s{S_HM}, 1056, s{S_HM}")
                    e(f"s_cselect_b32 s{S_HGS}, 4096, s{S_HGS}")
                    e(f"s_cselect_b32 m0, s{S_KL}, s{S_VL}")
                    e(f"s_cselect_b64 vcc, -1, 0")
                    e(f"s_add_u32 s{S_T0}, s{S_HK}, 262144")
                    e(f"s_add_u32 s{S_T1}, s{S_HVC}, 128")
                    e(f"v_cndmask_b32 v{self.A_NM}, v{self.A_VV}, v{self.A_VK}, vcc")
                    e(f"s_cmp_eq_u32 s{S_CH}, 3")
                    e(f"s_cselect_b32 s{S_T1}, s{S_T0}, s{S_T1}")
                    e(f"s_mov_b32 s{S_HS+2}, 524288")
                    e(f"s_mov_b32 s{S_HS+3}, 0x20000")
                hops = self.A_Hops('G', 0, None, None)
            else:
                hops = self.A_Hops('V', 1, S_HVC, 131072)
            e("s_waitcnt lgkmcnt(4)")
            for f in range(32):
                T, u = f >> 2, f & 3
                Tg = 8*half + T
                d0, d1 = vr(O + 8*u, 4), vr(O + 8*u + 4, 4)
                if f < 16 and f % 2 == 0:
                    hops[f >> 1](True)
                if not self.noAm:
                    e(f"v_mfma_f32_16x16x32_bf16 {d0}, {ar(64+4*(f%4),4)}, {vr(self.A_P+8*Tg,4)}, {d0 if Tg else 0}")
                if f + 3 < 32:
                    self.v_read(f + 3, half, (0,))
                if not self.noAm:
                    e(f"v_mfma_f32_16x16x32_bf16 {d1}, {ar(64+4*(f%4),4)}, {vr(self.A_P+8*Tg+4,4)}, {d1 if Tg else 0}")
                if f + 3 < 32:
                    self.v_read(f + 3, half, (1,))
                if f < 16 and f % 2 == 0:
                    hops[f >> 1](False)
                for kind, pos in (('early', self.obe), ('late', self.obf)):
                    mask = sum(1 << (4*it + cc) for it in range(2) for cc in range(1, 4) if self.ob.get(8 + 2*cc + 16*it) == kind)
                    if half == 0 and f == pos and mask:
                        e(f"s_lshl2_add_u32 s{S_T0}, s{S_ITEM}, s{S_CH}")
                        e(f"s_bitcmp1_b32 {mask}, s{S_T0}")
                        e(f"s_cbranch_scc0 L_nob{kind}")
                        e("s_barrier")
                        self.stamp(self.A_ST)
                        e.lab(f"L_nob{kind}")
                if half == 1 and f == (15 if self.hA else 4):
                    e(f"s_cmp_eq_u32 s{S_CH}, 0")
                    e("s_cbranch_scc0 L_nqb")
                    e("s_barrier")
                    self.stamp(self.A_ST)
                    e.lab("L_nqb")
                if f == 30:
                    e("s_waitcnt vmcnt(0) lgkmcnt(0)" if self.hA else "s_waitcnt lgkmcnt(0)")
                    self.stamp(self.A_ST, '@')
                    self.barA_("KV")
                    self.stamp(self.A_ST, '@')
                    if half == 0:
                        for g in range(3):
                            self.v_read(g, 1)
                    else:
                        e(f"s_cmp_eq_u32 s{S_CH}, 3")
                        e("s_cbranch_scc1 L_nk")
                        for g in range(3):
                            self.v_read(g, 0)
                        e("s_branch L_nk2")
                        e.lab("L_nk")
                        for g in range(3):
                            self.k_read(g, 0, 0)
                        e.lab("L_nk2")
                elif f < 30:
                    e(f"s_waitcnt lgkmcnt({2*min(2, 30 - f)})")
        if self.dyn:
            e("s_setprio 0")
        e("s_nop 7")
        for u in range(4):
            for cb in range(2):
                for r in range(4):
                    x = O + 8*u + 4*cb + r
                    e(f"v_mul_f32 v{x}, v{x}, v{self.A_L+cb}")
        for u2 in range(2):
            for cb in range(2):
                d = O + 16*u2 + 4*cb
                s1 = d + 8
                e(f"v_cvt_pk_bf16_f32 v{d}, v{d}, v{d+1}")
                e(f"v_cvt_pk_bf16_f32 v{d+1}, v{d+2}, v{d+3}")
                e(f"v_cvt_pk_bf16_f32 v{d+2}, v{s1}, v{s1+1}")
                e(f"v_cvt_pk_bf16_f32 v{d+3}, v{s1+2}, v{s1+3}")
                e(f"ds_write_b128 v{OW}, {vr(d,4)} offset:{u2*4096 + cb*1024}")
        barA_C = list(self.barA)
        e(f"s_add_u32 s{S_HVC}, s{S_HVC}, 128")
        e(f"s_add_u32 s{S_CH}, s{S_CH}, 1")
        e(f"s_cmp_lt_u32 s{S_CH}, 4")
        e("s_cbranch_scc1 L_chunk")
        e(f"s_add_u32 s{S_HK}, s{S_HK}, 262144")
        e(f"s_add_u32 s{S_HV}, s{S_HV}, 262144")
        e(f"s_add_u32 s{S_ITEM}, s{S_ITEM}, 1")
        e(f"s_cmp_lt_u32 s{S_ITEM}, 2")
        e("s_cbranch_scc1 L_item")
        seq = list(barA_pre)
        for it in range(2):
            seq += (["HX"] if it == 0 and self.hA else []) + (["OB"] if it == 1 and 16 in self.ob else []) + barA_K
            for c in range(4):
                x = list(barA_C)
                if c == 0:
                    x.insert(1, "QB2")
                elif 8 + 2*c + 16*it in self.ob:
                    x.insert(0, "OB")
                seq += x
        e("s_waitcnt lgkmcnt(0)")
        self.barA_("OB")
        self.barA = seq + ["OB"]
        if self.prof:
            self.stamp(self.A_ST)
            e(f"s_cmp_eq_u32 s{S_W}, 0")
            e("s_cbranch_scc0 L_end")
            self.prof_store(self.A_ST, 0, 0)
        e("s_endpgm")
        self.rescale_routine()

    def prof_store(self, vreg, role, tmp):
        e = self.e
        e(f"v_mbcnt_lo_u32_b32 v{tmp}, -1, 0")
        e(f"v_mbcnt_hi_u32_b32 v{tmp}, -1, v{tmp}")
        e(f"v_lshlrev_b32 v{tmp}, 2, v{tmp}")
        e(f"s_lshl_b32 s{S_T0}, s{S_WG}, 9")
        e(f"s_add_u32 s{S_T0}, s{S_T0}, {0x3000000 + role*256}")
        e(f"buffer_store_dword v{vreg}, v{tmp}, {sr(S_WS,4)}, s{S_T0} offen")
        e(f"s_add_u32 s{S_T0}, s{S_T0}, 0x200000")
        e(f"buffer_store_dword v{self.st2[vreg]}, v{tmp}, {sr(S_WS,4)}, s{S_T0} offen")
        e("s_waitcnt vmcnt(0)")

    def stouch_wq(self, item, k0, k1, step):
        e = self.e
        if k0 >= k1:
            return
        e(f"s_lshl_b32 s{S_T0}, s{S_W}, 14")
        e(f"s_lshr_b32 s{S_T1}, s{S_B}, 4")
        e(f"s_lshl_b32 s{S_T1}, s{S_T1}, 13")
        e(f"s_add_u32 s{S_T0}, s{S_T0}, s{S_T1}")
        e(f"s_and_b32 s{S_T1}, s{S_B}, 15")
        e(f"s_lshl_b32 s{S_T1}, s{S_T1}, 6")
        e(f"s_add_u32 s{S_T0}, s{S_T0}, s{S_T1}")
        cur = 0
        for k in range(k0, k1, step):
            if k // 8 != cur:
                e(f"s_add_u32 s{S_T0}, s{S_T0}, {(k // 8 - cur)*8*65536}")
                cur = k // 8
            e(f"s_buffer_load_dword s{S_JUNK + k % 4}, {sr(S_WQ,4)}, s{S_T0} offset:{(k % 8)*65536 + item*1024}")

    def stouch_wo(self, item, k0, k1):
        e = self.e
        e(f"s_lshl_b32 s{S_T0}, s{S_W}, 11")
        e(f"s_lshl_b32 s{S_T1}, s{S_B}, 6")
        e(f"s_add_u32 s{S_T0}, s{S_T0}, s{S_T1}")
        for k in range(k0, k1):
            e(f"s_buffer_load_dword s{S_JUNK + k % 4}, {sr(S_WO,4)}, s{S_T0} offset:{k*8192 + item*458752}")

    B_OR = 128
    B_TMP = 132
    B_BF = 32
    B_WT = 160
    B_XR = 164
    B_XR0 = 165
    B_VWQ = 166
    B_VWO = 167
    B_VV = 168
    B_VK = 169
    B_VX = 170
    B_QW = 171
    B_LANE = 172
    B_TA, B_TD = 166, 167
    B_FIN, B_FOUT, B_FAI, B_FAO = 148, 149, 150, 151
    B_VWQ4 = 152
    B_VWO4 = 156
    B_ST = 175

    def setupB(self):
        e = self.e
        e(f"s_mul_i32 s{S_XLDS}, s{S_W}, {2*1088}")
        e(f"s_mul_i32 s{S_XG}, s{S_W}, {16*896}")
        g = self.dma_voffs(self.B_VX, self.B_VK, self.B_VV, self.B_VWO4, self.B_VWQ4, self.B_TMP)
        next(g)
        e(f"v_and_b32 v{self.B_FAO}, 3, v0")
        e(f"v_lshlrev_b32 v{self.B_FAI}, 2, v{self.B_FAO}")
        e(f"s_lshl_b32 s{S_T0}, s{S_WG}, 7")
        e(f"s_add_u32 s{S_T0}, s{S_T0}, {FLAG_BASE}")
        e(f"v_add_u32 v{self.B_FAI}, s{S_T0}, v{self.B_FAI}")
        e(f"s_mul_i32 s{S_T1}, s{S_P}, 124")
        e(f"s_sub_u32 s{S_T0}, s{S_T0}, s{S_T1}")
        e(f"v_lshl_add_u32 v{self.B_FAO}, v{self.B_FAO}, 7, s{S_T0}")
        e(f"buffer_load_dword v{self.B_FIN}, v{self.B_FAI}, {sr(S_WS,4)}, 0 offen sc1")
        e(f"buffer_load_dword v{self.B_FOUT}, v{self.B_FAO}, {sr(S_WS,4)}, 0 offen sc1")
        self.vmq += ["F", "F"]
        for xp in range(2 if self.early else 7):
            for op in self.X_ops(xp, self.xloc(0, xp), "X0", self.xnt):
                op()
        e(f"s_lshl_b32 s{S_WLDS}, s{S_W}, 14")
        e(f"s_add_u32 s{S_WLDS}, s{S_WLDS}, {W_BASE}")
        e(f"s_lshl_b32 s{S_WCOL}, s{S_W}, 8")
        e(f"s_mul_i32 s{S_KLDS}, s{S_W}, {8*1056}")
        e(f"s_lshl_b32 s{S_KG}, s{S_W}, 15")
        r1, r2 = 44, 45
        if self.rot:
            e(f"s_and_b32 s{r1}, s{S_B}, 3")
            e(f"s_bfe_u32 s{r2}, s{S_B}, 0x20002")
        else:
            e(f"s_mov_b32 s{r1}, 0")
            e(f"s_mov_b32 s{r2}, 0")
        e(f"s_add_u32 s{S_VG}, s{S_W}, s{r1}")
        e(f"s_and_b32 s{S_VG}, s{S_VG}, 3")
        e(f"s_lshl_b32 s{S_VG}, s{S_VG}, 9")
        for r in range(4):
            e(f"s_add_u32 s{S_T0}, s{r1}, {r}")
            e(f"s_and_b32 s{S_T0}, s{S_T0}, 3")
            e(f"s_lshl_b32 s{S_T0}, s{S_T0}, 9")
            e(f"s_add_u32 s{S_KR+r}, s{S_KG}, s{S_T0}")
            e(f"s_add_u32 s{S_T0}, s{r2}, {r}")
            e(f"s_and_b32 s{S_T0}, s{S_T0}, 3")
            e(f"s_lshl_b32 s{S_T1}, s{S_T0}, 7")
            e(f"s_add_u32 s{S_VC+r}, s{S_VG}, s{S_T1}")
            e(f"s_mul_i32 s{S_T1}, s{S_T0}, {64*896}")
            e(f"s_add_u32 s{S_WR+r}, s{S_WCOL}, s{S_T1}")
        e(f"s_lshl_b32 s{S_VLB}, s{S_W}, 13")
        next(g)
        for pc in range(1, 4):
            e(f"v_add_u32 v{self.B_VWQ4+pc}, {(16*(pc & 1) + 4*(pc >> 1))*8192 - 1024*pc}, v{self.B_VWQ4}")

    def setupB2(self):
        e = self.e
        a, b, c = self.B_TMP, self.B_TMP + 1, self.B_TMP + 2
        self.tr_addr(self.B_WT, base_sreg=S_WLDS, t0=a, t1=b, t2=c)
        e(f"v_bfe_u32 v{a}, v0, 3, 1")
        e(f"v_mul_u32_u24 v{self.B_XR0}, 1088, v{a}")
        e(f"v_and_b32 v{a}, 7, v0")
        e(f"v_lshl_add_u32 v{self.B_XR0}, v{a}, 7, v{self.B_XR0}")
        e(f"v_lshrrev_b32 v{a}, 1, v{a}")
        e(f"v_lshrrev_b32 v{b}, 4, v0")
        e(f"v_xor_b32 v{a}, v{a}, v{b}")
        e(f"v_lshl_add_u32 v{self.B_XR0}, v{a}, 4, v{self.B_XR0}")
        e(f"v_add_u32 v{self.B_XR}, {XO_BASE}, v{self.B_XR0}")
        e(f"v_add_u32 v{self.B_XR0}, {KV_SLOT}, v{self.B_XR0}")
        for rb in range(4):
            e(f"s_add_u32 s{S_T0}, s{S_P}, {rb}")
            e(f"s_and_b32 s{S_T0}, s{S_T0}, 3")
            e(f"s_lshl_b32 s{S_T0}, s{S_T0}, 10")
            e(f"s_add_u32 s{S_T0}, s{S_T0}, {XO_BASE}")
            e(f"v_lshl_add_u32 v{self.B_OR+rb}, v0, 4, s{S_T0}")
        e(f"v_lshrrev_b32 v{a}, 5, v0")
        e(f"v_lshlrev_b32 v{a}, 8, v{a}")
        e(f"v_and_b32 v{b}, 15, v0")
        e(f"v_lshl_add_u32 v{a}, v{b}, 4, v{a}")
        e(f"v_bfe_u32 v{b}, v0, 4, 1")
        e(f"v_lshl_add_u32 v{a}, v{b}, 3, v{a}")
        e(f"v_add_u32 v{self.B_QW}, s{S_WLDS}, v{a}")
        e(f"v_mov_b32 v{self.B_LANE}, v0")
        e(f"v_min_u32 v{self.B_TA}, 27, v0")
        e(f"s_mul_i32 s{S_T0}, s{S_W}, 28")
        e(f"v_add_u32 v{self.B_TA}, s{S_T0}, v{self.B_TA}")
        e(f"v_lshlrev_b32 v{self.B_TA}, 12, v{self.B_TA}")
        e(f"s_lshl_b32 s{S_T0}, s{S_B}, 7")
        e(f"v_add_u32 v{self.B_TA}, s{S_T0}, v{self.B_TA}")
        for pc in range(1, 4):
            e(f"v_add_u32 v{self.B_VWO4+pc}, {(16*(pc >> 1) + 8*(pc & 1))*896 - 1024*pc}, v{self.B_VWO4}")

    def xloc(self, item, xp):
        if xp == 0 and (item == 0 or self.qcnt[0]):
            return KV_SLOT + 4 * X_SLOT
        if item == 1:
            return XO_BASE + (xp & 1) * X_SLOT
        if xp < 5:
            return KV_SLOT + (xp - 1) * X_SLOT
        return XO_BASE + (xp - 5) * X_SLOT

    def dma(self, lds_s, lds_imm, g_s, g_imm, vaddr, srd, tag, nt=False):
        def emit():
            e = self.e
            e(f"s_add_u32 m0, s{lds_s}, {lds_imm}")
            e(f"s_add_u32 s{S_T0}, s{g_s}, {g_imm}")
            e(f"buffer_load_dwordx4 v{vaddr}, {sr(srd,4)}, s{S_T0} offen{' nt' if nt else ''} lds")
            self.vmq.append(tag)
        return emit

    def H_ops(self, n):
        item, ph = n >> 4, n & 15
        slot = n & 1
        ops = []
        if self.noH:
            return ops
        for k in range(8):
            if ph < 8:
                ops.append(self.dma(S_KLDS, slot*KV_SLOT + k*1056, S_KR + (ph & 3), item*262144 + (ph >> 2)*131072 + k*4096,
                                    self.B_VK, S_K, f"H{n}", nt=True))
            else:
                c, half = (ph - 8) >> 1, ph & 1
                ops.append(self.dma(S_VLB, slot*KV_SLOT + k*1024, S_VC + c, item*262144 + half*131072 + k*16384,
                                    self.B_VV, S_V, f"H{n}", nt=True))
        return ops

    def X_ops(self, xp, loc, tag, nt=False):
        return [self.dma(S_XLDS, loc + k*1088, S_XG, k*7168 + xp*128, self.B_VX, S_X, tag, nt=nt) for k in range(2)]

    def W_ops(self, wd, hs):
        ks, cbk = hs >> 1, hs & 1
        ops = []
        if self.noW and wd[:2] != ('Q', 0):
            return ops
        if wd[0] == 'Q':
            _, item, xp = wd
            g = 32*(2*xp + ks)*8192 + item*1024 + cbk*128
            vb, srd, gs = self.B_VWQ4, S_WQ, S_WCOL
        else:
            _, item, c, j = wd
            g = (item*512 + 256*j + 32*ks)*896 + cbk*128
            vb, srd, gs = self.B_VWO4, S_WO, S_WR + c
        for pc in range(4):
            def emit(pc=pc):
                e = self.e
                if pc == 0:
                    e(f"s_add_u32 m0, s{S_WLDS}, {hs*4096}")
                    e(f"s_add_u32 s{S_T0}, s{gs}, {g}")
                e(f"buffer_load_dwordx4 v{vb+pc}, {sr(srd,4)}, s{S_T0} offen offset:{pc*1024}{' nt' if self.wq0nt and wd[:2] == ('Q', 0) else ''} lds")
                self.vmq.append((wd, hs))
            ops.append(emit)
        return ops

    def wo_touch(self, nt):
        ops = []
        for item in self.hto:
            def tch(item=item):
                self.e(f"s_mov_b32 s{S_T0}, {item*458752}")
                self.e(f"buffer_load_dword v{self.B_TD}, v{self.B_TA}, {sr(S_WO,4)}, s{S_T0} offen{' nt' if nt else ''}")
                self.vmq.append("T")
            ops.append(tch)
        return ops

    def vmwait(self, need, extra=""):
        idx = -1
        for i, t in enumerate(self.vmq):
            if t in need:
                idx = i
        if idx < 0:
            if extra:
                self.e(f"s_waitcnt {extra}")
            return
        n = len(self.vmq) - 1 - idx
        assert n <= 63, n
        self.e(f"s_waitcnt vmcnt({n}) {extra}".rstrip())
        self.vmq = self.vmq[idx+1:]

    def barB_(self, name):
        sel = 10 <= self.curn <= 16 or 26 <= self.curn <= 32
        if sel:
            self.stamp(self.B_ST, f"@a{name}{self.curn}")
        self.e("s_barrier")
        if sel:
            self.stamp(self.B_ST, f"@{name}{self.curn}")
        self.barB[self.path].append(name)
        if self.prof != 2 or self.curn in self.fine or self.curn - 1 in self.fine:
            self.stamp(self.B_ST, name + str(self.curn))

    def hs_list(self, wd):
        if wd[0] == 'O' and self.path == 'w3':
            return [0, 2]
        return [0, 1, 2, 3]

    @staticmethod
    def kid(st):
        wd, hs = st
        return (wd[0], wd[1], 2*wd[2] + (hs >> 1)) if wd[0] == 'Q' else ('O', wd[1], 4*wd[2] + 2*wd[3] + (hs >> 1))

    def make_sched(self):
        P = {n: [] for n in range(34)}
        def fill(seq, base, cnt):
            k = 0
            for i, c in enumerate(cnt):
                P[base + i] += seq[k:k + c]
                k += c
            return seq[k:]
        assert not fill([(('Q', 1, xp), hs) for xp in range(7) for hs in range(4)], 0, self.qcnt)
        oseq = lambda it: [(('O', it, k >> 2, (k >> 1) & 1), 2*(k & 1) + cbk) for k in range(16) for cbk in range(2)]
        assert not fill(oseq(0), 10, self.o1cnt)
        P[32] = fill(oseq(1), 26, self.o2cnt)
        self.P = P
        self.ob = {}
        for it, base in ((0, 10), (1, 26)):
            for c in range(4):
                wp = base + 2*c
                use = [i for i, (wd, hs) in enumerate(P[wp]) if wd[:3] == ('O', it, c)]
                for n in range(wp):
                    assert not any(wd[:3] == ('O', it, c) for wd, hs in P[n])
                if use:
                    self.ob[wp] = 'early' if use[0] == 0 else 'late'
        self.xfirst = {}
        for n in range(9):
            for wd, hs in P[n]:
                self.xfirst.setdefault(wd[2], n)

    def sched(self, n):
        return [st for st in self.P[n] if not (self.path == 'w3' and st[0][0] == 'O' and st[1] & 1)]

    def bf_reads(self, st):
        wd, hs = st
        k = self.kid(st)
        if k in self.bfl:
            return []
        self.bfl.add(k)
        ks = hs >> 1
        e = self.e
        ops = []
        for cb4 in range(4):
            d = ar(self.B_BF + 16*(k[2] % 3) + 4*cb4, 4)
            if wd[0] == 'Q':
                loc = self.xloc(wd[1], wd[2])
                reg = self.B_XR if loc >= XO_BASE else self.B_XR0
                off = (loc - XO_BASE if loc >= XO_BASE else loc - KV_SLOT) + cb4*2176 + ks*64
            else:
                reg = self.B_OR + cb4
                off = (2*wd[3] + ks)*4096
            ops.append(lambda d=d, off=off, reg=reg: e(f"ds_read_b128 {d}, v{reg} offset:{off}"))
        return ops

    def w_reads(self, hs, i):
        e = self.e
        ops = []
        for u in range(4):
            for t in range(2):
                d = ar(16*(i & 1) + 4*u + 2*t, 2)
                off = hs*4096 + t*2048
                ops.append(lambda d=d, off=off, u=u: e(f"ds_read_b64_tr_b16 {d}, v{self.B_WT+u} offset:{off}"))
        return ops

    def needs_ob(self, st):
        wd, hs = st
        return wd[0] == 'O' and wd[3] == 0 and hs == 0 and self.curn == (10, 26)[wd[1]] + 2*wd[2]

    def run_steps(self, steps, per_step, preload=(), upfront=()):
        e = self.e
        if self.boost:
            e(f"s_setprio {self.boost}")
        if self.wpre != steps[0]:
            self.vmwait([steps[0]])
            for op in self.w_reads(steps[0][1], 0):
                op()
        if self.needs_ob(steps[0]):
            for op in upfront:
                op()
            upfront = ()
            self.barB_("OB")
        for op in self.bf_reads(steps[0]):
            op()
        for op in upfront:
            op()
        if self.boost:
            e(f"s_setprio {self.prioB}")
        late = []
        for i, (wd, hs) in enumerate(steps):
            ks, cbk = hs >> 1, hs & 1
            kb = self.kid(steps[i])[2] % 3
            others = []
            nx = steps[i+1] if i + 1 < len(steps) else None
            if nx:
                self.vmwait([nx], "lgkmcnt(0)")
                if not self.needs_ob(nx):
                    others += self.bf_reads(nx)
                others += self.w_reads(nx[1], i + 1)
            else:
                e("s_waitcnt lgkmcnt(0)")
                for st in preload:
                    if self.kid(st)[2] % 3 != kb:
                        others += self.bf_reads(st)
                    else:
                        late += self.bf_reads(st)
            others += per_step(i)
            zero = ks == 0 and ((wd[0] == 'Q' and wd[2] == 0) or wd == ('O', 0, 0, 0))
            k = 0
            for u in range(4):
                for cb4 in range(4):
                    d = vr(64*cbk + 16*u + 4*cb4, 4)
                    if not (self.noBm and wd[:2] != ('Q', 0)):
                        e(f"v_mfma_f32_16x16x32_bf16 {d}, {ar(16*(i&1)+4*u,4)}, {ar(self.B_BF+16*kb+4*cb4,4)}, {0 if zero else d}")
                    if k < len(others):
                        others[k](); k += 1
            while k < len(others):
                others[k](); k += 1
            if nx and self.needs_ob(nx):
                if self.boost:
                    e(f"s_setprio {self.boost}")
                self.barB_("OB")
                for op in self.bf_reads(nx):
                    op()
                if self.boost:
                    e(f"s_setprio {self.prioB}")
        for op in late:
            op()

    def q_ops(self, cbk):
        e = self.e
        t = self.B_TMP
        ops = []
        for u in range(4):
            for cb4 in range(4):
                def op(u=u, cb4=cb4):
                    a = 64*cbk + 16*u + 4*cb4
                    d = t + 2*((4*u + cb4) % 8)
                    e(f"v_cvt_pk_bf16_f32 v{d}, v{a}, v{a+1}")
                    e(f"v_cvt_pk_bf16_f32 v{d+1}, v{a+2}, v{a+3}")
                    off = (cb4*4 + 2*cbk + (u >> 1))*1024 + (u & 1)*512
                    e(f"ds_write_b64 v{self.B_QW}, {vr(d,2)} offset:{off}")
                ops.append(op)
        return ops

    def q_write(self, cbks=(0, 1)):
        e = self.e
        if cbks == (0, 1):
            e("s_nop 7")
        for cbk in cbks:
            for op in self.q_ops(cbk):
                op()
        e("s_waitcnt lgkmcnt(0)")

    def periodB(self, n):
        e = self.e
        self.curn = n
        steps = self.sched(n)
        nxt = self.sched(n + 1) if n < 32 else []
        self.vmwait([f"H{n}"] + [f"X1_{xp}" for xp, m in self.xfirst.items() if m == n])
        self.barB_("KV0" if n == 0 else "KV")
        hx = []
        if n + 1 <= 31 and not (n == 0 and self.h1h):
            hx += self.H_ops(n + 1)
        for xp, m in self.xfirst.items():
            if m == n + 1:
                hx += self.X_ops(xp, self.xloc(1, xp), f"X1_{xp}", self.x2nt)
        if n == 0:
            for st in steps:
                for op in self.W_ops(*st):
                    op()
        if not steps:
            for op in hx:
                op()
        if n == 8 and not steps:
            self.q_write()
        if n in (9, 25):
            self.barB_("QB2")
        todo = list(nxt[:len({hs for _, hs in nxt})])
        pre = []
        for it, base in ((0, 10), (1, 26)):
            for c in range(4):
                if n + 1 == (base + 2*c + 2 if c < 3 else (26 if it == 0 else -1)):
                    rest = [st for m in range(n + 1, 33) for st in self.sched(m) if st[0][:3] == ('O', it, c) and not st[1] & 1]
                    pre += rest
        if steps:
            def per(i):
                if n == 32:
                    rest = [st for st in steps[i+1:] if st[1] == steps[i][1]]
                    if self.tailov and self.path == 'main' and i == len(steps) - 2:
                        return [self.pub_setup]
                    if self.tailov and self.path == 'main' and i == len(steps) - 1:
                        return [lambda: None]*3 + self.pub_ops(0)
                    return self.W_ops(*rest[0]) if rest else []
                free = {hs for _, hs in steps[:i+1-self.lag]} | ({0, 1, 2, 3} - {hs for _, hs in steps})
                r = []
                if inter and i < 2:
                    nh = (len(hx) + 1)//2 if (i == 0 and len(steps) > 2) else len(hx)
                    r += hx[:nh]
                    del hx[:nh]
                while todo and todo[0][1] in free and i >= self.rin:
                    r += self.W_ops(*todo.pop(0))
                if n == 8 and i == len(steps) - 1:
                    r += self.q_ops(0)
                return r
            a_epi = n in (10, 12, 14, 16, 26, 28, 30)
            inter = self.hint and a_epi and not self.needs_ob(steps[0])
            last_k = self.kid(steps[-1])
            newk = [self.kid(st) for st in pre if self.kid(st) not in self.bfl and self.kid(st) not in map(self.kid, steps)]
            live = {self.kid(st) for m in range(n + 1, 33) for st in self.sched(m) if self.kid(st) in self.bfl or self.kid(st) in map(self.kid, steps)}
            bufs = [k[2] % 3 for k in newk] + [k[2] % 3 for k in live]
            assert len(bufs) == len(set(bufs)), (n, newk, live)
            self.run_steps(steps, per, pre, [] if inter else hx)
            if n == 8:
                self.q_write((1,))
        else:
            assert all(self.kid(st) in self.bfl for st in pre)
        for st in todo:
            for op in self.W_ops(*st):
                op()
        if pre:
            e("s_waitcnt lgkmcnt(0)")
        if self.pre_rd and nxt and n + 1 in (12, 14, 16, 28, 30, 32) and self.kid(nxt[0]) in self.bfl:
            self.vmwait([f"H{n+1}", nxt[0]])
            for op in self.w_reads(nxt[0][1], 0):
                op()
            self.wpre = nxt[0]

    def epilogue_v1(self):
        e = self.e
        t = self.B_TMP
        e("s_nop 7")
        e(f"v_lshlrev_b32 v{t}, 4, v{self.B_LANE}")
        e(f"s_lshl_b32 s{S_T1}, s{S_WG}, 17")
        e(f"s_lshl_b32 s{S_T0}, s{S_W}, 15")
        e(f"s_add_u32 s{S_T1}, s{S_T1}, s{S_T0}")
        for cbk in range(1 if self.path == 'w3' else 2):
            for u in range(4):
                e(f"s_add_u32 s{S_T0}, s{S_T1}, {(cbk*4+u)*4096}")
                for cb4 in range(4):
                    e(f"buffer_store_dwordx4 {vr(64*cbk+16*u+4*cb4,4)}, v{t}, {sr(S_WS,4)}, s{S_T0} offen offset:{cb4*1024}")

    def pub_setup(self):
        e = self.e
        slot = 32768 if self.f32 else 16384
        e(f"v_lshlrev_b32 v{self.B_TMP}, 4, v{self.B_LANE}")
        e(f"s_and_b32 s{S_T1}, s{S_WG}, 0xfc")
        e(f"s_mul_i32 s{S_T1}, s{S_T1}, {4*slot}")
        e(f"s_mul_i32 s{S_T0}, s{S_W}, {slot // 4}")
        e(f"s_add_u32 s{S_T1}, s{S_T1}, s{S_T0}")
        e(f"s_mul_i32 s2, s{S_P}, {slot}")
        e(f"s_add_u32 s2, s2, s{S_T1}")
        for rb in (1, 2, 3):
            e(f"s_add_u32 s{S_T0}, s{S_P}, {rb}")
            e(f"s_and_b32 s{S_T0}, s{S_T0}, 3")
            e(f"s_mul_i32 s{S_T0}, s{S_T0}, {4*slot}")
            e(f"s_add_u32 s{S_KR+rb}, s{S_T0}, s2")

    def pub_ops(self, cbk):
        e = self.e
        L16, D, fl = self.B_TMP, self.B_TMP + 4, self.pfl
        ops = []
        if self.f32:
            for u in range(4):
                for rb in (1, 2, 3):
                    def op(u=u, rb=rb):
                        e(f"s_add_u32 s{S_T0}, s{S_KR+rb}, {cbk*4096}")
                        e(f"buffer_store_dwordx4 {vr(64*cbk+16*u+4*rb,4)}, v{L16}, {sr(S_WS,4)}, s{S_T0} offen offset:{u*1024} {fl}")
                    ops.append(op)
            return ops
        n = 0
        for u2 in range(2):
            for rb in (1, 2, 3):
                d = D + 4*(n % 3); n += 1
                a0 = 64*cbk + 32*u2 + 4*rb
                ops.append(lambda d=d, a0=a0: (e(f"v_cvt_pk_bf16_f32 v{d}, v{a0}, v{a0+1}"), e(f"v_cvt_pk_bf16_f32 v{d+1}, v{a0+2}, v{a0+3}")))
                ops.append(lambda d=d, a0=a0, rb=rb, u2=u2: (e(f"v_cvt_pk_bf16_f32 v{d+2}, v{a0+16}, v{a0+17}"), e(f"v_cvt_pk_bf16_f32 v{d+3}, v{a0+18}, v{a0+19}"),
                           e(f"buffer_store_dwordx4 {vr(d,4)}, v{L16}, {sr(S_WS,4)}, s{S_KR+rb} offen offset:{(2*cbk+u2)*1024} {fl}")))
        return ops

    def epilogue_fused(self):
        e = self.e
        t = self.B_TMP
        L16, OA = t, t + 1
        D = t + 4
        ncbk = 1 if self.path == 'w3' else 2
        slot = 32768 if self.f32 else 16384
        self.stamp(self.B_ST)
        ov = self.tailov and ncbk == 2
        if not ov:
            self.pub_setup()
        e("s_nop 7")
        for cbk in range(1 if ov else 0, ncbk):
            for op in self.pub_ops(cbk):
                op()
        e(f"v_and_b32 v{OA}, 15, v{self.B_LANE}")
        e(f"v_mul_u32_u24 v{OA}, 1792, v{OA}")
        e(f"v_lshrrev_b32 v{t+2}, 4, v{self.B_LANE}")
        e(f"v_lshl_add_u32 v{OA}, v{t+2}, 3, v{OA}")
        e("s_waitcnt vmcnt(0)")
        e("s_barrier")
        self.stamp(self.B_ST)
        if self.path == 'main':
            e(f"s_cmp_eq_u32 s{S_W}, 0")
            e("s_cbranch_scc0 L_nopoll")
            e(f"v_add_u32 v{self.B_FOUT}, 1, v{self.B_FOUT}")
            e("s_mov_b64 exec, 15")
            e(f"buffer_store_dword v{self.B_FOUT}, v{self.B_FAO}, {sr(S_WS,4)}, 0 offen sc1")
            e(f"s_mov_b32 s{S_CH}, 0")
            e.lab("L_poll")
            e(f"buffer_load_dword v{t+2}, v{self.B_FAI}, {sr(S_WS,4)}, 0 offen sc1")
            e(f"s_add_u32 s{S_CH}, s{S_CH}, 1")
            e("s_waitcnt vmcnt(0)")
            e(f"v_cmp_eq_u32 vcc, v{t+2}, v{self.B_FIN}")
            e("s_nop 0")
            e("s_cbranch_vccz L_polled")
            e(f"s_cmp_lt_u32 s{S_CH}, 0x20000")
            e("s_cbranch_scc1 L_poll")
            e.lab("L_polled")
            e("s_mov_b64 exec, -1")
            e.lab("L_nopoll")
        e("s_barrier")
        self.stamp(self.B_ST)
        e(f"s_mul_i32 s2, s{S_P}, {4*slot}")
        e(f"s_add_u32 s2, s2, s{S_T1}")
        for rb in (1, 2, 3):
            e(f"s_add_u32 s{S_T0}, s{S_P}, {rb}")
            e(f"s_and_b32 s{S_T0}, s{S_T0}, 3")
            e(f"s_mul_i32 s{S_T0}, s{S_T0}, {slot}")
            e(f"s_add_u32 s{S_T0}, s{S_T0}, s2")
            for cbk in range(ncbk):
                if self.f32:
                    if cbk:
                        e(f"s_add_u32 s{S_T0}, s{S_T0}, 4096")
                    for u in range(4):
                        e(f"buffer_load_dwordx4 {vr(64*cbk+16*u+4*rb,4)}, v{L16}, {sr(S_WS,4)}, s{S_T0} offen offset:{u*1024} {self.lfl}")
                else:
                    for u2 in range(2):
                        e(f"buffer_load_dwordx4 {vr(64*cbk+32*u2+4*rb,4)}, v{L16}, {sr(S_WS,4)}, s{S_T0} offen offset:{(2*cbk+u2)*1024} {self.lfl}")
        e(f"s_mul_i32 s2, s{S_B}, {64*1792}")
        e(f"s_mul_i32 s3, s{S_P}, {16*1792}")
        e(f"s_add_u32 s2, s2, s3")
        e(f"s_mul_i32 s3, s{S_BR}, 896")
        e(f"s_add_u32 s2, s2, s3")
        e(f"s_add_u32 s2, s2, s{S_WCOL}")
        e("s_waitcnt vmcnt(0)")
        for cbk in range(ncbk):
            for u in range(4):
                a = 64*cbk + 16*u
                for rb in (1, 2, 3):
                    if self.f32:
                        for r in range(4):
                            e(f"v_add_f32 v{a+r}, v{a+r}, v{a+4*rb+r}")
                    else:
                        src = 64*cbk + 32*(u >> 1) + 4*rb + 2*(u & 1)
                        for h in range(2):
                            e(f"v_lshlrev_b32 v{D+2*h}, 16, v{src+h}")
                            e(f"v_and_b32 v{D+2*h+1}, 0xffff0000, v{src+h}")
                        e(f"v_pk_add_f32 {vr(a,2)}, {vr(a,2)}, {vr(D,2)}")
                        e(f"v_pk_add_f32 {vr(a+2,2)}, {vr(a+2,2)}, {vr(D+2,2)}")
                e(f"v_cvt_pk_bf16_f32 v{a}, v{a}, v{a+1}")
                e(f"v_cvt_pk_bf16_f32 v{a+1}, v{a+2}, v{a+3}")
                e(f"buffer_store_dwordx2 {vr(a,2)}, v{OA}, {sr(S_OUT,4)}, s2 offen offset:{cbk*128+u*32} {self.ofl}".rstrip())

    def endB(self):
        e = self.e
        if self.fuse:
            self.epilogue_fused()
        else:
            self.epilogue_v1()
        if self.prof:
            e("s_waitcnt vmcnt(0)")
            self.stamp(self.B_ST)
            if self.path == 'main':
                e(f"s_cmp_eq_u32 s{S_W}, 0")
                e("s_cbranch_scc0 L_end")
                self.prof_store(self.B_ST, 1, 0)
        e("s_endpgm")

    def streamB(self):
        e = self.e
        e.lab("L_B")
        self.vmq = []
        self.deferred = []
        self.path = 'main'
        self.barB = {'main': [], 'w3': []}
        self.stamp(self.B_ST)
        self.setupB()
        for hs in range(4):
            for op in self.W_ops(('Q', 0, 0), hs):
                op()
        self.setupB2()
        if self.early:
            for xp in range(2, 7):
                for op in self.X_ops(xp, self.xloc(0, xp), "X0b", self.xnt):
                    op()
        self.stamp(self.B_ST)
        self.vmwait(["X0"])
        self.barB_("HB")
        steps = [(('Q', 0, h), hs) for h in range(7) for hs in range(4)]
        H0 = self.H_ops(0)
        if self.h1h:
            assert self.early and self.hdef is None and not self.hto
            H0 = H0 + self.H_ops(1)
        def per(i):
            if i % 2 == 1 and self.prof != 2:
                self.stamp(self.B_ST, f"h{i}")
            if i == 6 and self.early:
                assert "X0b" not in self.vmq
                return self.W_ops(*steps[i + 4]) + [lambda: self.barB_("HB2")]
            if i == 23 and self.h1h:
                return self.W_ops(*steps[i + 4]) + [lambda: self.barB_("HB3")]
            if i >= 24 and self.h1h:
                return H0[4*(i - 24):4*(i - 24) + 4]
            if i + 4 < 28:
                return self.W_ops(*steps[i + 4])
            if self.hdef is not None:
                tt = self.wo_touch(False)
                return (tt if self.hdef == i else []) + H0[2*(i - 24):2*(i - 24) + 2] + (tt if self.hdef == i + 1 == 28 else [])
            return (self.wo_touch(True) if i == 24 else []) + H0[2*(i - 24):2*(i - 24) + 2]
        def per2(i):
            return per(i) + (self.q_ops(0) if self.qov and i == 27 else [])
        self.run_steps(steps, per2)
        self.q_write((1,) if self.qov else (0, 1))
        for op in (self.wo_touch(False) if self.hdef is None else []):
            op()
        self.barB_("QB1")
        for n in range(9):
            self.periodB(n)
        e(f"s_cmp_eq_u32 s{S_W}, 3")
        e("s_cbranch_scc1 L_B3")
        save = list(self.vmq)
        save_bfl = set(self.bfl)
        assert not self.deferred
        self.barB['w3'] = list(self.barB['main'])
        for n in range(9, 33):
            self.periodB(n)
        self.endB()
        e.lab("L_B3")
        self.path = 'w3'
        self.vmq = save
        self.bfl = save_bfl
        self.wpre = None
        self.deferred = []
        for n in range(9, 33):
            self.periodB(n)
        self.endB()

    def reduce_kernel(self):
        e = self.e
        e(".globl red_kernel")
        e(".p2align 8")
        e(".type red_kernel,@function")
        e.lab("red_kernel")
        e("s_cmp_ge_u32 s2, 1792")
        e("s_cbranch_scc1 L_rend")
        e("s_load_dwordx2 s[4:5], s[0:1], 96")
        e("s_load_dwordx2 s[8:9], s[0:1], 80")
        e("s_mul_hi_u32 s12, s2, 153391690")
        e("s_mul_i32 s13, s12, 28")
        e("s_sub_u32 s13, s2, s13")
        e("s_and_b32 s14, s12, 1")
        e("s_lshr_b32 s15, s12, 1")
        e("s_lshl_b32 s16, s15, 3")
        e("s_lshl_b32 s17, s14, 2")
        e("s_add_u32 s16, s16, s17")
        e("s_lshl_b32 s16, s16, 17")
        e("s_lshl_b32 s17, s13, 12")
        e("s_add_u32 s16, s16, s17")
        e("v_lshlrev_b32 v1, 4, v0")
        e("s_mov_b32 s6, 67108864")
        e("s_mov_b32 s7, 0x20000")
        e("s_mov_b32 s10, 3670016")
        e("s_mov_b32 s11, 0x20000")
        e("s_waitcnt lgkmcnt(0)")
        for p in range(4):
            e(f"buffer_load_dwordx4 {vr(4+4*p,4)}, v1, s[4:7], s16 offen")
            e("s_add_u32 s16, s16, 131072")
        e("v_lshrrev_b32 v2, 6, v0")
        e("v_lshlrev_b32 v2, 4, v2")
        e("v_and_b32 v3, 15, v0")
        e("v_add_u32 v2, v2, v3")
        e("v_mul_u32_u24 v2, 1792, v2")
        e("v_bfe_u32 v3, v0, 4, 2")
        e("v_lshl_add_u32 v2, v3, 3, v2")
        e("s_mul_i32 s15, s15, 114688")
        e("s_mul_i32 s14, s14, 896")
        e("s_add_u32 s15, s15, s14")
        e("s_lshl_b32 s13, s13, 5")
        e("s_add_u32 s15, s15, s13")
        e("s_waitcnt vmcnt(0)")
        for r in range(4):
            e(f"v_add_f32 v{4+r}, v{4+r}, v{8+r}")
            e(f"v_add_f32 v{12+r}, v{12+r}, v{16+r}")
            e(f"v_add_f32 v{4+r}, v{4+r}, v{12+r}")
        e("v_cvt_pk_bf16_f32 v4, v4, v5")
        e("v_cvt_pk_bf16_f32 v5, v6, v7")
        e("buffer_store_dwordx2 v[4:5], v2, s[8:11], s15 offen")
        e.lab("L_rend")
        e("s_endpgm")

    def build(self):
        e = self.e
        out = [HEADER.rstrip()]
        if self.fuse:
            out.append(f"; @launch grid=(256,1,1) block=(512,1,1) lds={LDS_BYTES}")
        else:
            out.append(f"; @launch kernel={NAME}_kernel grid=(256,1,1) block=(512,1,1) lds={LDS_BYTES}")
            out.append(f"; @launch kernel=red_kernel grid=(1792,1,1) block=(256,1,1) lds=0")
        out.append('.amdgcn_target "amdgcn-amd-amdhsa--gfx950"')
        out.append(".text")
        out.append(f".globl {NAME}_kernel")
        out.append(".p2align 8")
        out.append(f".type {NAME}_kernel,@function")
        out.append(f"{NAME}_kernel:")
        self.prologue()
        self.streamB()
        self.path = None
        e.lab("L_A")
        self.streamA()
        e.lab("L_end")
        e("s_endpgm")
        if not self.fuse:
            self.reduce_kernel()
        assert self.barA == self.barB['main'] == self.barB['w3'], (self.barA, self.barB)
        if self.prof:
            out.insert(1, f"; NST {44 if self.prof == 4 else len(self.barA)+2} {len(self.namesB)} " + " ".join(self.namesB))
        out.append(e.text())
        out.append('.section .rodata,"a"')
        def kd(name, v, s, acc):
            return f""".p2align 6
.amdhsa_kernel {name}
  .amdhsa_next_free_vgpr {v}
  .amdhsa_next_free_sgpr {s}
  .amdhsa_accum_offset {acc}
  .amdhsa_group_segment_fixed_size 0
  .amdhsa_kernarg_size 104
  .amdhsa_user_sgpr_count 2
  .amdhsa_user_sgpr_kernarg_segment_ptr 1
  .amdhsa_system_sgpr_workgroup_id_x 1
.end_amdhsa_kernel"""
        out.append(kd(f"{NAME}_kernel", 256, 96, 176))
        if not self.fuse:
            out.append(kd("red_kernel", 24, 32, 24))
        return "\n".join(out) + "\n"


if __name__ == "__main__":
    kw = {}
    path = None
    for a in sys.argv[1:]:
        if "=" in a:
            k, v = a.split("=")
            kw[k] = eval(v)
        else:
            path = a
    txt = Gen(**kw).build()
    open(path or f"cdna_kernels/{NAME}.s", "w").write(txt)
    print("lines", txt.count("\n"), "bytes", len(txt))
```

```python
import sys, math

NAME = "concat_heads__gqa_block_cached__gqa_block_cached__near_ridge"
HEADER = open("cdna_kernels/%s.s.ref" % NAME).read().split("; Override launch")[0]

KV_SLOT = 33792
W_BASE = KV_SLOT + 5 * 8704
XO_BASE = W_BASE + 65536
X_SLOT = 8704
FLAG_BASE = 0x2800000
LDS_BYTES = XO_BASE + 2 * X_SLOT

S_X, S_K, S_V, S_WQ, S_WO, S_OUT, S_WS = 4, 8, 12, 16, 20, 24, 28
S_W = 60
S_B = 61
S_P = 62
S_BR = 63
S_T0, S_T1 = 64, 65
S_WLDS = 66
S_WCOL = 67
S_KLDS = 68
S_KG = 69
S_VG = 70
S_KR, S_VC, S_WR = 32, 36, 40
S_VLB = 77
S_XLDS = 71
S_XG = 72
S_HK, S_HV, S_KL, S_VL, S_HVC = 66, 67, 68, 69, 70
S_HS = 32
S_HM, S_HGS = 36, 37
S_C = 73
S_THR = 74
S_ITEM = 75
S_CH = 76
S_RET = 78
S_STAMP = 80
S_SIDX = 82
S_WG = 83
S_DBG = 88
S_JUNK = 92


class Em:
    def __init__(self):
        self.l = []
    def __call__(self, s):
        self.l.append(s)
    def lab(self, s):
        self.l.append(s + ":")
    def text(self):
        return "\n".join(self.l)


def vr(a, n=1):
    return f"v{a}" if n == 1 else f"v[{a}:{a+n-1}]"
def ar(a, n=1):
    return f"a{a}" if n == 1 else f"a[{a}:{a+n-1}]"
def sr(a, n=1):
    return f"s{a}" if n == 1 else f"s[{a}:{a+n-1}]"


class Gen:
    def __init__(self, prof=False, prioA=1, npostQ=10, npostO=12, npre=6, fuse=True, pfl='sc1', f32=False, xnt=False, rin=0, nearlyQ=0, nearlyO=0, shift=1, lag=1, boost=2, hA=False, obf=26, obk=(1, 8), pre1=36, tailov=True, dropr=(0, 99), vt0=1, vto=False, xpromo=False, early=True, pre2=76, bto=False, hto=(), rot=True, ctouch=True, qcnt=(2,2,2,4,4,4,4,4,2), o1cnt=(2,2,2,4,4,4,2,3,3,2,2,2), o2cnt=(2,4,4,4,4,4), obe=3, h1h=False, pre3=150, nolt=False, hdef=None, spread=True, pre_rd=True, qov=True, x2nt=True, wq0nt=False, tp1=20, lfl='sc1', ofl='', drop=0, hint=True, wo1A=56, dyn=True, prioB=1, noH=False, noW=False, noSM=False, noBm=False, noAm=False, tnt=False):
        self.e = Em()
        self.prof = prof
        self.prioA = prioA
        self.npostQ, self.npostO, self.npre, self.pfl, self.f32 = npostQ, npostO, npre, pfl, f32
        self.fuse = fuse
        self.ctouch = ctouch
        self.qcnt, self.o1cnt, self.o2cnt, self.obe = qcnt, o1cnt, o2cnt, obe
        self.make_sched()
        self.h1h, self.pre3 = h1h, pre3
        self.nolt = nolt
        self.hdef, self.spread, self.pre_rd, self.qov = hdef, spread, pre_rd, qov
        if hdef is not None:
            vto, hto = False, (1,)
        self.hto, self.rot = hto, rot
        self.bto, self.x2nt, self.wq0nt, self.tp1 = bto, x2nt, wq0nt, tp1
        self.early, self.pre2 = early, pre2
        self.xpromo = xpromo
        self.vt0, self.vto, self.lfl, self.ofl = vt0, vto, lfl, ofl
        self.drop = drop
        self.dropr = dropr
        self.obk, self.pre1, self.tailov = obk, pre1, tailov
        self.dyn = dyn
        self.prioB = prioB if dyn else 0
        if dyn:
            prioA, boost = 2, (3 if boost else 0)
            self.prioA = 2
        self.wo1A = wo1A
        self.hA, self.obf, self.hint = hA, obf, hint
        self.lag, self.boost = lag, boost
        self.xnt, self.rin, self.nearlyQ, self.nearlyO, self.shift = xnt, rin, nearlyQ, nearlyO, shift
        self.noH, self.noW, self.noSM, self.noBm, self.noAm = noH, noW, noSM, noBm, noAm
        self.tfl = ' nt' if tnt else ''
        self.barA = []
        self.barB = {}
        self.st2 = {175: 174}
        self.namesB = []
        self.curn = -1
        self.wpre = None
        self.bfl = set()
        self.fine = (3, 4, 12, 13, 14, 29)

    def stamp(self, vreg, name="."):
        e = self.e
        if not self.prof:
            return
        if self.prof in (4, 5) and not name.startswith('@'):
            return
        if self.prof == 4 and getattr(self, 'path', None) is not None:
            return
        if self.prof == 5 and getattr(self, 'path', None) is None:
            return
        if self.prof == 6 and (getattr(self, 'path', None) is None or not (name.startswith('KV') or name in ('.', 'HB-1', 'QB1-1'))):
            return
        if self.prof == 7 and (getattr(self, 'path', None) is None or name not in ('.', 'KV00', 'KV8', 'KV16', 'KV24', 'KV32')):
            return
        if self.prof == 8 and (getattr(self, 'path', None) is None or not (name[0] in '.hHQ' or name in ('KV00', 'KV1', 'KV2', 'KV32'))):
            return
        if self.prof == 3 and (getattr(self, 'path', None) is None or not (name in ('.', 'HB-1', 'HB2-1', 'QB1-1', 'KV00', 'KV1', 'KV8', 'KV10', 'KV16', 'KV19', 'KV24', 'KV26', 'KV32', 'OB32'))):
            return
        if getattr(self, 'path', None) == 'main':
            self.namesB.append(name)
        e(f"s_memrealtime {sr(S_STAMP,2)}")
        e(f"s_memtime {sr(S_STAMP+4,2)}")
        e("s_waitcnt lgkmcnt(0)")
        e(f"s_mov_b32 m0, s{S_SIDX}")
        e(f"v_writelane_b32 v{vreg}, s{S_STAMP}, m0")
        e(f"v_writelane_b32 v{self.st2[vreg]}, s{S_STAMP+4}, m0")
        e(f"s_add_u32 s{S_SIDX}, s{S_SIDX}, 1")

    def prologue(self):
        e = self.e
        e("s_cmp_ge_u32 s2, 256")
        e("s_cbranch_scc1 L_end")
        e("s_load_dwordx16 s[32:47], s[0:1], 0")
        e("s_load_dwordx8 s[48:55], s[0:1], 64")
        e("s_load_dwordx2 s[56:57], s[0:1], 96")
        e(f"v_lshrrev_b32 v1, 6, v0")
        e(f"s_mov_b32 s{S_WG}, s2")
        e(f"s_and_b32 s{S_P}, s2, 3")
        e(f"v_readfirstlane_b32 s3, v1")
        e(f"s_lshr_b32 s{S_B}, s2, 3")
        e(f"s_bfe_u32 s{S_BR}, s2, 0x10002")
        e(f"s_mov_b32 s{S_SIDX}, 0")
        e("v_and_b32 v0, 63, v0")
        e(f"s_and_b32 s{S_W}, s3, 3")
        if self.ctouch:
            e(f"s_cmp_eq_u32 s3, 1")
            e("s_cbranch_scc0 L_noct")
            e(f"s_getpc_b64 s[58:59]")
            e.lab("L_pc")
            e(f"s_sub_u32 s58, s58, L_pc-{NAME}_kernel")
            e(f"s_subb_u32 s59, s59, 0")
            e(f"v_lshl_add_u32 v2, v0, 5, s{S_B}")
            e(f"v_lshlrev_b32 v2, 7, v2")
            e(f"v_min_u32 v2, L_end-{NAME}_kernel, v2")
            e(f"v_mov_b32 v3, s59")
            e(f"v_add_co_u32 v2, vcc, s58, v2")
            e("s_nop 1")
            e(f"v_addc_co_u32 v3, vcc, 0, v3, vcc")
            e(f"global_load_dword v4, v[2:3], off")
            e.lab("L_noct")
        e("s_waitcnt lgkmcnt(0)")
        e("s_bitcmp1_b32 s2, 2")
        e(f"s_cselect_b64 {sr(S_X,2)}, s[42:43], s[32:33]")
        e(f"s_cselect_b64 {sr(S_K,2)}, s[44:45], s[34:35]")
        e(f"s_cselect_b64 {sr(S_V,2)}, s[46:47], s[36:37]")
        e(f"s_cselect_b64 {sr(S_WQ,2)}, s[48:49], s[38:39]")
        e(f"s_cselect_b64 {sr(S_WO,2)}, s[50:51], s[40:41]")
        def addbase(srd, sreg):
            e(f"s_add_u32 s{srd}, s{srd}, s{sreg}")
            e(f"s_addc_u32 s{srd+1}, s{srd+1}, 0")
        e(f"s_mul_i32 s{S_T0}, s{S_B}, 57344")
        addbase(S_X, S_T0)
        e(f"s_lshl_b32 s{S_T0}, s{S_B}, 21")
        e(f"s_lshl_b32 s{S_T1}, s{S_P}, 19")
        e(f"s_add_u32 s{S_T0}, s{S_T0}, s{S_T1}")
        addbase(S_K, S_T0)
        addbase(S_V, S_T0)
        e(f"s_lshl_b32 s{S_T0}, s{S_P}, 11")
        addbase(S_WQ, S_T0)
        e(f"s_sub_u32 s{S_WQ+2}, 3670016, s{S_T0}")
        e(f"s_mul_i32 s{S_T0}, s{S_P}, 917504")
        addbase(S_WO, S_T0)
        e(f"s_mov_b32 s{S_X+2}, 57344")
        e(f"s_mov_b32 s{S_K+2}, 524288")
        e(f"s_mov_b32 s{S_V+2}, 524288")
        e(f"s_mov_b32 s{S_WO+2}, 917504")
        e(f"s_mov_b64 {sr(S_OUT,2)}, s[52:53]")
        e(f"s_mov_b32 s{S_OUT+2}, 3670016")
        e(f"s_mov_b64 {sr(S_WS,2)}, s[56:57]")
        e(f"s_mov_b32 s{S_WS+2}, 67108864")
        e(f"s_mov_b64 {sr(S_DBG,2)}, s[54:55]")
        e(f"s_mov_b32 s{S_DBG+2}, 256")
        for s in (S_X, S_K, S_V, S_WQ, S_WO, S_OUT, S_WS, S_DBG):
            e(f"s_mov_b32 s{s+3}, 0x20000")
        e("s_cmp_lt_u32 s3, 4")
        e("s_cbranch_scc1 L_A")

    def tr_addr(self, dst, base_imm=None, base_sreg=None, t0=None, t1=None, t2=None):
        e = self.e
        e(f"v_bfe_u32 v{t0}, v0, 2, 3")
        e(f"v_lshrrev_b32 v{t1}, 5, v0")
        e(f"v_lshlrev_b32 v{t1}, 10, v{t1}")
        e(f"v_lshl_add_u32 v{t1}, v{t0}, 7, v{t1}")
        e(f"v_and_b32 v{t2}, 3, v0")
        e(f"v_lshl_add_u32 v{t1}, v{t2}, 3, v{t1}")
        if base_imm:
            e(f"v_add_u32 v{t1}, {base_imm}, v{t1}")
        if base_sreg is not None:
            e(f"v_add_u32 v{t1}, s{base_sreg}, v{t1}")
        e(f"v_lshrrev_b32 v{t0}, 1, v{t0}")
        for u in range(4):
            e(f"v_xor_b32 v{t2}, {u}, v{t0}")
            e(f"v_lshl_add_u32 v{dst+u}, v{t2}, 5, v{t1}")

    A_P = 0
    A_S = 128
    A_T = 144
    A_KA = 160
    A_VA = 161
    A_OW = 165
    A_VX = 165
    A_VK = 166
    A_VV = 167
    A_NM = 168
    A_L = 170
    A_TS = 172
    A_ST = 175

    def barA_(self, name, times=1):
        if self.prof == 2:
            self.stamp(self.A_ST)
        self.e("s_barrier")
        self.barA.append(name)
        if self.prof != 2:
            self.stamp(self.A_ST)

    def k_read(self, f, slot, tile):
        s, mt = f >> 1, f & 1
        off = slot * KV_SLOT + tile * 16896 + mt * 8448 + s * 64
        self.e(f"ds_read_b128 {ar(64 + 4*(f % 4), 4)}, v{self.A_KA} offset:{off}")

    def v_read(self, f, slot, parts=(0, 1)):
        T, u = f >> 2, f & 3
        b = 64 + 4 * (f % 4)
        off = slot * KV_SLOT + T * 4096
        for t in parts:
            self.e(f"ds_read_b64_tr_b16 {ar(b+2*t,2)}, v{self.A_VA+u} offset:{off+2048*t}")

    def lane16(self, dst, jsh, qsh, base):
        e = self.e
        e(f"v_mbcnt_lo_u32_b32 v{dst}, -1, 0")
        e(f"v_mbcnt_hi_u32_b32 v{dst}, -1, v{dst}")
        e(f"s_lshr_b32 s{S_T0}, s{S_W}, 1")
        e(f"s_and_b32 s{S_T1}, s{S_W}, 1")
        e(f"s_lshl_b32 s{S_T0}, s{S_T0}, {jsh}")
        e(f"s_lshl_b32 s{S_T1}, s{S_T1}, {qsh}")
        e(f"s_add_u32 s{S_T0}, s{S_T0}, s{S_T1}")
        e(f"s_add_u32 s{S_T0}, s{S_T0}, {base}")
        e(f"v_lshl_add_u32 v{dst}, v{dst}, 4, s{S_T0}")

    def q_read(self):
        e = self.e
        qa = self.A_TS
        self.lane16(qa, 15, 13, W_BASE)
        for s in range(8):
            for cb in range(2):
                off = (s >> 2) * 16384 + cb * 4096 + (s & 3) * 1024
                e(f"ds_read_b128 {ar(8*s+4*cb,4)}, v{qa} offset:{off}")

    def dma_voffs(self, VX, VK, VV, VWO, VWQ, a):
        e = self.e
        b, c, d = a + 1, a + 2, a + 3
        e(f"v_lshrrev_b32 v{a}, 3, v0")
        e(f"v_bfe_u32 v{b}, v0, 4, 2")
        e(f"v_and_b32 v{c}, 7, v0")
        e(f"v_xor_b32 v{VX}, v{c}, v{b}")
        e(f"v_lshlrev_b32 v{VX}, 4, v{VX}")
        e(f"v_mul_u32_u24 v{d}, 896, v{a}")
        e(f"v_add_u32 v{VX}, v{VX}, v{d}")
        yield
        e(f"v_lshlrev_b32 v{b}, 1, v{b}")
        e(f"v_xor_b32 v{c}, v{c}, v{b}")
        e(f"v_lshlrev_b32 v{c}, 4, v{c}")
        if VWO is not None:
            e(f"v_add_u32 v{VWO}, v{c}, v{d}")
        if VV is not None:
            e(f"v_lshl_add_u32 v{VV}, v{a}, 11, v{c}")
        e(f"v_lshrrev_b32 v{b}, 5, v0")
        if VWQ is not None:
            e(f"v_and_b32 v{d}, 3, v{a}")
            e(f"v_lshl_add_u32 v{VWQ}, v{d}, 13, v{c}")
            e(f"v_lshl_add_u32 v{VWQ}, v{b}, 16, v{VWQ}")
        e(f"v_and_b32 v{c}, 31, v0")
        e(f"v_xor_b32 v{c}, v{c}, v{b}")
        e(f"v_lshlrev_b32 v{c}, 4, v{c}")
        e(f"v_lshl_add_u32 v{VK}, v{b}, 11, v{c}")
        yield

    def A_Hops(self, kind, slot, gs, gimm):
        e = self.e
        ops = []
        if self.noH or not self.hA:
            return [lambda pre: None]*8
        for k in range(8):
            def op(pre, k=k):
                if kind == 'K':
                    if pre:
                        e(f"s_add_u32 m0, s{S_KL}, {slot*KV_SLOT + k*1056}")
                        e(f"s_add_u32 s{S_T0}, s{gs}, {gimm + k*4096}")
                    else:
                        e(f"buffer_load_dwordx4 v{self.A_VK}, {sr(S_K,4)}, s{S_T0} offen nt lds")
                elif kind == 'V':
                    if pre:
                        if k % 4 == 0:
                            e(f"s_add_u32 m0, s{S_VL}, {slot*KV_SLOT + k*1024}")
                        e(f"s_add_u32 s{S_T0}, s{gs}, {gimm + k*16384 - (k % 4)*1024}")
                    else:
                        e(f"buffer_load_dwordx4 v{self.A_VV}, {sr(S_V,4)}, s{S_T0} offen offset:{(k%4)*1024} nt lds")
                else:
                    if pre:
                        if k:
                            e(f"s_add_u32 m0, m0, s{S_HM}")
                            e(f"s_add_u32 s{S_T1}, s{S_T1}, s{S_HGS}")
                    else:
                        e(f"buffer_load_dwordx4 v{self.A_NM}, {sr(S_HS,4)}, s{S_T1} offen nt lds")
            ops.append(op)
        return ops

    def xlane(self, op, x, t):
        e = self.e
        e(f"v_mov_b32 v{t}, v{x}")
        e("s_nop 1")
        e(f"v_permlane32_swap_b32 v{t}, v{x}")
        e("s_nop 1")
        e(f"{op} v{x}, v{x}, v{t}")
        e(f"v_mov_b32 v{t}, v{x}")
        e("s_nop 1")
        e(f"v_permlane16_swap_b32 v{t}, v{x}")
        e("s_nop 1")
        e(f"{op} v{x}, v{x}, v{t}")

    def tile_max(self, cb, dst, t):
        e = self.e
        S = self.A_S
        r = [S + 4*cb + k for k in range(4)] + [S + 8 + 4*cb + k for k in range(4)]
        e(f"v_max3_f32 v{dst}, v{r[0]}, v{r[1]}, v{r[2]}")
        e(f"v_max3_f32 v{dst}, v{dst}, v{r[3]}, v{r[4]}")
        e(f"v_max3_f32 v{dst}, v{dst}, v{r[5]}, v{r[6]}")
        e(f"v_max_f32 v{dst}, v{dst}, v{r[7]}")
        self.xlane("v_max_f32", dst, t)

    def softmax(self, T):
        e = self.e
        S, TT, P = self.A_S, self.A_T, self.A_P
        if T == 0:
            for cb in range(2):
                self.tile_max(cb, TT + cb, TT + 2)
                e(f"v_mul_f32 v{self.A_NM+cb}, s{S_C}, v{TT+cb}")
                e(f"v_sub_f32 v{self.A_NM+cb}, 0, v{self.A_NM+cb}")
                e(f"v_mov_b32 v{self.A_L+cb}, 0")
        e.lab(f"L_sm{T}")
        groups = [(0, 0), (0, 1), (1, 0), (1, 1)]
        def fma(gi):
            mt, cb = groups[gi]
            for r in range(4):
                e(f"v_fma_f32 v{TT+4*gi+r}, v{S+8*mt+4*cb+r}, s{S_C}, v{self.A_NM+cb}")
        def exp(gi):
            for r in range(4):
                e(f"v_exp_f32 v{TT+4*gi+r}, v{TT+4*gi+r}")
        def fin(gi):
            mt, cb = groups[gi]
            t = TT + 4*gi
            ts = self.A_TS + cb
            if mt == 0:
                e(f"v_add_f32 v{ts}, v{t}, v{t+1}")
            else:
                e(f"v_add_f32 v{ts}, v{ts}, v{t}")
                e(f"v_add_f32 v{ts}, v{ts}, v{t+1}")
            e(f"v_cvt_pk_bf16_f32 v{P+8*T+4*cb+2*mt}, v{t}, v{t+1}")
            e(f"v_add_f32 v{ts}, v{ts}, v{t+2}")
            e(f"v_cvt_pk_bf16_f32 v{P+8*T+4*cb+2*mt+1}, v{t+2}, v{t+3}")
            e(f"v_add_f32 v{ts}, v{ts}, v{t+3}")
        fma(0); fma(1); exp(0); fma(2); exp(1); fma(3); fin(0); exp(2); fin(1); exp(3); fin(2); fin(3)
        if T > 0:
            e(f"v_max_f32 v{TT}, v{self.A_TS}, v{self.A_TS+1}")
            e(f"v_cmp_lt_f32 vcc, s{S_THR}, v{TT}")
            e("s_nop 0")
            e(f"s_cbranch_vccz L_ok{T}")
            e(f"s_call_b64 {sr(S_RET,2)}, L_rescale")
            e(f"s_branch L_sm{T}")
            e.lab(f"L_ok{T}")
            e(f"s_mov_b32 s{S_THR}, 0x47800000")
        for cb in range(2):
            e(f"v_add_f32 v{self.A_L+cb}, v{self.A_L+cb}, v{self.A_TS+cb}")

    def rescale_routine(self):
        e = self.e
        TT, P = self.A_T, self.A_P
        e.lab("L_rescale")
        for cb in range(2):
            self.tile_max(cb, TT, TT + 2)
            e(f"v_fma_f32 v{TT}, v{TT}, s{S_C}, v{self.A_NM+cb}")
            e(f"v_ceil_f32 v{TT}, v{TT}")
            e(f"v_max_f32 v{TT}, 0, v{TT}")
            e(f"v_sub_f32 v{self.A_NM+cb}, v{self.A_NM+cb}, v{TT}")
            e(f"v_min_f32 v{TT}, 0x43800000, v{TT}")
            e(f"v_cvt_i32_f32 v{TT}, v{TT}")
            e(f"v_sub_u32 v{TT}, 0, v{TT}")
            e(f"v_ldexp_f32 v{self.A_L+cb}, v{self.A_L+cb}, v{TT}")
            for T in range(16):
                for k in range(4):
                    r = P + 8*T + 4*cb + k
                    e(f"v_lshlrev_b32 v{TT+4}, 16, v{r}")
                    e(f"v_and_b32 v{TT+5}, 0xffff0000, v{r}")
                    e(f"v_ldexp_f32 v{TT+4}, v{TT+4}, v{TT}")
                    e(f"v_ldexp_f32 v{TT+5}, v{TT+5}, v{TT}")
                    e(f"v_cvt_pk_bf16_f32 v{r}, v{TT+4}, v{TT+5}")
        e(f"s_mov_b32 s{S_THR}, 0x7f800000")
        e(f"s_setpc_b64 {sr(S_RET,2)}")

    def streamA(self):
        e = self.e
        KA, VA, OW = self.A_KA, self.A_VA, self.A_OW
        self.stamp(self.A_ST)
        if self.prioA:
            e(f"s_setprio {self.prioA}")
        t = self.A_T
        e(f"v_and_b32 v{t+12}, 31, v0")
        e(f"v_min_u32 v{t+12}, 27, v{t+12}")
        e(f"s_mul_i32 s{S_T0}, s{S_W}, 28")
        e(f"v_add_u32 v{t+12}, s{S_T0}, v{t+12}")
        if self.vt0:
            e(f"v_lshlrev_b32 v{t+13}, 15, v{t+12}")
            if self.vt0 == 3:
                e(f"v_lshrrev_b32 v{t+14}, 5, v0")
                e(f"v_lshl_add_u32 v{t+13}, v{t+14}, 10, v{t+13}")
            e(f"s_lshr_b32 s{S_T0}, s{S_B}, 3")
            e(f"s_lshl_b32 s{S_T0}, s{S_T0}, 13")
            e(f"s_and_b32 s{S_T1}, s{S_B}, 7")
            e(f"s_lshl_b32 s{S_T1}, s{S_T1}, 7")
            e(f"s_add_u32 s{S_T0}, s{S_T0}, s{S_T1}")
            e(f"buffer_load_dword v{t+14}, v{t+13}, {sr(S_WQ,4)}, s{S_T0} offen{' nt' if self.vt0 == 2 else ''}")
        else:
            self.stouch_wq(0, 0, 56, 1)
        a, b, c = t + 4, t + 5, t + 6
        e(f"v_bfe_u32 v{a}, v0, 1, 3")
        e(f"v_mul_u32_u24 v{KA}, 1056, v{a}")
        e(f"v_and_b32 v{a}, 1, v0")
        e(f"v_lshl_add_u32 v{KA}, v{a}, 9, v{KA}")
        e(f"v_lshrrev_b32 v{b}, 4, v0")
        e(f"v_xor_b32 v{b}, v{b}, v{a}")
        e(f"v_lshl_add_u32 v{KA}, v{b}, 4, v{KA}")
        self.tr_addr(VA, t0=a, t1=b, t2=c)
        for _ in self.dma_voffs(self.A_VX, self.A_VK, self.A_VV, None, None, t + 8):
            pass
        e(f"s_lshl_b32 s{S_HK}, s{S_W}, 15")
        e(f"s_lshl_b32 s{S_HV}, s{S_W}, 9")
        e(f"s_mul_i32 s{S_KL}, s{S_W}, {8*1056}")
        e(f"s_lshl_b32 s{S_VL}, s{S_W}, 13")
        e(f"s_mul_i32 s{S_XLDS}, s{S_W}, {2*1088}")
        e(f"s_mul_i32 s{S_XG}, s{S_W}, {16*896}")
        e(f"s_mov_b32 s{S_C}, 0x3db8aa3b")
        e(f"s_mov_b32 s{S_THR}, 0x47800000")
        e(f"s_mov_b32 s{S_ITEM}, 0")
        segs = [('q', 56)] if self.vt0 != 3 else []
        if 0 not in self.hto:
            segs.append(('o0', 56))
        if not self.vto and not self.bto and 1 not in self.hto:
            segs.append(('o1', self.wo1A))
        def touch_range(a, b):
            pos = 0
            for kind, n in segs:
                lo, hi = max(a - pos, 0), min(b - pos, n)
                if lo < hi:
                    if kind == 'q':
                        self.stouch_wq(1, lo, hi, 1)
                    else:
                        self.stouch_wo(int(kind[1]), lo, hi)
                pos += n
        touch_range(0, self.pre1)
        self.barA_("HB")
        if self.early:
            touch_range(self.pre1, self.pre2)
            self.barA_("HB2")
            if self.h1h:
                touch_range(self.pre2, self.pre3)
                self.barA_("HB3")
                touch_range(self.pre3, 999)
            else:
                touch_range(self.pre2, 999)
        else:
            touch_range(self.pre1, 999)
        e("s_waitcnt vmcnt(0)")
        if self.xpromo:
            e(f"v_lshlrev_b32 v{t+13}, 7, v0")
            e(f"s_lshl_b32 s{S_T0}, s{S_W}, 13")
            e(f"buffer_load_dword v{t+14}, v{t+13}, {sr(S_X,4)}, s{S_T0} offen")
            e(f"s_add_u32 s{S_T0}, s{S_T0}, 32768")
            e(f"buffer_load_dword v{t+15}, v{t+13}, {sr(S_X,4)}, s{S_T0} offen")
            e("s_waitcnt vmcnt(0)")
        e(f"v_lshlrev_b32 v{self.A_VK}, 12, v{t+12}")
        e(f"s_lshl_b32 s{S_HK}, s{S_B}, 7")
        e(f"s_add_u32 s{S_HK}, s{S_HK}, 458752")
        self.barA_("QB1")
        if self.vto:
            e(f"buffer_load_dword v{self.A_VV}, v{self.A_VK}, {sr(S_WO,4)}, s{S_HK} offen nt")
        self.q_read()
        e("s_waitcnt lgkmcnt(0)")
        self.barA_("KV0")
        for f in range(3):
            self.k_read(f, 0, 0)
        barA_pre = list(self.barA)
        self.barA = []
        e.lab("L_item")
        if self.dyn:
            e(f"s_setprio {self.prioA}")
        S = self.A_S
        for T in range(16):
            slot, tile = (T >> 1) & 1, T & 1
            ph = T >> 1
            hops = []
            if T == 2 and self.vto:
                e(f"s_cmp_eq_u32 s{S_ITEM}, 0")
                e("s_cbranch_scc0 L_nopromo")
                e(f"buffer_load_dword v{self.A_VV}, v{self.A_VK}, {sr(S_WO,4)}, s{S_HK} offen")
                e.lab("L_nopromo")
            if tile == 0:
                hops = self.A_Hops('K', slot ^ 1, S_HK, ((ph + 1) >> 2)*131072 + ((ph + 1) & 3)*512) if ph < 7 else self.A_Hops('V', 0, S_HV, 0)
            e("s_waitcnt lgkmcnt(2)" if T else ("s_waitcnt lgkmcnt(2)"))
            for f in range(16):
                s, mt = f >> 1, f & 1
                d0, d1 = vr(S + 8*mt, 4), vr(S + 8*mt + 4, 4)
                if hops and f % 2 == 0:
                    hops[f >> 1](True)
                if not self.noAm:
                    e(f"v_mfma_f32_16x16x32_bf16 {d0}, {ar(64+4*(f%4),4)}, {ar(8*s,4)}, {d0 if s else 0}")
                if f + 3 < 16:
                    self.k_read(f + 3, slot, tile)
                elif tile == 0:
                    self.k_read(f + 3 - 16, slot, 1)
                if not self.noAm:
                    e(f"v_mfma_f32_16x16x32_bf16 {d1}, {ar(64+4*(f%4),4)}, {ar(8*s+4,4)}, {d1 if s else 0}")
                if hops and f % 2 == 0:
                    hops[f >> 1](False)
                if (T, f) == ((0, self.obe) if self.ob.get(16) == 'early' else self.obk) and 16 in self.ob:
                    e(f"s_cmp_eq_u32 s{S_ITEM}, 0")
                    e("s_cbranch_scc1 L_nobk")
                    e("s_barrier")
                    self.stamp(self.A_ST)
                    e.lab("L_nobk")
                if f < 15:
                    n_out = 2 if (tile == 0 or f + 3 < 16) else 14 - f
                    if tile == 1 and f == 14:
                        e("s_waitcnt vmcnt(0) lgkmcnt(0)" if self.hA else "s_waitcnt lgkmcnt(0)")
                        self.barA_("KV")
                        for g in range(3):
                            if T < 15:
                                self.k_read(g, slot ^ 1, 0)
                            else:
                                self.v_read(g, 0)
                    else:
                        e(f"s_waitcnt lgkmcnt({n_out})")
            if tile == 0 and ph < 7 and self.hA:
                e(f"s_cmp_eq_u32 s{S_ITEM}, 0")
                e(f"s_cbranch_scc0 L_nox{ph}")
                for k in range(2):
                    e(f"s_add_u32 m0, s{S_XLDS}, {self.xloc(1, ph) + k*1088}")
                    e(f"s_add_u32 s{S_T0}, s{S_XG}, {k*7168 + ph*128}")
                    e(f"buffer_load_dwordx4 v{self.A_VX}, {sr(S_X,4)}, s{S_T0} offen lds")
                if ph == 0:
                    e("s_barrier")
                    self.stamp(self.A_ST)
                e.lab(f"L_nox{ph}")
            if self.dyn:
                e("s_setprio 0")
            e("s_nop 1" if T else "s_nop 7")
            if not self.noSM:
                self.softmax(T)
            if self.dyn and T < 15:
                e(f"s_setprio {self.prioA}")
        TT = self.A_T
        for cb in range(2):
            self.xlane("v_add_f32", self.A_L + cb, TT)
            e(f"v_rcp_f32 v{self.A_L+cb}, v{self.A_L+cb}")
        self.lane16(OW, 13, 11, XO_BASE)
        barA_K = list(self.barA)
        self.barA = []
        e(f"s_mov_b32 s{S_CH}, 0")
        e(f"s_mov_b32 s{S_HVC}, s{S_HV}")
        e.lab("L_chunk")
        if self.dyn:
            e(f"s_setprio {self.prioA}")
        O = self.A_S
        for half in range(2):
            if half == 1:
                e(f"s_or_b32 s{S_T0}, s{S_ITEM}, s{S_CH}")
                e(f"s_cbranch_scc1 L_noq2")
                self.q_read()
                e.lab("L_noq2")
                if self.hA:
                    e(f"s_movk_i32 s{S_HM}, 1024")
                    e(f"s_movk_i32 s{S_HGS}, 16384")
                    e(f"s_cmp_eq_u32 s{S_CH}, 3")
                    e(f"s_cselect_b64 {sr(S_HS,2)}, {sr(S_K,2)}, {sr(S_V,2)}")
                    e(f"s_cselect_b32 s{S_HM}, 1056, s{S_HM}")
                    e(f"s_cselect_b32 s{S_HGS}, 4096, s{S_HGS}")
                    e(f"s_cselect_b32 m0, s{S_KL}, s{S_VL}")
                    e(f"s_cselect_b64 vcc, -1, 0")
                    e(f"s_add_u32 s{S_T0}, s{S_HK}, 262144")
                    e(f"s_add_u32 s{S_T1}, s{S_HVC}, 128")
                    e(f"v_cndmask_b32 v{self.A_NM}, v{self.A_VV}, v{self.A_VK}, vcc")
                    e(f"s_cmp_eq_u32 s{S_CH}, 3")
                    e(f"s_cselect_b32 s{S_T1}, s{S_T0}, s{S_T1}")
                    e(f"s_mov_b32 s{S_HS+2}, 524288")
                    e(f"s_mov_b32 s{S_HS+3}, 0x20000")
                hops = self.A_Hops('G', 0, None, None)
            else:
                hops = self.A_Hops('V', 1, S_HVC, 131072)
            e("s_waitcnt lgkmcnt(4)")
            for f in range(32):
                T, u = f >> 2, f & 3
                Tg = 8*half + T
                d0, d1 = vr(O + 8*u, 4), vr(O + 8*u + 4, 4)
                if f < 16 and f % 2 == 0:
                    hops[f >> 1](True)
                if not self.noAm:
                    e(f"v_mfma_f32_16x16x32_bf16 {d0}, {ar(64+4*(f%4),4)}, {vr(self.A_P+8*Tg,4)}, {d0 if Tg else 0}")
                if f + 3 < 32:
                    self.v_read(f + 3, half, (0,))
                if not self.noAm:
                    e(f"v_mfma_f32_16x16x32_bf16 {d1}, {ar(64+4*(f%4),4)}, {vr(self.A_P+8*Tg+4,4)}, {d1 if Tg else 0}")
                if f + 3 < 32:
                    self.v_read(f + 3, half, (1,))
                if f < 16 and f % 2 == 0:
                    hops[f >> 1](False)
                for kind, pos in (('early', self.obe), ('late', self.obf)):
                    mask = sum(1 << (4*it + cc) for it in range(2) for cc in range(1, 4) if self.ob.get(8 + 2*cc + 16*it) == kind)
                    if half == 0 and f == pos and mask:
                        e(f"s_lshl2_add_u32 s{S_T0}, s{S_ITEM}, s{S_CH}")
                        e(f"s_bitcmp1_b32 {mask}, s{S_T0}")
                        e(f"s_cbranch_scc0 L_nob{kind}")
                        e("s_barrier")
                        self.stamp(self.A_ST)
                        e.lab(f"L_nob{kind}")
                if half == 1 and f == (15 if self.hA else 4):
                    e(f"s_cmp_eq_u32 s{S_CH}, 0")
                    e("s_cbranch_scc0 L_nqb")
                    e("s_barrier")
                    self.stamp(self.A_ST)
                    e.lab("L_nqb")
                if f == 30:
                    e("s_waitcnt vmcnt(0) lgkmcnt(0)" if self.hA else "s_waitcnt lgkmcnt(0)")
                    self.stamp(self.A_ST, '@')
                    self.barA_("KV")
                    self.stamp(self.A_ST, '@')
                    if half == 0:
                        for g in range(3):
                            self.v_read(g, 1)
                    else:
                        e(f"s_cmp_eq_u32 s{S_CH}, 3")
                        e("s_cbranch_scc1 L_nk")
                        for g in range(3):
                            self.v_read(g, 0)
                        e("s_branch L_nk2")
                        e.lab("L_nk")
                        for g in range(3):
                            self.k_read(g, 0, 0)
                        e.lab("L_nk2")
                elif f < 30:
                    e(f"s_waitcnt lgkmcnt({2*min(2, 30 - f)})")
        if self.dyn:
            e("s_setprio 0")
        e("s_nop 7")
        for u in range(4):
            for cb in range(2):
                for r in range(4):
                    x = O + 8*u + 4*cb + r
                    e(f"v_mul_f32 v{x}, v{x}, v{self.A_L+cb}")
        for u2 in range(2):
            for cb in range(2):
                d = O + 16*u2 + 4*cb
                s1 = d + 8
                e(f"v_cvt_pk_bf16_f32 v{d}, v{d}, v{d+1}")
                e(f"v_cvt_pk_bf16_f32 v{d+1}, v{d+2}, v{d+3}")
                e(f"v_cvt_pk_bf16_f32 v{d+2}, v{s1}, v{s1+1}")
                e(f"v_cvt_pk_bf16_f32 v{d+3}, v{s1+2}, v{s1+3}")
                e(f"ds_write_b128 v{OW}, {vr(d,4)} offset:{u2*4096 + cb*1024}")
        barA_C = list(self.barA)
        e(f"s_add_u32 s{S_HVC}, s{S_HVC}, 128")
        e(f"s_add_u32 s{S_CH}, s{S_CH}, 1")
        e(f"s_cmp_lt_u32 s{S_CH}, 4")
        e("s_cbranch_scc1 L_chunk")
        e(f"s_add_u32 s{S_HK}, s{S_HK}, 262144")
        e(f"s_add_u32 s{S_HV}, s{S_HV}, 262144")
        e(f"s_add_u32 s{S_ITEM}, s{S_ITEM}, 1")
        e(f"s_cmp_lt_u32 s{S_ITEM}, 2")
        e("s_cbranch_scc1 L_item")
        seq = list(barA_pre)
        for it in range(2):
            seq += (["HX"] if it == 0 and self.hA else []) + (["OB"] if it == 1 and 16 in self.ob else []) + barA_K
            for c in range(4):
                x = list(barA_C)
                if c == 0:
                    x.insert(1, "QB2")
                elif 8 + 2*c + 16*it in self.ob:
                    x.insert(0, "OB")
                seq += x
        e("s_waitcnt lgkmcnt(0)")
        self.barA_("OB")
        self.barA = seq + ["OB"]
        if self.prof:
            self.stamp(self.A_ST)
            e(f"s_cmp_eq_u32 s{S_W}, 0")
            e("s_cbranch_scc0 L_end")
            self.prof_store(self.A_ST, 0, 0)
        e("s_endpgm")
        self.rescale_routine()

    def prof_store(self, vreg, role, tmp):
        e = self.e
        e(f"v_mbcnt_lo_u32_b32 v{tmp}, -1, 0")
        e(f"v_mbcnt_hi_u32_b32 v{tmp}, -1, v{tmp}")
        e(f"v_lshlrev_b32 v{tmp}, 2, v{tmp}")
        e(f"s_lshl_b32 s{S_T0}, s{S_WG}, 9")
        e(f"s_add_u32 s{S_T0}, s{S_T0}, {0x3000000 + role*256}")
        e(f"buffer_store_dword v{vreg}, v{tmp}, {sr(S_WS,4)}, s{S_T0} offen")
        e(f"s_add_u32 s{S_T0}, s{S_T0}, 0x200000")
        e(f"buffer_store_dword v{self.st2[vreg]}, v{tmp}, {sr(S_WS,4)}, s{S_T0} offen")
        e("s_waitcnt vmcnt(0)")

    def stouch_wq(self, item, k0, k1, step):
        e = self.e
        if k0 >= k1:
            return
        e(f"s_lshl_b32 s{S_T0}, s{S_W}, 14")
        e(f"s_lshr_b32 s{S_T1}, s{S_B}, 4")
        e(f"s_lshl_b32 s{S_T1}, s{S_T1}, 13")
        e(f"s_add_u32 s{S_T0}, s{S_T0}, s{S_T1}")
        e(f"s_and_b32 s{S_T1}, s{S_B}, 15")
        e(f"s_lshl_b32 s{S_T1}, s{S_T1}, 6")
        e(f"s_add_u32 s{S_T0}, s{S_T0}, s{S_T1}")
        cur = 0
        for k in range(k0, k1, step):
            if k // 8 != cur:
                e(f"s_add_u32 s{S_T0}, s{S_T0}, {(k // 8 - cur)*8*65536}")
                cur = k // 8
            e(f"s_buffer_load_dword s{S_JUNK + k % 4}, {sr(S_WQ,4)}, s{S_T0} offset:{(k % 8)*65536 + item*1024}")

    def stouch_wo(self, item, k0, k1):
        e = self.e
        e(f"s_lshl_b32 s{S_T0}, s{S_W}, 11")
        e(f"s_lshl_b32 s{S_T1}, s{S_B}, 6")
        e(f"s_add_u32 s{S_T0}, s{S_T0}, s{S_T1}")
        for k in range(k0, k1):
            e(f"s_buffer_load_dword s{S_JUNK + k % 4}, {sr(S_WO,4)}, s{S_T0} offset:{k*8192 + item*458752}")

    B_OR = 128
    B_TMP = 132
    B_BF = 32
    B_WT = 160
    B_XR = 164
    B_XR0 = 165
    B_VWQ = 166
    B_VWO = 167
    B_VV = 168
    B_VK = 169
    B_VX = 170
    B_QW = 171
    B_LANE = 172
    B_TA, B_TD = 166, 167
    B_FIN, B_FOUT, B_FAI, B_FAO = 148, 149, 150, 151
    B_VWQ4 = 152
    B_VWO4 = 156
    B_ST = 175

    def setupB(self):
        e = self.e
        e(f"s_mul_i32 s{S_XLDS}, s{S_W}, {2*1088}")
        e(f"s_mul_i32 s{S_XG}, s{S_W}, {16*896}")
        g = self.dma_voffs(self.B_VX, self.B_VK, self.B_VV, self.B_VWO4, self.B_VWQ4, self.B_TMP)
        next(g)
        e(f"v_and_b32 v{self.B_FAO}, 3, v0")
        e(f"v_lshlrev_b32 v{self.B_FAI}, 2, v{self.B_FAO}")
        e(f"s_lshl_b32 s{S_T0}, s{S_WG}, 7")
        e(f"s_add_u32 s{S_T0}, s{S_T0}, {FLAG_BASE}")
        e(f"v_add_u32 v{self.B_FAI}, s{S_T0}, v{self.B_FAI}")
        e(f"s_mul_i32 s{S_T1}, s{S_P}, 124")
        e(f"s_sub_u32 s{S_T0}, s{S_T0}, s{S_T1}")
        e(f"v_lshl_add_u32 v{self.B_FAO}, v{self.B_FAO}, 7, s{S_T0}")
        e(f"buffer_load_dword v{self.B_FIN}, v{self.B_FAI}, {sr(S_WS,4)}, 0 offen sc1")
        e(f"buffer_load_dword v{self.B_FOUT}, v{self.B_FAO}, {sr(S_WS,4)}, 0 offen sc1")
        self.vmq += ["F", "F"]
        for xp in range(2 if self.early else 7):
            for op in self.X_ops(xp, self.xloc(0, xp), "X0", self.xnt):
                op()
        e(f"s_lshl_b32 s{S_WLDS}, s{S_W}, 14")
        e(f"s_add_u32 s{S_WLDS}, s{S_WLDS}, {W_BASE}")
        e(f"s_lshl_b32 s{S_WCOL}, s{S_W}, 8")
        e(f"s_mul_i32 s{S_KLDS}, s{S_W}, {8*1056}")
        e(f"s_lshl_b32 s{S_KG}, s{S_W}, 15")
        r1, r2 = 44, 45
        if self.rot:
            e(f"s_and_b32 s{r1}, s{S_B}, 3")
            e(f"s_bfe_u32 s{r2}, s{S_B}, 0x20002")
        else:
            e(f"s_mov_b32 s{r1}, 0")
            e(f"s_mov_b32 s{r2}, 0")
        e(f"s_add_u32 s{S_VG}, s{S_W}, s{r1}")
        e(f"s_and_b32 s{S_VG}, s{S_VG}, 3")
        e(f"s_lshl_b32 s{S_VG}, s{S_VG}, 9")
        for r in range(4):
            e(f"s_add_u32 s{S_T0}, s{r1}, {r}")
            e(f"s_and_b32 s{S_T0}, s{S_T0}, 3")
            e(f"s_lshl_b32 s{S_T0}, s{S_T0}, 9")
            e(f"s_add_u32 s{S_KR+r}, s{S_KG}, s{S_T0}")
            e(f"s_add_u32 s{S_T0}, s{r2}, {r}")
            e(f"s_and_b32 s{S_T0}, s{S_T0}, 3")
            e(f"s_lshl_b32 s{S_T1}, s{S_T0}, 7")
            e(f"s_add_u32 s{S_VC+r}, s{S_VG}, s{S_T1}")
            e(f"s_mul_i32 s{S_T1}, s{S_T0}, {64*896}")
            e(f"s_add_u32 s{S_WR+r}, s{S_WCOL}, s{S_T1}")
        e(f"s_lshl_b32 s{S_VLB}, s{S_W}, 13")
        next(g)
        for pc in range(1, 4):
            e(f"v_add_u32 v{self.B_VWQ4+pc}, {(16*(pc & 1) + 4*(pc >> 1))*8192 - 1024*pc}, v{self.B_VWQ4}")

    def setupB2(self):
        e = self.e
        a, b, c = self.B_TMP, self.B_TMP + 1, self.B_TMP + 2
        self.tr_addr(self.B_WT, base_sreg=S_WLDS, t0=a, t1=b, t2=c)
        e(f"v_bfe_u32 v{a}, v0, 3, 1")
        e(f"v_mul_u32_u24 v{self.B_XR0}, 1088, v{a}")
        e(f"v_and_b32 v{a}, 7, v0")
        e(f"v_lshl_add_u32 v{self.B_XR0}, v{a}, 7, v{self.B_XR0}")
        e(f"v_lshrrev_b32 v{a}, 1, v{a}")
        e(f"v_lshrrev_b32 v{b}, 4, v0")
        e(f"v_xor_b32 v{a}, v{a}, v{b}")
        e(f"v_lshl_add_u32 v{self.B_XR0}, v{a}, 4, v{self.B_XR0}")
        e(f"v_add_u32 v{self.B_XR}, {XO_BASE}, v{self.B_XR0}")
        e(f"v_add_u32 v{self.B_XR0}, {KV_SLOT}, v{self.B_XR0}")
        for rb in range(4):
            e(f"s_add_u32 s{S_T0}, s{S_P}, {rb}")
            e(f"s_and_b32 s{S_T0}, s{S_T0}, 3")
            e(f"s_lshl_b32 s{S_T0}, s{S_T0}, 10")
            e(f"s_add_u32 s{S_T0}, s{S_T0}, {XO_BASE}")
            e(f"v_lshl_add_u32 v{self.B_OR+rb}, v0, 4, s{S_T0}")
        e(f"v_lshrrev_b32 v{a}, 5, v0")
        e(f"v_lshlrev_b32 v{a}, 8, v{a}")
        e(f"v_and_b32 v{b}, 15, v0")
        e(f"v_lshl_add_u32 v{a}, v{b}, 4, v{a}")
        e(f"v_bfe_u32 v{b}, v0, 4, 1")
        e(f"v_lshl_add_u32 v{a}, v{b}, 3, v{a}")
        e(f"v_add_u32 v{self.B_QW}, s{S_WLDS}, v{a}")
        e(f"v_mov_b32 v{self.B_LANE}, v0")
        e(f"v_min_u32 v{self.B_TA}, 27, v0")
        e(f"s_mul_i32 s{S_T0}, s{S_W}, 28")
        e(f"v_add_u32 v{self.B_TA}, s{S_T0}, v{self.B_TA}")
        e(f"v_lshlrev_b32 v{self.B_TA}, 12, v{self.B_TA}")
        e(f"s_lshl_b32 s{S_T0}, s{S_B}, 7")
        e(f"v_add_u32 v{self.B_TA}, s{S_T0}, v{self.B_TA}")
        for pc in range(1, 4):
            e(f"v_add_u32 v{self.B_VWO4+pc}, {(16*(pc >> 1) + 8*(pc & 1))*896 - 1024*pc}, v{self.B_VWO4}")

    def xloc(self, item, xp):
        if xp == 0 or (item == 1 and xp % 3 == 0):
            return KV_SLOT + 4 * X_SLOT
        if item == 1:
            return XO_BASE + (xp % 3 - 1) * X_SLOT
        if xp < 5:
            return KV_SLOT + (xp - 1) * X_SLOT
        return XO_BASE + (xp - 5) * X_SLOT

    def dma(self, lds_s, lds_imm, g_s, g_imm, vaddr, srd, tag, nt=False):
        def emit():
            e = self.e
            e(f"s_add_u32 m0, s{lds_s}, {lds_imm}")
            e(f"s_add_u32 s{S_T0}, s{g_s}, {g_imm}")
            e(f"buffer_load_dwordx4 v{vaddr}, {sr(srd,4)}, s{S_T0} offen{' nt' if nt else ''} lds")
            self.vmq.append(tag)
        return emit

    def H_ops(self, n):
        item, ph = n >> 4, n & 15
        slot = n & 1
        ops = []
        if self.noH:
            return ops
        for k in range(8):
            if ph < 8:
                ops.append(self.dma(S_KLDS, slot*KV_SLOT + k*1056, S_KR + (ph & 3), item*262144 + (ph >> 2)*131072 + k*4096,
                                    self.B_VK, S_K, f"H{n}", nt=True))
            else:
                c, half = (ph - 8) >> 1, ph & 1
                ops.append(self.dma(S_VLB, slot*KV_SLOT + k*1024, S_VC + c, item*262144 + half*131072 + k*16384,
                                    self.B_VV, S_V, f"H{n}", nt=True))
        return ops

    def X_ops(self, xp, loc, tag, nt=False):
        return [self.dma(S_XLDS, loc + k*1088, S_XG, k*7168 + xp*128, self.B_VX, S_X, tag, nt=nt) for k in range(2)]

    def W_ops(self, wd, hs):
        ks, cbk = hs >> 1, hs & 1
        ops = []
        if self.noW and wd[:2] != ('Q', 0):
            return ops
        if wd[0] == 'Q':
            _, item, xp = wd
            g = 32*(2*xp + ks)*8192 + item*1024 + cbk*128
            vb, srd, gs = self.B_VWQ4, S_WQ, S_WCOL
        else:
            _, item, c, j = wd
            g = (item*512 + 256*j + 32*ks)*896 + cbk*128
            vb, srd, gs = self.B_VWO4, S_WO, S_WR + c
        for pc in range(4):
            def emit(pc=pc):
                e = self.e
                if pc == 0:
                    e(f"s_add_u32 m0, s{S_WLDS}, {hs*4096}")
                    e(f"s_add_u32 s{S_T0}, s{gs}, {g}")
                e(f"buffer_load_dwordx4 v{vb+pc}, {sr(srd,4)}, s{S_T0} offen offset:{pc*1024}{' nt' if self.wq0nt and wd[:2] == ('Q', 0) else ''} lds")
                self.vmq.append((wd, hs))
            ops.append(emit)
        return ops

    def wo_touch(self, nt):
        ops = []
        for item in self.hto:
            def tch(item=item):
                self.e(f"s_mov_b32 s{S_T0}, {item*458752}")
                self.e(f"buffer_load_dword v{self.B_TD}, v{self.B_TA}, {sr(S_WO,4)}, s{S_T0} offen{' nt' if nt else ''}")
                self.vmq.append("T")
            ops.append(tch)
        return ops

    def vmwait(self, need, extra=""):
        idx = -1
        for i, t in enumerate(self.vmq):
            if t in need:
                idx = i
        if idx < 0:
            if extra:
                self.e(f"s_waitcnt {extra}")
            return
        n = len(self.vmq) - 1 - idx
        assert n <= 63, n
        self.e(f"s_waitcnt vmcnt({n}) {extra}".rstrip())
        self.vmq = self.vmq[idx+1:]

    def barB_(self, name):
        sel = 10 <= self.curn <= 16 or 26 <= self.curn <= 32
        if sel:
            self.stamp(self.B_ST, f"@a{name}{self.curn}")
        self.e("s_barrier")
        if sel:
            self.stamp(self.B_ST, f"@{name}{self.curn}")
        self.barB[self.path].append(name)
        if self.prof != 2 or self.curn in self.fine or self.curn - 1 in self.fine:
            self.stamp(self.B_ST, name + str(self.curn))

    def hs_list(self, wd):
        if wd[0] == 'O' and self.path == 'w3':
            return [0, 2]
        return [0, 1, 2, 3]

    @staticmethod
    def kid(st):
        wd, hs = st
        return (wd[0], wd[1], 2*wd[2] + (hs >> 1)) if wd[0] == 'Q' else ('O', wd[1], 4*wd[2] + 2*wd[3] + (hs >> 1))

    def make_sched(self):
        P = {n: [] for n in range(34)}
        def fill(seq, base, cnt):
            k = 0
            for i, c in enumerate(cnt):
                P[base + i] += seq[k:k + c]
                k += c
            return seq[k:]
        assert not fill([(('Q', 1, xp), hs) for xp in range(7) for hs in range(4)], 0, self.qcnt)
        oseq = lambda it: [(('O', it, k >> 2, (k >> 1) & 1), 2*(k & 1) + cbk) for k in range(16) for cbk in range(2)]
        assert not fill(oseq(0), 10, self.o1cnt)
        P[32] = fill(oseq(1), 26, self.o2cnt)
        self.P = P
        self.ob = {}
        for it, base in ((0, 10), (1, 26)):
            for c in range(4):
                wp = base + 2*c
                use = [i for i, (wd, hs) in enumerate(P[wp]) if wd[:3] == ('O', it, c)]
                for n in range(wp):
                    assert not any(wd[:3] == ('O', it, c) for wd, hs in P[n])
                if use:
                    self.ob[wp] = 'early' if use[0] == 0 else 'late'
        self.xfirst, xlast = {}, {}
        for n in range(9):
            for wd, hs in P[n]:
                self.xfirst.setdefault(wd[2], n)
                xlast[wd[2]] = n
        del self.xfirst[0]
        for xp, n in self.xfirst.items():
            assert n >= 1 and (xp < 3 or xlast[xp - 3] < n - 1), (xp, n)

    def sched(self, n):
        return [st for st in self.P[n] if not (self.path == 'w3' and st[0][0] == 'O' and st[1] & 1)]

    def bf_reads(self, st):
        wd, hs = st
        k = self.kid(st)
        if k in self.bfl:
            return []
        self.bfl.add(k)
        ks = hs >> 1
        e = self.e
        ops = []
        for cb4 in range(4):
            d = ar(self.B_BF + 16*(k[2] % 3) + 4*cb4, 4)
            if wd[0] == 'Q':
                loc = self.xloc(wd[1], wd[2])
                reg = self.B_XR if loc >= XO_BASE else self.B_XR0
                off = (loc - XO_BASE if loc >= XO_BASE else loc - KV_SLOT) + cb4*2176 + ks*64
            else:
                reg = self.B_OR + cb4
                off = (2*wd[3] + ks)*4096
            ops.append(lambda d=d, off=off, reg=reg: e(f"ds_read_b128 {d}, v{reg} offset:{off}"))
        return ops

    def w_reads(self, hs, i):
        e = self.e
        ops = []
        for u in range(4):
            for t in range(2):
                d = ar(16*(i & 1) + 4*u + 2*t, 2)
                off = hs*4096 + t*2048
                ops.append(lambda d=d, off=off, u=u: e(f"ds_read_b64_tr_b16 {d}, v{self.B_WT+u} offset:{off}"))
        return ops

    def needs_ob(self, st):
        wd, hs = st
        return wd[0] == 'O' and wd[3] == 0 and hs == 0 and self.curn == (10, 26)[wd[1]] + 2*wd[2]

    def run_steps(self, steps, per_step, preload=(), upfront=()):
        e = self.e
        if self.boost:
            e(f"s_setprio {self.boost}")
        if self.wpre != steps[0]:
            self.vmwait([steps[0]])
            for op in self.w_reads(steps[0][1], 0):
                op()
        if self.needs_ob(steps[0]):
            for op in upfront:
                op()
            upfront = ()
            self.barB_("OB")
        for op in self.bf_reads(steps[0]):
            op()
        for op in upfront:
            op()
        if self.boost:
            e(f"s_setprio {self.prioB}")
        late = []
        for i, (wd, hs) in enumerate(steps):
            ks, cbk = hs >> 1, hs & 1
            kb = self.kid(steps[i])[2] % 3
            others = []
            nx = steps[i+1] if i + 1 < len(steps) else None
            if nx:
                self.vmwait([nx], "lgkmcnt(0)")
                if not self.needs_ob(nx):
                    others += self.bf_reads(nx)
                others += self.w_reads(nx[1], i + 1)
            else:
                e("s_waitcnt lgkmcnt(0)")
                for st in preload:
                    if self.kid(st)[2] % 3 != kb:
                        others += self.bf_reads(st)
                    else:
                        late += self.bf_reads(st)
            others += per_step(i)
            zero = ks == 0 and ((wd[0] == 'Q' and wd[2] == 0) or wd == ('O', 0, 0, 0))
            k = 0
            for u in range(4):
                for cb4 in range(4):
                    d = vr(64*cbk + 16*u + 4*cb4, 4)
                    if not (self.noBm and wd[:2] != ('Q', 0)):
                        e(f"v_mfma_f32_16x16x32_bf16 {d}, {ar(16*(i&1)+4*u,4)}, {ar(self.B_BF+16*kb+4*cb4,4)}, {0 if zero else d}")
                    if k < len(others):
                        others[k](); k += 1
            while k < len(others):
                others[k](); k += 1
            if nx and self.needs_ob(nx):
                if self.boost:
                    e(f"s_setprio {self.boost}")
                self.barB_("OB")
                for op in self.bf_reads(nx):
                    op()
                if self.boost:
                    e(f"s_setprio {self.prioB}")
        for op in late:
            op()

    def q_ops(self, cbk):
        e = self.e
        t = self.B_TMP
        ops = []
        for u in range(4):
            for cb4 in range(4):
                def op(u=u, cb4=cb4):
                    a = 64*cbk + 16*u + 4*cb4
                    d = t + 2*((4*u + cb4) % 8)
                    e(f"v_cvt_pk_bf16_f32 v{d}, v{a}, v{a+1}")
                    e(f"v_cvt_pk_bf16_f32 v{d+1}, v{a+2}, v{a+3}")
                    off = (cb4*4 + 2*cbk + (u >> 1))*1024 + (u & 1)*512
                    e(f"ds_write_b64 v{self.B_QW}, {vr(d,2)} offset:{off}")
                ops.append(op)
        return ops

    def q_write(self, cbks=(0, 1)):
        e = self.e
        if cbks == (0, 1):
            e("s_nop 7")
        for cbk in cbks:
            for op in self.q_ops(cbk):
                op()
        e("s_waitcnt lgkmcnt(0)")

    def periodB(self, n):
        e = self.e
        self.curn = n
        steps = self.sched(n)
        nxt = self.sched(n + 1) if n < 32 else []
        self.vmwait([f"H{n}"] + [f"X1_{xp}" for xp, m in self.xfirst.items() if m == n])
        self.barB_("KV0" if n == 0 else "KV")
        hx = []
        if n + 1 <= 31 and not (n == 0 and self.h1h):
            hx += self.H_ops(n + 1)
        for xp, m in self.xfirst.items():
            if m == n + 1:
                hx += self.X_ops(xp, self.xloc(1, xp), f"X1_{xp}", self.x2nt)
        if n == 0:
            for st in steps:
                for op in self.W_ops(*st):
                    op()
        if not steps:
            for op in hx:
                op()
        if n == 8 and not steps:
            self.q_write()
        if n in (9, 25):
            self.barB_("QB2")
        todo = list(nxt[:len({hs for _, hs in nxt})])
        pre = []
        for it, base in ((0, 10), (1, 26)):
            for c in range(4):
                if n + 1 == (base + 2*c + 2 if c < 3 else (26 if it == 0 else -1)):
                    rest = [st for m in range(n + 1, 33) for st in self.sched(m) if st[0][:3] == ('O', it, c) and not st[1] & 1]
                    pre += rest
        if steps:
            def per(i):
                if n == 32:
                    rest = [st for st in steps[i+1:] if st[1] == steps[i][1]]
                    if self.tailov and self.path == 'main' and i == len(steps) - 2:
                        return [self.pub_setup]
                    if self.tailov and self.path == 'main' and i == len(steps) - 1:
                        return [lambda: None]*3 + self.pub_ops(0)
                    return self.W_ops(*rest[0]) if rest else []
                free = {hs for _, hs in steps[:i+1-self.lag]} | ({0, 1, 2, 3} - {hs for _, hs in steps})
                r = []
                if inter and i < 2:
                    nh = (len(hx) + 1)//2 if (i == 0 and len(steps) > 2) else len(hx)
                    r += hx[:nh]
                    del hx[:nh]
                while todo and todo[0][1] in free and i >= self.rin:
                    r += self.W_ops(*todo.pop(0))
                if n == 8 and i == len(steps) - 1:
                    r += self.q_ops(0)
                return r
            a_epi = n in (10, 12, 14, 16, 26, 28, 30)
            inter = self.hint and a_epi and not self.needs_ob(steps[0])
            last_k = self.kid(steps[-1])
            newk = [self.kid(st) for st in pre if self.kid(st) not in self.bfl and self.kid(st) not in map(self.kid, steps)]
            live = {self.kid(st) for m in range(n + 1, 33) for st in self.sched(m) if self.kid(st) in self.bfl or self.kid(st) in map(self.kid, steps)}
            bufs = [k[2] % 3 for k in newk] + [k[2] % 3 for k in live]
            assert len(bufs) == len(set(bufs)), (n, newk, live)
            self.run_steps(steps, per, pre, [] if inter else hx)
            if n == 8:
                self.q_write((1,))
        else:
            assert all(self.kid(st) in self.bfl for st in pre)
        for st in todo:
            for op in self.W_ops(*st):
                op()
        if pre:
            e("s_waitcnt lgkmcnt(0)")
        if self.pre_rd and nxt and n + 1 in (12, 14, 16, 28, 30, 32) and self.kid(nxt[0]) in self.bfl:
            self.vmwait([f"H{n+1}", nxt[0]])
            for op in self.w_reads(nxt[0][1], 0):
                op()
            self.wpre = nxt[0]

    def epilogue_v1(self):
        e = self.e
        t = self.B_TMP
        e("s_nop 7")
        e(f"v_lshlrev_b32 v{t}, 4, v{self.B_LANE}")
        e(f"s_lshl_b32 s{S_T1}, s{S_WG}, 17")
        e(f"s_lshl_b32 s{S_T0}, s{S_W}, 15")
        e(f"s_add_u32 s{S_T1}, s{S_T1}, s{S_T0}")
        for cbk in range(1 if self.path == 'w3' else 2):
            for u in range(4):
                e(f"s_add_u32 s{S_T0}, s{S_T1}, {(cbk*4+u)*4096}")
                for cb4 in range(4):
                    e(f"buffer_store_dwordx4 {vr(64*cbk+16*u+4*cb4,4)}, v{t}, {sr(S_WS,4)}, s{S_T0} offen offset:{cb4*1024}")

    def pub_setup(self):
        e = self.e
        slot = 32768 if self.f32 else 16384
        e(f"v_lshlrev_b32 v{self.B_TMP}, 4, v{self.B_LANE}")
        e(f"s_and_b32 s{S_T1}, s{S_WG}, 0xfc")
        e(f"s_mul_i32 s{S_T1}, s{S_T1}, {4*slot}")
        e(f"s_mul_i32 s{S_T0}, s{S_W}, {slot // 4}")
        e(f"s_add_u32 s{S_T1}, s{S_T1}, s{S_T0}")
        e(f"s_mul_i32 s2, s{S_P}, {slot}")
        e(f"s_add_u32 s2, s2, s{S_T1}")
        for rb in (1, 2, 3):
            e(f"s_add_u32 s{S_T0}, s{S_P}, {rb}")
            e(f"s_and_b32 s{S_T0}, s{S_T0}, 3")
            e(f"s_mul_i32 s{S_T0}, s{S_T0}, {4*slot}")
            e(f"s_add_u32 s{S_KR+rb}, s{S_T0}, s2")

    def pub_ops(self, cbk):
        e = self.e
        L16, D, fl = self.B_TMP, self.B_TMP + 4, self.pfl
        ops = []
        if self.f32:
            for u in range(4):
                for rb in (1, 2, 3):
                    def op(u=u, rb=rb):
                        e(f"s_add_u32 s{S_T0}, s{S_KR+rb}, {cbk*4096}")
                        e(f"buffer_store_dwordx4 {vr(64*cbk+16*u+4*rb,4)}, v{L16}, {sr(S_WS,4)}, s{S_T0} offen offset:{u*1024} {fl}")
                    ops.append(op)
            return ops
        n = 0
        for u2 in range(2):
            for rb in (1, 2, 3):
                d = D + 4*(n % 3); n += 1
                a0 = 64*cbk + 32*u2 + 4*rb
                ops.append(lambda d=d, a0=a0: (e(f"v_cvt_pk_bf16_f32 v{d}, v{a0}, v{a0+1}"), e(f"v_cvt_pk_bf16_f32 v{d+1}, v{a0+2}, v{a0+3}")))
                ops.append(lambda d=d, a0=a0, rb=rb, u2=u2: (e(f"v_cvt_pk_bf16_f32 v{d+2}, v{a0+16}, v{a0+17}"), e(f"v_cvt_pk_bf16_f32 v{d+3}, v{a0+18}, v{a0+19}"),
                           e(f"buffer_store_dwordx4 {vr(d,4)}, v{L16}, {sr(S_WS,4)}, s{S_KR+rb} offen offset:{(2*cbk+u2)*1024} {fl}")))
        return ops

    def epilogue_fused(self):
        e = self.e
        t = self.B_TMP
        L16, OA = t, t + 1
        D = t + 4
        ncbk = 1 if self.path == 'w3' else 2
        slot = 32768 if self.f32 else 16384
        self.stamp(self.B_ST)
        ov = self.tailov and ncbk == 2
        if not ov:
            self.pub_setup()
        e("s_nop 7")
        for cbk in range(1 if ov else 0, ncbk):
            for op in self.pub_ops(cbk):
                op()
        e(f"v_and_b32 v{OA}, 15, v{self.B_LANE}")
        e(f"v_mul_u32_u24 v{OA}, 1792, v{OA}")
        e(f"v_lshrrev_b32 v{t+2}, 4, v{self.B_LANE}")
        e(f"v_lshl_add_u32 v{OA}, v{t+2}, 3, v{OA}")
        e("s_waitcnt vmcnt(0)")
        e("s_barrier")
        self.stamp(self.B_ST)
        if self.path == 'main':
            e(f"s_cmp_eq_u32 s{S_W}, 0")
            e("s_cbranch_scc0 L_nopoll")
            e(f"v_add_u32 v{self.B_FOUT}, 1, v{self.B_FOUT}")
            e("s_mov_b64 exec, 15")
            e(f"buffer_store_dword v{self.B_FOUT}, v{self.B_FAO}, {sr(S_WS,4)}, 0 offen sc1")
            e(f"s_mov_b32 s{S_CH}, 0")
            e.lab("L_poll")
            e(f"buffer_load_dword v{t+2}, v{self.B_FAI}, {sr(S_WS,4)}, 0 offen sc1")
            e(f"s_add_u32 s{S_CH}, s{S_CH}, 1")
            e("s_waitcnt vmcnt(0)")
            e(f"v_cmp_eq_u32 vcc, v{t+2}, v{self.B_FIN}")
            e("s_nop 0")
            e("s_cbranch_vccz L_polled")
            e(f"s_cmp_lt_u32 s{S_CH}, 0x20000")
            e("s_cbranch_scc1 L_poll")
            e.lab("L_polled")
            e("s_mov_b64 exec, -1")
            e.lab("L_nopoll")
        e("s_barrier")
        self.stamp(self.B_ST)
        e(f"s_mul_i32 s2, s{S_P}, {4*slot}")
        e(f"s_add_u32 s2, s2, s{S_T1}")
        for rb in (1, 2, 3):
            e(f"s_add_u32 s{S_T0}, s{S_P}, {rb}")
            e(f"s_and_b32 s{S_T0}, s{S_T0}, 3")
            e(f"s_mul_i32 s{S_T0}, s{S_T0}, {slot}")
            e(f"s_add_u32 s{S_T0}, s{S_T0}, s2")
            for cbk in range(ncbk):
                if self.f32:
                    if cbk:
                        e(f"s_add_u32 s{S_T0}, s{S_T0}, 4096")
                    for u in range(4):
                        e(f"buffer_load_dwordx4 {vr(64*cbk+16*u+4*rb,4)}, v{L16}, {sr(S_WS,4)}, s{S_T0} offen offset:{u*1024} {self.lfl}")
                else:
                    for u2 in range(2):
                        e(f"buffer_load_dwordx4 {vr(64*cbk+32*u2+4*rb,4)}, v{L16}, {sr(S_WS,4)}, s{S_T0} offen offset:{(2*cbk+u2)*1024} {self.lfl}")
        e(f"s_mul_i32 s2, s{S_B}, {64*1792}")
        e(f"s_mul_i32 s3, s{S_P}, {16*1792}")
        e(f"s_add_u32 s2, s2, s3")
        e(f"s_mul_i32 s3, s{S_BR}, 896")
        e(f"s_add_u32 s2, s2, s3")
        e(f"s_add_u32 s2, s2, s{S_WCOL}")
        e("s_waitcnt vmcnt(0)")
        for cbk in range(ncbk):
            for u in range(4):
                a = 64*cbk + 16*u
                for rb in (1, 2, 3):
                    if self.f32:
                        for r in range(4):
                            e(f"v_add_f32 v{a+r}, v{a+r}, v{a+4*rb+r}")
                    else:
                        src = 64*cbk + 32*(u >> 1) + 4*rb + 2*(u & 1)
                        for h in range(2):
                            e(f"v_lshlrev_b32 v{D+2*h}, 16, v{src+h}")
                            e(f"v_and_b32 v{D+2*h+1}, 0xffff0000, v{src+h}")
                        e(f"v_pk_add_f32 {vr(a,2)}, {vr(a,2)}, {vr(D,2)}")
                        e(f"v_pk_add_f32 {vr(a+2,2)}, {vr(a+2,2)}, {vr(D+2,2)}")
                e(f"v_cvt_pk_bf16_f32 v{a}, v{a}, v{a+1}")
                e(f"v_cvt_pk_bf16_f32 v{a+1}, v{a+2}, v{a+3}")
                e(f"buffer_store_dwordx2 {vr(a,2)}, v{OA}, {sr(S_OUT,4)}, s2 offen offset:{cbk*128+u*32} {self.ofl}".rstrip())

    def endB(self):
        e = self.e
        if self.fuse:
            self.epilogue_fused()
        else:
            self.epilogue_v1()
        if self.prof:
            e("s_waitcnt vmcnt(0)")
            self.stamp(self.B_ST)
            if self.path == 'main':
                e(f"s_cmp_eq_u32 s{S_W}, 0")
                e("s_cbranch_scc0 L_end")
                self.prof_store(self.B_ST, 1, 0)
        e("s_endpgm")

    def streamB(self):
        e = self.e
        e.lab("L_B")
        self.vmq = []
        self.deferred = []
        self.path = 'main'
        self.barB = {'main': [], 'w3': []}
        self.stamp(self.B_ST)
        self.setupB()
        for hs in range(4):
            for op in self.W_ops(('Q', 0, 0), hs):
                op()
        self.setupB2()
        if self.early:
            for xp in range(2, 7):
                for op in self.X_ops(xp, self.xloc(0, xp), "X0b", self.xnt):
                    op()
        self.stamp(self.B_ST)
        self.vmwait(["X0"])
        self.barB_("HB")
        steps = [(('Q', 0, h), hs) for h in range(7) for hs in range(4)]
        H0 = self.H_ops(0)
        if self.h1h:
            assert self.early and self.hdef is None and not self.hto
            H0 = H0 + self.H_ops(1)
        def per(i):
            if i % 2 == 1 and self.prof != 2:
                self.stamp(self.B_ST, f"h{i}")
            if i == 6 and self.early:
                assert "X0b" not in self.vmq
                return self.W_ops(*steps[i + 4]) + [lambda: self.barB_("HB2")]
            if i == 23 and self.h1h:
                return self.W_ops(*steps[i + 4]) + [lambda: self.barB_("HB3")]
            if i >= 24 and self.h1h:
                return H0[4*(i - 24):4*(i - 24) + 4]
            if i + 4 < 28:
                return self.W_ops(*steps[i + 4])
            if self.hdef is not None:
                tt = self.wo_touch(False)
                return (tt if self.hdef == i else []) + H0[2*(i - 24):2*(i - 24) + 2] + (tt if self.hdef == i + 1 == 28 else [])
            return (self.wo_touch(True) if i == 24 else []) + H0[2*(i - 24):2*(i - 24) + 2]
        def per2(i):
            return per(i) + (self.q_ops(0) if self.qov and i == 27 else [])
        self.run_steps(steps, per2)
        self.q_write((1,) if self.qov else (0, 1))
        for op in (self.wo_touch(False) if self.hdef is None else []):
            op()
        self.barB_("QB1")
        for n in range(9):
            self.periodB(n)
        e(f"s_cmp_eq_u32 s{S_W}, 3")
        e("s_cbranch_scc1 L_B3")
        save = list(self.vmq)
        save_bfl = set(self.bfl)
        assert not self.deferred
        self.barB['w3'] = list(self.barB['main'])
        for n in range(9, 33):
            self.periodB(n)
        self.endB()
        e.lab("L_B3")
        self.path = 'w3'
        self.vmq = save
        self.bfl = save_bfl
        self.wpre = None
        self.deferred = []
        for n in range(9, 33):
            self.periodB(n)
        self.endB()

    def reduce_kernel(self):
        e = self.e
        e(".globl red_kernel")
        e(".p2align 8")
        e(".type red_kernel,@function")
        e.lab("red_kernel")
        e("s_cmp_ge_u32 s2, 1792")
        e("s_cbranch_scc1 L_rend")
        e("s_load_dwordx2 s[4:5], s[0:1], 96")
        e("s_load_dwordx2 s[8:9], s[0:1], 80")
        e("s_mul_hi_u32 s12, s2, 153391690")
        e("s_mul_i32 s13, s12, 28")
        e("s_sub_u32 s13, s2, s13")
        e("s_and_b32 s14, s12, 1")
        e("s_lshr_b32 s15, s12, 1")
        e("s_lshl_b32 s16, s15, 3")
        e("s_lshl_b32 s17, s14, 2")
        e("s_add_u32 s16, s16, s17")
        e("s_lshl_b32 s16, s16, 17")
        e("s_lshl_b32 s17, s13, 12")
        e("s_add_u32 s16, s16, s17")
        e("v_lshlrev_b32 v1, 4, v0")
        e("s_mov_b32 s6, 67108864")
        e("s_mov_b32 s7, 0x20000")
        e("s_mov_b32 s10, 3670016")
        e("s_mov_b32 s11, 0x20000")
        e("s_waitcnt lgkmcnt(0)")
        for p in range(4):
            e(f"buffer_load_dwordx4 {vr(4+4*p,4)}, v1, s[4:7], s16 offen")
            e("s_add_u32 s16, s16, 131072")
        e("v_lshrrev_b32 v2, 6, v0")
        e("v_lshlrev_b32 v2, 4, v2")
        e("v_and_b32 v3, 15, v0")
        e("v_add_u32 v2, v2, v3")
        e("v_mul_u32_u24 v2, 1792, v2")
        e("v_bfe_u32 v3, v0, 4, 2")
        e("v_lshl_add_u32 v2, v3, 3, v2")
        e("s_mul_i32 s15, s15, 114688")
        e("s_mul_i32 s14, s14, 896")
        e("s_add_u32 s15, s15, s14")
        e("s_lshl_b32 s13, s13, 5")
        e("s_add_u32 s15, s15, s13")
        e("s_waitcnt vmcnt(0)")
        for r in range(4):
            e(f"v_add_f32 v{4+r}, v{4+r}, v{8+r}")
            e(f"v_add_f32 v{12+r}, v{12+r}, v{16+r}")
            e(f"v_add_f32 v{4+r}, v{4+r}, v{12+r}")
        e("v_cvt_pk_bf16_f32 v4, v4, v5")
        e("v_cvt_pk_bf16_f32 v5, v6, v7")
        e("buffer_store_dwordx2 v[4:5], v2, s[8:11], s15 offen")
        e.lab("L_rend")
        e("s_endpgm")

    def build(self):
        e = self.e
        out = [HEADER.rstrip()]
        if self.fuse:
            out.append(f"; @launch grid=(256,1,1) block=(512,1,1) lds={LDS_BYTES}")
        else:
            out.append(f"; @launch kernel={NAME}_kernel grid=(256,1,1) block=(512,1,1) lds={LDS_BYTES}")
            out.append(f"; @launch kernel=red_kernel grid=(1792,1,1) block=(256,1,1) lds=0")
        out.append('.amdgcn_target "amdgcn-amd-amdhsa--gfx950"')
        out.append(".text")
        out.append(f".globl {NAME}_kernel")
        out.append(".p2align 8")
        out.append(f".type {NAME}_kernel,@function")
        out.append(f"{NAME}_kernel:")
        self.prologue()
        self.streamB()
        self.path = None
        e.lab("L_A")
        self.streamA()
        e.lab("L_end")
        e("s_endpgm")
        if not self.fuse:
            self.reduce_kernel()
        assert self.barA == self.barB['main'] == self.barB['w3'], (self.barA, self.barB)
        if self.prof:
            out.insert(1, f"; NST {44 if self.prof == 4 else len(self.barA)+2} {len(self.namesB)} " + " ".join(self.namesB))
        out.append(e.text())
        out.append('.section .rodata,"a"')
        def kd(name, v, s, acc):
            return f""".p2align 6
.amdhsa_kernel {name}
  .amdhsa_next_free_vgpr {v}
  .amdhsa_next_free_sgpr {s}
  .amdhsa_accum_offset {acc}
  .amdhsa_group_segment_fixed_size 0
  .amdhsa_kernarg_size 104
  .amdhsa_user_sgpr_count 2
  .amdhsa_user_sgpr_kernarg_segment_ptr 1
  .amdhsa_system_sgpr_workgroup_id_x 1
.end_amdhsa_kernel"""
        out.append(kd(f"{NAME}_kernel", 256, 96, 176))
        if not self.fuse:
            out.append(kd("red_kernel", 24, 32, 24))
        return "\n".join(out) + "\n"


if __name__ == "__main__":
    kw = {}
    path = None
    for a in sys.argv[1:]:
        if "=" in a:
            k, v = a.split("=")
            kw[k] = eval(v)
        else:
            path = a
    txt = Gen(**kw).build()
    open(path or f"cdna_kernels/{NAME}.s", "w").write(txt)
    print("lines", txt.count("\n"), "bytes", len(txt))
```

```python
import sys, math

NAME = "concat_heads__gqa_block_cached__gqa_block_cached__near_ridge"
HEADER = open("cdna_kernels/%s.s.ref" % NAME).read().split("; Override launch")[0]

KV_SLOT = 33792
W_BASE = KV_SLOT + 5 * 8704
XO_BASE = W_BASE + 65536
X_SLOT = 8704
FLAG_BASE = 0x2800000
LDS_BYTES = XO_BASE + 2 * X_SLOT

S_X, S_K, S_V, S_WQ, S_WO, S_OUT, S_WS = 4, 8, 12, 16, 20, 24, 28
S_W = 60
S_B = 61
S_P = 62
S_BR = 63
S_T0, S_T1 = 64, 65
S_WLDS = 66
S_WCOL = 67
S_KLDS = 68
S_KG = 69
S_VG = 70
S_KR, S_VC, S_WR = 32, 36, 40
S_VLB = 77
S_XLDS = 71
S_XG = 72
S_HK, S_HV, S_KL, S_VL, S_HVC = 66, 67, 68, 69, 70
S_HS = 32
S_HM, S_HGS = 36, 37
S_C = 73
S_THR = 74
S_ITEM = 75
S_CH = 76
S_RET = 78
S_STAMP = 80
S_SIDX = 82
S_WG = 83
S_DBG = 88
S_JUNK = 92


S22 = [(0,0),(0,1),(1,1),(1,0),(2,0),(2,1),(3,1),(3,0),(3,2),(3,3),(2,3),(2,2),(1,2),(1,3),(0,3),(0,2)]


class Em:
    def __init__(self):
        self.l = []
    def __call__(self, s):
        self.l.append(s)
    def lab(self, s):
        self.l.append(s + ":")
    def text(self):
        return "\n".join(self.l)


def vr(a, n=1):
    return f"v{a}" if n == 1 else f"v[{a}:{a+n-1}]"
def ar(a, n=1):
    return f"a{a}" if n == 1 else f"a[{a}:{a+n-1}]"
def sr(a, n=1):
    return f"s{a}" if n == 1 else f"s[{a}:{a+n-1}]"


class Gen:
    def __init__(self, prof=False, prioA=1, npostQ=10, npostO=12, npre=6, fuse=True, pfl='sc1', f32=False, xnt=False, rin=0, nearlyQ=0, nearlyO=0, shift=1, lag=1, boost=2, hA=False, obf=26, obk=(1, 8), pre1=36, tailov=True, dropr=(0, 99), vt0=1, vto=False, xpromo=False, early=True, pre2=76, bto=False, hto=(), rot=True, s22=True, fre=False, cap=48, ctouch=True, qcnt=(2,2,2,4,4,4,4,4,2), o1cnt=(2,2,2,4,4,4,2,3,3,2,2,2), o2cnt=(2,4,4,4,4,4), obe=3, h1h=False, pre3=150, nolt=False, hdef=None, spread=True, pre_rd=True, qov=True, x2nt=True, wq0nt=False, tp1=20, lfl='sc1', ofl='', drop=0, hint=True, wo1A=56, dyn=True, prioB=1, noH=False, noW=False, noSM=False, noBm=False, noAm=False, tnt=False):
        self.e = Em()
        self.prof = prof
        self.prioA = prioA
        self.npostQ, self.npostO, self.npre, self.pfl, self.f32 = npostQ, npostO, npre, pfl, f32
        self.fuse = fuse
        self.s22 = s22
        self.fre, self.cap = fre, cap
        self.hdone = {}
        self.ctouch = ctouch
        self.qcnt, self.o1cnt, self.o2cnt, self.obe = qcnt, o1cnt, o2cnt, obe
        self.make_sched()
        self.h1h, self.pre3 = h1h, pre3
        self.nolt = nolt
        self.hdef, self.spread, self.pre_rd, self.qov = hdef, spread, pre_rd, qov
        if hdef is not None:
            vto, hto = False, (1,)
        self.hto, self.rot = hto, rot
        self.bto, self.x2nt, self.wq0nt, self.tp1 = bto, x2nt, wq0nt, tp1
        self.early, self.pre2 = early, pre2
        self.xpromo = xpromo
        self.vt0, self.vto, self.lfl, self.ofl = vt0, vto, lfl, ofl
        self.drop = drop
        self.dropr = dropr
        self.obk, self.pre1, self.tailov = obk, pre1, tailov
        self.dyn = dyn
        self.prioB = prioB if dyn else 0
        if dyn:
            prioA, boost = 2, (3 if boost else 0)
            self.prioA = 2
        self.wo1A = wo1A
        self.hA, self.obf, self.hint = hA, obf, hint
        self.lag, self.boost = lag, boost
        self.xnt, self.rin, self.nearlyQ, self.nearlyO, self.shift = xnt, rin, nearlyQ, nearlyO, shift
        self.noH, self.noW, self.noSM, self.noBm, self.noAm = noH, noW, noSM, noBm, noAm
        self.tfl = ' nt' if tnt else ''
        self.barA = []
        self.barB = {}
        self.st2 = {175: 174}
        self.namesB = []
        self.curn = -1
        self.wpre = None
        self.bfl = set()
        self.fine = (3, 4, 12, 13, 14, 29)

    def stamp(self, vreg, name="."):
        e = self.e
        if not self.prof:
            return
        if self.prof in (4, 5) and not name.startswith('@'):
            return
        if self.prof == 4 and getattr(self, 'path', None) is not None:
            return
        if self.prof == 5 and getattr(self, 'path', None) is None:
            return
        if self.prof == 6 and (getattr(self, 'path', None) is None or not (name.startswith('KV') or name in ('.', 'HB-1', 'QB1-1'))):
            return
        if self.prof == 7 and (getattr(self, 'path', None) is None or name not in ('.', 'KV00', 'KV8', 'KV16', 'KV24', 'KV32')):
            return
        if self.prof == 8 and (getattr(self, 'path', None) is None or not (name[0] in '.hHQ' or name in ('KV00', 'KV1', 'KV2', 'KV32'))):
            return
        if self.prof == 3 and (getattr(self, 'path', None) is None or not (name in ('.', 'HB-1', 'HB2-1', 'QB1-1', 'KV00', 'KV1', 'KV8', 'KV10', 'KV16', 'KV19', 'KV24', 'KV26', 'KV32', 'OB32'))):
            return
        if getattr(self, 'path', None) == 'main':
            self.namesB.append(name)
        e(f"s_memrealtime {sr(S_STAMP,2)}")
        e(f"s_memtime {sr(S_STAMP+4,2)}")
        e("s_waitcnt lgkmcnt(0)")
        e(f"s_mov_b32 m0, s{S_SIDX}")
        e(f"v_writelane_b32 v{vreg}, s{S_STAMP}, m0")
        e(f"v_writelane_b32 v{self.st2[vreg]}, s{S_STAMP+4}, m0")
        e(f"s_add_u32 s{S_SIDX}, s{S_SIDX}, 1")

    def prologue(self):
        e = self.e
        e("s_cmp_ge_u32 s2, 256")
        e("s_cbranch_scc1 L_end")
        e("s_load_dwordx16 s[32:47], s[0:1], 0")
        e("s_load_dwordx8 s[48:55], s[0:1], 64")
        e("s_load_dwordx2 s[56:57], s[0:1], 96")
        e(f"v_lshrrev_b32 v1, 6, v0")
        e(f"s_mov_b32 s{S_WG}, s2")
        e(f"s_and_b32 s{S_P}, s2, 3")
        e(f"v_readfirstlane_b32 s3, v1")
        e(f"s_lshr_b32 s{S_B}, s2, 3")
        e(f"s_bfe_u32 s{S_BR}, s2, 0x10002")
        e(f"s_mov_b32 s{S_SIDX}, 0")
        e("v_and_b32 v0, 63, v0")
        e(f"s_and_b32 s{S_W}, s3, 3")
        if self.ctouch:
            e(f"s_cmp_eq_u32 s3, 1")
            e("s_cbranch_scc0 L_noct")
            e(f"s_getpc_b64 s[58:59]")
            e.lab("L_pc")
            e(f"s_sub_u32 s58, s58, L_pc-{NAME}_kernel")
            e(f"s_subb_u32 s59, s59, 0")
            e(f"v_lshl_add_u32 v2, v0, 5, s{S_B}")
            e(f"v_lshlrev_b32 v2, 7, v2")
            e(f"v_min_u32 v2, L_end-{NAME}_kernel, v2")
            e(f"v_mov_b32 v3, s59")
            e(f"v_add_co_u32 v2, vcc, s58, v2")
            e("s_nop 1")
            e(f"v_addc_co_u32 v3, vcc, 0, v3, vcc")
            e(f"global_load_dword v4, v[2:3], off")
            e.lab("L_noct")
        e("s_waitcnt lgkmcnt(0)")
        e("s_bitcmp1_b32 s2, 2")
        e(f"s_cselect_b64 {sr(S_X,2)}, s[42:43], s[32:33]")
        e(f"s_cselect_b64 {sr(S_K,2)}, s[44:45], s[34:35]")
        e(f"s_cselect_b64 {sr(S_V,2)}, s[46:47], s[36:37]")
        e(f"s_cselect_b64 {sr(S_WQ,2)}, s[48:49], s[38:39]")
        e(f"s_cselect_b64 {sr(S_WO,2)}, s[50:51], s[40:41]")
        def addbase(srd, sreg):
            e(f"s_add_u32 s{srd}, s{srd}, s{sreg}")
            e(f"s_addc_u32 s{srd+1}, s{srd+1}, 0")
        e(f"s_mul_i32 s{S_T0}, s{S_B}, 57344")
        addbase(S_X, S_T0)
        e(f"s_lshl_b32 s{S_T0}, s{S_B}, 21")
        e(f"s_lshl_b32 s{S_T1}, s{S_P}, 19")
        e(f"s_add_u32 s{S_T0}, s{S_T0}, s{S_T1}")
        addbase(S_K, S_T0)
        addbase(S_V, S_T0)
        e(f"s_lshl_b32 s{S_T0}, s{S_P}, 11")
        addbase(S_WQ, S_T0)
        e(f"s_sub_u32 s{S_WQ+2}, 3670016, s{S_T0}")
        e(f"s_mul_i32 s{S_T0}, s{S_P}, 917504")
        addbase(S_WO, S_T0)
        e(f"s_mov_b32 s{S_X+2}, 57344")
        e(f"s_mov_b32 s{S_K+2}, 524288")
        e(f"s_mov_b32 s{S_V+2}, 524288")
        e(f"s_mov_b32 s{S_WO+2}, 917504")
        e(f"s_mov_b64 {sr(S_OUT,2)}, s[52:53]")
        e(f"s_mov_b32 s{S_OUT+2}, 3670016")
        e(f"s_mov_b64 {sr(S_WS,2)}, s[56:57]")
        e(f"s_mov_b32 s{S_WS+2}, 67108864")
        e(f"s_mov_b64 {sr(S_DBG,2)}, s[54:55]")
        e(f"s_mov_b32 s{S_DBG+2}, 256")
        for s in (S_X, S_K, S_V, S_WQ, S_WO, S_OUT, S_WS, S_DBG):
            e(f"s_mov_b32 s{s+3}, 0x20000")
        e("s_cmp_lt_u32 s3, 4")
        e("s_cbranch_scc1 L_A")

    def tr_addr(self, dst, base_imm=None, base_sreg=None, t0=None, t1=None, t2=None):
        e = self.e
        e(f"v_bfe_u32 v{t0}, v0, 2, 3")
        e(f"v_lshrrev_b32 v{t1}, 5, v0")
        e(f"v_lshlrev_b32 v{t1}, 10, v{t1}")
        e(f"v_lshl_add_u32 v{t1}, v{t0}, 7, v{t1}")
        e(f"v_and_b32 v{t2}, 3, v0")
        e(f"v_lshl_add_u32 v{t1}, v{t2}, 3, v{t1}")
        if base_imm:
            e(f"v_add_u32 v{t1}, {base_imm}, v{t1}")
        if base_sreg is not None:
            e(f"v_add_u32 v{t1}, s{base_sreg}, v{t1}")
        e(f"v_lshrrev_b32 v{t0}, 1, v{t0}")
        for u in range(4):
            e(f"v_xor_b32 v{t2}, {u}, v{t0}")
            e(f"v_lshl_add_u32 v{dst+u}, v{t2}, 5, v{t1}")

    A_P = 0
    A_S = 128
    A_T = 144
    A_KA = 160
    A_VA = 161
    A_OW = 165
    A_VX = 165
    A_VK = 166
    A_VV = 167
    A_NM = 168
    A_L = 170
    A_TS = 172
    A_ST = 175

    def barA_(self, name, times=1):
        if self.prof == 2:
            self.stamp(self.A_ST)
        self.e("s_barrier")
        self.barA.append(name)
        if self.prof != 2:
            self.stamp(self.A_ST)

    def k_read(self, f, slot, tile):
        s, mt = f >> 1, f & 1
        off = slot * KV_SLOT + tile * 16896 + mt * 8448 + s * 64
        self.e(f"ds_read_b128 {ar(64 + 4*(f % 4), 4)}, v{self.A_KA} offset:{off}")

    def v_read(self, f, slot, parts=(0, 1)):
        T, u = f >> 2, f & 3
        b = 64 + 4 * (f % 4)
        off = slot * KV_SLOT + T * 4096
        for t in parts:
            self.e(f"ds_read_b64_tr_b16 {ar(b+2*t,2)}, v{self.A_VA+u} offset:{off+2048*t}")

    def lane16(self, dst, jsh, qsh, base):
        e = self.e
        e(f"v_mbcnt_lo_u32_b32 v{dst}, -1, 0")
        e(f"v_mbcnt_hi_u32_b32 v{dst}, -1, v{dst}")
        e(f"s_lshr_b32 s{S_T0}, s{S_W}, 1")
        e(f"s_and_b32 s{S_T1}, s{S_W}, 1")
        e(f"s_lshl_b32 s{S_T0}, s{S_T0}, {jsh}")
        e(f"s_lshl_b32 s{S_T1}, s{S_T1}, {qsh}")
        e(f"s_add_u32 s{S_T0}, s{S_T0}, s{S_T1}")
        e(f"s_add_u32 s{S_T0}, s{S_T0}, {base}")
        e(f"v_lshl_add_u32 v{dst}, v{dst}, 4, s{S_T0}")

    def q_read(self):
        e = self.e
        qa = self.A_TS
        self.lane16(qa, 15, 13, W_BASE)
        for s in range(8):
            for cb in range(2):
                off = (s >> 2) * 16384 + cb * 4096 + (s & 3) * 1024
                e(f"ds_read_b128 {ar(8*s+4*cb,4)}, v{qa} offset:{off}")

    def dma_voffs(self, VX, VK, VV, VWO, VWQ, a):
        e = self.e
        b, c, d = a + 1, a + 2, a + 3
        e(f"v_lshrrev_b32 v{a}, 3, v0")
        e(f"v_bfe_u32 v{b}, v0, 4, 2")
        e(f"v_and_b32 v{c}, 7, v0")
        e(f"v_xor_b32 v{VX}, v{c}, v{b}")
        e(f"v_lshlrev_b32 v{VX}, 4, v{VX}")
        e(f"v_mul_u32_u24 v{d}, 896, v{a}")
        e(f"v_add_u32 v{VX}, v{VX}, v{d}")
        yield
        e(f"v_lshlrev_b32 v{b}, 1, v{b}")
        e(f"v_xor_b32 v{c}, v{c}, v{b}")
        e(f"v_lshlrev_b32 v{c}, 4, v{c}")
        if VWO is not None:
            e(f"v_add_u32 v{VWO}, v{c}, v{d}")
        if VV is not None:
            e(f"v_lshl_add_u32 v{VV}, v{a}, 11, v{c}")
        e(f"v_lshrrev_b32 v{b}, 5, v0")
        if VWQ is not None:
            e(f"v_and_b32 v{d}, 3, v{a}")
            e(f"v_lshl_add_u32 v{VWQ}, v{d}, 13, v{c}")
            e(f"v_lshl_add_u32 v{VWQ}, v{b}, 16, v{VWQ}")
        e(f"v_and_b32 v{c}, 31, v0")
        e(f"v_xor_b32 v{c}, v{c}, v{b}")
        e(f"v_lshlrev_b32 v{c}, 4, v{c}")
        e(f"v_lshl_add_u32 v{VK}, v{b}, 11, v{c}")
        yield

    def A_Hops(self, kind, slot, gs, gimm):
        e = self.e
        ops = []
        if self.noH or not self.hA:
            return [lambda pre: None]*8
        for k in range(8):
            def op(pre, k=k):
                if kind == 'K':
                    if pre:
                        e(f"s_add_u32 m0, s{S_KL}, {slot*KV_SLOT + k*1056}")
                        e(f"s_add_u32 s{S_T0}, s{gs}, {gimm + k*4096}")
                    else:
                        e(f"buffer_load_dwordx4 v{self.A_VK}, {sr(S_K,4)}, s{S_T0} offen nt lds")
                elif kind == 'V':
                    if pre:
                        if k % 4 == 0:
                            e(f"s_add_u32 m0, s{S_VL}, {slot*KV_SLOT + k*1024}")
                        e(f"s_add_u32 s{S_T0}, s{gs}, {gimm + k*16384 - (k % 4)*1024}")
                    else:
                        e(f"buffer_load_dwordx4 v{self.A_VV}, {sr(S_V,4)}, s{S_T0} offen offset:{(k%4)*1024} nt lds")
                else:
                    if pre:
                        if k:
                            e(f"s_add_u32 m0, m0, s{S_HM}")
                            e(f"s_add_u32 s{S_T1}, s{S_T1}, s{S_HGS}")
                    else:
                        e(f"buffer_load_dwordx4 v{self.A_NM}, {sr(S_HS,4)}, s{S_T1} offen nt lds")
            ops.append(op)
        return ops

    def xlane(self, op, x, t):
        e = self.e
        e(f"v_mov_b32 v{t}, v{x}")
        e("s_nop 1")
        e(f"v_permlane32_swap_b32 v{t}, v{x}")
        e("s_nop 1")
        e(f"{op} v{x}, v{x}, v{t}")
        e(f"v_mov_b32 v{t}, v{x}")
        e("s_nop 1")
        e(f"v_permlane16_swap_b32 v{t}, v{x}")
        e("s_nop 1")
        e(f"{op} v{x}, v{x}, v{t}")

    def tile_max(self, cb, dst, t):
        e = self.e
        S = self.A_S
        r = [S + 4*cb + k for k in range(4)] + [S + 8 + 4*cb + k for k in range(4)]
        e(f"v_max3_f32 v{dst}, v{r[0]}, v{r[1]}, v{r[2]}")
        e(f"v_max3_f32 v{dst}, v{dst}, v{r[3]}, v{r[4]}")
        e(f"v_max3_f32 v{dst}, v{dst}, v{r[5]}, v{r[6]}")
        e(f"v_max_f32 v{dst}, v{dst}, v{r[7]}")
        self.xlane("v_max_f32", dst, t)

    def softmax(self, T):
        e = self.e
        S, TT, P = self.A_S, self.A_T, self.A_P
        if T == 0:
            for cb in range(2):
                self.tile_max(cb, TT + cb, TT + 2)
                e(f"v_mul_f32 v{self.A_NM+cb}, s{S_C}, v{TT+cb}")
                e(f"v_sub_f32 v{self.A_NM+cb}, 0, v{self.A_NM+cb}")
                e(f"v_mov_b32 v{self.A_L+cb}, 0")
        e.lab(f"L_sm{T}")
        groups = [(0, 0), (0, 1), (1, 0), (1, 1)]
        def fma(gi):
            mt, cb = groups[gi]
            for r in range(4):
                e(f"v_fma_f32 v{TT+4*gi+r}, v{S+8*mt+4*cb+r}, s{S_C}, v{self.A_NM+cb}")
        def exp(gi):
            for r in range(4):
                e(f"v_exp_f32 v{TT+4*gi+r}, v{TT+4*gi+r}")
        def fin(gi):
            mt, cb = groups[gi]
            t = TT + 4*gi
            ts = self.A_TS + cb
            if mt == 0:
                e(f"v_add_f32 v{ts}, v{t}, v{t+1}")
            else:
                e(f"v_add_f32 v{ts}, v{ts}, v{t}")
                e(f"v_add_f32 v{ts}, v{ts}, v{t+1}")
            e(f"v_cvt_pk_bf16_f32 v{P+8*T+4*cb+2*mt}, v{t}, v{t+1}")
            e(f"v_add_f32 v{ts}, v{ts}, v{t+2}")
            e(f"v_cvt_pk_bf16_f32 v{P+8*T+4*cb+2*mt+1}, v{t+2}, v{t+3}")
            e(f"v_add_f32 v{ts}, v{ts}, v{t+3}")
        fma(0); fma(1); exp(0); fma(2); exp(1); fma(3); fin(0); exp(2); fin(1); exp(3); fin(2); fin(3)
        if T > 0:
            e(f"v_max_f32 v{TT}, v{self.A_TS}, v{self.A_TS+1}")
            e(f"v_cmp_lt_f32 vcc, s{S_THR}, v{TT}")
            e("s_nop 0")
            e(f"s_cbranch_vccz L_ok{T}")
            e(f"s_call_b64 {sr(S_RET,2)}, L_rescale")
            e(f"s_branch L_sm{T}")
            e.lab(f"L_ok{T}")
            e(f"s_mov_b32 s{S_THR}, 0x47800000")
        for cb in range(2):
            e(f"v_add_f32 v{self.A_L+cb}, v{self.A_L+cb}, v{self.A_TS+cb}")

    def rescale_routine(self):
        e = self.e
        TT, P = self.A_T, self.A_P
        e.lab("L_rescale")
        for cb in range(2):
            self.tile_max(cb, TT, TT + 2)
            e(f"v_fma_f32 v{TT}, v{TT}, s{S_C}, v{self.A_NM+cb}")
            e(f"v_ceil_f32 v{TT}, v{TT}")
            e(f"v_max_f32 v{TT}, 0, v{TT}")
            e(f"v_sub_f32 v{self.A_NM+cb}, v{self.A_NM+cb}, v{TT}")
            e(f"v_min_f32 v{TT}, 0x43800000, v{TT}")
            e(f"v_cvt_i32_f32 v{TT}, v{TT}")
            e(f"v_sub_u32 v{TT}, 0, v{TT}")
            e(f"v_ldexp_f32 v{self.A_L+cb}, v{self.A_L+cb}, v{TT}")
            for T in range(16):
                for k in range(4):
                    r = P + 8*T + 4*cb + k
                    e(f"v_lshlrev_b32 v{TT+4}, 16, v{r}")
                    e(f"v_and_b32 v{TT+5}, 0xffff0000, v{r}")
                    e(f"v_ldexp_f32 v{TT+4}, v{TT+4}, v{TT}")
                    e(f"v_ldexp_f32 v{TT+5}, v{TT+5}, v{TT}")
                    e(f"v_cvt_pk_bf16_f32 v{r}, v{TT+4}, v{TT+5}")
        e(f"s_mov_b32 s{S_THR}, 0x7f800000")
        e(f"s_setpc_b64 {sr(S_RET,2)}")

    def streamA(self):
        e = self.e
        KA, VA, OW = self.A_KA, self.A_VA, self.A_OW
        self.stamp(self.A_ST)
        if self.prioA:
            e(f"s_setprio {self.prioA}")
        t = self.A_T
        e(f"v_and_b32 v{t+12}, 31, v0")
        e(f"v_min_u32 v{t+12}, 27, v{t+12}")
        e(f"s_mul_i32 s{S_T0}, s{S_W}, 28")
        e(f"v_add_u32 v{t+12}, s{S_T0}, v{t+12}")
        if self.vt0:
            e(f"v_lshlrev_b32 v{t+13}, 15, v{t+12}")
            if self.vt0 == 3:
                e(f"v_lshrrev_b32 v{t+14}, 5, v0")
                e(f"v_lshl_add_u32 v{t+13}, v{t+14}, 10, v{t+13}")
            e(f"s_lshr_b32 s{S_T0}, s{S_B}, 3")
            e(f"s_lshl_b32 s{S_T0}, s{S_T0}, 13")
            e(f"s_and_b32 s{S_T1}, s{S_B}, 7")
            e(f"s_lshl_b32 s{S_T1}, s{S_T1}, 7")
            e(f"s_add_u32 s{S_T0}, s{S_T0}, s{S_T1}")
            e(f"buffer_load_dword v{t+14}, v{t+13}, {sr(S_WQ,4)}, s{S_T0} offen{' nt' if self.vt0 == 2 else ''}")
        else:
            self.stouch_wq(0, 0, 56, 1)
        a, b, c = t + 4, t + 5, t + 6
        e(f"v_bfe_u32 v{a}, v0, 1, 3")
        e(f"v_mul_u32_u24 v{KA}, 1056, v{a}")
        e(f"v_and_b32 v{a}, 1, v0")
        e(f"v_lshl_add_u32 v{KA}, v{a}, 9, v{KA}")
        e(f"v_lshrrev_b32 v{b}, 4, v0")
        e(f"v_xor_b32 v{b}, v{b}, v{a}")
        e(f"v_lshl_add_u32 v{KA}, v{b}, 4, v{KA}")
        self.tr_addr(VA, t0=a, t1=b, t2=c)
        for _ in self.dma_voffs(self.A_VX, self.A_VK, self.A_VV, None, None, t + 8):
            pass
        e(f"s_lshl_b32 s{S_HK}, s{S_W}, 15")
        e(f"s_lshl_b32 s{S_HV}, s{S_W}, 9")
        e(f"s_mul_i32 s{S_KL}, s{S_W}, {8*1056}")
        e(f"s_lshl_b32 s{S_VL}, s{S_W}, 13")
        e(f"s_mul_i32 s{S_XLDS}, s{S_W}, {2*1088}")
        e(f"s_mul_i32 s{S_XG}, s{S_W}, {16*896}")
        e(f"s_mov_b32 s{S_C}, 0x3db8aa3b")
        e(f"s_mov_b32 s{S_THR}, 0x47800000")
        e(f"s_mov_b32 s{S_ITEM}, 0")
        segs = [('q', 56)] if self.vt0 != 3 else []
        if 0 not in self.hto:
            segs.append(('o0', 56))
        if not self.vto and not self.bto and 1 not in self.hto:
            segs.append(('o1', self.wo1A))
        def touch_range(a, b):
            pos = 0
            for kind, n in segs:
                lo, hi = max(a - pos, 0), min(b - pos, n)
                if lo < hi:
                    if kind == 'q':
                        self.stouch_wq(1, lo, hi, 1)
                    else:
                        self.stouch_wo(int(kind[1]), lo, hi)
                pos += n
        touch_range(0, self.pre1)
        self.barA_("HB")
        if self.early:
            touch_range(self.pre1, self.pre2)
            self.barA_("HB2")
            if self.h1h:
                touch_range(self.pre2, self.pre3)
                self.barA_("HB3")
                touch_range(self.pre3, 999)
            else:
                touch_range(self.pre2, 999)
        else:
            touch_range(self.pre1, 999)
        e("s_waitcnt vmcnt(0)")
        if self.xpromo:
            e(f"v_lshlrev_b32 v{t+13}, 7, v0")
            e(f"s_lshl_b32 s{S_T0}, s{S_W}, 13")
            e(f"buffer_load_dword v{t+14}, v{t+13}, {sr(S_X,4)}, s{S_T0} offen")
            e(f"s_add_u32 s{S_T0}, s{S_T0}, 32768")
            e(f"buffer_load_dword v{t+15}, v{t+13}, {sr(S_X,4)}, s{S_T0} offen")
            e("s_waitcnt vmcnt(0)")
        e(f"v_lshlrev_b32 v{self.A_VK}, 12, v{t+12}")
        e(f"s_lshl_b32 s{S_HK}, s{S_B}, 7")
        e(f"s_add_u32 s{S_HK}, s{S_HK}, 458752")
        self.barA_("QB1")
        if self.vto:
            e(f"buffer_load_dword v{self.A_VV}, v{self.A_VK}, {sr(S_WO,4)}, s{S_HK} offen nt")
        self.q_read()
        e("s_waitcnt lgkmcnt(0)")
        self.barA_("KV0")
        for f in range(3):
            self.k_read(f, 0, 0)
        barA_pre = list(self.barA)
        self.barA = []
        e.lab("L_item")
        if self.dyn:
            e(f"s_setprio {self.prioA}")
        S = self.A_S
        for T in range(16):
            slot, tile = (T >> 1) & 1, T & 1
            ph = T >> 1
            hops = []
            if T == 2 and self.vto:
                e(f"s_cmp_eq_u32 s{S_ITEM}, 0")
                e("s_cbranch_scc0 L_nopromo")
                e(f"buffer_load_dword v{self.A_VV}, v{self.A_VK}, {sr(S_WO,4)}, s{S_HK} offen")
                e.lab("L_nopromo")
            if tile == 0:
                hops = self.A_Hops('K', slot ^ 1, S_HK, ((ph + 1) >> 2)*131072 + ((ph + 1) & 3)*512) if ph < 7 else self.A_Hops('V', 0, S_HV, 0)
            e("s_waitcnt lgkmcnt(2)" if T else ("s_waitcnt lgkmcnt(2)"))
            for f in range(16):
                s, mt = f >> 1, f & 1
                c0 = mt if self.s22 else 0
                d0, d1 = vr(S + 8*mt + 4*c0, 4), vr(S + 8*mt + 4*(1 - c0), 4)
                if hops and f % 2 == 0:
                    hops[f >> 1](True)
                if not self.noAm:
                    e(f"v_mfma_f32_16x16x32_bf16 {d0}, {ar(64+4*(f%4),4)}, {ar(8*s+4*c0,4)}, {d0 if s else 0}")
                if f + 3 < 16:
                    self.k_read(f + 3, slot, tile)
                elif tile == 0:
                    self.k_read(f + 3 - 16, slot, 1)
                if not self.noAm:
                    e(f"v_mfma_f32_16x16x32_bf16 {d1}, {ar(64+4*(f%4),4)}, {ar(8*s+4*(1-c0),4)}, {d1 if s else 0}")
                if hops and f % 2 == 0:
                    hops[f >> 1](False)
                if (T, f) == ((0, self.obe) if self.ob.get(16) == 'early' else self.obk) and 16 in self.ob:
                    e(f"s_cmp_eq_u32 s{S_ITEM}, 0")
                    e("s_cbranch_scc1 L_nobk")
                    e("s_barrier")
                    self.stamp(self.A_ST)
                    e.lab("L_nobk")
                if f < 15:
                    n_out = 2 if (tile == 0 or f + 3 < 16) else 14 - f
                    if tile == 1 and f == 14:
                        e("s_waitcnt lgkmcnt(0)")
                        if self.fre:
                            e("s_barrier")
                            self.barA.append("FR")
                        self.barA_("KV")
                        for g in range(3):
                            if T < 15:
                                self.k_read(g, slot ^ 1, 0)
                            else:
                                self.v_read(g, 0)
                    else:
                        e(f"s_waitcnt lgkmcnt({n_out})")
            if tile == 0 and ph < 7 and self.hA:
                e(f"s_cmp_eq_u32 s{S_ITEM}, 0")
                e(f"s_cbranch_scc0 L_nox{ph}")
                for k in range(2):
                    e(f"s_add_u32 m0, s{S_XLDS}, {self.xloc(1, ph) + k*1088}")
                    e(f"s_add_u32 s{S_T0}, s{S_XG}, {k*7168 + ph*128}")
                    e(f"buffer_load_dwordx4 v{self.A_VX}, {sr(S_X,4)}, s{S_T0} offen lds")
                if ph == 0:
                    e("s_barrier")
                    self.stamp(self.A_ST)
                e.lab(f"L_nox{ph}")
            if self.dyn:
                e("s_setprio 0")
            e("s_nop 1" if T else "s_nop 7")
            if not self.noSM:
                self.softmax(T)
            if self.dyn and T < 15:
                e(f"s_setprio {self.prioA}")
        TT = self.A_T
        for cb in range(2):
            self.xlane("v_add_f32", self.A_L + cb, TT)
            e(f"v_rcp_f32 v{self.A_L+cb}, v{self.A_L+cb}")
        self.lane16(OW, 13, 11, XO_BASE)
        barA_K = list(self.barA)
        self.barA = []
        e(f"s_mov_b32 s{S_CH}, 0")
        e(f"s_mov_b32 s{S_HVC}, s{S_HV}")
        e.lab("L_chunk")
        if self.dyn:
            e(f"s_setprio {self.prioA}")
        O = self.A_S
        for half in range(2):
            if half == 1:
                e(f"s_or_b32 s{S_T0}, s{S_ITEM}, s{S_CH}")
                e(f"s_cbranch_scc1 L_noq2")
                self.q_read()
                e.lab("L_noq2")
                if self.hA:
                    e(f"s_movk_i32 s{S_HM}, 1024")
                    e(f"s_movk_i32 s{S_HGS}, 16384")
                    e(f"s_cmp_eq_u32 s{S_CH}, 3")
                    e(f"s_cselect_b64 {sr(S_HS,2)}, {sr(S_K,2)}, {sr(S_V,2)}")
                    e(f"s_cselect_b32 s{S_HM}, 1056, s{S_HM}")
                    e(f"s_cselect_b32 s{S_HGS}, 4096, s{S_HGS}")
                    e(f"s_cselect_b32 m0, s{S_KL}, s{S_VL}")
                    e(f"s_cselect_b64 vcc, -1, 0")
                    e(f"s_add_u32 s{S_T0}, s{S_HK}, 262144")
                    e(f"s_add_u32 s{S_T1}, s{S_HVC}, 128")
                    e(f"v_cndmask_b32 v{self.A_NM}, v{self.A_VV}, v{self.A_VK}, vcc")
                    e(f"s_cmp_eq_u32 s{S_CH}, 3")
                    e(f"s_cselect_b32 s{S_T1}, s{S_T0}, s{S_T1}")
                    e(f"s_mov_b32 s{S_HS+2}, 524288")
                    e(f"s_mov_b32 s{S_HS+3}, 0x20000")
                hops = self.A_Hops('G', 0, None, None)
            else:
                hops = self.A_Hops('V', 1, S_HVC, 131072)
            e("s_waitcnt lgkmcnt(4)")
            for f in range(32):
                T, u = f >> 2, f & 3
                Tg = 8*half + T
                c0 = u & 1 if self.s22 else 0
                d0, d1 = vr(O + 8*u + 4*c0, 4), vr(O + 8*u + 4*(1 - c0), 4)
                if f < 16 and f % 2 == 0:
                    hops[f >> 1](True)
                if not self.noAm:
                    e(f"v_mfma_f32_16x16x32_bf16 {d0}, {ar(64+4*(f%4),4)}, {vr(self.A_P+8*Tg+4*c0,4)}, {d0 if Tg else 0}")
                if f + 3 < 32:
                    self.v_read(f + 3, half, (0,))
                if not self.noAm:
                    e(f"v_mfma_f32_16x16x32_bf16 {d1}, {ar(64+4*(f%4),4)}, {vr(self.A_P+8*Tg+4*(1-c0),4)}, {d1 if Tg else 0}")
                if f + 3 < 32:
                    self.v_read(f + 3, half, (1,))
                if f < 16 and f % 2 == 0:
                    hops[f >> 1](False)
                for kind, pos in (('early', self.obe), ('late', self.obf)):
                    mask = sum(1 << (4*it + cc) for it in range(2) for cc in range(1, 4) if self.ob.get(8 + 2*cc + 16*it) == kind)
                    if half == 0 and f == pos and mask:
                        e(f"s_lshl2_add_u32 s{S_T0}, s{S_ITEM}, s{S_CH}")
                        e(f"s_bitcmp1_b32 {mask}, s{S_T0}")
                        e(f"s_cbranch_scc0 L_nob{kind}")
                        e("s_barrier")
                        self.stamp(self.A_ST)
                        e.lab(f"L_nob{kind}")
                if half == 1 and f == (15 if self.hA else 4):
                    e(f"s_cmp_eq_u32 s{S_CH}, 0")
                    e("s_cbranch_scc0 L_nqb")
                    e("s_barrier")
                    self.stamp(self.A_ST)
                    e.lab("L_nqb")
                if f == 30:
                    e("s_waitcnt lgkmcnt(0)")
                    if self.fre:
                        e("s_barrier")
                        self.barA.append("FR")
                    self.barA_("KV")
                    self.stamp(self.A_ST, '@')
                    if half == 0:
                        for g in range(3):
                            self.v_read(g, 1)
                    else:
                        e(f"s_cmp_eq_u32 s{S_CH}, 3")
                        e("s_cbranch_scc1 L_nk")
                        for g in range(3):
                            self.v_read(g, 0)
                        e("s_branch L_nk2")
                        e.lab("L_nk")
                        for g in range(3):
                            self.k_read(g, 0, 0)
                        e.lab("L_nk2")
                elif f < 30:
                    e(f"s_waitcnt lgkmcnt({2*min(2, 30 - f)})")
        if self.dyn:
            e("s_setprio 0")
        e("s_nop 7")
        for u in range(4):
            for cb in range(2):
                for r in range(4):
                    x = O + 8*u + 4*cb + r
                    e(f"v_mul_f32 v{x}, v{x}, v{self.A_L+cb}")
        for u2 in range(2):
            for cb in range(2):
                d = O + 16*u2 + 4*cb
                s1 = d + 8
                e(f"v_cvt_pk_bf16_f32 v{d}, v{d}, v{d+1}")
                e(f"v_cvt_pk_bf16_f32 v{d+1}, v{d+2}, v{d+3}")
                e(f"v_cvt_pk_bf16_f32 v{d+2}, v{s1}, v{s1+1}")
                e(f"v_cvt_pk_bf16_f32 v{d+3}, v{s1+2}, v{s1+3}")
                e(f"ds_write_b128 v{OW}, {vr(d,4)} offset:{u2*4096 + cb*1024}")
        barA_C = list(self.barA)
        e(f"s_add_u32 s{S_HVC}, s{S_HVC}, 128")
        e(f"s_add_u32 s{S_CH}, s{S_CH}, 1")
        e(f"s_cmp_lt_u32 s{S_CH}, 4")
        e("s_cbranch_scc1 L_chunk")
        e(f"s_add_u32 s{S_HK}, s{S_HK}, 262144")
        e(f"s_add_u32 s{S_HV}, s{S_HV}, 262144")
        e(f"s_add_u32 s{S_ITEM}, s{S_ITEM}, 1")
        e(f"s_cmp_lt_u32 s{S_ITEM}, 2")
        e("s_cbranch_scc1 L_item")
        seq = list(barA_pre)
        for it in range(2):
            seq += (["HX"] if it == 0 and self.hA else []) + (["OB"] if it == 1 and 16 in self.ob else []) + barA_K
            for c in range(4):
                x = list(barA_C)
                if c == 0:
                    x.insert(2 if self.fre else 1, "QB2")
                elif 8 + 2*c + 16*it in self.ob:
                    x.insert(0, "OB")
                seq += x
        e("s_waitcnt lgkmcnt(0)")
        self.barA_("OB")
        self.barA = seq + ["OB"]
        if self.prof:
            self.stamp(self.A_ST)
            e(f"s_cmp_eq_u32 s{S_W}, 0")
            e("s_cbranch_scc0 L_end")
            self.prof_store(self.A_ST, 0, 0)
        e("s_endpgm")
        self.rescale_routine()

    def prof_store(self, vreg, role, tmp):
        e = self.e
        e(f"v_mbcnt_lo_u32_b32 v{tmp}, -1, 0")
        e(f"v_mbcnt_hi_u32_b32 v{tmp}, -1, v{tmp}")
        e(f"v_lshlrev_b32 v{tmp}, 2, v{tmp}")
        e(f"s_lshl_b32 s{S_T0}, s{S_WG}, 9")
        e(f"s_add_u32 s{S_T0}, s{S_T0}, {0x3000000 + role*256}")
        e(f"buffer_store_dword v{vreg}, v{tmp}, {sr(S_WS,4)}, s{S_T0} offen")
        e(f"s_add_u32 s{S_T0}, s{S_T0}, 0x200000")
        e(f"buffer_store_dword v{self.st2[vreg]}, v{tmp}, {sr(S_WS,4)}, s{S_T0} offen")
        e("s_waitcnt vmcnt(0)")

    def stouch_wq(self, item, k0, k1, step):
        e = self.e
        if k0 >= k1:
            return
        e(f"s_lshl_b32 s{S_T0}, s{S_W}, 14")
        e(f"s_lshr_b32 s{S_T1}, s{S_B}, 4")
        e(f"s_lshl_b32 s{S_T1}, s{S_T1}, 13")
        e(f"s_add_u32 s{S_T0}, s{S_T0}, s{S_T1}")
        e(f"s_and_b32 s{S_T1}, s{S_B}, 15")
        e(f"s_lshl_b32 s{S_T1}, s{S_T1}, 6")
        e(f"s_add_u32 s{S_T0}, s{S_T0}, s{S_T1}")
        cur = 0
        for k in range(k0, k1, step):
            if k // 8 != cur:
                e(f"s_add_u32 s{S_T0}, s{S_T0}, {(k // 8 - cur)*8*65536}")
                cur = k // 8
            e(f"s_buffer_load_dword s{S_JUNK + k % 4}, {sr(S_WQ,4)}, s{S_T0} offset:{(k % 8)*65536 + item*1024}")

    def stouch_wo(self, item, k0, k1):
        e = self.e
        e(f"s_lshl_b32 s{S_T0}, s{S_W}, 11")
        e(f"s_lshl_b32 s{S_T1}, s{S_B}, 6")
        e(f"s_add_u32 s{S_T0}, s{S_T0}, s{S_T1}")
        for k in range(k0, k1):
            e(f"s_buffer_load_dword s{S_JUNK + k % 4}, {sr(S_WO,4)}, s{S_T0} offset:{k*8192 + item*458752}")

    B_OR = 128
    B_TMP = 132
    B_BF = 32
    B_WT = 160
    B_XR = 164
    B_XR0 = 165
    B_VWQ = 166
    B_VWO = 167
    B_VV = 168
    B_VK = 169
    B_VX = 170
    B_QW = 171
    B_LANE = 172
    B_TA, B_TD = 166, 167
    B_FIN, B_FOUT, B_FAI, B_FAO = 148, 149, 150, 151
    B_VWQ4 = 152
    B_VWO4 = 156
    B_ST = 175

    def setupB(self):
        e = self.e
        e(f"s_mul_i32 s{S_XLDS}, s{S_W}, {2*1088}")
        e(f"s_mul_i32 s{S_XG}, s{S_W}, {16*896}")
        g = self.dma_voffs(self.B_VX, self.B_VK, self.B_VV, self.B_VWO4, self.B_VWQ4, self.B_TMP)
        next(g)
        e(f"v_and_b32 v{self.B_FAO}, 3, v0")
        e(f"v_lshlrev_b32 v{self.B_FAI}, 2, v{self.B_FAO}")
        e(f"s_lshl_b32 s{S_T0}, s{S_WG}, 7")
        e(f"s_add_u32 s{S_T0}, s{S_T0}, {FLAG_BASE}")
        e(f"v_add_u32 v{self.B_FAI}, s{S_T0}, v{self.B_FAI}")
        e(f"s_mul_i32 s{S_T1}, s{S_P}, 124")
        e(f"s_sub_u32 s{S_T0}, s{S_T0}, s{S_T1}")
        e(f"v_lshl_add_u32 v{self.B_FAO}, v{self.B_FAO}, 7, s{S_T0}")
        e(f"buffer_load_dword v{self.B_FIN}, v{self.B_FAI}, {sr(S_WS,4)}, 0 offen sc1")
        e(f"buffer_load_dword v{self.B_FOUT}, v{self.B_FAO}, {sr(S_WS,4)}, 0 offen sc1")
        self.vmq += ["F", "F"]
        for xp in range(2 if self.early else 7):
            for op in self.X_ops(xp, self.xloc(0, xp), "X0", self.xnt):
                op()
        e(f"s_lshl_b32 s{S_WLDS}, s{S_W}, 14")
        e(f"s_add_u32 s{S_WLDS}, s{S_WLDS}, {W_BASE}")
        e(f"s_lshl_b32 s{S_WCOL}, s{S_W}, 8")
        e(f"s_mul_i32 s{S_KLDS}, s{S_W}, {8*1056}")
        e(f"s_lshl_b32 s{S_KG}, s{S_W}, 15")
        r1, r2 = 44, 45
        if self.rot:
            e(f"s_and_b32 s{r1}, s{S_B}, 3")
            e(f"s_bfe_u32 s{r2}, s{S_B}, 0x20002")
        else:
            e(f"s_mov_b32 s{r1}, 0")
            e(f"s_mov_b32 s{r2}, 0")
        e(f"s_add_u32 s{S_VG}, s{S_W}, s{r1}")
        e(f"s_and_b32 s{S_VG}, s{S_VG}, 3")
        e(f"s_lshl_b32 s{S_VG}, s{S_VG}, 9")
        for r in range(4):
            e(f"s_add_u32 s{S_T0}, s{r1}, {r}")
            e(f"s_and_b32 s{S_T0}, s{S_T0}, 3")
            e(f"s_lshl_b32 s{S_T0}, s{S_T0}, 9")
            e(f"s_add_u32 s{S_KR+r}, s{S_KG}, s{S_T0}")
            e(f"s_add_u32 s{S_T0}, s{r2}, {r}")
            e(f"s_and_b32 s{S_T0}, s{S_T0}, 3")
            e(f"s_lshl_b32 s{S_T1}, s{S_T0}, 7")
            e(f"s_add_u32 s{S_VC+r}, s{S_VG}, s{S_T1}")
            e(f"s_mul_i32 s{S_T1}, s{S_T0}, {64*896}")
            e(f"s_add_u32 s{S_WR+r}, s{S_WCOL}, s{S_T1}")
        e(f"s_lshl_b32 s{S_VLB}, s{S_W}, 13")
        next(g)
        for pc in range(1, 4):
            e(f"v_add_u32 v{self.B_VWQ4+pc}, {(16*(pc & 1) + 4*(pc >> 1))*8192 - 1024*pc}, v{self.B_VWQ4}")

    def setupB2(self):
        e = self.e
        a, b, c = self.B_TMP, self.B_TMP + 1, self.B_TMP + 2
        self.tr_addr(self.B_WT, base_sreg=S_WLDS, t0=a, t1=b, t2=c)
        e(f"v_bfe_u32 v{a}, v0, 3, 1")
        e(f"v_mul_u32_u24 v{self.B_XR0}, 1088, v{a}")
        e(f"v_and_b32 v{a}, 7, v0")
        e(f"v_lshl_add_u32 v{self.B_XR0}, v{a}, 7, v{self.B_XR0}")
        e(f"v_lshrrev_b32 v{a}, 1, v{a}")
        e(f"v_lshrrev_b32 v{b}, 4, v0")
        e(f"v_xor_b32 v{a}, v{a}, v{b}")
        e(f"v_lshl_add_u32 v{self.B_XR0}, v{a}, 4, v{self.B_XR0}")
        e(f"v_add_u32 v{self.B_XR}, {XO_BASE}, v{self.B_XR0}")
        e(f"v_add_u32 v{self.B_XR0}, {KV_SLOT}, v{self.B_XR0}")
        for rb in range(4):
            e(f"s_add_u32 s{S_T0}, s{S_P}, {rb}")
            e(f"s_and_b32 s{S_T0}, s{S_T0}, 3")
            e(f"s_lshl_b32 s{S_T0}, s{S_T0}, 10")
            e(f"s_add_u32 s{S_T0}, s{S_T0}, {XO_BASE}")
            e(f"v_lshl_add_u32 v{self.B_OR+rb}, v0, 4, s{S_T0}")
        e(f"v_lshrrev_b32 v{a}, 5, v0")
        e(f"v_lshlrev_b32 v{a}, 8, v{a}")
        e(f"v_and_b32 v{b}, 15, v0")
        e(f"v_lshl_add_u32 v{a}, v{b}, 4, v{a}")
        e(f"v_bfe_u32 v{b}, v0, 4, 1")
        e(f"v_lshl_add_u32 v{a}, v{b}, 3, v{a}")
        e(f"v_add_u32 v{self.B_QW}, s{S_WLDS}, v{a}")
        e(f"v_mov_b32 v{self.B_LANE}, v0")
        e(f"v_min_u32 v{self.B_TA}, 27, v0")
        e(f"s_mul_i32 s{S_T0}, s{S_W}, 28")
        e(f"v_add_u32 v{self.B_TA}, s{S_T0}, v{self.B_TA}")
        e(f"v_lshlrev_b32 v{self.B_TA}, 12, v{self.B_TA}")
        e(f"s_lshl_b32 s{S_T0}, s{S_B}, 7")
        e(f"v_add_u32 v{self.B_TA}, s{S_T0}, v{self.B_TA}")
        for pc in range(1, 4):
            e(f"v_add_u32 v{self.B_VWO4+pc}, {(16*(pc >> 1) + 8*(pc & 1))*896 - 1024*pc}, v{self.B_VWO4}")

    def xloc(self, item, xp):
        if xp == 0 or (item == 1 and xp % 3 == 0):
            return KV_SLOT + 4 * X_SLOT
        if item == 1:
            return XO_BASE + (xp % 3 - 1) * X_SLOT
        if xp < 5:
            return KV_SLOT + (xp - 1) * X_SLOT
        return XO_BASE + (xp - 5) * X_SLOT

    def dma(self, lds_s, lds_imm, g_s, g_imm, vaddr, srd, tag, nt=False):
        def emit():
            e = self.e
            e(f"s_add_u32 m0, s{lds_s}, {lds_imm}")
            e(f"s_add_u32 s{S_T0}, s{g_s}, {g_imm}")
            e(f"buffer_load_dwordx4 v{vaddr}, {sr(srd,4)}, s{S_T0} offen{' nt' if nt else ''} lds")
            self.vmq.append(tag)
        return emit

    def H_ops(self, n):
        item, ph = n >> 4, n & 15
        slot = n & 1
        ops = []
        if self.noH:
            return ops
        for k in range(8):
            if ph < 8:
                ops.append(self.dma(S_KLDS, slot*KV_SLOT + k*1056, S_KR + (ph & 3), item*262144 + (ph >> 2)*131072 + k*4096,
                                    self.B_VK, S_K, f"H{n}", nt=True))
            else:
                c, half = (ph - 8) >> 1, ph & 1
                ops.append(self.dma(S_VLB, slot*KV_SLOT + k*1024, S_VC + c, item*262144 + half*131072 + k*16384,
                                    self.B_VV, S_V, f"H{n}", nt=True))
        return ops

    def X_ops(self, xp, loc, tag, nt=False):
        return [self.dma(S_XLDS, loc + k*1088, S_XG, k*7168 + xp*128, self.B_VX, S_X, tag, nt=nt) for k in range(2)]

    def W_ops(self, wd, hs):
        ks, cbk = hs >> 1, hs & 1
        ops = []
        if self.noW and wd[:2] != ('Q', 0):
            return ops
        if wd[0] == 'Q':
            _, item, xp = wd
            g = 32*(2*xp + ks)*8192 + item*1024 + cbk*128
            vb, srd, gs = self.B_VWQ4, S_WQ, S_WCOL
        else:
            _, item, c, j = wd
            g = (item*512 + 256*j + 32*ks)*896 + cbk*128
            vb, srd, gs = self.B_VWO4, S_WO, S_WR + c
        for pc in range(4):
            def emit(pc=pc):
                e = self.e
                if pc == 0:
                    e(f"s_add_u32 m0, s{S_WLDS}, {hs*4096}")
                    e(f"s_add_u32 s{S_T0}, s{gs}, {g}")
                e(f"buffer_load_dwordx4 v{vb+pc}, {sr(srd,4)}, s{S_T0} offen offset:{pc*1024}{' nt' if self.wq0nt and wd[:2] == ('Q', 0) else ''} lds")
                self.vmq.append((wd, hs))
            ops.append(emit)
        return ops

    def wo_touch(self, nt):
        ops = []
        for item in self.hto:
            def tch(item=item):
                self.e(f"s_mov_b32 s{S_T0}, {item*458752}")
                self.e(f"buffer_load_dword v{self.B_TD}, v{self.B_TA}, {sr(S_WO,4)}, s{S_T0} offen{' nt' if nt else ''}")
                self.vmq.append("T")
            ops.append(tch)
        return ops

    def vmwait(self, need, extra=""):
        idx = -1
        for i, t in enumerate(self.vmq):
            if t in need:
                idx = i
        if idx < 0:
            if extra:
                self.e(f"s_waitcnt {extra}")
            return
        n = len(self.vmq) - 1 - idx
        assert n <= 63, n
        self.e(f"s_waitcnt vmcnt({n}) {extra}".rstrip())
        self.vmq = self.vmq[idx+1:]

    def barB_(self, name):
        sel = 10 <= self.curn <= 16 or 26 <= self.curn <= 32
        if sel:
            self.stamp(self.B_ST, f"@a{name}{self.curn}")
        self.e("s_barrier")
        if sel:
            self.stamp(self.B_ST, f"@{name}{self.curn}")
        self.barB[self.path].append(name)
        if self.prof != 2 or self.curn in self.fine or self.curn - 1 in self.fine:
            self.stamp(self.B_ST, name + str(self.curn))

    def hs_list(self, wd):
        if wd[0] == 'O' and self.path == 'w3':
            return [0, 2]
        return [0, 1, 2, 3]

    @staticmethod
    def kid(st):
        wd, hs = st
        return (wd[0], wd[1], 2*wd[2] + (hs >> 1)) if wd[0] == 'Q' else ('O', wd[1], 4*wd[2] + 2*wd[3] + (hs >> 1))

    def make_sched(self):
        P = {n: [] for n in range(34)}
        def fill(seq, base, cnt):
            k = 0
            for i, c in enumerate(cnt):
                P[base + i] += seq[k:k + c]
                k += c
            return seq[k:]
        assert not fill([(('Q', 1, xp), hs) for xp in range(7) for hs in range(4)], 0, self.qcnt)
        oseq = lambda it: [(('O', it, k >> 2, (k >> 1) & 1), 2*(k & 1) + cbk) for k in range(16) for cbk in range(2)]
        assert not fill(oseq(0), 10, self.o1cnt)
        P[32] = fill(oseq(1), 26, self.o2cnt)
        self.P = P
        self.ob = {}
        for it, base in ((0, 10), (1, 26)):
            for c in range(4):
                wp = base + 2*c
                use = [i for i, (wd, hs) in enumerate(P[wp]) if wd[:3] == ('O', it, c)]
                for n in range(wp):
                    assert not any(wd[:3] == ('O', it, c) for wd, hs in P[n])
                if use:
                    self.ob[wp] = 'early' if use[0] == 0 else 'late'
        self.xfirst, xlast = {}, {}
        for n in range(9):
            for wd, hs in P[n]:
                self.xfirst.setdefault(wd[2], n)
                xlast[wd[2]] = n
        del self.xfirst[0]
        for xp, n in self.xfirst.items():
            assert n >= 1 and (xp < 3 or xlast[xp - 3] < n - 1), (xp, n)

    def bfi(self, k):
        return k[2] % (4 if k[:2] == ('O', 0) else 3)

    def bfreg(self, k, cb4):
        b = self.bfi(k)
        return vr(self.B_TMP + 4*cb4, 4) if b == 3 else ar(self.B_BF + 16*b + 4*cb4, 4)

    def sched(self, n):
        return [st for st in self.P[n] if not (self.path == 'w3' and st[0][0] == 'O' and st[1] & 1)]

    def bf_reads(self, st):
        wd, hs = st
        k = self.kid(st)
        if k in self.bfl:
            return []
        self.bfl.add(k)
        ks = hs >> 1
        e = self.e
        ops = []
        for cb4 in range(4):
            d = self.bfreg(k, cb4)
            if wd[0] == 'Q':
                loc = self.xloc(wd[1], wd[2])
                reg = self.B_XR if loc >= XO_BASE else self.B_XR0
                off = (loc - XO_BASE if loc >= XO_BASE else loc - KV_SLOT) + cb4*2176 + ks*64
            else:
                reg = self.B_OR + cb4
                off = (2*wd[3] + ks)*4096
            ops.append(lambda d=d, off=off, reg=reg: e(f"ds_read_b128 {d}, v{reg} offset:{off}"))
        return ops

    def w_reads(self, hs, i):
        e = self.e
        ops = []
        for u in range(4):
            for t in range(2):
                d = ar(16*(i & 1) + 4*u + 2*t, 2)
                off = hs*4096 + t*2048
                ops.append(lambda d=d, off=off, u=u: e(f"ds_read_b64_tr_b16 {d}, v{self.B_WT+u} offset:{off}"))
        return ops

    def needs_ob(self, st):
        wd, hs = st
        return wd[0] == 'O' and wd[3] == 0 and hs == 0 and self.curn == (10, 26)[wd[1]] + 2*wd[2]

    def run_steps(self, steps, per_step, preload=(), upfront=()):
        e = self.e
        if self.boost:
            e(f"s_setprio {self.boost}")
        if self.wpre != steps[0]:
            self.vmwait([steps[0]])
            for op in self.w_reads(steps[0][1], 0):
                op()
        if self.needs_ob(steps[0]):
            for op in upfront:
                op()
            upfront = ()
            self.barB_("OB")
        for op in self.bf_reads(steps[0]):
            op()
        for op in upfront:
            op()
        if self.boost:
            e(f"s_setprio {self.prioB}")
        late = []
        for i, (wd, hs) in enumerate(steps):
            ks, cbk = hs >> 1, hs & 1
            kk = self.kid(steps[i])
            kb = self.bfi(kk)
            others = []
            nx = steps[i+1] if i + 1 < len(steps) else None
            if nx:
                self.vmwait([nx], "lgkmcnt(0)")
                if not self.needs_ob(nx):
                    others += self.bf_reads(nx)
                others += self.w_reads(nx[1], i + 1)
            else:
                e("s_waitcnt lgkmcnt(0)")
                for st in preload:
                    if self.bfi(self.kid(st)) != kb:
                        others += self.bf_reads(st)
                    else:
                        late += self.bf_reads(st)
            others += per_step(i)
            zero = ks == 0 and ((wd[0] == 'Q' and wd[2] == 0) or wd == ('O', 0, 0, 0))
            k = 0
            for u, cb4 in (S22 if self.s22 else [(u, c) for u in range(4) for c in range(4)]):
                d = vr(64*cbk + 16*u + 4*cb4, 4)
                if not (self.noBm and wd[:2] != ('Q', 0)):
                    e(f"v_mfma_f32_16x16x32_bf16 {d}, {ar(16*(i&1)+4*u,4)}, {self.bfreg(kk, cb4)}, {0 if zero else d}")
                if k < len(others):
                    others[k](); k += 1
            while k < len(others):
                others[k](); k += 1
            if nx and self.needs_ob(nx):
                if self.boost:
                    e(f"s_setprio {self.boost}")
                self.barB_("OB")
                for op in self.bf_reads(nx):
                    op()
                if self.boost:
                    e(f"s_setprio {self.prioB}")
        for op in late:
            op()

    def q_ops(self, cbk):
        e = self.e
        t = self.B_TMP
        ops = []
        for u in range(4):
            for cb4 in range(4):
                def op(u=u, cb4=cb4):
                    a = 64*cbk + 16*u + 4*cb4
                    d = t + 2*((4*u + cb4) % 8)
                    e(f"v_cvt_pk_bf16_f32 v{d}, v{a}, v{a+1}")
                    e(f"v_cvt_pk_bf16_f32 v{d+1}, v{a+2}, v{a+3}")
                    off = (cb4*4 + 2*cbk + (u >> 1))*1024 + (u & 1)*512
                    e(f"ds_write_b64 v{self.B_QW}, {vr(d,2)} offset:{off}")
                ops.append(op)
        return ops

    def q_write(self, cbks=(0, 1)):
        e = self.e
        e("s_nop 7" if cbks == (0, 1) else "s_nop 3")
        for cbk in cbks:
            for op in self.q_ops(cbk):
                op()
        e("s_waitcnt lgkmcnt(0)")

    def periodB(self, n):
        e = self.e
        self.curn = n
        steps = self.sched(n)
        nxt = self.sched(n + 1) if n < 32 else []
        self.vmwait([f"H{n}"] + [f"X1_{xp}" for xp, m in self.xfirst.items() if m == n])
        self.barB_("KV0" if n == 0 else "KV")
        hx = []
        if n + 1 <= 31 and not (n == 0 and self.h1h):
            hx += self.H_ops(n + 1)[self.hdone.get(n + 1, 0):]
        for xp, m in self.xfirst.items():
            if m == n + 1:
                hx += self.X_ops(xp, self.xloc(1, xp), f"X1_{xp}", self.x2nt)
        if n == 0:
            for st in steps:
                for op in self.W_ops(*st):
                    op()
        if not steps:
            for op in hx:
                op()
        if n == 8 and not steps:
            self.q_write()
        if n in (9, 25):
            self.barB_("QB2")
        todo = list(nxt[:len({hs for _, hs in nxt})])
        pre = []
        for it, base in ((0, 10), (1, 26)):
            for c in range(4):
                if n + 1 == (base + 2*c + 2 if c < 3 else (26 if it == 0 else -1)):
                    rest = [st for m in range(n + 1, 33) for st in self.sched(m) if st[0][:3] == ('O', it, c) and not st[1] & 1]
                    pre += rest
        if steps:
            def per(i):
                if n == 32:
                    rest = [st for st in steps[i+1:] if st[1] == steps[i][1]]
                    if self.tailov and self.path == 'main' and i == len(steps) - 2:
                        return [self.pub_setup]
                    if self.tailov and self.path == 'main' and i == len(steps) - 1:
                        return [lambda: None]*3 + self.pub_ops(0)
                    return self.W_ops(*rest[0]) if rest else []
                free = {hs for _, hs in steps[:i+1-self.lag]} | ({0, 1, 2, 3} - {hs for _, hs in steps})
                r = []
                if inter and i < 2:
                    nh = (len(hx) + 1)//2 if (i == 0 and len(steps) > 2) else len(hx)
                    r += hx[:nh]
                    del hx[:nh]
                while todo and todo[0][1] in free and i >= self.rin:
                    r += self.W_ops(*todo.pop(0))
                if n == 8 and i == len(steps) - 1:
                    r += self.q_ops(0)
                return r
            a_epi = n in (10, 12, 14, 16, 26, 28, 30)
            inter = self.hint and a_epi and not self.needs_ob(steps[0])
            last_k = self.kid(steps[-1])
            newk = [self.kid(st) for st in pre if self.kid(st) not in self.bfl and self.kid(st) not in map(self.kid, steps)]
            live = {self.kid(st) for m in range(n + 1, 33) for st in self.sched(m) if self.kid(st) in self.bfl or self.kid(st) in map(self.kid, steps)}
            bufs = [self.bfi(k) for k in newk] + [self.bfi(k) for k in live]
            assert len(bufs) == len(set(bufs)), (n, newk, live)
            self.run_steps(steps, per, pre, [] if inter else hx)
            if n == 8:
                self.q_write((1,))
        else:
            assert all(self.kid(st) in self.bfl for st in pre)
        for st in todo:
            for op in self.W_ops(*st):
                op()
        if pre:
            e("s_waitcnt lgkmcnt(0)")
        if self.fre and n < 32:
            e("s_barrier")
            self.barB[self.path].append("FR")
            if n + 2 <= 31:
                k = "H%d" % (n + 1)
                after = len(self.vmq) - 1 - max([i for i, t in enumerate(self.vmq) if t == k], default=-1)
                if self.path == 'main':
                    self.hdone[n + 2] = max(0, min(8, (self.cap - 4*after)//4))
                for op in self.H_ops(n + 2)[:self.hdone[n + 2]]:
                    op()
        if self.pre_rd and nxt and n + 1 in (12, 14, 16, 28, 30, 32) and self.kid(nxt[0]) in self.bfl:
            self.vmwait([f"H{n+1}", nxt[0]])
            for op in self.w_reads(nxt[0][1], 0):
                op()
            self.wpre = nxt[0]

    def epilogue_v1(self):
        e = self.e
        t = self.B_TMP
        e("s_nop 7")
        e(f"v_lshlrev_b32 v{t}, 4, v{self.B_LANE}")
        e(f"s_lshl_b32 s{S_T1}, s{S_WG}, 17")
        e(f"s_lshl_b32 s{S_T0}, s{S_W}, 15")
        e(f"s_add_u32 s{S_T1}, s{S_T1}, s{S_T0}")
        for cbk in range(1 if self.path == 'w3' else 2):
            for u in range(4):
                e(f"s_add_u32 s{S_T0}, s{S_T1}, {(cbk*4+u)*4096}")
                for cb4 in range(4):
                    e(f"buffer_store_dwordx4 {vr(64*cbk+16*u+4*cb4,4)}, v{t}, {sr(S_WS,4)}, s{S_T0} offen offset:{cb4*1024}")

    def pub_setup(self):
        e = self.e
        slot = 32768 if self.f32 else 16384
        e(f"v_lshlrev_b32 v{self.B_TMP}, 4, v{self.B_LANE}")
        e(f"s_and_b32 s{S_T1}, s{S_WG}, 0xfc")
        e(f"s_mul_i32 s{S_T1}, s{S_T1}, {4*slot}")
        e(f"s_mul_i32 s{S_T0}, s{S_W}, {slot // 4}")
        e(f"s_add_u32 s{S_T1}, s{S_T1}, s{S_T0}")
        e(f"s_mul_i32 s2, s{S_P}, {slot}")
        e(f"s_add_u32 s2, s2, s{S_T1}")
        for rb in (1, 2, 3):
            e(f"s_add_u32 s{S_T0}, s{S_P}, {rb}")
            e(f"s_and_b32 s{S_T0}, s{S_T0}, 3")
            e(f"s_mul_i32 s{S_T0}, s{S_T0}, {4*slot}")
            e(f"s_add_u32 s{S_KR+rb}, s{S_T0}, s2")

    def pub_ops(self, cbk):
        e = self.e
        L16, D, fl = self.B_TMP, self.B_TMP + 4, self.pfl
        ops = []
        if self.f32:
            for u in range(4):
                for rb in (1, 2, 3):
                    def op(u=u, rb=rb):
                        e(f"s_add_u32 s{S_T0}, s{S_KR+rb}, {cbk*4096}")
                        e(f"buffer_store_dwordx4 {vr(64*cbk+16*u+4*rb,4)}, v{L16}, {sr(S_WS,4)}, s{S_T0} offen offset:{u*1024} {fl}")
                    ops.append(op)
            return ops
        n = 0
        for u2 in range(2):
            for rb in (1, 2, 3):
                d = D + 4*(n % 3); n += 1
                a0 = 64*cbk + 32*u2 + 4*rb
                ops.append(lambda d=d, a0=a0: (e(f"v_cvt_pk_bf16_f32 v{d}, v{a0}, v{a0+1}"), e(f"v_cvt_pk_bf16_f32 v{d+1}, v{a0+2}, v{a0+3}")))
                ops.append(lambda d=d, a0=a0, rb=rb, u2=u2: (e(f"v_cvt_pk_bf16_f32 v{d+2}, v{a0+16}, v{a0+17}"), e(f"v_cvt_pk_bf16_f32 v{d+3}, v{a0+18}, v{a0+19}"),
                           e(f"buffer_store_dwordx4 {vr(d,4)}, v{L16}, {sr(S_WS,4)}, s{S_KR+rb} offen offset:{(2*cbk+u2)*1024} {fl}")))
        return ops

    def epilogue_fused(self):
        e = self.e
        t = self.B_TMP
        L16, OA = t, t + 1
        D = t + 4
        ncbk = 1 if self.path == 'w3' else 2
        slot = 32768 if self.f32 else 16384
        self.stamp(self.B_ST)
        ov = self.tailov and ncbk == 2
        if not ov:
            self.pub_setup()
        e("s_nop 7")
        for cbk in range(1 if ov else 0, ncbk):
            for op in self.pub_ops(cbk):
                op()
        e(f"v_and_b32 v{OA}, 15, v{self.B_LANE}")
        e(f"v_mul_u32_u24 v{OA}, 1792, v{OA}")
        e(f"v_lshrrev_b32 v{t+2}, 4, v{self.B_LANE}")
        e(f"v_lshl_add_u32 v{OA}, v{t+2}, 3, v{OA}")
        e("s_waitcnt vmcnt(0)")
        e("s_barrier")
        self.stamp(self.B_ST)
        if self.path == 'main':
            e(f"s_cmp_eq_u32 s{S_W}, 0")
            e("s_cbranch_scc0 L_nopoll")
            e(f"v_add_u32 v{self.B_FOUT}, 1, v{self.B_FOUT}")
            e("s_mov_b64 exec, 15")
            e(f"buffer_store_dword v{self.B_FOUT}, v{self.B_FAO}, {sr(S_WS,4)}, 0 offen sc1")
            e(f"s_mov_b32 s{S_CH}, 0")
            e.lab("L_poll")
            e(f"buffer_load_dword v{t+2}, v{self.B_FAI}, {sr(S_WS,4)}, 0 offen sc1")
            e(f"s_add_u32 s{S_CH}, s{S_CH}, 1")
            e("s_waitcnt vmcnt(0)")
            e(f"v_cmp_eq_u32 vcc, v{t+2}, v{self.B_FIN}")
            e("s_nop 0")
            e("s_cbranch_vccz L_polled")
            e(f"s_cmp_lt_u32 s{S_CH}, 0x20000")
            e("s_cbranch_scc1 L_poll")
            e.lab("L_polled")
            e("s_mov_b64 exec, -1")
            e.lab("L_nopoll")
        e("s_barrier")
        self.stamp(self.B_ST)
        e(f"s_mul_i32 s2, s{S_P}, {4*slot}")
        e(f"s_add_u32 s2, s2, s{S_T1}")
        for rb in (1, 2, 3):
            e(f"s_add_u32 s{S_T0}, s{S_P}, {rb}")
            e(f"s_and_b32 s{S_T0}, s{S_T0}, 3")
            e(f"s_mul_i32 s{S_T0}, s{S_T0}, {slot}")
            e(f"s_add_u32 s{S_T0}, s{S_T0}, s2")
            for cbk in range(ncbk):
                if self.f32:
                    if cbk:
                        e(f"s_add_u32 s{S_T0}, s{S_T0}, 4096")
                    for u in range(4):
                        e(f"buffer_load_dwordx4 {vr(64*cbk+16*u+4*rb,4)}, v{L16}, {sr(S_WS,4)}, s{S_T0} offen offset:{u*1024} {self.lfl}")
                else:
                    for u2 in range(2):
                        e(f"buffer_load_dwordx4 {vr(64*cbk+32*u2+4*rb,4)}, v{L16}, {sr(S_WS,4)}, s{S_T0} offen offset:{(2*cbk+u2)*1024} {self.lfl}")
        e(f"s_mul_i32 s2, s{S_B}, {64*1792}")
        e(f"s_mul_i32 s3, s{S_P}, {16*1792}")
        e(f"s_add_u32 s2, s2, s3")
        e(f"s_mul_i32 s3, s{S_BR}, 896")
        e(f"s_add_u32 s2, s2, s3")
        e(f"s_add_u32 s2, s2, s{S_WCOL}")
        e("s_waitcnt vmcnt(0)")
        for cbk in range(ncbk):
            for u in range(4):
                a = 64*cbk + 16*u
                for rb in (1, 2, 3):
                    if self.f32:
                        for r in range(4):
                            e(f"v_add_f32 v{a+r}, v{a+r}, v{a+4*rb+r}")
                    else:
                        src = 64*cbk + 32*(u >> 1) + 4*rb + 2*(u & 1)
                        for h in range(2):
                            e(f"v_lshlrev_b32 v{D+2*h}, 16, v{src+h}")
                            e(f"v_and_b32 v{D+2*h+1}, 0xffff0000, v{src+h}")
                        e(f"v_pk_add_f32 {vr(a,2)}, {vr(a,2)}, {vr(D,2)}")
                        e(f"v_pk_add_f32 {vr(a+2,2)}, {vr(a+2,2)}, {vr(D+2,2)}")
                e(f"v_cvt_pk_bf16_f32 v{a}, v{a}, v{a+1}")
                e(f"v_cvt_pk_bf16_f32 v{a+1}, v{a+2}, v{a+3}")
                e(f"buffer_store_dwordx2 {vr(a,2)}, v{OA}, {sr(S_OUT,4)}, s2 offen offset:{cbk*128+u*32} {self.ofl}".rstrip())

    def endB(self):
        e = self.e
        if self.fuse:
            self.epilogue_fused()
        else:
            self.epilogue_v1()
        if self.prof:
            e("s_waitcnt vmcnt(0)")
            self.stamp(self.B_ST)
            if self.path == 'main':
                e(f"s_cmp_eq_u32 s{S_W}, 0")
                e("s_cbranch_scc0 L_end")
                self.prof_store(self.B_ST, 1, 0)
        e("s_endpgm")

    def streamB(self):
        e = self.e
        e.lab("L_B")
        self.vmq = []
        self.deferred = []
        self.path = 'main'
        self.barB = {'main': [], 'w3': []}
        self.stamp(self.B_ST)
        self.setupB()
        for hs in range(4):
            for op in self.W_ops(('Q', 0, 0), hs):
                op()
        self.setupB2()
        if self.early:
            for xp in range(2, 7):
                for op in self.X_ops(xp, self.xloc(0, xp), "X0b", self.xnt):
                    op()
        self.stamp(self.B_ST)
        self.vmwait(["X0"])
        self.barB_("HB")
        steps = [(('Q', 0, h), hs) for h in range(7) for hs in range(4)]
        H0 = self.H_ops(0)
        if self.h1h:
            assert self.early and self.hdef is None and not self.hto
            H0 = H0 + self.H_ops(1)
        def per(i):
            if i % 2 == 1 and self.prof != 2:
                self.stamp(self.B_ST, f"h{i}")
            if i == 6 and self.early:
                assert "X0b" not in self.vmq
                return self.W_ops(*steps[i + 4]) + [lambda: self.barB_("HB2")]
            if i == 23 and self.h1h:
                return self.W_ops(*steps[i + 4]) + [lambda: self.barB_("HB3")]
            if i >= 24 and self.h1h:
                return H0[4*(i - 24):4*(i - 24) + 4]
            if i + 4 < 28:
                return self.W_ops(*steps[i + 4])
            if self.hdef is not None:
                tt = self.wo_touch(False)
                return (tt if self.hdef == i else []) + H0[2*(i - 24):2*(i - 24) + 2] + (tt if self.hdef == i + 1 == 28 else [])
            return (self.wo_touch(True) if i == 24 else []) + H0[2*(i - 24):2*(i - 24) + 2]
        def per2(i):
            return per(i) + (self.q_ops(0) if self.qov and i == 27 else [])
        self.run_steps(steps, per2)
        self.q_write((1,) if self.qov else (0, 1))
        for op in (self.wo_touch(False) if self.hdef is None else []):
            op()
        self.barB_("QB1")
        for n in range(9):
            self.periodB(n)
        e(f"s_cmp_eq_u32 s{S_W}, 3")
        e("s_cbranch_scc1 L_B3")
        save = list(self.vmq)
        save_bfl = set(self.bfl)
        assert not self.deferred
        self.barB['w3'] = list(self.barB['main'])
        for n in range(9, 33):
            self.periodB(n)
        self.endB()
        e.lab("L_B3")
        self.path = 'w3'
        self.vmq = save
        self.bfl = save_bfl
        self.wpre = None
        self.deferred = []
        for n in range(9, 33):
            self.periodB(n)
        self.endB()

    def reduce_kernel(self):
        e = self.e
        e(".globl red_kernel")
        e(".p2align 8")
        e(".type red_kernel,@function")
        e.lab("red_kernel")
        e("s_cmp_ge_u32 s2, 1792")
        e("s_cbranch_scc1 L_rend")
        e("s_load_dwordx2 s[4:5], s[0:1], 96")
        e("s_load_dwordx2 s[8:9], s[0:1], 80")
        e("s_mul_hi_u32 s12, s2, 153391690")
        e("s_mul_i32 s13, s12, 28")
        e("s_sub_u32 s13, s2, s13")
        e("s_and_b32 s14, s12, 1")
        e("s_lshr_b32 s15, s12, 1")
        e("s_lshl_b32 s16, s15, 3")
        e("s_lshl_b32 s17, s14, 2")
        e("s_add_u32 s16, s16, s17")
        e("s_lshl_b32 s16, s16, 17")
        e("s_lshl_b32 s17, s13, 12")
        e("s_add_u32 s16, s16, s17")
        e("v_lshlrev_b32 v1, 4, v0")
        e("s_mov_b32 s6, 67108864")
        e("s_mov_b32 s7, 0x20000")
        e("s_mov_b32 s10, 3670016")
        e("s_mov_b32 s11, 0x20000")
        e("s_waitcnt lgkmcnt(0)")
        for p in range(4):
            e(f"buffer_load_dwordx4 {vr(4+4*p,4)}, v1, s[4:7], s16 offen")
            e("s_add_u32 s16, s16, 131072")
        e("v_lshrrev_b32 v2, 6, v0")
        e("v_lshlrev_b32 v2, 4, v2")
        e("v_and_b32 v3, 15, v0")
        e("v_add_u32 v2, v2, v3")
        e("v_mul_u32_u24 v2, 1792, v2")
        e("v_bfe_u32 v3, v0, 4, 2")
        e("v_lshl_add_u32 v2, v3, 3, v2")
        e("s_mul_i32 s15, s15, 114688")
        e("s_mul_i32 s14, s14, 896")
        e("s_add_u32 s15, s15, s14")
        e("s_lshl_b32 s13, s13, 5")
        e("s_add_u32 s15, s15, s13")
        e("s_waitcnt vmcnt(0)")
        for r in range(4):
            e(f"v_add_f32 v{4+r}, v{4+r}, v{8+r}")
            e(f"v_add_f32 v{12+r}, v{12+r}, v{16+r}")
            e(f"v_add_f32 v{4+r}, v{4+r}, v{12+r}")
        e("v_cvt_pk_bf16_f32 v4, v4, v5")
        e("v_cvt_pk_bf16_f32 v5, v6, v7")
        e("buffer_store_dwordx2 v[4:5], v2, s[8:11], s15 offen")
        e.lab("L_rend")
        e("s_endpgm")

    def build(self):
        e = self.e
        out = [HEADER.rstrip()]
        if self.fuse:
            out.append(f"; @launch grid=(256,1,1) block=(512,1,1) lds={LDS_BYTES}")
        else:
            out.append(f"; @launch kernel={NAME}_kernel grid=(256,1,1) block=(512,1,1) lds={LDS_BYTES}")
            out.append(f"; @launch kernel=red_kernel grid=(1792,1,1) block=(256,1,1) lds=0")
        out.append('.amdgcn_target "amdgcn-amd-amdhsa--gfx950"')
        out.append(".text")
        out.append(f".globl {NAME}_kernel")
        out.append(".p2align 8")
        out.append(f".type {NAME}_kernel,@function")
        out.append(f"{NAME}_kernel:")
        self.prologue()
        self.streamB()
        self.path = None
        e.lab("L_A")
        self.streamA()
        e.lab("L_end")
        e("s_endpgm")
        if not self.fuse:
            self.reduce_kernel()
        assert self.barA == self.barB['main'] == self.barB['w3'], (self.barA, self.barB)
        if self.prof:
            out.insert(1, f"; NST {44 if self.prof == 4 else len(self.barA)+2} {len(self.namesB)} " + " ".join(self.namesB))
        out.append(e.text())
        out.append('.section .rodata,"a"')
        def kd(name, v, s, acc):
            return f""".p2align 6
.amdhsa_kernel {name}
  .amdhsa_next_free_vgpr {v}
  .amdhsa_next_free_sgpr {s}
  .amdhsa_accum_offset {acc}
  .amdhsa_group_segment_fixed_size 0
  .amdhsa_kernarg_size 104
  .amdhsa_user_sgpr_count 2
  .amdhsa_user_sgpr_kernarg_segment_ptr 1
  .amdhsa_system_sgpr_workgroup_id_x 1
.end_amdhsa_kernel"""
        out.append(kd(f"{NAME}_kernel", 256, 96, 176))
        if not self.fuse:
            out.append(kd("red_kernel", 24, 32, 24))
        return "\n".join(out) + "\n"


if __name__ == "__main__":
    kw = {}
    path = None
    for a in sys.argv[1:]:
        if "=" in a:
            k, v = a.split("=")
            kw[k] = eval(v)
        else:
            path = a
    txt = Gen(**kw).build()
    open(path or f"cdna_kernels/{NAME}.s", "w").write(txt)
    print("lines", txt.count("\n"), "bytes", len(txt))
```

```python
import sys, math

NAME = "concat_heads__gqa_block_cached__gqa_block_cached__near_ridge"
HEADER = open("cdna_kernels/%s.s.ref" % NAME).read().split("; Override launch")[0]

KV_SLOT = 33792
W_BASE = KV_SLOT + 5 * 8704
XO_BASE = W_BASE + 65536
X_SLOT = 8704
FLAG_BASE = 0x2800000
LDS_BYTES = XO_BASE + 2 * X_SLOT

S_X, S_K, S_V, S_WQ, S_WO, S_OUT, S_WS = 4, 8, 12, 16, 20, 24, 28
S_W = 60
S_B = 61
S_P = 62
S_BR = 63
S_T0, S_T1 = 64, 65
S_WLDS = 66
S_WCOL = 67
S_KLDS = 68
S_KG = 69
S_VG = 70
S_KR, S_VC, S_WR = 32, 36, 40
S_VLB = 77
S_XLDS = 71
S_XG = 72
S_HK, S_HV, S_KL, S_VL, S_HVC = 66, 67, 68, 69, 70
S_HS = 32
S_HM, S_HGS = 36, 37
S_C = 73
S_THR = 74
S_ITEM = 75
S_CH = 76
S_RET = 78
S_STAMP = 80
S_SIDX = 82
S_WG = 83
S_DBG = 88
S_JUNK = 92


S22 = [(0,0),(0,1),(1,1),(1,0),(2,0),(2,1),(3,1),(3,0),(3,2),(3,3),(2,3),(2,2),(1,2),(1,3),(0,3),(0,2)]


class Em:
    def __init__(self):
        self.l = []
    def __call__(self, s):
        self.l.append(s)
    def lab(self, s):
        self.l.append(s + ":")
    def text(self):
        return "\n".join(self.l)


def vr(a, n=1):
    return f"v{a}" if n == 1 else f"v[{a}:{a+n-1}]"
def ar(a, n=1):
    return f"a{a}" if n == 1 else f"a[{a}:{a+n-1}]"
def sr(a, n=1):
    return f"s{a}" if n == 1 else f"s[{a}:{a+n-1}]"


class Gen:
    def __init__(self, prof=False, prioA=1, npostQ=10, npostO=12, npre=6, fuse=True, pfl='sc1', f32=False, xnt=False, rin=0, nearlyQ=0, nearlyO=0, shift=1, lag=1, boost=2, hA=False, obf=26, obk=(1, 8), pre1=36, tailov=True, dropr=(0, 99), vt0=1, vto=False, xpromo=False, early=True, pre2=76, bto=False, hto=(), rot=True, flate=False, tlate=False, epi=False, kst=4, s22=True, fre=False, cap=48, ctouch=True, qcnt=(2,2,2,4,4,4,4,4,2), o1cnt=(2,2,2,2,4,4,0,2,2,2,2,2,2,2,2), o2cnt=(2,4,4,4,4,4), obe=3, h1h=False, pre3=150, nolt=False, hdef=None, spread=True, pre_rd=True, qov=True, x2nt=True, wq0nt=False, tp1=20, lfl='sc1', ofl='', drop=0, hint=True, wo1A=56, dyn=True, prioB=1, noH=False, noW=False, noSM=False, noBm=False, noAm=False, tnt=False):
        self.e = Em()
        self.prof = prof
        self.prioA = prioA
        self.npostQ, self.npostO, self.npre, self.pfl, self.f32 = npostQ, npostO, npre, pfl, f32
        self.fuse = fuse
        self.kst = kst
        self.ksh = {1: 9, 2: 10, 4: 11}[kst]
        self.flate, self.tlate, self.epi = flate, tlate, epi
        self.s22 = s22
        self.fre, self.cap = fre, cap
        self.hdone = {}
        self.ctouch = ctouch
        self.qcnt, self.o1cnt, self.o2cnt, self.obe = qcnt, o1cnt, o2cnt, obe
        self.make_sched()
        self.h1h, self.pre3 = h1h, pre3
        self.nolt = nolt
        self.hdef, self.spread, self.pre_rd, self.qov = hdef, spread, pre_rd, qov
        if hdef is not None:
            vto, hto = False, (1,)
        self.hto, self.rot = hto, rot
        self.bto, self.x2nt, self.wq0nt, self.tp1 = bto, x2nt, wq0nt, tp1
        self.early, self.pre2 = early, pre2
        self.xpromo = xpromo
        self.vt0, self.vto, self.lfl, self.ofl = vt0, vto, lfl, ofl
        self.drop = drop
        self.dropr = dropr
        self.obk, self.pre1, self.tailov = obk, pre1, tailov
        self.dyn = dyn
        self.prioB = prioB if dyn else 0
        if dyn:
            prioA, boost = 2, (3 if boost else 0)
            self.prioA = 2
        self.wo1A = wo1A
        self.hA, self.obf, self.hint = hA, obf, hint
        self.lag, self.boost = lag, boost
        self.xnt, self.rin, self.nearlyQ, self.nearlyO, self.shift = xnt, rin, nearlyQ, nearlyO, shift
        self.noH, self.noW, self.noSM, self.noBm, self.noAm = noH, noW, noSM, noBm, noAm
        self.tfl = ' nt' if tnt else ''
        self.barA = []
        self.barB = {}
        self.st2 = {175: 174}
        self.namesB = []
        self.curn = -1
        self.wpre = None
        self.bfl = set()
        self.fine = (3, 4, 12, 13, 14, 29)

    def stamp(self, vreg, name="."):
        e = self.e
        if not self.prof:
            return
        if self.prof in (4, 5) and not name.startswith('@'):
            return
        if self.prof == 4 and getattr(self, 'path', None) is not None:
            return
        if self.prof == 5 and getattr(self, 'path', None) is None:
            return
        if self.prof == 6 and (getattr(self, 'path', None) is None or not (name.startswith('KV') or name in ('.', 'HB-1', 'QB1-1'))):
            return
        if self.prof == 7 and (getattr(self, 'path', None) is None or name not in ('.', 'KV00', 'KV8', 'KV16', 'KV24', 'KV32')):
            return
        if self.prof == 8 and (getattr(self, 'path', None) is None or not (name[0] in '.hHQ' or name in ('KV00', 'KV1', 'KV2', 'KV32'))):
            return
        if self.prof == 3 and (getattr(self, 'path', None) is None or not (name in ('.', 'HB-1', 'HB2-1', 'QB1-1', 'KV00', 'KV1', 'KV8', 'KV10', 'KV16', 'KV19', 'KV24', 'KV26', 'KV32', 'OB32'))):
            return
        if getattr(self, 'path', None) == 'main':
            self.namesB.append(name)
        e(f"s_memrealtime {sr(S_STAMP,2)}")
        e(f"s_memtime {sr(S_STAMP+4,2)}")
        e("s_waitcnt lgkmcnt(0)")
        e(f"s_mov_b32 m0, s{S_SIDX}")
        e(f"v_writelane_b32 v{vreg}, s{S_STAMP}, m0")
        e(f"v_writelane_b32 v{self.st2[vreg]}, s{S_STAMP+4}, m0")
        e(f"s_add_u32 s{S_SIDX}, s{S_SIDX}, 1")

    def prologue(self):
        e = self.e
        e("s_cmp_ge_u32 s2, 256")
        e("s_cbranch_scc1 L_end")
        e("s_load_dwordx16 s[32:47], s[0:1], 0")
        e("s_load_dwordx8 s[48:55], s[0:1], 64")
        e("s_load_dwordx2 s[56:57], s[0:1], 96")
        e(f"v_lshrrev_b32 v1, 6, v0")
        e(f"s_mov_b32 s{S_WG}, s2")
        e(f"s_and_b32 s{S_P}, s2, 3")
        e(f"v_readfirstlane_b32 s3, v1")
        e(f"s_lshr_b32 s{S_B}, s2, 3")
        e(f"s_bfe_u32 s{S_BR}, s2, 0x10002")
        e(f"s_mov_b32 s{S_SIDX}, 0")
        e("v_and_b32 v0, 63, v0")
        e(f"s_and_b32 s{S_W}, s3, 3")
        if self.ctouch:
            e(f"s_cmp_eq_u32 s3, 1")
            e("s_cbranch_scc0 L_noct")
            e(f"s_getpc_b64 s[58:59]")
            e.lab("L_pc")
            e(f"s_sub_u32 s58, s58, L_pc-{NAME}_kernel")
            e(f"s_subb_u32 s59, s59, 0")
            e(f"v_lshl_add_u32 v2, v0, 5, s{S_B}")
            e(f"v_lshlrev_b32 v2, 7, v2")
            e(f"v_min_u32 v2, L_end-{NAME}_kernel, v2")
            e(f"v_mov_b32 v3, s59")
            e(f"v_add_co_u32 v2, vcc, s58, v2")
            e("s_nop 1")
            e(f"v_addc_co_u32 v3, vcc, 0, v3, vcc")
            e(f"global_load_dword v4, v[2:3], off")
            e.lab("L_noct")
        e("s_waitcnt lgkmcnt(0)")
        e("s_bitcmp1_b32 s2, 2")
        e(f"s_cselect_b64 {sr(S_X,2)}, s[42:43], s[32:33]")
        e(f"s_cselect_b64 {sr(S_K,2)}, s[44:45], s[34:35]")
        e(f"s_cselect_b64 {sr(S_V,2)}, s[46:47], s[36:37]")
        e(f"s_cselect_b64 {sr(S_WQ,2)}, s[48:49], s[38:39]")
        e(f"s_cselect_b64 {sr(S_WO,2)}, s[50:51], s[40:41]")
        def addbase(srd, sreg):
            e(f"s_add_u32 s{srd}, s{srd}, s{sreg}")
            e(f"s_addc_u32 s{srd+1}, s{srd+1}, 0")
        e(f"s_mul_i32 s{S_T0}, s{S_B}, 57344")
        addbase(S_X, S_T0)
        e(f"s_lshl_b32 s{S_T0}, s{S_B}, 21")
        e(f"s_lshl_b32 s{S_T1}, s{S_P}, 19")
        e(f"s_add_u32 s{S_T0}, s{S_T0}, s{S_T1}")
        addbase(S_K, S_T0)
        addbase(S_V, S_T0)
        e(f"s_lshl_b32 s{S_T0}, s{S_P}, 11")
        addbase(S_WQ, S_T0)
        e(f"s_sub_u32 s{S_WQ+2}, 3670016, s{S_T0}")
        e(f"s_mul_i32 s{S_T0}, s{S_P}, 917504")
        addbase(S_WO, S_T0)
        e(f"s_mov_b32 s{S_X+2}, 57344")
        e(f"s_mov_b32 s{S_K+2}, 524288")
        e(f"s_mov_b32 s{S_V+2}, 524288")
        e(f"s_mov_b32 s{S_WO+2}, 917504")
        e(f"s_mov_b64 {sr(S_OUT,2)}, s[52:53]")
        e(f"s_mov_b32 s{S_OUT+2}, 3670016")
        e(f"s_mov_b64 {sr(S_WS,2)}, s[56:57]")
        e(f"s_mov_b32 s{S_WS+2}, 67108864")
        e(f"s_mov_b64 {sr(S_DBG,2)}, s[54:55]")
        e(f"s_mov_b32 s{S_DBG+2}, 256")
        for s in (S_X, S_K, S_V, S_WQ, S_WO, S_OUT, S_WS, S_DBG):
            e(f"s_mov_b32 s{s+3}, 0x20000")
        e("s_cmp_lt_u32 s3, 4")
        e("s_cbranch_scc1 L_A")

    def tr_addr(self, dst, base_imm=None, base_sreg=None, t0=None, t1=None, t2=None):
        e = self.e
        e(f"v_bfe_u32 v{t0}, v0, 2, 3")
        e(f"v_lshrrev_b32 v{t1}, 5, v0")
        e(f"v_lshlrev_b32 v{t1}, 10, v{t1}")
        e(f"v_lshl_add_u32 v{t1}, v{t0}, 7, v{t1}")
        e(f"v_and_b32 v{t2}, 3, v0")
        e(f"v_lshl_add_u32 v{t1}, v{t2}, 3, v{t1}")
        if base_imm:
            e(f"v_add_u32 v{t1}, {base_imm}, v{t1}")
        if base_sreg is not None:
            e(f"v_add_u32 v{t1}, s{base_sreg}, v{t1}")
        e(f"v_lshrrev_b32 v{t0}, 1, v{t0}")
        for u in range(4):
            e(f"v_xor_b32 v{t2}, {u}, v{t0}")
            e(f"v_lshl_add_u32 v{dst+u}, v{t2}, 5, v{t1}")

    A_P = 0
    A_S = 128
    A_T = 144
    A_KA = 160
    A_VA = 161
    A_OW = 165
    A_VX = 165
    A_VK = 166
    A_VV = 167
    A_NM = 168
    A_L = 170
    A_TS = 172
    A_ST = 175

    def barA_(self, name, times=1):
        if self.prof == 2:
            self.stamp(self.A_ST)
        self.e("s_barrier")
        self.barA.append(name)
        if self.prof != 2:
            self.stamp(self.A_ST)

    def k_read(self, f, slot, tile):
        s, mt = f >> 1, f & 1
        off = slot * KV_SLOT + tile * 16896 + mt * 8448 + s * 64
        self.e(f"ds_read_b128 {ar(64 + 4*(f % 4), 4)}, v{self.A_KA} offset:{off}")

    def v_tu(self, f, half):
        if self.epi and half == 1 and f >= 24:
            k = f - 24
            return 6 + ((k >> 1) & 1), 2*(k >> 2) + (k & 1)
        return f >> 2, f & 3

    def v_read(self, f, slot, parts=(0, 1)):
        T, u = self.v_tu(f, slot)
        b = 64 + 4 * (f % 4)
        off = slot * KV_SLOT + T * 4096
        for t in parts:
            self.e(f"ds_read_b64_tr_b16 {ar(b+2*t,2)}, v{self.A_VA+u} offset:{off+2048*t}")

    def lane16(self, dst, jsh, qsh, base):
        e = self.e
        e(f"v_mbcnt_lo_u32_b32 v{dst}, -1, 0")
        e(f"v_mbcnt_hi_u32_b32 v{dst}, -1, v{dst}")
        e(f"s_lshr_b32 s{S_T0}, s{S_W}, 1")
        e(f"s_and_b32 s{S_T1}, s{S_W}, 1")
        e(f"s_lshl_b32 s{S_T0}, s{S_T0}, {jsh}")
        e(f"s_lshl_b32 s{S_T1}, s{S_T1}, {qsh}")
        e(f"s_add_u32 s{S_T0}, s{S_T0}, s{S_T1}")
        e(f"s_add_u32 s{S_T0}, s{S_T0}, {base}")
        e(f"v_lshl_add_u32 v{dst}, v{dst}, 4, s{S_T0}")

    def q_read(self):
        e = self.e
        qa = self.A_TS
        self.lane16(qa, 15, 13, W_BASE)
        for s in range(8):
            for cb in range(2):
                off = (s >> 2) * 16384 + cb * 4096 + (s & 3) * 1024
                e(f"ds_read_b128 {ar(8*s+4*cb,4)}, v{qa} offset:{off}")

    def dma_voffs(self, VX, VK, VV, VWO, VWQ, a):
        e = self.e
        b, c, d = a + 1, a + 2, a + 3
        e(f"v_lshrrev_b32 v{a}, 3, v0")
        e(f"v_bfe_u32 v{b}, v0, 4, 2")
        e(f"v_and_b32 v{c}, 7, v0")
        e(f"v_xor_b32 v{VX}, v{c}, v{b}")
        e(f"v_lshlrev_b32 v{VX}, 4, v{VX}")
        e(f"v_mul_u32_u24 v{d}, 896, v{a}")
        e(f"v_add_u32 v{VX}, v{VX}, v{d}")
        yield
        e(f"v_lshlrev_b32 v{b}, 1, v{b}")
        e(f"v_xor_b32 v{c}, v{c}, v{b}")
        e(f"v_lshlrev_b32 v{c}, 4, v{c}")
        if VWO is not None:
            e(f"v_add_u32 v{VWO}, v{c}, v{d}")
        if VV is not None:
            e(f"v_lshl_add_u32 v{VV}, v{a}, {self.ksh}, v{c}")
        e(f"v_lshrrev_b32 v{b}, 5, v0")
        if VWQ is not None:
            e(f"v_and_b32 v{d}, 3, v{a}")
            e(f"v_lshl_add_u32 v{VWQ}, v{d}, 13, v{c}")
            e(f"v_lshl_add_u32 v{VWQ}, v{b}, 16, v{VWQ}")
        e(f"v_and_b32 v{c}, 31, v0")
        e(f"v_xor_b32 v{c}, v{c}, v{b}")
        e(f"v_lshlrev_b32 v{c}, 4, v{c}")
        e(f"v_lshl_add_u32 v{VK}, v{b}, {self.ksh}, v{c}")
        yield

    def A_Hops(self, kind, slot, gs, gimm):
        e = self.e
        ops = []
        if self.noH or not self.hA:
            return [lambda pre: None]*8
        for k in range(8):
            def op(pre, k=k):
                if kind == 'K':
                    if pre:
                        e(f"s_add_u32 m0, s{S_KL}, {slot*KV_SLOT + k*1056}")
                        e(f"s_add_u32 s{S_T0}, s{gs}, {gimm + k*4096}")
                    else:
                        e(f"buffer_load_dwordx4 v{self.A_VK}, {sr(S_K,4)}, s{S_T0} offen nt lds")
                elif kind == 'V':
                    if pre:
                        if k % 4 == 0:
                            e(f"s_add_u32 m0, s{S_VL}, {slot*KV_SLOT + k*1024}")
                        e(f"s_add_u32 s{S_T0}, s{gs}, {gimm + k*16384 - (k % 4)*1024}")
                    else:
                        e(f"buffer_load_dwordx4 v{self.A_VV}, {sr(S_V,4)}, s{S_T0} offen offset:{(k%4)*1024} nt lds")
                else:
                    if pre:
                        if k:
                            e(f"s_add_u32 m0, m0, s{S_HM}")
                            e(f"s_add_u32 s{S_T1}, s{S_T1}, s{S_HGS}")
                    else:
                        e(f"buffer_load_dwordx4 v{self.A_NM}, {sr(S_HS,4)}, s{S_T1} offen nt lds")
            ops.append(op)
        return ops

    def xlane(self, op, x, t):
        e = self.e
        e(f"v_mov_b32 v{t}, v{x}")
        e("s_nop 1")
        e(f"v_permlane32_swap_b32 v{t}, v{x}")
        e("s_nop 1")
        e(f"{op} v{x}, v{x}, v{t}")
        e(f"v_mov_b32 v{t}, v{x}")
        e("s_nop 1")
        e(f"v_permlane16_swap_b32 v{t}, v{x}")
        e("s_nop 1")
        e(f"{op} v{x}, v{x}, v{t}")

    def tile_max(self, cb, dst, t):
        e = self.e
        S = self.A_S
        r = [S + 4*cb + k for k in range(4)] + [S + 8 + 4*cb + k for k in range(4)]
        e(f"v_max3_f32 v{dst}, v{r[0]}, v{r[1]}, v{r[2]}")
        e(f"v_max3_f32 v{dst}, v{dst}, v{r[3]}, v{r[4]}")
        e(f"v_max3_f32 v{dst}, v{dst}, v{r[5]}, v{r[6]}")
        e(f"v_max_f32 v{dst}, v{dst}, v{r[7]}")
        self.xlane("v_max_f32", dst, t)

    def softmax(self, T):
        e = self.e
        S, TT, P = self.A_S, self.A_T, self.A_P
        if T == 0:
            for cb in range(2):
                self.tile_max(cb, TT + cb, TT + 2)
                e(f"v_mul_f32 v{self.A_NM+cb}, s{S_C}, v{TT+cb}")
                e(f"v_sub_f32 v{self.A_NM+cb}, 0, v{self.A_NM+cb}")
                e(f"v_mov_b32 v{self.A_L+cb}, 0")
        e.lab(f"L_sm{T}")
        groups = [(0, 0), (0, 1), (1, 0), (1, 1)]
        def fma(gi):
            mt, cb = groups[gi]
            for r in range(4):
                e(f"v_fma_f32 v{TT+4*gi+r}, v{S+8*mt+4*cb+r}, s{S_C}, v{self.A_NM+cb}")
        def exp(gi):
            for r in range(4):
                e(f"v_exp_f32 v{TT+4*gi+r}, v{TT+4*gi+r}")
        def fin(gi):
            mt, cb = groups[gi]
            t = TT + 4*gi
            ts = self.A_TS + cb
            if mt == 0:
                e(f"v_add_f32 v{ts}, v{t}, v{t+1}")
            else:
                e(f"v_add_f32 v{ts}, v{ts}, v{t}")
                e(f"v_add_f32 v{ts}, v{ts}, v{t+1}")
            e(f"v_cvt_pk_bf16_f32 v{P+8*T+4*cb+2*mt}, v{t}, v{t+1}")
            e(f"v_add_f32 v{ts}, v{ts}, v{t+2}")
            e(f"v_cvt_pk_bf16_f32 v{P+8*T+4*cb+2*mt+1}, v{t+2}, v{t+3}")
            e(f"v_add_f32 v{ts}, v{ts}, v{t+3}")
        fma(0); fma(1); exp(0); fma(2); exp(1); fma(3); fin(0); exp(2); fin(1); exp(3); fin(2); fin(3)
        if T > 0:
            e(f"v_max_f32 v{TT}, v{self.A_TS}, v{self.A_TS+1}")
            e(f"v_cmp_lt_f32 vcc, s{S_THR}, v{TT}")
            e("s_nop 0")
            e(f"s_cbranch_vccz L_ok{T}")
            e(f"s_call_b64 {sr(S_RET,2)}, L_rescale")
            e(f"s_branch L_sm{T}")
            e.lab(f"L_ok{T}")
            e(f"s_mov_b32 s{S_THR}, 0x47800000")
        for cb in range(2):
            e(f"v_add_f32 v{self.A_L+cb}, v{self.A_L+cb}, v{self.A_TS+cb}")

    def rescale_routine(self):
        e = self.e
        TT, P = self.A_T, self.A_P
        e.lab("L_rescale")
        for cb in range(2):
            self.tile_max(cb, TT, TT + 2)
            e(f"v_fma_f32 v{TT}, v{TT}, s{S_C}, v{self.A_NM+cb}")
            e(f"v_ceil_f32 v{TT}, v{TT}")
            e(f"v_max_f32 v{TT}, 0, v{TT}")
            e(f"v_sub_f32 v{self.A_NM+cb}, v{self.A_NM+cb}, v{TT}")
            e(f"v_min_f32 v{TT}, 0x43800000, v{TT}")
            e(f"v_cvt_i32_f32 v{TT}, v{TT}")
            e(f"v_sub_u32 v{TT}, 0, v{TT}")
            e(f"v_ldexp_f32 v{self.A_L+cb}, v{self.A_L+cb}, v{TT}")
            for T in range(16):
                for k in range(4):
                    r = P + 8*T + 4*cb + k
                    e(f"v_lshlrev_b32 v{TT+4}, 16, v{r}")
                    e(f"v_and_b32 v{TT+5}, 0xffff0000, v{r}")
                    e(f"v_ldexp_f32 v{TT+4}, v{TT+4}, v{TT}")
                    e(f"v_ldexp_f32 v{TT+5}, v{TT+5}, v{TT}")
                    e(f"v_cvt_pk_bf16_f32 v{r}, v{TT+4}, v{TT+5}")
        e(f"s_mov_b32 s{S_THR}, 0x7f800000")
        e(f"s_setpc_b64 {sr(S_RET,2)}")

    def streamA(self):
        e = self.e
        KA, VA, OW = self.A_KA, self.A_VA, self.A_OW
        self.stamp(self.A_ST)
        if self.prioA:
            e(f"s_setprio {self.prioA}")
        t = self.A_T
        def vtouch():
            e(f"v_and_b32 v{t+12}, 31, v0")
            e(f"v_min_u32 v{t+12}, 27, v{t+12}")
            e(f"s_mul_i32 s{S_T0}, s{S_W}, 28")
            e(f"v_add_u32 v{t+12}, s{S_T0}, v{t+12}")
            if self.vt0:
                e(f"v_lshlrev_b32 v{t+13}, 15, v{t+12}")
                if self.vt0 == 3:
                    e(f"v_lshrrev_b32 v{t+14}, 5, v0")
                    e(f"v_lshl_add_u32 v{t+13}, v{t+14}, 10, v{t+13}")
                e(f"s_lshr_b32 s{S_T0}, s{S_B}, 3")
                e(f"s_lshl_b32 s{S_T0}, s{S_T0}, 13")
                e(f"s_and_b32 s{S_T1}, s{S_B}, 7")
                e(f"s_lshl_b32 s{S_T1}, s{S_T1}, 7")
                e(f"s_add_u32 s{S_T0}, s{S_T0}, s{S_T1}")
                e(f"buffer_load_dword v{t+14}, v{t+13}, {sr(S_WQ,4)}, s{S_T0} offen{' nt' if self.vt0 == 2 else ''}")
            else:
                self.stouch_wq(0, 0, 56, 1)
        if not self.tlate:
            vtouch()
        a, b, c = t + 4, t + 5, t + 6
        e(f"v_bfe_u32 v{a}, v0, 1, 3")
        e(f"v_mul_u32_u24 v{KA}, 1056, v{a}")
        e(f"v_and_b32 v{a}, 1, v0")
        e(f"v_lshl_add_u32 v{KA}, v{a}, 9, v{KA}")
        e(f"v_lshrrev_b32 v{b}, 4, v0")
        e(f"v_xor_b32 v{b}, v{b}, v{a}")
        e(f"v_lshl_add_u32 v{KA}, v{b}, 4, v{KA}")
        self.tr_addr(VA, t0=a, t1=b, t2=c)
        for _ in self.dma_voffs(self.A_VX, self.A_VK, self.A_VV, None, None, t + 8):
            pass
        e(f"s_lshl_b32 s{S_HK}, s{S_W}, 15")
        e(f"s_lshl_b32 s{S_HV}, s{S_W}, 9")
        e(f"s_mul_i32 s{S_KL}, s{S_W}, {8*1056}")
        e(f"s_lshl_b32 s{S_VL}, s{S_W}, 13")
        e(f"s_mul_i32 s{S_XLDS}, s{S_W}, {2*1088}")
        e(f"s_mul_i32 s{S_XG}, s{S_W}, {16*896}")
        e(f"s_mov_b32 s{S_C}, 0x3db8aa3b")
        e(f"s_mov_b32 s{S_THR}, 0x47800000")
        e(f"s_mov_b32 s{S_ITEM}, 0")
        if self.tlate:
            vtouch()
        segs = [('q', 56)] if self.vt0 != 3 else []
        if 0 not in self.hto:
            segs.append(('o0', 56))
        if not self.vto and not self.bto and 1 not in self.hto:
            segs.append(('o1', self.wo1A))
        def touch_range(a, b):
            pos = 0
            for kind, n in segs:
                lo, hi = max(a - pos, 0), min(b - pos, n)
                if lo < hi:
                    if kind == 'q':
                        self.stouch_wq(1, lo, hi, 1)
                    else:
                        self.stouch_wo(int(kind[1]), lo, hi)
                pos += n
        touch_range(0, self.pre1)
        self.barA_("HB")
        if self.early:
            touch_range(self.pre1, self.pre2)
            self.barA_("HB2")
            if self.h1h:
                touch_range(self.pre2, self.pre3)
                self.barA_("HB3")
                touch_range(self.pre3, 999)
            else:
                touch_range(self.pre2, 999)
        else:
            touch_range(self.pre1, 999)
        e("s_waitcnt vmcnt(0)")
        if self.xpromo:
            e(f"v_lshlrev_b32 v{t+13}, 7, v0")
            e(f"s_lshl_b32 s{S_T0}, s{S_W}, 13")
            e(f"buffer_load_dword v{t+14}, v{t+13}, {sr(S_X,4)}, s{S_T0} offen")
            e(f"s_add_u32 s{S_T0}, s{S_T0}, 32768")
            e(f"buffer_load_dword v{t+15}, v{t+13}, {sr(S_X,4)}, s{S_T0} offen")
            e("s_waitcnt vmcnt(0)")
        e(f"v_lshlrev_b32 v{self.A_VK}, 12, v{t+12}")
        e(f"s_lshl_b32 s{S_HK}, s{S_B}, 7")
        e(f"s_add_u32 s{S_HK}, s{S_HK}, 458752")
        self.barA_("QB1")
        if self.vto:
            e(f"buffer_load_dword v{self.A_VV}, v{self.A_VK}, {sr(S_WO,4)}, s{S_HK} offen nt")
        self.q_read()
        e("s_waitcnt lgkmcnt(0)")
        self.barA_("KV0")
        for f in range(3):
            self.k_read(f, 0, 0)
        barA_pre = list(self.barA)
        self.barA = []
        e.lab("L_item")
        if self.dyn:
            e(f"s_setprio {self.prioA}")
        S = self.A_S
        for T in range(16):
            slot, tile = (T >> 1) & 1, T & 1
            ph = T >> 1
            hops = []
            if T == 2 and self.vto:
                e(f"s_cmp_eq_u32 s{S_ITEM}, 0")
                e("s_cbranch_scc0 L_nopromo")
                e(f"buffer_load_dword v{self.A_VV}, v{self.A_VK}, {sr(S_WO,4)}, s{S_HK} offen")
                e.lab("L_nopromo")
            if tile == 0:
                hops = self.A_Hops('K', slot ^ 1, S_HK, ((ph + 1) >> 2)*131072 + ((ph + 1) & 3)*512) if ph < 7 else self.A_Hops('V', 0, S_HV, 0)
            e("s_waitcnt lgkmcnt(2)" if T else ("s_waitcnt lgkmcnt(2)"))
            for f in range(16):
                s, mt = f >> 1, f & 1
                c0 = mt if self.s22 else 0
                d0, d1 = vr(S + 8*mt + 4*c0, 4), vr(S + 8*mt + 4*(1 - c0), 4)
                if hops and f % 2 == 0:
                    hops[f >> 1](True)
                if not self.noAm:
                    e(f"v_mfma_f32_16x16x32_bf16 {d0}, {ar(64+4*(f%4),4)}, {ar(8*s+4*c0,4)}, {d0 if s else 0}")
                if f + 3 < 16:
                    self.k_read(f + 3, slot, tile)
                elif tile == 0:
                    self.k_read(f + 3 - 16, slot, 1)
                if not self.noAm:
                    e(f"v_mfma_f32_16x16x32_bf16 {d1}, {ar(64+4*(f%4),4)}, {ar(8*s+4*(1-c0),4)}, {d1 if s else 0}")
                if hops and f % 2 == 0:
                    hops[f >> 1](False)
                if (T, f) == ((0, self.obe) if self.ob.get(16) == 'early' else self.obk) and 16 in self.ob:
                    e(f"s_cmp_eq_u32 s{S_ITEM}, 0")
                    e("s_cbranch_scc1 L_nobk")
                    e("s_barrier")
                    self.stamp(self.A_ST)
                    e.lab("L_nobk")
                if f < 15:
                    n_out = 2 if (tile == 0 or f + 3 < 16) else 14 - f
                    if tile == 1 and f == 14:
                        e("s_waitcnt lgkmcnt(0)")
                        if self.fre:
                            e("s_barrier")
                            self.barA.append("FR")
                        self.barA_("KV")
                        for g in range(3):
                            if T < 15:
                                self.k_read(g, slot ^ 1, 0)
                            else:
                                self.v_read(g, 0)
                    else:
                        e(f"s_waitcnt lgkmcnt({n_out})")
            if tile == 0 and ph < 7 and self.hA:
                e(f"s_cmp_eq_u32 s{S_ITEM}, 0")
                e(f"s_cbranch_scc0 L_nox{ph}")
                for k in range(2):
                    e(f"s_add_u32 m0, s{S_XLDS}, {self.xloc(1, ph) + k*1088}")
                    e(f"s_add_u32 s{S_T0}, s{S_XG}, {k*7168 + ph*128}")
                    e(f"buffer_load_dwordx4 v{self.A_VX}, {sr(S_X,4)}, s{S_T0} offen lds")
                if ph == 0:
                    e("s_barrier")
                    self.stamp(self.A_ST)
                e.lab(f"L_nox{ph}")
            if self.dyn:
                e("s_setprio 0")
            e("s_nop 1" if T else "s_nop 7")
            if not self.noSM:
                self.softmax(T)
            if self.dyn and T < 15:
                e(f"s_setprio {self.prioA}")
        TT = self.A_T
        for cb in range(2):
            self.xlane("v_add_f32", self.A_L + cb, TT)
            e(f"v_rcp_f32 v{self.A_L+cb}, v{self.A_L+cb}")
        self.lane16(OW, 13, 11, XO_BASE)
        barA_K = list(self.barA)
        self.barA = []
        e(f"s_mov_b32 s{S_CH}, 0")
        e(f"s_mov_b32 s{S_HVC}, s{S_HV}")
        e.lab("L_chunk")
        if self.dyn:
            e(f"s_setprio {self.prioA}")
        O = self.A_S
        def epi_ops(u2):
            ops = []
            for cb in range(2):
                d = O + 16*u2 + 4*cb
                for x in list(range(d, d + 4)) + list(range(d + 8, d + 12)):
                    ops.append(lambda x=x, cb=cb: e(f"v_mul_f32 v{x}, v{x}, v{self.A_L+cb}"))
                for k, x in enumerate((d, d + 2, d + 8, d + 10)):
                    ops.append(lambda k=k, x=x, d=d: e(f"v_cvt_pk_bf16_f32 v{d+k}, v{x}, v{x+1}"))
            return ops
        epi0, nepi = epi_ops(0), [0]
        def epi_some(n):
            for op in epi0[nepi[0]:nepi[0] + n]:
                op()
            nepi[0] += n
        for half in range(2):
            if half == 1:
                e(f"s_or_b32 s{S_T0}, s{S_ITEM}, s{S_CH}")
                e(f"s_cbranch_scc1 L_noq2")
                self.q_read()
                e.lab("L_noq2")
                if self.hA:
                    e(f"s_movk_i32 s{S_HM}, 1024")
                    e(f"s_movk_i32 s{S_HGS}, 16384")
                    e(f"s_cmp_eq_u32 s{S_CH}, 3")
                    e(f"s_cselect_b64 {sr(S_HS,2)}, {sr(S_K,2)}, {sr(S_V,2)}")
                    e(f"s_cselect_b32 s{S_HM}, 1056, s{S_HM}")
                    e(f"s_cselect_b32 s{S_HGS}, 4096, s{S_HGS}")
                    e(f"s_cselect_b32 m0, s{S_KL}, s{S_VL}")
                    e(f"s_cselect_b64 vcc, -1, 0")
                    e(f"s_add_u32 s{S_T0}, s{S_HK}, 262144")
                    e(f"s_add_u32 s{S_T1}, s{S_HVC}, 128")
                    e(f"v_cndmask_b32 v{self.A_NM}, v{self.A_VV}, v{self.A_VK}, vcc")
                    e(f"s_cmp_eq_u32 s{S_CH}, 3")
                    e(f"s_cselect_b32 s{S_T1}, s{S_T0}, s{S_T1}")
                    e(f"s_mov_b32 s{S_HS+2}, 524288")
                    e(f"s_mov_b32 s{S_HS+3}, 0x20000")
                hops = self.A_Hops('G', 0, None, None)
            else:
                hops = self.A_Hops('V', 1, S_HVC, 131072)
            e("s_waitcnt lgkmcnt(4)")
            for f in range(32):
                T, u = self.v_tu(f, half)
                Tg = 8*half + T
                c0 = u & 1 if self.s22 else 0
                d0, d1 = vr(O + 8*u + 4*c0, 4), vr(O + 8*u + 4*(1 - c0), 4)
                if f < 16 and f % 2 == 0:
                    hops[f >> 1](True)
                if not self.noAm:
                    e(f"v_mfma_f32_16x16x32_bf16 {d0}, {ar(64+4*(f%4),4)}, {vr(self.A_P+8*Tg+4*c0,4)}, {d0 if Tg else 0}")
                if f + 3 < 32:
                    self.v_read(f + 3, half, (0,))
                if self.epi and half == 1 and f >= 30:
                    epi_some(2)
                if not self.noAm:
                    e(f"v_mfma_f32_16x16x32_bf16 {d1}, {ar(64+4*(f%4),4)}, {vr(self.A_P+8*Tg+4*(1-c0),4)}, {d1 if Tg else 0}")
                if f + 3 < 32:
                    self.v_read(f + 3, half, (1,))
                if self.epi and half == 1 and f >= 29:
                    epi_some(2)
                if f < 16 and f % 2 == 0:
                    hops[f >> 1](False)
                for kind, pos in (('early', self.obe), ('late', self.obf)):
                    mask = sum(1 << (4*it + cc) for it in range(2) for cc in range(1, 4) if self.ob.get(8 + 2*cc + 16*it) == kind)
                    if half == 0 and f == pos and mask:
                        e(f"s_lshl2_add_u32 s{S_T0}, s{S_ITEM}, s{S_CH}")
                        e(f"s_bitcmp1_b32 {mask}, s{S_T0}")
                        e(f"s_cbranch_scc0 L_nob{kind}")
                        e("s_barrier")
                        self.stamp(self.A_ST)
                        e.lab(f"L_nob{kind}")
                if half == 1 and f == (15 if self.hA else 4):
                    e(f"s_cmp_eq_u32 s{S_CH}, 0")
                    e("s_cbranch_scc0 L_nqb")
                    e("s_barrier")
                    self.stamp(self.A_ST)
                    e.lab("L_nqb")
                if f == 30:
                    e("s_waitcnt lgkmcnt(0)")
                    if self.fre:
                        e("s_barrier")
                        self.barA.append("FR")
                    self.barA_("KV")
                    self.stamp(self.A_ST, '@')
                    if half == 0:
                        for g in range(3):
                            self.v_read(g, 1)
                    else:
                        e(f"s_cmp_eq_u32 s{S_CH}, 3")
                        e("s_cbranch_scc1 L_nk")
                        for g in range(3):
                            self.v_read(g, 0)
                        e("s_branch L_nk2")
                        e.lab("L_nk")
                        for g in range(3):
                            self.k_read(g, 0, 0)
                        e.lab("L_nk2")
                elif f < 30:
                    e(f"s_waitcnt lgkmcnt({2*min(2, 30 - f)})")
        if self.dyn:
            e("s_setprio 0")
        if self.epi:
            for op in epi0[nepi[0]:]:
                op()
            for cb in range(2):
                e(f"ds_write_b128 v{OW}, {vr(O + 4*cb, 4)} offset:{cb*1024}")
        else:
            e("s_nop 7")
        for u2 in range(1 if self.epi else 0, 2):
            for op in epi_ops(u2):
                op()
            for cb in range(2):
                e(f"ds_write_b128 v{OW}, {vr(O + 16*u2 + 4*cb, 4)} offset:{u2*4096 + cb*1024}")
        barA_C = list(self.barA)
        e(f"s_add_u32 s{S_HVC}, s{S_HVC}, 128")
        e(f"s_add_u32 s{S_CH}, s{S_CH}, 1")
        e(f"s_cmp_lt_u32 s{S_CH}, 4")
        e("s_cbranch_scc1 L_chunk")
        e(f"s_add_u32 s{S_HK}, s{S_HK}, 262144")
        e(f"s_add_u32 s{S_HV}, s{S_HV}, 262144")
        e(f"s_add_u32 s{S_ITEM}, s{S_ITEM}, 1")
        e(f"s_cmp_lt_u32 s{S_ITEM}, 2")
        e("s_cbranch_scc1 L_item")
        seq = list(barA_pre)
        for it in range(2):
            seq += (["HX"] if it == 0 and self.hA else []) + (["OB"] if it == 1 and 16 in self.ob else []) + barA_K
            for c in range(4):
                x = list(barA_C)
                if c == 0:
                    x.insert(2 if self.fre else 1, "QB2")
                elif 8 + 2*c + 16*it in self.ob:
                    x.insert(0, "OB")
                seq += x
        e("s_waitcnt lgkmcnt(0)")
        self.barA_("OB")
        self.barA = seq + ["OB"]
        if self.prof:
            self.stamp(self.A_ST)
            e(f"s_cmp_eq_u32 s{S_W}, 0")
            e("s_cbranch_scc0 L_end")
            self.prof_store(self.A_ST, 0, 0)
        e("s_endpgm")
        self.rescale_routine()

    def prof_store(self, vreg, role, tmp):
        e = self.e
        e(f"v_mbcnt_lo_u32_b32 v{tmp}, -1, 0")
        e(f"v_mbcnt_hi_u32_b32 v{tmp}, -1, v{tmp}")
        e(f"v_lshlrev_b32 v{tmp}, 2, v{tmp}")
        e(f"s_lshl_b32 s{S_T0}, s{S_WG}, 9")
        e(f"s_add_u32 s{S_T0}, s{S_T0}, {0x3000000 + role*256}")
        e(f"buffer_store_dword v{vreg}, v{tmp}, {sr(S_WS,4)}, s{S_T0} offen")
        e(f"s_add_u32 s{S_T0}, s{S_T0}, 0x200000")
        e(f"buffer_store_dword v{self.st2[vreg]}, v{tmp}, {sr(S_WS,4)}, s{S_T0} offen")
        e("s_waitcnt vmcnt(0)")

    def stouch_wq(self, item, k0, k1, step):
        e = self.e
        if k0 >= k1:
            return
        e(f"s_lshl_b32 s{S_T0}, s{S_W}, 14")
        e(f"s_lshr_b32 s{S_T1}, s{S_B}, 4")
        e(f"s_lshl_b32 s{S_T1}, s{S_T1}, 13")
        e(f"s_add_u32 s{S_T0}, s{S_T0}, s{S_T1}")
        e(f"s_and_b32 s{S_T1}, s{S_B}, 15")
        e(f"s_lshl_b32 s{S_T1}, s{S_T1}, 6")
        e(f"s_add_u32 s{S_T0}, s{S_T0}, s{S_T1}")
        cur = 0
        for k in range(k0, k1, step):
            if k // 8 != cur:
                e(f"s_add_u32 s{S_T0}, s{S_T0}, {(k // 8 - cur)*8*65536}")
                cur = k // 8
            e(f"s_buffer_load_dword s{S_JUNK + k % 4}, {sr(S_WQ,4)}, s{S_T0} offset:{(k % 8)*65536 + item*1024}")

    def stouch_wo(self, item, k0, k1):
        e = self.e
        e(f"s_lshl_b32 s{S_T0}, s{S_W}, 11")
        e(f"s_lshl_b32 s{S_T1}, s{S_B}, 6")
        e(f"s_add_u32 s{S_T0}, s{S_T0}, s{S_T1}")
        for k in range(k0, k1):
            e(f"s_buffer_load_dword s{S_JUNK + k % 4}, {sr(S_WO,4)}, s{S_T0} offset:{k*8192 + item*458752}")

    B_OR = 128
    B_TMP = 132
    B_BF = 32
    B_WT = 160
    B_XR = 164
    B_XR0 = 165
    B_VWQ = 166
    B_VWO = 167
    B_VV = 168
    B_VK = 169
    B_VX = 170
    B_QW = 171
    B_LANE = 172
    B_TA, B_TD = 166, 167
    B_FIN, B_FOUT, B_FAI, B_FAO = 148, 149, 150, 151
    B_VWQ4 = 152
    B_VWO4 = 156
    B_ST = 175

    def setupB(self):
        e = self.e
        e(f"s_mul_i32 s{S_XLDS}, s{S_W}, {2*1088}")
        e(f"s_mul_i32 s{S_XG}, s{S_W}, {16*896}")
        g = self.dma_voffs(self.B_VX, self.B_VK, self.B_VV, self.B_VWO4, self.B_VWQ4, self.B_TMP)
        next(g)
        if not self.flate:
            self.flag_loads()
        for xp in range(2 if self.early else 7):
            for op in self.X_ops(xp, self.xloc(0, xp), "X0", self.xnt):
                op()
        e(f"s_lshl_b32 s{S_WLDS}, s{S_W}, 14")
        e(f"s_add_u32 s{S_WLDS}, s{S_WLDS}, {W_BASE}")
        e(f"s_lshl_b32 s{S_WCOL}, s{S_W}, 8")
        e(f"s_mul_i32 s{S_KLDS}, s{S_W}, {8*1056}")
        e(f"s_lshl_b32 s{S_KG}, s{S_W}, {self.ksh + 4}")
        r1, r2 = 44, 45
        if self.rot:
            e(f"s_and_b32 s{r1}, s{S_B}, 3")
            e(f"s_bfe_u32 s{r2}, s{S_B}, 0x20002")
        else:
            e(f"s_mov_b32 s{r1}, 0")
            e(f"s_mov_b32 s{r2}, 0")
        K = self.kst
        e(f"s_add_u32 s{S_VG}, s{S_W}, s{r1}")
        e(f"s_and_b32 s{S_VG}, s{S_VG}, {K - 1}")
        e(f"s_lshl_b32 s{S_VG}, s{S_VG}, 9")
        e(f"s_lshr_b32 s{S_T0}, s{S_W}, {self.ksh - 9}")
        e(f"s_lshl_b32 s{S_T0}, s{S_T0}, {self.ksh + 6}")
        e(f"s_add_u32 s{S_VG}, s{S_VG}, s{S_T0}")
        for r in range(4):
            e(f"s_add_u32 s{S_T0}, s{r1}, {r}")
            e(f"s_and_b32 s{S_T0}, s{S_T0}, {K - 1}")
            e(f"s_lshl_b32 s{S_T0}, s{S_T0}, 9")
            e(f"s_add_u32 s{S_KR+r}, s{S_KG}, s{S_T0}")
            e(f"s_add_u32 s{S_T0}, s{r2}, {r}")
            e(f"s_and_b32 s{S_T0}, s{S_T0}, 3")
            e(f"s_lshl_b32 s{S_T1}, s{S_T0}, 7")
            e(f"s_add_u32 s{S_VC+r}, s{S_VG}, s{S_T1}")
            e(f"s_mul_i32 s{S_T1}, s{S_T0}, {64*896}")
            e(f"s_add_u32 s{S_WR+r}, s{S_WCOL}, s{S_T1}")
        e(f"s_lshl_b32 s{S_VLB}, s{S_W}, 13")
        next(g)
        for pc in range(1, 4):
            e(f"v_add_u32 v{self.B_VWQ4+pc}, {(16*(pc & 1) + 4*(pc >> 1))*8192 - 1024*pc}, v{self.B_VWQ4}")

    def flag_loads(self):
        e = self.e
        e(f"v_and_b32 v{self.B_FAO}, 3, v0")
        e(f"v_lshlrev_b32 v{self.B_FAI}, 2, v{self.B_FAO}")
        e(f"s_lshl_b32 s{S_T0}, s{S_WG}, 7")
        e(f"s_add_u32 s{S_T0}, s{S_T0}, {FLAG_BASE}")
        e(f"v_add_u32 v{self.B_FAI}, s{S_T0}, v{self.B_FAI}")
        e(f"s_mul_i32 s{S_T1}, s{S_P}, 124")
        e(f"s_sub_u32 s{S_T0}, s{S_T0}, s{S_T1}")
        e(f"v_lshl_add_u32 v{self.B_FAO}, v{self.B_FAO}, 7, s{S_T0}")
        e(f"buffer_load_dword v{self.B_FIN}, v{self.B_FAI}, {sr(S_WS,4)}, 0 offen sc1")
        e(f"buffer_load_dword v{self.B_FOUT}, v{self.B_FAO}, {sr(S_WS,4)}, 0 offen sc1")
        self.vmq += ["F", "F"]

    def setupB2(self):
        e = self.e
        a, b, c = self.B_TMP, self.B_TMP + 1, self.B_TMP + 2
        self.tr_addr(self.B_WT, base_sreg=S_WLDS, t0=a, t1=b, t2=c)
        e(f"v_bfe_u32 v{a}, v0, 3, 1")
        e(f"v_mul_u32_u24 v{self.B_XR0}, 1088, v{a}")
        e(f"v_and_b32 v{a}, 7, v0")
        e(f"v_lshl_add_u32 v{self.B_XR0}, v{a}, 7, v{self.B_XR0}")
        e(f"v_lshrrev_b32 v{a}, 1, v{a}")
        e(f"v_lshrrev_b32 v{b}, 4, v0")
        e(f"v_xor_b32 v{a}, v{a}, v{b}")
        e(f"v_lshl_add_u32 v{self.B_XR0}, v{a}, 4, v{self.B_XR0}")
        e(f"v_add_u32 v{self.B_XR}, {XO_BASE}, v{self.B_XR0}")
        e(f"v_add_u32 v{self.B_XR0}, {KV_SLOT}, v{self.B_XR0}")
        for rb in range(4):
            e(f"s_add_u32 s{S_T0}, s{S_P}, {rb}")
            e(f"s_and_b32 s{S_T0}, s{S_T0}, 3")
            e(f"s_lshl_b32 s{S_T0}, s{S_T0}, 10")
            e(f"s_add_u32 s{S_T0}, s{S_T0}, {XO_BASE}")
            e(f"v_lshl_add_u32 v{self.B_OR+rb}, v0, 4, s{S_T0}")
        e(f"v_lshrrev_b32 v{a}, 5, v0")
        e(f"v_lshlrev_b32 v{a}, 8, v{a}")
        e(f"v_and_b32 v{b}, 15, v0")
        e(f"v_lshl_add_u32 v{a}, v{b}, 4, v{a}")
        e(f"v_bfe_u32 v{b}, v0, 4, 1")
        e(f"v_lshl_add_u32 v{a}, v{b}, 3, v{a}")
        e(f"v_add_u32 v{self.B_QW}, s{S_WLDS}, v{a}")
        e(f"v_mov_b32 v{self.B_LANE}, v0")
        e(f"v_min_u32 v{self.B_TA}, 27, v0")
        e(f"s_mul_i32 s{S_T0}, s{S_W}, 28")
        e(f"v_add_u32 v{self.B_TA}, s{S_T0}, v{self.B_TA}")
        e(f"v_lshlrev_b32 v{self.B_TA}, 12, v{self.B_TA}")
        e(f"s_lshl_b32 s{S_T0}, s{S_B}, 7")
        e(f"v_add_u32 v{self.B_TA}, s{S_T0}, v{self.B_TA}")
        for pc in range(1, 4):
            e(f"v_add_u32 v{self.B_VWO4+pc}, {(16*(pc >> 1) + 8*(pc & 1))*896 - 1024*pc}, v{self.B_VWO4}")

    def xloc(self, item, xp):
        if xp == 0 or (item == 1 and xp % 3 == 0):
            return KV_SLOT + 4 * X_SLOT
        if item == 1:
            return XO_BASE + (xp % 3 - 1) * X_SLOT
        if xp < 5:
            return KV_SLOT + (xp - 1) * X_SLOT
        return XO_BASE + (xp - 5) * X_SLOT

    def dma(self, lds_s, lds_imm, g_s, g_imm, vaddr, srd, tag, nt=False):
        def emit():
            e = self.e
            e(f"s_add_u32 m0, s{lds_s}, {lds_imm}")
            e(f"s_add_u32 s{S_T0}, s{g_s}, {g_imm}")
            e(f"buffer_load_dwordx4 v{vaddr}, {sr(srd,4)}, s{S_T0} offen{' nt' if nt else ''} lds")
            self.vmq.append(tag)
        return emit

    def H_ops(self, n):
        item, ph = n >> 4, n & 15
        slot = n & 1
        ops = []
        if self.noH:
            return ops
        for k in range(8):
            if ph < 8:
                ops.append(self.dma(S_KLDS, slot*KV_SLOT + k*1056, S_KR + (ph & 3), item*262144 + (ph // self.kst)*32768*self.kst + k*1024*self.kst,
                                    self.B_VK, S_K, f"H{n}", nt=True))
            else:
                c, half = (ph - 8) >> 1, ph & 1
                ops.append(self.dma(S_VLB, slot*KV_SLOT + k*1024, S_VC + c, item*262144 + half*131072 + k*4096*self.kst,
                                    self.B_VV, S_V, f"H{n}", nt=True))
        return ops

    def X_ops(self, xp, loc, tag, nt=False):
        return [self.dma(S_XLDS, loc + k*1088, S_XG, k*7168 + xp*128, self.B_VX, S_X, tag, nt=nt) for k in range(2)]

    def W_ops(self, wd, hs):
        ks, cbk = hs >> 1, hs & 1
        ops = []
        if self.noW and wd[:2] != ('Q', 0):
            return ops
        if wd[0] == 'Q':
            _, item, xp = wd
            g = 32*(2*xp + ks)*8192 + item*1024 + cbk*128
            vb, srd, gs = self.B_VWQ4, S_WQ, S_WCOL
        else:
            _, item, c, j = wd
            g = (item*512 + 256*j + 32*ks)*896 + cbk*128
            vb, srd, gs = self.B_VWO4, S_WO, S_WR + c
        for pc in range(4):
            def emit(pc=pc):
                e = self.e
                if pc == 0:
                    e(f"s_add_u32 m0, s{S_WLDS}, {hs*4096}")
                    e(f"s_add_u32 s{S_T0}, s{gs}, {g}")
                e(f"buffer_load_dwordx4 v{vb+pc}, {sr(srd,4)}, s{S_T0} offen offset:{pc*1024}{' nt' if self.wq0nt and wd[:2] == ('Q', 0) else ''} lds")
                self.vmq.append((wd, hs))
            ops.append(emit)
        return ops

    def wo_touch(self, nt):
        ops = []
        for item in self.hto:
            def tch(item=item):
                self.e(f"s_mov_b32 s{S_T0}, {item*458752}")
                self.e(f"buffer_load_dword v{self.B_TD}, v{self.B_TA}, {sr(S_WO,4)}, s{S_T0} offen{' nt' if nt else ''}")
                self.vmq.append("T")
            ops.append(tch)
        return ops

    def vmwait(self, need, extra=""):
        idx = -1
        for i, t in enumerate(self.vmq):
            if t in need:
                idx = i
        if idx < 0:
            if extra:
                self.e(f"s_waitcnt {extra}")
            return
        n = len(self.vmq) - 1 - idx
        assert n <= 63, n
        self.e(f"s_waitcnt vmcnt({n}) {extra}".rstrip())
        self.vmq = self.vmq[idx+1:]

    def barB_(self, name):
        sel = 10 <= self.curn <= 16 or 26 <= self.curn <= 32
        if sel:
            self.stamp(self.B_ST, f"@a{name}{self.curn}")
        self.e("s_barrier")
        if sel:
            self.stamp(self.B_ST, f"@{name}{self.curn}")
        self.barB[self.path].append(name)
        if self.prof != 2 or self.curn in self.fine or self.curn - 1 in self.fine:
            self.stamp(self.B_ST, name + str(self.curn))

    def hs_list(self, wd):
        if wd[0] == 'O' and self.path == 'w3':
            return [0, 2]
        return [0, 1, 2, 3]

    @staticmethod
    def kid(st):
        wd, hs = st
        return (wd[0], wd[1], 2*wd[2] + (hs >> 1)) if wd[0] == 'Q' else ('O', wd[1], 4*wd[2] + 2*wd[3] + (hs >> 1))

    def make_sched(self):
        P = {n: [] for n in range(34)}
        def fill(seq, base, cnt):
            k = 0
            for i, c in enumerate(cnt):
                P[base + i] += seq[k:k + c]
                k += c
            return seq[k:]
        assert not fill([(('Q', 1, xp), hs) for xp in range(7) for hs in range(4)], 0, self.qcnt)
        oseq = lambda it: [(('O', it, k >> 2, (k >> 1) & 1), 2*(k & 1) + cbk) for k in range(16) for cbk in range(2)]
        assert not fill(oseq(0), 10, self.o1cnt)
        P[32] = fill(oseq(1), 26, self.o2cnt)
        self.P = P
        self.ob = {}
        for it, base in ((0, 10), (1, 26)):
            for c in range(4):
                wp = base + 2*c
                use = [i for i, (wd, hs) in enumerate(P[wp]) if wd[:3] == ('O', it, c)]
                for n in range(wp):
                    assert not any(wd[:3] == ('O', it, c) for wd, hs in P[n])
                if use:
                    self.ob[wp] = 'early' if use[0] == 0 else 'late'
        self.xfirst, xlast = {}, {}
        for n in range(9):
            for wd, hs in P[n]:
                self.xfirst.setdefault(wd[2], n)
                xlast[wd[2]] = n
        del self.xfirst[0]
        for xp, n in self.xfirst.items():
            assert n >= 1 and (xp < 3 or xlast[xp - 3] < n - 1), (xp, n)

    def bfi(self, k):
        return k[2] % (4 if k[:2] == ('O', 0) else 3)

    def bfreg(self, k, cb4):
        b = self.bfi(k)
        return vr(self.B_TMP + 4*cb4, 4) if b == 3 else ar(self.B_BF + 16*b + 4*cb4, 4)

    def sched(self, n):
        return [st for st in self.P[n] if not (self.path == 'w3' and st[0][0] == 'O' and st[1] & 1)]

    def bf_reads(self, st):
        wd, hs = st
        k = self.kid(st)
        if k in self.bfl:
            return []
        self.bfl.add(k)
        ks = hs >> 1
        e = self.e
        ops = []
        for cb4 in range(4):
            d = self.bfreg(k, cb4)
            if wd[0] == 'Q':
                loc = self.xloc(wd[1], wd[2])
                reg = self.B_XR if loc >= XO_BASE else self.B_XR0
                off = (loc - XO_BASE if loc >= XO_BASE else loc - KV_SLOT) + cb4*2176 + ks*64
            else:
                reg = self.B_OR + cb4
                off = (2*wd[3] + ks)*4096
            ops.append(lambda d=d, off=off, reg=reg: e(f"ds_read_b128 {d}, v{reg} offset:{off}"))
        return ops

    def w_reads(self, hs, i):
        e = self.e
        ops = []
        for u in range(4):
            for t in range(2):
                d = ar(16*(i & 1) + 4*u + 2*t, 2)
                off = hs*4096 + t*2048
                ops.append(lambda d=d, off=off, u=u: e(f"ds_read_b64_tr_b16 {d}, v{self.B_WT+u} offset:{off}"))
        return ops

    def needs_ob(self, st):
        wd, hs = st
        return wd[0] == 'O' and wd[3] == 0 and hs == 0 and self.curn == (10, 26)[wd[1]] + 2*wd[2]

    def run_steps(self, steps, per_step, preload=(), upfront=()):
        e = self.e
        if self.boost:
            e(f"s_setprio {self.boost}")
        if self.wpre != steps[0]:
            self.vmwait([steps[0]])
            for op in self.w_reads(steps[0][1], 0):
                op()
        if self.needs_ob(steps[0]):
            for op in upfront:
                op()
            upfront = ()
            self.barB_("OB")
        for op in self.bf_reads(steps[0]):
            op()
        for op in upfront:
            op()
        if self.boost:
            e(f"s_setprio {self.prioB}")
        late = []
        for i, (wd, hs) in enumerate(steps):
            ks, cbk = hs >> 1, hs & 1
            kk = self.kid(steps[i])
            kb = self.bfi(kk)
            others = []
            nx = steps[i+1] if i + 1 < len(steps) else None
            if nx:
                self.vmwait([nx], "lgkmcnt(0)")
                if not self.needs_ob(nx):
                    others += self.bf_reads(nx)
                others += self.w_reads(nx[1], i + 1)
            else:
                e("s_waitcnt lgkmcnt(0)")
                for st in preload:
                    if self.bfi(self.kid(st)) != kb:
                        others += self.bf_reads(st)
                    else:
                        late += self.bf_reads(st)
            others += per_step(i)
            zero = ks == 0 and ((wd[0] == 'Q' and wd[2] == 0) or wd == ('O', 0, 0, 0))
            k = 0
            for u, cb4 in (S22 if self.s22 else [(u, c) for u in range(4) for c in range(4)]):
                d = vr(64*cbk + 16*u + 4*cb4, 4)
                if not (self.noBm and wd[:2] != ('Q', 0)):
                    e(f"v_mfma_f32_16x16x32_bf16 {d}, {ar(16*(i&1)+4*u,4)}, {self.bfreg(kk, cb4)}, {0 if zero else d}")
                if k < len(others):
                    others[k](); k += 1
            while k < len(others):
                others[k](); k += 1
            if nx and self.needs_ob(nx):
                if self.boost:
                    e(f"s_setprio {self.boost}")
                self.barB_("OB")
                for op in self.bf_reads(nx):
                    op()
                if self.boost:
                    e(f"s_setprio {self.prioB}")
        for op in late:
            op()

    def q_ops(self, cbk):
        e = self.e
        t = self.B_TMP
        ops = []
        for u in range(4):
            for cb4 in range(4):
                def op(u=u, cb4=cb4):
                    a = 64*cbk + 16*u + 4*cb4
                    d = t + 2*((4*u + cb4) % 8)
                    e(f"v_cvt_pk_bf16_f32 v{d}, v{a}, v{a+1}")
                    e(f"v_cvt_pk_bf16_f32 v{d+1}, v{a+2}, v{a+3}")
                    off = (cb4*4 + 2*cbk + (u >> 1))*1024 + (u & 1)*512
                    e(f"ds_write_b64 v{self.B_QW}, {vr(d,2)} offset:{off}")
                ops.append(op)
        return ops

    def q_write(self, cbks=(0, 1)):
        e = self.e
        e("s_nop 7" if cbks == (0, 1) else "s_nop 3")
        for cbk in cbks:
            for op in self.q_ops(cbk):
                op()
        e("s_waitcnt lgkmcnt(0)")

    def periodB(self, n):
        e = self.e
        self.curn = n
        steps = self.sched(n)
        nxt = self.sched(n + 1) if n < 32 else []
        self.vmwait([f"H{n}"] + [f"X1_{xp}" for xp, m in self.xfirst.items() if m == n])
        self.barB_("KV0" if n == 0 else "KV")
        hx = []
        if n + 1 <= 31 and not (n == 0 and self.h1h):
            hx += self.H_ops(n + 1)[self.hdone.get(n + 1, 0):]
        for xp, m in self.xfirst.items():
            if m == n + 1:
                hx += self.X_ops(xp, self.xloc(1, xp), f"X1_{xp}", self.x2nt)
        if n == 0:
            for st in steps:
                for op in self.W_ops(*st):
                    op()
        if not steps:
            for op in hx:
                op()
        if n == 8 and not steps:
            self.q_write()
        if n in (9, 25):
            self.barB_("QB2")
        todo = list(nxt[:len({hs for _, hs in nxt})])
        pre = []
        for it, base in ((0, 10), (1, 26)):
            for c in range(4):
                if n + 1 == (base + 2*c + 2 if c < 3 else (26 if it == 0 else -1)):
                    rest = [st for m in range(n + 1, 33) for st in self.sched(m) if st[0][:3] == ('O', it, c) and not st[1] & 1]
                    pre += rest
        if steps:
            def per(i):
                if n == 32:
                    rest = [st for st in steps[i+1:] if st[1] == steps[i][1]]
                    if self.tailov and self.path == 'main' and i == len(steps) - 2:
                        return [self.pub_setup]
                    if self.tailov and self.path == 'main' and i == len(steps) - 1:
                        return [lambda: None]*3 + self.pub_ops(0)
                    return self.W_ops(*rest[0]) if rest else []
                free = {hs for _, hs in steps[:i+1-self.lag]} | ({0, 1, 2, 3} - {hs for _, hs in steps})
                r = []
                if inter and i < 2:
                    nh = (len(hx) + 1)//2 if (i == 0 and len(steps) > 2) else len(hx)
                    r += hx[:nh]
                    del hx[:nh]
                while todo and todo[0][1] in free and i >= self.rin:
                    r += self.W_ops(*todo.pop(0))
                if n == 8 and i == len(steps) - 1:
                    r += self.q_ops(0)
                return r
            a_epi = n in (10, 12, 14, 16, 26, 28, 30)
            inter = self.hint and a_epi and not self.needs_ob(steps[0])
            last_k = self.kid(steps[-1])
            newk = [self.kid(st) for st in pre if self.kid(st) not in self.bfl and self.kid(st) not in map(self.kid, steps)]
            live = {self.kid(st) for m in range(n + 1, 33) for st in self.sched(m) if self.kid(st) in self.bfl or self.kid(st) in map(self.kid, steps)}
            bufs = [self.bfi(k) for k in newk] + [self.bfi(k) for k in live]
            assert len(bufs) == len(set(bufs)), (n, newk, live)
            self.run_steps(steps, per, pre, [] if inter else hx)
            if n == 8:
                self.q_write((1,))
        else:
            assert all(self.kid(st) in self.bfl for st in pre)
        for st in todo:
            for op in self.W_ops(*st):
                op()
        if pre:
            e("s_waitcnt lgkmcnt(0)")
        if self.fre and n < 32:
            e("s_barrier")
            self.barB[self.path].append("FR")
            if n + 2 <= 31:
                k = "H%d" % (n + 1)
                after = len(self.vmq) - 1 - max([i for i, t in enumerate(self.vmq) if t == k], default=-1)
                if self.path == 'main':
                    self.hdone[n + 2] = max(0, min(8, (self.cap - 4*after)//4))
                for op in self.H_ops(n + 2)[:self.hdone[n + 2]]:
                    op()
        if self.pre_rd and nxt and n + 1 in (12, 14, 16, 28, 30, 32) and self.kid(nxt[0]) in self.bfl:
            self.vmwait([f"H{n+1}", nxt[0]])
            for op in self.w_reads(nxt[0][1], 0):
                op()
            self.wpre = nxt[0]

    def epilogue_v1(self):
        e = self.e
        t = self.B_TMP
        e("s_nop 7")
        e(f"v_lshlrev_b32 v{t}, 4, v{self.B_LANE}")
        e(f"s_lshl_b32 s{S_T1}, s{S_WG}, 17")
        e(f"s_lshl_b32 s{S_T0}, s{S_W}, 15")
        e(f"s_add_u32 s{S_T1}, s{S_T1}, s{S_T0}")
        for cbk in range(1 if self.path == 'w3' else 2):
            for u in range(4):
                e(f"s_add_u32 s{S_T0}, s{S_T1}, {(cbk*4+u)*4096}")
                for cb4 in range(4):
                    e(f"buffer_store_dwordx4 {vr(64*cbk+16*u+4*cb4,4)}, v{t}, {sr(S_WS,4)}, s{S_T0} offen offset:{cb4*1024}")

    def pub_setup(self):
        e = self.e
        slot = 32768 if self.f32 else 16384
        e(f"v_lshlrev_b32 v{self.B_TMP}, 4, v{self.B_LANE}")
        e(f"s_and_b32 s{S_T1}, s{S_WG}, 0xfc")
        e(f"s_mul_i32 s{S_T1}, s{S_T1}, {4*slot}")
        e(f"s_mul_i32 s{S_T0}, s{S_W}, {slot // 4}")
        e(f"s_add_u32 s{S_T1}, s{S_T1}, s{S_T0}")
        e(f"s_mul_i32 s2, s{S_P}, {slot}")
        e(f"s_add_u32 s2, s2, s{S_T1}")
        for rb in (1, 2, 3):
            e(f"s_add_u32 s{S_T0}, s{S_P}, {rb}")
            e(f"s_and_b32 s{S_T0}, s{S_T0}, 3")
            e(f"s_mul_i32 s{S_T0}, s{S_T0}, {4*slot}")
            e(f"s_add_u32 s{S_KR+rb}, s{S_T0}, s2")

    def pub_ops(self, cbk):
        e = self.e
        L16, D, fl = self.B_TMP, self.B_TMP + 4, self.pfl
        ops = []
        if self.f32:
            for u in range(4):
                for rb in (1, 2, 3):
                    def op(u=u, rb=rb):
                        e(f"s_add_u32 s{S_T0}, s{S_KR+rb}, {cbk*4096}")
                        e(f"buffer_store_dwordx4 {vr(64*cbk+16*u+4*rb,4)}, v{L16}, {sr(S_WS,4)}, s{S_T0} offen offset:{u*1024} {fl}")
                    ops.append(op)
            return ops
        n = 0
        for u2 in range(2):
            for rb in (1, 2, 3):
                d = D + 4*(n % 3); n += 1
                a0 = 64*cbk + 32*u2 + 4*rb
                ops.append(lambda d=d, a0=a0: (e(f"v_cvt_pk_bf16_f32 v{d}, v{a0}, v{a0+1}"), e(f"v_cvt_pk_bf16_f32 v{d+1}, v{a0+2}, v{a0+3}")))
                ops.append(lambda d=d, a0=a0, rb=rb, u2=u2: (e(f"v_cvt_pk_bf16_f32 v{d+2}, v{a0+16}, v{a0+17}"), e(f"v_cvt_pk_bf16_f32 v{d+3}, v{a0+18}, v{a0+19}"),
                           e(f"buffer_store_dwordx4 {vr(d,4)}, v{L16}, {sr(S_WS,4)}, s{S_KR+rb} offen offset:{(2*cbk+u2)*1024} {fl}")))
        return ops

    def epilogue_fused(self):
        e = self.e
        t = self.B_TMP
        L16, OA = t, t + 1
        D = t + 4
        ncbk = 1 if self.path == 'w3' else 2
        slot = 32768 if self.f32 else 16384
        self.stamp(self.B_ST)
        ov = self.tailov and ncbk == 2
        if not ov:
            self.pub_setup()
        e("s_nop 7")
        for cbk in range(1 if ov else 0, ncbk):
            for op in self.pub_ops(cbk):
                op()
        e(f"v_and_b32 v{OA}, 15, v{self.B_LANE}")
        e(f"v_mul_u32_u24 v{OA}, 1792, v{OA}")
        e(f"v_lshrrev_b32 v{t+2}, 4, v{self.B_LANE}")
        e(f"v_lshl_add_u32 v{OA}, v{t+2}, 3, v{OA}")
        e("s_waitcnt vmcnt(0)")
        e("s_barrier")
        self.stamp(self.B_ST)
        if self.path == 'main':
            e(f"s_cmp_eq_u32 s{S_W}, 0")
            e("s_cbranch_scc0 L_nopoll")
            e(f"v_add_u32 v{self.B_FOUT}, 1, v{self.B_FOUT}")
            e("s_mov_b64 exec, 15")
            e(f"buffer_store_dword v{self.B_FOUT}, v{self.B_FAO}, {sr(S_WS,4)}, 0 offen sc1")
            e(f"s_mov_b32 s{S_CH}, 0")
            e.lab("L_poll")
            e(f"buffer_load_dword v{t+2}, v{self.B_FAI}, {sr(S_WS,4)}, 0 offen sc1")
            e(f"s_add_u32 s{S_CH}, s{S_CH}, 1")
            e("s_waitcnt vmcnt(0)")
            e(f"v_cmp_eq_u32 vcc, v{t+2}, v{self.B_FIN}")
            e("s_nop 0")
            e("s_cbranch_vccz L_polled")
            e(f"s_cmp_lt_u32 s{S_CH}, 0x20000")
            e("s_cbranch_scc1 L_poll")
            e.lab("L_polled")
            e("s_mov_b64 exec, -1")
            e.lab("L_nopoll")
        e("s_barrier")
        self.stamp(self.B_ST)
        e(f"s_mul_i32 s2, s{S_P}, {4*slot}")
        e(f"s_add_u32 s2, s2, s{S_T1}")
        for rb in (1, 2, 3):
            e(f"s_add_u32 s{S_T0}, s{S_P}, {rb}")
            e(f"s_and_b32 s{S_T0}, s{S_T0}, 3")
            e(f"s_mul_i32 s{S_T0}, s{S_T0}, {slot}")
            e(f"s_add_u32 s{S_T0}, s{S_T0}, s2")
            for cbk in range(ncbk):
                if self.f32:
                    if cbk:
                        e(f"s_add_u32 s{S_T0}, s{S_T0}, 4096")
                    for u in range(4):
                        e(f"buffer_load_dwordx4 {vr(64*cbk+16*u+4*rb,4)}, v{L16}, {sr(S_WS,4)}, s{S_T0} offen offset:{u*1024} {self.lfl}")
                else:
                    for u2 in range(2):
                        e(f"buffer_load_dwordx4 {vr(64*cbk+32*u2+4*rb,4)}, v{L16}, {sr(S_WS,4)}, s{S_T0} offen offset:{(2*cbk+u2)*1024} {self.lfl}")
        e(f"s_mul_i32 s2, s{S_B}, {64*1792}")
        e(f"s_mul_i32 s3, s{S_P}, {16*1792}")
        e(f"s_add_u32 s2, s2, s3")
        e(f"s_mul_i32 s3, s{S_BR}, 896")
        e(f"s_add_u32 s2, s2, s3")
        e(f"s_add_u32 s2, s2, s{S_WCOL}")
        e("s_waitcnt vmcnt(0)")
        for cbk in range(ncbk):
            for u in range(4):
                a = 64*cbk + 16*u
                for rb in (1, 2, 3):
                    if self.f32:
                        for r in range(4):
                            e(f"v_add_f32 v{a+r}, v{a+r}, v{a+4*rb+r}")
                    else:
                        src = 64*cbk + 32*(u >> 1) + 4*rb + 2*(u & 1)
                        for h in range(2):
                            e(f"v_lshlrev_b32 v{D+2*h}, 16, v{src+h}")
                            e(f"v_and_b32 v{D+2*h+1}, 0xffff0000, v{src+h}")
                        e(f"v_pk_add_f32 {vr(a,2)}, {vr(a,2)}, {vr(D,2)}")
                        e(f"v_pk_add_f32 {vr(a+2,2)}, {vr(a+2,2)}, {vr(D+2,2)}")
                e(f"v_cvt_pk_bf16_f32 v{a}, v{a}, v{a+1}")
                e(f"v_cvt_pk_bf16_f32 v{a+1}, v{a+2}, v{a+3}")
                e(f"buffer_store_dwordx2 {vr(a,2)}, v{OA}, {sr(S_OUT,4)}, s2 offen offset:{cbk*128+u*32} {self.ofl}".rstrip())

    def endB(self):
        e = self.e
        if self.fuse:
            self.epilogue_fused()
        else:
            self.epilogue_v1()
        if self.prof:
            e("s_waitcnt vmcnt(0)")
            self.stamp(self.B_ST)
            if self.path == 'main':
                e(f"s_cmp_eq_u32 s{S_W}, 0")
                e("s_cbranch_scc0 L_end")
                self.prof_store(self.B_ST, 1, 0)
        e("s_endpgm")

    def streamB(self):
        e = self.e
        e.lab("L_B")
        self.vmq = []
        self.deferred = []
        self.path = 'main'
        self.barB = {'main': [], 'w3': []}
        self.stamp(self.B_ST)
        self.setupB()
        for hs in range(4):
            for op in self.W_ops(('Q', 0, 0), hs):
                op()
        self.setupB2()
        if self.early:
            for xp in range(2, 7):
                for op in self.X_ops(xp, self.xloc(0, xp), "X0b", self.xnt):
                    op()
        if self.flate:
            self.flag_loads()
        self.stamp(self.B_ST)
        self.vmwait(["X0"])
        self.barB_("HB")
        steps = [(('Q', 0, h), hs) for h in range(7) for hs in range(4)]
        H0 = self.H_ops(0)
        if self.h1h:
            assert self.early and self.hdef is None and not self.hto
            H0 = H0 + self.H_ops(1)
        def per(i):
            if i % 2 == 1 and self.prof != 2:
                self.stamp(self.B_ST, f"h{i}")
            if i == 6 and self.early:
                assert "X0b" not in self.vmq
                return self.W_ops(*steps[i + 4]) + [lambda: self.barB_("HB2")]
            if i == 23 and self.h1h:
                return self.W_ops(*steps[i + 4]) + [lambda: self.barB_("HB3")]
            if i >= 24 and self.h1h:
                return H0[4*(i - 24):4*(i - 24) + 4]
            if i + 4 < 28:
                return self.W_ops(*steps[i + 4])
            if self.hdef is not None:
                tt = self.wo_touch(False)
                return (tt if self.hdef == i else []) + H0[2*(i - 24):2*(i - 24) + 2] + (tt if self.hdef == i + 1 == 28 else [])
            return (self.wo_touch(True) if i == 24 else []) + H0[2*(i - 24):2*(i - 24) + 2]
        def per2(i):
            return per(i) + (self.q_ops(0) if self.qov and i == 27 else [])
        self.run_steps(steps, per2)
        self.q_write((1,) if self.qov else (0, 1))
        for op in (self.wo_touch(False) if self.hdef is None else []):
            op()
        self.barB_("QB1")
        for n in range(9):
            self.periodB(n)
        e(f"s_cmp_eq_u32 s{S_W}, 3")
        e("s_cbranch_scc1 L_B3")
        save = list(self.vmq)
        save_bfl = set(self.bfl)
        assert not self.deferred
        self.barB['w3'] = list(self.barB['main'])
        for n in range(9, 33):
            self.periodB(n)
        self.endB()
        e.lab("L_B3")
        self.path = 'w3'
        self.vmq = save
        self.bfl = save_bfl
        self.wpre = None
        self.deferred = []
        for n in range(9, 33):
            self.periodB(n)
        self.endB()

    def reduce_kernel(self):
        e = self.e
        e(".globl red_kernel")
        e(".p2align 8")
        e(".type red_kernel,@function")
        e.lab("red_kernel")
        e("s_cmp_ge_u32 s2, 1792")
        e("s_cbranch_scc1 L_rend")
        e("s_load_dwordx2 s[4:5], s[0:1], 96")
        e("s_load_dwordx2 s[8:9], s[0:1], 80")
        e("s_mul_hi_u32 s12, s2, 153391690")
        e("s_mul_i32 s13, s12, 28")
        e("s_sub_u32 s13, s2, s13")
        e("s_and_b32 s14, s12, 1")
        e("s_lshr_b32 s15, s12, 1")
        e("s_lshl_b32 s16, s15, 3")
        e("s_lshl_b32 s17, s14, 2")
        e("s_add_u32 s16, s16, s17")
        e("s_lshl_b32 s16, s16, 17")
        e("s_lshl_b32 s17, s13, 12")
        e("s_add_u32 s16, s16, s17")
        e("v_lshlrev_b32 v1, 4, v0")
        e("s_mov_b32 s6, 67108864")
        e("s_mov_b32 s7, 0x20000")
        e("s_mov_b32 s10, 3670016")
        e("s_mov_b32 s11, 0x20000")
        e("s_waitcnt lgkmcnt(0)")
        for p in range(4):
            e(f"buffer_load_dwordx4 {vr(4+4*p,4)}, v1, s[4:7], s16 offen")
            e("s_add_u32 s16, s16, 131072")
        e("v_lshrrev_b32 v2, 6, v0")
        e("v_lshlrev_b32 v2, 4, v2")
        e("v_and_b32 v3, 15, v0")
        e("v_add_u32 v2, v2, v3")
        e("v_mul_u32_u24 v2, 1792, v2")
        e("v_bfe_u32 v3, v0, 4, 2")
        e("v_lshl_add_u32 v2, v3, 3, v2")
        e("s_mul_i32 s15, s15, 114688")
        e("s_mul_i32 s14, s14, 896")
        e("s_add_u32 s15, s15, s14")
        e("s_lshl_b32 s13, s13, 5")
        e("s_add_u32 s15, s15, s13")
        e("s_waitcnt vmcnt(0)")
        for r in range(4):
            e(f"v_add_f32 v{4+r}, v{4+r}, v{8+r}")
            e(f"v_add_f32 v{12+r}, v{12+r}, v{16+r}")
            e(f"v_add_f32 v{4+r}, v{4+r}, v{12+r}")
        e("v_cvt_pk_bf16_f32 v4, v4, v5")
        e("v_cvt_pk_bf16_f32 v5, v6, v7")
        e("buffer_store_dwordx2 v[4:5], v2, s[8:11], s15 offen")
        e.lab("L_rend")
        e("s_endpgm")

    def build(self):
        e = self.e
        out = [HEADER.rstrip()]
        if self.fuse:
            out.append(f"; @launch grid=(256,1,1) block=(512,1,1) lds={LDS_BYTES}")
        else:
            out.append(f"; @launch kernel={NAME}_kernel grid=(256,1,1) block=(512,1,1) lds={LDS_BYTES}")
            out.append(f"; @launch kernel=red_kernel grid=(1792,1,1) block=(256,1,1) lds=0")
        out.append('.amdgcn_target "amdgcn-amd-amdhsa--gfx950"')
        out.append(".text")
        out.append(f".globl {NAME}_kernel")
        out.append(".p2align 8")
        out.append(f".type {NAME}_kernel,@function")
        out.append(f"{NAME}_kernel:")
        self.prologue()
        self.streamB()
        self.path = None
        e.lab("L_A")
        self.streamA()
        e.lab("L_end")
        e("s_endpgm")
        if not self.fuse:
            self.reduce_kernel()
        assert self.barA == self.barB['main'] == self.barB['w3'], (self.barA, self.barB)
        if self.prof:
            out.insert(1, f"; NST {44 if self.prof == 4 else len(self.barA)+2} {len(self.namesB)} " + " ".join(self.namesB))
        out.append(e.text())
        out.append('.section .rodata,"a"')
        def kd(name, v, s, acc):
            return f""".p2align 6
.amdhsa_kernel {name}
  .amdhsa_next_free_vgpr {v}
  .amdhsa_next_free_sgpr {s}
  .amdhsa_accum_offset {acc}
  .amdhsa_group_segment_fixed_size 0
  .amdhsa_kernarg_size 104
  .amdhsa_user_sgpr_count 2
  .amdhsa_user_sgpr_kernarg_segment_ptr 1
  .amdhsa_system_sgpr_workgroup_id_x 1
.end_amdhsa_kernel"""
        out.append(kd(f"{NAME}_kernel", 256, 96, 176))
        if not self.fuse:
            out.append(kd("red_kernel", 24, 32, 24))
        return "\n".join(out) + "\n"


if __name__ == "__main__":
    kw = {}
    path = None
    for a in sys.argv[1:]:
        if "=" in a:
            k, v = a.split("=")
            kw[k] = eval(v)
        else:
            path = a
    txt = Gen(**kw).build()
    open(path or f"cdna_kernels/{NAME}.s", "w").write(txt)
    print("lines", txt.count("\n"), "bytes", len(txt))
```

```python
import sys, math

NAME = "concat_heads__gqa_block_cached__gqa_block_cached__near_ridge"
HEADER = open("cdna_kernels/%s.s.ref" % NAME).read().split("; Override launch")[0]

KV_SLOT = 33792
W_BASE = KV_SLOT + 5 * 8704
XO_BASE = W_BASE + 65536
X_SLOT = 8704
FLAG_BASE = 0x2800000
LDS_BYTES = XO_BASE + 2 * X_SLOT

S_X, S_K, S_V, S_WQ, S_WO, S_OUT, S_WS = 4, 8, 12, 16, 20, 24, 28
S_W = 60
S_B = 61
S_P = 62
S_BR = 63
S_T0, S_T1 = 64, 65
S_WLDS = 66
S_WCOL = 67
S_KLDS = 68
S_KG = 69
S_VG = 70
S_KR, S_VC, S_WR = 32, 36, 40
S_VLB = 77
S_XLDS = 71
S_XG = 72
S_HK, S_HV, S_KL, S_VL, S_HVC = 66, 67, 68, 69, 70
S_HS = 32
S_HM, S_HGS = 36, 37
S_C = 73
S_THR = 74
S_ITEM = 75
S_CH = 76
S_RET = 78
S_STAMP = 80
S_SIDX = 82
S_WG = 83
S_DBG = 88
S_JUNK = 92


S22 = [(0,0),(0,1),(1,1),(1,0),(2,0),(2,1),(3,1),(3,0),(3,2),(3,3),(2,3),(2,2),(1,2),(1,3),(0,3),(0,2)]


class Em:
    def __init__(self):
        self.l = []
    def __call__(self, s):
        self.l.append(s)
    def lab(self, s):
        self.l.append(s + ":")
    def text(self):
        return "\n".join(self.l)


def vr(a, n=1):
    return f"v{a}" if n == 1 else f"v[{a}:{a+n-1}]"
def ar(a, n=1):
    return f"a{a}" if n == 1 else f"a[{a}:{a+n-1}]"
def sr(a, n=1):
    return f"s{a}" if n == 1 else f"s[{a}:{a+n-1}]"


class Gen:
    def __init__(self, prof=False, prioA=1, npostQ=10, npostO=12, npre=6, fuse=True, pfl='sc1', f32=False, xnt=False, rin=1, nearlyQ=0, nearlyO=0, shift=1, lag=1, boost=2, hA=False, obf=26, obk=(1, 8), pre1=36, tailov=True, dropr=(0, 99), vt0=1, vto=False, xpromo=False, early=True, pre2=76, bto=False, hto=(), rot=True, chA=True, flate=False, tlate=False, epi=True, kst=4, s22=True, fre=False, cap=48, ctouch=True, qcnt=(2,2,2,3,4,4,4,4,3), o1cnt=(2,2,2,2,4,4,0,2,2,2,2,2,2,2,2), o2cnt=(2,2,3,3,4,4), obe=3, h1h=False, pre3=150, nolt=False, hdef=None, spread=True, pre_rd=True, qov=True, x2nt=True, wq0nt=False, tp1=20, lfl='sc1', ofl='', drop=0, hint=True, wo1A=56, dyn=True, prioB=1, noH=False, noW=False, noSM=False, noBm=False, noAm=False, tnt=False):
        self.e = Em()
        self.prof = prof
        self.prioA = prioA
        self.npostQ, self.npostO, self.npre, self.pfl, self.f32 = npostQ, npostO, npre, pfl, f32
        self.fuse = fuse
        self.chA = chA
        assert chA
        self.kst = kst
        self.ksh = {1: 9, 2: 10, 4: 11}[kst]
        self.flate, self.tlate, self.epi = flate, tlate, epi
        self.s22 = s22
        self.fre, self.cap = fre, cap
        self.hdone = {}
        self.ctouch = ctouch
        self.qcnt, self.o1cnt, self.o2cnt, self.obe = qcnt, o1cnt, o2cnt, obe
        self.make_sched()
        self.h1h, self.pre3 = h1h, pre3
        self.nolt = nolt
        self.hdef, self.spread, self.pre_rd, self.qov = hdef, spread, pre_rd, qov
        if hdef is not None:
            vto, hto = False, (1,)
        self.hto, self.rot = hto, rot
        self.bto, self.x2nt, self.wq0nt, self.tp1 = bto, x2nt, wq0nt, tp1
        self.early, self.pre2 = early, pre2
        self.xpromo = xpromo
        self.vt0, self.vto, self.lfl, self.ofl = vt0, vto, lfl, ofl
        self.drop = drop
        self.dropr = dropr
        self.obk, self.pre1, self.tailov = obk, pre1, tailov
        self.dyn = dyn
        self.prioB = prioB if dyn else 0
        if dyn:
            prioA, boost = 2, (3 if boost else 0)
            self.prioA = 2
        self.wo1A = wo1A
        self.hA, self.obf, self.hint = hA, obf, hint
        self.lag, self.boost = lag, boost
        self.xnt, self.rin, self.nearlyQ, self.nearlyO, self.shift = xnt, rin, nearlyQ, nearlyO, shift
        self.noH, self.noW, self.noSM, self.noBm, self.noAm = noH, noW, noSM, noBm, noAm
        self.tfl = ' nt' if tnt else ''
        self.barA = []
        self.barB = {}
        self.st2 = {175: 174}
        self.namesB = []
        self.curn = -1
        self.wpre = None
        self.bfl = set()
        self.fine = (3, 4, 12, 13, 14, 29)

    def stamp(self, vreg, name="."):
        e = self.e
        if not self.prof:
            return
        if self.prof in (4, 5) and not name.startswith('@'):
            return
        if self.prof == 4 and getattr(self, 'path', None) is not None:
            return
        if self.prof == 5 and getattr(self, 'path', None) is None:
            return
        if self.prof == 6 and (getattr(self, 'path', None) is None or not (name.startswith('KV') or name in ('.', 'HB-1', 'QB1-1'))):
            return
        if self.prof == 7 and (getattr(self, 'path', None) is None or name not in ('.', 'KV00', 'KV8', 'KV16', 'KV24', 'KV32')):
            return
        if self.prof == 8 and (getattr(self, 'path', None) is None or not (name[0] in '.hHQ' or name in ('KV00', 'KV1', 'KV2', 'KV32'))):
            return
        if self.prof == 3 and (getattr(self, 'path', None) is None or not (name in ('.', 'HB-1', 'HB2-1', 'QB1-1', 'KV00', 'KV1', 'KV8', 'KV10', 'KV16', 'KV19', 'KV24', 'KV26', 'KV32', 'OB32'))):
            return
        if getattr(self, 'path', None) == 'main':
            self.namesB.append(name)
        e(f"s_memrealtime {sr(S_STAMP,2)}")
        e(f"s_memtime {sr(S_STAMP+4,2)}")
        e("s_waitcnt lgkmcnt(0)")
        e(f"s_mov_b32 m0, s{S_SIDX}")
        e(f"v_writelane_b32 v{vreg}, s{S_STAMP}, m0")
        e(f"v_writelane_b32 v{self.st2[vreg]}, s{S_STAMP+4}, m0")
        e(f"s_add_u32 s{S_SIDX}, s{S_SIDX}, 1")

    def prologue(self):
        e = self.e
        e("s_cmp_ge_u32 s2, 256")
        e("s_cbranch_scc1 L_end")
        e("s_load_dwordx16 s[32:47], s[0:1], 0")
        e("s_load_dwordx8 s[48:55], s[0:1], 64")
        e("s_load_dwordx2 s[56:57], s[0:1], 96")
        e(f"v_lshrrev_b32 v1, 6, v0")
        e(f"s_mov_b32 s{S_WG}, s2")
        e(f"s_and_b32 s{S_P}, s2, 3")
        e(f"v_readfirstlane_b32 s3, v1")
        e(f"s_lshr_b32 s{S_B}, s2, 3")
        e(f"s_bfe_u32 s{S_BR}, s2, 0x10002")
        e(f"s_mov_b32 s{S_SIDX}, 0")
        e("v_and_b32 v0, 63, v0")
        e(f"s_and_b32 s{S_W}, s3, 3")
        if self.ctouch:
            e(f"s_cmp_eq_u32 s3, 1")
            e("s_cbranch_scc0 L_noct")
            e(f"s_getpc_b64 s[58:59]")
            e.lab("L_pc")
            e(f"s_sub_u32 s58, s58, L_pc-{NAME}_kernel")
            e(f"s_subb_u32 s59, s59, 0")
            e(f"v_lshl_add_u32 v2, v0, 5, s{S_B}")
            e(f"v_lshlrev_b32 v2, 7, v2")
            e(f"v_min_u32 v2, L_end-{NAME}_kernel, v2")
            e(f"v_mov_b32 v3, s59")
            e(f"v_add_co_u32 v2, vcc, s58, v2")
            e("s_nop 1")
            e(f"v_addc_co_u32 v3, vcc, 0, v3, vcc")
            e(f"global_load_dword v4, v[2:3], off")
            e.lab("L_noct")
        e("s_waitcnt lgkmcnt(0)")
        e("s_bitcmp1_b32 s2, 2")
        e(f"s_cselect_b64 {sr(S_X,2)}, s[42:43], s[32:33]")
        e(f"s_cselect_b64 {sr(S_K,2)}, s[44:45], s[34:35]")
        e(f"s_cselect_b64 {sr(S_V,2)}, s[46:47], s[36:37]")
        e(f"s_cselect_b64 {sr(S_WQ,2)}, s[48:49], s[38:39]")
        e(f"s_cselect_b64 {sr(S_WO,2)}, s[50:51], s[40:41]")
        def addbase(srd, sreg):
            e(f"s_add_u32 s{srd}, s{srd}, s{sreg}")
            e(f"s_addc_u32 s{srd+1}, s{srd+1}, 0")
        e(f"s_mul_i32 s{S_T0}, s{S_B}, 57344")
        addbase(S_X, S_T0)
        e(f"s_lshl_b32 s{S_T0}, s{S_B}, 21")
        e(f"s_lshl_b32 s{S_T1}, s{S_P}, 19")
        e(f"s_add_u32 s{S_T0}, s{S_T0}, s{S_T1}")
        addbase(S_K, S_T0)
        addbase(S_V, S_T0)
        e(f"s_lshl_b32 s{S_T0}, s{S_P}, 11")
        addbase(S_WQ, S_T0)
        e(f"s_sub_u32 s{S_WQ+2}, 3670016, s{S_T0}")
        e(f"s_mul_i32 s{S_T0}, s{S_P}, 917504")
        addbase(S_WO, S_T0)
        e(f"s_mov_b32 s{S_X+2}, 57344")
        e(f"s_mov_b32 s{S_K+2}, 524288")
        e(f"s_mov_b32 s{S_V+2}, 524288")
        e(f"s_mov_b32 s{S_WO+2}, 917504")
        e(f"s_mov_b64 {sr(S_OUT,2)}, s[52:53]")
        e(f"s_mov_b32 s{S_OUT+2}, 3670016")
        e(f"s_mov_b64 {sr(S_WS,2)}, s[56:57]")
        e(f"s_mov_b32 s{S_WS+2}, 67108864")
        e(f"s_mov_b64 {sr(S_DBG,2)}, s[54:55]")
        e(f"s_mov_b32 s{S_DBG+2}, 256")
        for s in (S_X, S_K, S_V, S_WQ, S_WO, S_OUT, S_WS, S_DBG):
            e(f"s_mov_b32 s{s+3}, 0x20000")
        e("s_cmp_lt_u32 s3, 4")
        e("s_cbranch_scc1 L_A")

    def tr_addr(self, dst, base_imm=None, base_sreg=None, t0=None, t1=None, t2=None):
        e = self.e
        e(f"v_bfe_u32 v{t0}, v0, 2, 3")
        e(f"v_lshrrev_b32 v{t1}, 5, v0")
        e(f"v_lshlrev_b32 v{t1}, 10, v{t1}")
        e(f"v_lshl_add_u32 v{t1}, v{t0}, 7, v{t1}")
        e(f"v_and_b32 v{t2}, 3, v0")
        e(f"v_lshl_add_u32 v{t1}, v{t2}, 3, v{t1}")
        if base_imm:
            e(f"v_add_u32 v{t1}, {base_imm}, v{t1}")
        if base_sreg is not None:
            e(f"v_add_u32 v{t1}, s{base_sreg}, v{t1}")
        e(f"v_lshrrev_b32 v{t0}, 1, v{t0}")
        for u in range(4):
            e(f"v_xor_b32 v{t2}, {u}, v{t0}")
            e(f"v_lshl_add_u32 v{dst+u}, v{t2}, 5, v{t1}")

    A_P = 0
    A_S = 128
    A_T = 144
    A_KA = 160
    A_VA = 161
    A_OW = 165
    A_VX = 165
    A_VK = 166
    A_VV = 167
    A_NM = 168
    A_L = 174
    A_TS = 170
    A_ST = 175

    def barA_(self, name, times=1):
        if self.prof == 2:
            self.stamp(self.A_ST)
        self.e("s_barrier")
        self.barA.append(name)
        if self.prof != 2:
            self.stamp(self.A_ST)

    def kbuf(self, f):
        b = f % 8
        return ('a', 64 + 4*b) if b < 4 else ('v', self.A_T + 4*(b - 4))

    def vbuf(self, f, half):
        bp = ((f >> 1) + half) % 3
        return ('a', 64 + 8*bp + 4*(f & 1)) if bp < 2 else ('v', 166 + 4*(f & 1))

    @staticmethod
    def rg(b, off, n):
        return (ar if b[0] == 'a' else vr)(b[1] + off, n)

    def k_read(self, f, slot, tile):
        mt, s = f >> 3, f & 7
        off = slot * KV_SLOT + tile * 16896 + mt * 8448 + s * 64
        self.e(f"ds_read_b128 {self.rg(self.kbuf(f), 0, 4)}, v{self.A_KA} offset:{off}")

    def v_read(self, f, slot, parts=(0, 1)):
        u, T = f >> 3, f & 7
        off = slot * KV_SLOT + T * 4096
        for t in parts:
            self.e(f"ds_read_b64_tr_b16 {self.rg(self.vbuf(f, slot), 2*t, 2)}, v{self.A_VA+u} offset:{off+2048*t}")

    def lane16(self, dst, jsh, qsh, base):
        e = self.e
        e(f"v_mbcnt_lo_u32_b32 v{dst}, -1, 0")
        e(f"v_mbcnt_hi_u32_b32 v{dst}, -1, v{dst}")
        e(f"s_lshr_b32 s{S_T0}, s{S_W}, 1")
        e(f"s_and_b32 s{S_T1}, s{S_W}, 1")
        e(f"s_lshl_b32 s{S_T0}, s{S_T0}, {jsh}")
        e(f"s_lshl_b32 s{S_T1}, s{S_T1}, {qsh}")
        e(f"s_add_u32 s{S_T0}, s{S_T0}, s{S_T1}")
        e(f"s_add_u32 s{S_T0}, s{S_T0}, {base}")
        e(f"v_lshl_add_u32 v{dst}, v{dst}, 4, s{S_T0}")

    def q_read(self):
        e = self.e
        qa = self.A_OW
        e(f"v_add_u32 v{qa}, s{S_HV}, v{qa}")
        for s in range(8):
            for cb in range(2):
                off = (s >> 2) * 16384 + cb * 4096 + (s & 3) * 1024
                e(f"ds_read_b128 {ar(8*s+4*cb,4)}, v{qa} offset:{off}")
        e(f"v_subrev_u32 v{qa}, s{S_HV}, v{qa}")

    def dma_voffs(self, VX, VK, VV, VWO, VWQ, a):
        e = self.e
        b, c, d = a + 1, a + 2, a + 3
        e(f"v_lshrrev_b32 v{a}, 3, v0")
        e(f"v_bfe_u32 v{b}, v0, 4, 2")
        e(f"v_and_b32 v{c}, 7, v0")
        e(f"v_xor_b32 v{VX}, v{c}, v{b}")
        e(f"v_lshlrev_b32 v{VX}, 4, v{VX}")
        e(f"v_mul_u32_u24 v{d}, 896, v{a}")
        e(f"v_add_u32 v{VX}, v{VX}, v{d}")
        yield
        e(f"v_lshlrev_b32 v{b}, 1, v{b}")
        e(f"v_xor_b32 v{c}, v{c}, v{b}")
        e(f"v_lshlrev_b32 v{c}, 4, v{c}")
        if VWO is not None:
            e(f"v_add_u32 v{VWO}, v{c}, v{d}")
        if VV is not None:
            e(f"v_lshl_add_u32 v{VV}, v{a}, {self.ksh}, v{c}")
        e(f"v_lshrrev_b32 v{b}, 5, v0")
        if VWQ is not None:
            e(f"v_and_b32 v{d}, 3, v{a}")
            e(f"v_lshl_add_u32 v{VWQ}, v{d}, 13, v{c}")
            e(f"v_lshl_add_u32 v{VWQ}, v{b}, 16, v{VWQ}")
        e(f"v_and_b32 v{c}, 31, v0")
        e(f"v_xor_b32 v{c}, v{c}, v{b}")
        e(f"v_lshlrev_b32 v{c}, 4, v{c}")
        e(f"v_lshl_add_u32 v{VK}, v{b}, {self.ksh}, v{c}")
        yield

    def A_Hops(self, kind, slot, gs, gimm):
        e = self.e
        ops = []
        if self.noH or not self.hA:
            return [lambda pre: None]*8
        for k in range(8):
            def op(pre, k=k):
                if kind == 'K':
                    if pre:
                        e(f"s_add_u32 m0, s{S_KL}, {slot*KV_SLOT + k*1056}")
                        e(f"s_add_u32 s{S_T0}, s{gs}, {gimm + k*4096}")
                    else:
                        e(f"buffer_load_dwordx4 v{self.A_VK}, {sr(S_K,4)}, s{S_T0} offen nt lds")
                elif kind == 'V':
                    if pre:
                        if k % 4 == 0:
                            e(f"s_add_u32 m0, s{S_VL}, {slot*KV_SLOT + k*1024}")
                        e(f"s_add_u32 s{S_T0}, s{gs}, {gimm + k*16384 - (k % 4)*1024}")
                    else:
                        e(f"buffer_load_dwordx4 v{self.A_VV}, {sr(S_V,4)}, s{S_T0} offen offset:{(k%4)*1024} nt lds")
                else:
                    if pre:
                        if k:
                            e(f"s_add_u32 m0, m0, s{S_HM}")
                            e(f"s_add_u32 s{S_T1}, s{S_T1}, s{S_HGS}")
                    else:
                        e(f"buffer_load_dwordx4 v{self.A_NM}, {sr(S_HS,4)}, s{S_T1} offen nt lds")
            ops.append(op)
        return ops

    def xlane(self, op, x, t):
        e = self.e
        e(f"v_mov_b32 v{t}, v{x}")
        e("s_nop 1")
        e(f"v_permlane32_swap_b32 v{t}, v{x}")
        e("s_nop 1")
        e(f"{op} v{x}, v{x}, v{t}")
        e(f"v_mov_b32 v{t}, v{x}")
        e("s_nop 1")
        e(f"v_permlane16_swap_b32 v{t}, v{x}")
        e("s_nop 1")
        e(f"{op} v{x}, v{x}, v{t}")

    def tile_max(self, cb, dst, t):
        e = self.e
        S = self.A_S
        r = [S + 4*cb + k for k in range(4)] + [S + 8 + 4*cb + k for k in range(4)]
        e(f"v_max3_f32 v{dst}, v{r[0]}, v{r[1]}, v{r[2]}")
        e(f"v_max3_f32 v{dst}, v{dst}, v{r[3]}, v{r[4]}")
        e(f"v_max3_f32 v{dst}, v{dst}, v{r[5]}, v{r[6]}")
        e(f"v_max_f32 v{dst}, v{dst}, v{r[7]}")
        self.xlane("v_max_f32", dst, t)

    def softmax(self, T):
        e = self.e
        S, TT, P = self.A_S, self.A_T, self.A_P
        if T == 0:
            for cb in range(2):
                self.tile_max(cb, TT + cb, TT + 2)
                e(f"v_mul_f32 v{self.A_NM+cb}, s{S_C}, v{TT+cb}")
                e(f"v_sub_f32 v{self.A_NM+cb}, 0, v{self.A_NM+cb}")
                e(f"v_mov_b32 v{self.A_L+cb}, 0")
        e.lab(f"L_sm{T}")
        groups = [(0, 0), (0, 1), (1, 0), (1, 1)]
        def fma(gi):
            mt, cb = groups[gi]
            for r in range(4):
                e(f"v_fma_f32 v{TT+4*gi+r}, v{S+8*mt+4*cb+r}, s{S_C}, v{self.A_NM+cb}")
        def exp(gi):
            for r in range(4):
                e(f"v_exp_f32 v{TT+4*gi+r}, v{TT+4*gi+r}")
        def fin(gi):
            mt, cb = groups[gi]
            t = TT + 4*gi
            ts = self.A_TS + cb
            if mt == 0:
                e(f"v_add_f32 v{ts}, v{t}, v{t+1}")
            else:
                e(f"v_add_f32 v{ts}, v{ts}, v{t}")
                e(f"v_add_f32 v{ts}, v{ts}, v{t+1}")
            e(f"v_cvt_pk_bf16_f32 v{P+8*T+4*cb+2*mt}, v{t}, v{t+1}")
            e(f"v_add_f32 v{ts}, v{ts}, v{t+2}")
            e(f"v_cvt_pk_bf16_f32 v{P+8*T+4*cb+2*mt+1}, v{t+2}, v{t+3}")
            e(f"v_add_f32 v{ts}, v{ts}, v{t+3}")
        fma(0); fma(1); exp(0); fma(2); exp(1); fma(3); fin(0); exp(2); fin(1); exp(3); fin(2); fin(3)
        if T > 0:
            e(f"v_max_f32 v{TT}, v{self.A_TS}, v{self.A_TS+1}")
            e(f"v_cmp_lt_f32 vcc, s{S_THR}, v{TT}")
            e("s_nop 0")
            e(f"s_cbranch_vccz L_ok{T}")
            e(f"s_call_b64 {sr(S_RET,2)}, L_rescale")
            e(f"s_branch L_sm{T}")
            e.lab(f"L_ok{T}")
            e(f"s_mov_b32 s{S_THR}, 0x47800000")
        for cb in range(2):
            e(f"v_add_f32 v{self.A_L+cb}, v{self.A_L+cb}, v{self.A_TS+cb}")

    def rescale_routine(self):
        e = self.e
        TT, P = self.A_T, self.A_P
        e.lab("L_rescale")
        for cb in range(2):
            self.tile_max(cb, TT, TT + 2)
            e(f"v_fma_f32 v{TT}, v{TT}, s{S_C}, v{self.A_NM+cb}")
            e(f"v_ceil_f32 v{TT}, v{TT}")
            e(f"v_max_f32 v{TT}, 0, v{TT}")
            e(f"v_sub_f32 v{self.A_NM+cb}, v{self.A_NM+cb}, v{TT}")
            e(f"v_min_f32 v{TT}, 0x43800000, v{TT}")
            e(f"v_cvt_i32_f32 v{TT}, v{TT}")
            e(f"v_sub_u32 v{TT}, 0, v{TT}")
            e(f"v_ldexp_f32 v{self.A_L+cb}, v{self.A_L+cb}, v{TT}")
            for T in range(16):
                for k in range(4):
                    r = P + 8*T + 4*cb + k
                    e(f"v_lshlrev_b32 v{TT+4}, 16, v{r}")
                    e(f"v_and_b32 v{TT+5}, 0xffff0000, v{r}")
                    e(f"v_ldexp_f32 v{TT+4}, v{TT+4}, v{TT}")
                    e(f"v_ldexp_f32 v{TT+5}, v{TT+5}, v{TT}")
                    e(f"v_cvt_pk_bf16_f32 v{r}, v{TT+4}, v{TT+5}")
        e(f"s_mov_b32 s{S_THR}, 0x7f800000")
        e(f"s_setpc_b64 {sr(S_RET,2)}")

    def streamA(self):
        e = self.e
        KA, VA, OW = self.A_KA, self.A_VA, self.A_OW
        self.stamp(self.A_ST)
        if self.prioA:
            e(f"s_setprio {self.prioA}")
        t = self.A_T
        def vtouch():
            e(f"v_and_b32 v{t+12}, 31, v0")
            e(f"v_min_u32 v{t+12}, 27, v{t+12}")
            e(f"s_mul_i32 s{S_T0}, s{S_W}, 28")
            e(f"v_add_u32 v{t+12}, s{S_T0}, v{t+12}")
            if self.vt0:
                e(f"v_lshlrev_b32 v{t+13}, 15, v{t+12}")
                if self.vt0 == 3:
                    e(f"v_lshrrev_b32 v{t+14}, 5, v0")
                    e(f"v_lshl_add_u32 v{t+13}, v{t+14}, 10, v{t+13}")
                e(f"s_lshr_b32 s{S_T0}, s{S_B}, 3")
                e(f"s_lshl_b32 s{S_T0}, s{S_T0}, 13")
                e(f"s_and_b32 s{S_T1}, s{S_B}, 7")
                e(f"s_lshl_b32 s{S_T1}, s{S_T1}, 7")
                e(f"s_add_u32 s{S_T0}, s{S_T0}, s{S_T1}")
                e(f"buffer_load_dword v{t+14}, v{t+13}, {sr(S_WQ,4)}, s{S_T0} offen{' nt' if self.vt0 == 2 else ''}")
            else:
                self.stouch_wq(0, 0, 56, 1)
        if not self.tlate:
            vtouch()
        a, b, c = t + 4, t + 5, t + 6
        e(f"v_bfe_u32 v{a}, v0, 1, 3")
        e(f"v_mul_u32_u24 v{KA}, 1056, v{a}")
        e(f"v_and_b32 v{a}, 1, v0")
        e(f"v_lshl_add_u32 v{KA}, v{a}, 9, v{KA}")
        e(f"v_lshrrev_b32 v{b}, 4, v0")
        e(f"v_xor_b32 v{b}, v{b}, v{a}")
        e(f"v_lshl_add_u32 v{KA}, v{b}, 4, v{KA}")
        self.tr_addr(VA, t0=a, t1=b, t2=c)
        self.lane16(OW, 13, 11, XO_BASE)
        e(f"s_lshr_b32 s{S_T0}, s{S_W}, 1")
        e(f"s_mul_i32 s{S_T0}, s{S_T0}, {32768 - 8192}")
        e(f"s_and_b32 s{S_T1}, s{S_W}, 1")
        e(f"s_mul_i32 s{S_T1}, s{S_T1}, {8192 - 2048}")
        e(f"s_add_u32 s{S_HV}, s{S_T0}, s{S_T1}")
        e(f"s_sub_u32 s{S_HV}, s{S_HV}, {XO_BASE - W_BASE}")
        e(f"s_mov_b32 s{S_C}, 0x3db8aa3b")
        e(f"s_mov_b32 s{S_THR}, 0x47800000")
        e(f"s_mov_b32 s{S_ITEM}, 0")
        if self.tlate:
            vtouch()
        segs = [('q', 56)] if self.vt0 != 3 else []
        if 0 not in self.hto:
            segs.append(('o0', 56))
        if not self.vto and not self.bto and 1 not in self.hto:
            segs.append(('o1', self.wo1A))
        def touch_range(a, b):
            pos = 0
            for kind, n in segs:
                lo, hi = max(a - pos, 0), min(b - pos, n)
                if lo < hi:
                    if kind == 'q':
                        self.stouch_wq(1, lo, hi, 1)
                    else:
                        self.stouch_wo(int(kind[1]), lo, hi)
                pos += n
        touch_range(0, self.pre1)
        self.barA_("HB")
        if self.early:
            touch_range(self.pre1, self.pre2)
            self.barA_("HB2")
            if self.h1h:
                touch_range(self.pre2, self.pre3)
                self.barA_("HB3")
                touch_range(self.pre3, 999)
            else:
                touch_range(self.pre2, 999)
        else:
            touch_range(self.pre1, 999)
        e("s_waitcnt vmcnt(0)")
        if self.xpromo:
            e(f"v_lshlrev_b32 v{t+13}, 7, v0")
            e(f"s_lshl_b32 s{S_T0}, s{S_W}, 13")
            e(f"buffer_load_dword v{t+14}, v{t+13}, {sr(S_X,4)}, s{S_T0} offen")
            e(f"s_add_u32 s{S_T0}, s{S_T0}, 32768")
            e(f"buffer_load_dword v{t+15}, v{t+13}, {sr(S_X,4)}, s{S_T0} offen")
            e("s_waitcnt vmcnt(0)")
        self.barA_("QB1")
        self.q_read()
        e("s_waitcnt lgkmcnt(0)")
        self.barA_("KV0")
        for f in range(4):
            self.k_read(f, 0, 0)
        barA_pre = list(self.barA)
        self.barA = []
        e.lab("L_item")
        if self.dyn:
            e(f"s_setprio {self.prioA}")
        S = self.A_S
        for T in range(16):
            slot, tile = (T >> 1) & 1, T & 1
            ph = T >> 1
            e("s_waitcnt lgkmcnt(2)")
            for p in range(8):
                mt, q = p >> 2, p & 3
                c0 = q & 1
                seq = [(2*p, c0), (2*p + 1, c0), (2*p + 1, 1 - c0), (2*p, 1 - c0)]
                for k, (f, cb) in enumerate(seq):
                    d = vr(S + 8*mt + 4*cb, 4)
                    if not self.noAm:
                        e(f"v_mfma_f32_16x16x32_bf16 {d}, {self.rg(self.kbuf(f), 0, 4)}, {ar(8*(f & 7) + 4*cb, 4)}, {0 if q == 0 and k in (0, 2) else d}")
                    if k < 2:
                        fn = 2*(p + 2) + k
                        if fn < 16:
                            self.k_read(fn, slot, tile)
                        elif tile == 0:
                            self.k_read(fn - 16, slot, 1)
                if 16 in self.ob and (T, p) == ((0, 2) if self.ob[16] == 'early' else (1, 4)):
                    e(f"s_cmp_eq_u32 s{S_ITEM}, 0")
                    e("s_cbranch_scc1 L_nobk")
                    e("s_barrier")
                    e.lab("L_nobk")
                if tile == 1 and p == 6:
                    e("s_waitcnt lgkmcnt(0)")
                    if self.fre:
                        e("s_barrier")
                        self.barA.append("FR")
                    self.barA_("KV")
                    for g in range(4):
                        if T < 15:
                            self.k_read(g, slot ^ 1, 0)
                        else:
                            self.v_read(g, 0)
                elif p < 7:
                    e("s_waitcnt lgkmcnt(2)")
            if self.dyn:
                e("s_setprio 0")
            e("s_nop 1" if T else "s_nop 7")
            if not self.noSM:
                self.softmax(T)
            if self.dyn and T < 15:
                e(f"s_setprio {self.prioA}")
        TT = self.A_T
        for cb in range(2):
            self.xlane("v_add_f32", self.A_L + cb, TT)
            e(f"v_rcp_f32 v{self.A_L+cb}, v{self.A_L+cb}")
        barA_K = list(self.barA)
        self.barA = []
        e(f"s_mov_b32 s{S_CH}, 0")
        e.lab("L_chunk")
        if self.dyn:
            e(f"s_setprio {self.prioA}")
        O = self.A_S
        def epi_ops(u2):
            ops = []
            for cb in range(2):
                d = O + 16*u2 + 4*cb
                for x in list(range(d, d + 4)) + list(range(d + 8, d + 12)):
                    ops.append(lambda x=x, cb=cb: e(f"v_mul_f32 v{x}, v{x}, v{self.A_L+cb}"))
                for k, x in enumerate((d, d + 2, d + 8, d + 10)):
                    ops.append(lambda k=k, x=x, d=d: e(f"v_cvt_pk_bf16_f32 v{d+k}, v{x}, v{x+1}"))
            return ops
        epi0, nepi = epi_ops(0), [0]
        def epi_some(n):
            for op in epi0[nepi[0]:nepi[0] + n]:
                op()
            nepi[0] += n
        for half in range(2):
            if half == 1:
                e(f"s_or_b32 s{S_T0}, s{S_ITEM}, s{S_CH}")
                e(f"s_cbranch_scc1 L_noq2")
                self.q_read()
                e.lab("L_noq2")
            e("s_waitcnt lgkmcnt(4)")
            for p in range(16):
                u, q = p >> 2, p & 3
                c0 = q & 1
                seq = [(2*p, c0), (2*p + 1, c0), (2*p + 1, 1 - c0), (2*p, 1 - c0)]
                for k, (f, cb) in enumerate(seq):
                    d = vr(O + 8*u + 4*cb, 4)
                    Tg = 8*half + (f & 7)
                    if not self.noAm:
                        e(f"v_mfma_f32_16x16x32_bf16 {d}, {self.rg(self.vbuf(f, half), 0, 4)}, {vr(self.A_P + 8*Tg + 4*cb, 4)}, {0 if half == 0 and q == 0 and k in (0, 2) else d}")
                    if p + 2 < 16:
                        self.v_read(2*(p + 2) + (k >> 1), half, (k & 1,))
                    if self.epi and half == 1 and p >= 14:
                        epi_some(2)
                for kind, pos in (('early', (self.obe + 1)//2), ('late', self.obf//2)):
                    mask = sum(1 << (4*it + cc) for it in range(2) for cc in range(1, 4) if self.ob.get(8 + 2*cc + 16*it) == kind)
                    if half == 0 and p == pos and mask:
                        e(f"s_lshl2_add_u32 s{S_T0}, s{S_ITEM}, s{S_CH}")
                        e(f"s_bitcmp1_b32 {mask}, s{S_T0}")
                        e(f"s_cbranch_scc0 L_nob{kind}")
                        e("s_barrier")
                        e.lab(f"L_nob{kind}")
                if half == 1 and p == 2:
                    e(f"s_cmp_eq_u32 s{S_CH}, 0")
                    e("s_cbranch_scc0 L_nqb")
                    e("s_barrier")
                    e.lab("L_nqb")
                def nxt_reads(fs, tag):
                    if half == 0:
                        for g in fs:
                            self.v_read(g, 1)
                        return
                    e(f"s_cmp_eq_u32 s{S_CH}, 3")
                    e(f"s_cbranch_scc1 L_nk{tag}")
                    for g in fs:
                        self.v_read(g, 0)
                    e(f"s_branch L_nk2{tag}")
                    e.lab(f"L_nk{tag}")
                    for g in fs:
                        self.k_read(g, 0, 0)
                    e.lab(f"L_nk2{tag}")
                if p == 14:
                    e("s_waitcnt lgkmcnt(0)")
                    if self.fre:
                        e("s_barrier")
                        self.barA.append("FR")
                    self.barA_("KV")
                    nxt_reads((0, 1, 2, 3) if half == 0 else (0, 1), "a")
                elif p == 15:
                    if half == 1:
                        nxt_reads((2, 3), "b")
                else:
                    e(f"s_waitcnt lgkmcnt({4 if p < 14 else 0})")
        if self.dyn:
            e("s_setprio 0")
        if self.epi:
            for op in epi0[nepi[0]:]:
                op()
            for cb in range(2):
                e(f"ds_write_b128 v{OW}, {vr(O + 4*cb, 4)} offset:{cb*1024}")
        else:
            e("s_nop 7")
        for u2 in range(1 if self.epi else 0, 2):
            for op in epi_ops(u2):
                op()
            for cb in range(2):
                e(f"ds_write_b128 v{OW}, {vr(O + 16*u2 + 4*cb, 4)} offset:{u2*4096 + cb*1024}")
        barA_C = list(self.barA)
        e(f"s_add_u32 s{S_CH}, s{S_CH}, 1")
        e(f"s_cmp_lt_u32 s{S_CH}, 4")
        e("s_cbranch_scc1 L_chunk")
        e(f"s_add_u32 s{S_ITEM}, s{S_ITEM}, 1")
        e(f"s_cmp_lt_u32 s{S_ITEM}, 2")
        e("s_cbranch_scc1 L_item")
        seq = list(barA_pre)
        for it in range(2):
            seq += (["HX"] if it == 0 and self.hA else []) + (["OB"] if it == 1 and 16 in self.ob else []) + barA_K
            for c in range(4):
                x = list(barA_C)
                if c == 0:
                    x.insert(2 if self.fre else 1, "QB2")
                elif 8 + 2*c + 16*it in self.ob:
                    x.insert(0, "OB")
                seq += x
        e("s_waitcnt lgkmcnt(0)")
        self.barA_("OB")
        self.barA = seq + ["OB"]
        if self.prof:
            self.stamp(self.A_ST)
            e(f"s_cmp_eq_u32 s{S_W}, 0")
            e("s_cbranch_scc0 L_end")
            self.prof_store(self.A_ST, 0, 0)
        e("s_endpgm")
        self.rescale_routine()

    def prof_store(self, vreg, role, tmp):
        e = self.e
        e(f"v_mbcnt_lo_u32_b32 v{tmp}, -1, 0")
        e(f"v_mbcnt_hi_u32_b32 v{tmp}, -1, v{tmp}")
        e(f"v_lshlrev_b32 v{tmp}, 2, v{tmp}")
        e(f"s_lshl_b32 s{S_T0}, s{S_WG}, 9")
        e(f"s_add_u32 s{S_T0}, s{S_T0}, {0x3000000 + role*256}")
        e(f"buffer_store_dword v{vreg}, v{tmp}, {sr(S_WS,4)}, s{S_T0} offen")
        e(f"s_add_u32 s{S_T0}, s{S_T0}, 0x200000")
        e(f"buffer_store_dword v{self.st2[vreg]}, v{tmp}, {sr(S_WS,4)}, s{S_T0} offen")
        e("s_waitcnt vmcnt(0)")

    def stouch_wq(self, item, k0, k1, step):
        e = self.e
        if k0 >= k1:
            return
        e(f"s_lshl_b32 s{S_T0}, s{S_W}, 14")
        e(f"s_lshr_b32 s{S_T1}, s{S_B}, 4")
        e(f"s_lshl_b32 s{S_T1}, s{S_T1}, 13")
        e(f"s_add_u32 s{S_T0}, s{S_T0}, s{S_T1}")
        e(f"s_and_b32 s{S_T1}, s{S_B}, 15")
        e(f"s_lshl_b32 s{S_T1}, s{S_T1}, 6")
        e(f"s_add_u32 s{S_T0}, s{S_T0}, s{S_T1}")
        cur = 0
        for k in range(k0, k1, step):
            if k // 8 != cur:
                e(f"s_add_u32 s{S_T0}, s{S_T0}, {(k // 8 - cur)*8*65536}")
                cur = k // 8
            e(f"s_buffer_load_dword s{S_JUNK + k % 4}, {sr(S_WQ,4)}, s{S_T0} offset:{(k % 8)*65536 + item*1024}")

    def stouch_wo(self, item, k0, k1):
        e = self.e
        e(f"s_lshl_b32 s{S_T0}, s{S_W}, 11")
        e(f"s_lshl_b32 s{S_T1}, s{S_B}, 6")
        e(f"s_add_u32 s{S_T0}, s{S_T0}, s{S_T1}")
        for k in range(k0, k1):
            e(f"s_buffer_load_dword s{S_JUNK + k % 4}, {sr(S_WO,4)}, s{S_T0} offset:{k*8192 + item*458752}")

    B_OR = 128
    B_TMP = 132
    B_BF = 32
    B_WT = 160
    B_XR = 164
    B_XR0 = 165
    B_VWQ = 166
    B_VWO = 167
    B_VV = 168
    B_VK = 169
    B_VX = 170
    B_QW = 171
    B_LANE = 172
    B_TA, B_TD = 166, 167
    B_FIN, B_FOUT, B_FAI, B_FAO = 148, 149, 150, 151
    B_VWQ4 = 152
    B_VWO4 = 156
    B_ST = 175

    def setupB(self):
        e = self.e
        e(f"s_mul_i32 s{S_XLDS}, s{S_W}, {2*1088}")
        e(f"s_mul_i32 s{S_XG}, s{S_W}, {16*896}")
        g = self.dma_voffs(self.B_VX, self.B_VK, self.B_VV, self.B_VWO4, self.B_VWQ4, self.B_TMP)
        next(g)
        if not self.flate:
            self.flag_loads()
        for xp in range(2 if self.early else 7):
            for op in self.X_ops(xp, self.xloc(0, xp), "X0", self.xnt):
                op()
        e(f"s_lshl_b32 s{S_WLDS}, s{S_W}, 14")
        e(f"s_add_u32 s{S_WLDS}, s{S_WLDS}, {W_BASE}")
        e(f"s_lshl_b32 s{S_WCOL}, s{S_W}, 8")
        e(f"s_mul_i32 s{S_KLDS}, s{S_W}, {8*1056}")
        e(f"s_lshl_b32 s{S_KG}, s{S_W}, {self.ksh + 4}")
        r1, r2 = 44, 45
        if self.rot:
            e(f"s_and_b32 s{r1}, s{S_B}, 3")
            e(f"s_bfe_u32 s{r2}, s{S_B}, 0x20002")
        else:
            e(f"s_mov_b32 s{r1}, 0")
            e(f"s_mov_b32 s{r2}, 0")
        K = self.kst
        e(f"s_add_u32 s{S_VG}, s{S_W}, s{r1}")
        e(f"s_and_b32 s{S_VG}, s{S_VG}, {K - 1}")
        e(f"s_lshl_b32 s{S_VG}, s{S_VG}, 9")
        e(f"s_lshr_b32 s{S_T0}, s{S_W}, {self.ksh - 9}")
        e(f"s_lshl_b32 s{S_T0}, s{S_T0}, {self.ksh + 6}")
        e(f"s_add_u32 s{S_VG}, s{S_VG}, s{S_T0}")
        for r in range(4):
            e(f"s_add_u32 s{S_T0}, s{r1}, {r}")
            e(f"s_and_b32 s{S_T0}, s{S_T0}, {K - 1}")
            e(f"s_lshl_b32 s{S_T0}, s{S_T0}, 9")
            e(f"s_add_u32 s{S_KR+r}, s{S_KG}, s{S_T0}")
            e(f"s_add_u32 s{S_T0}, s{r2}, {r}")
            e(f"s_and_b32 s{S_T0}, s{S_T0}, 3")
            e(f"s_lshl_b32 s{S_T1}, s{S_T0}, 7")
            e(f"s_add_u32 s{S_VC+r}, s{S_VG}, s{S_T1}")
            e(f"s_mul_i32 s{S_T1}, s{S_T0}, {64*896}")
            e(f"s_add_u32 s{S_WR+r}, s{S_WCOL}, s{S_T1}")
        e(f"s_lshl_b32 s{S_VLB}, s{S_W}, 13")
        next(g)
        for pc in range(1, 4):
            e(f"v_add_u32 v{self.B_VWQ4+pc}, {(16*(pc & 1) + 4*(pc >> 1))*8192 - 1024*pc}, v{self.B_VWQ4}")

    def flag_loads(self):
        e = self.e
        e(f"v_and_b32 v{self.B_FAO}, 3, v0")
        e(f"v_lshlrev_b32 v{self.B_FAI}, 2, v{self.B_FAO}")
        e(f"s_lshl_b32 s{S_T0}, s{S_WG}, 7")
        e(f"s_add_u32 s{S_T0}, s{S_T0}, {FLAG_BASE}")
        e(f"v_add_u32 v{self.B_FAI}, s{S_T0}, v{self.B_FAI}")
        e(f"s_mul_i32 s{S_T1}, s{S_P}, 124")
        e(f"s_sub_u32 s{S_T0}, s{S_T0}, s{S_T1}")
        e(f"v_lshl_add_u32 v{self.B_FAO}, v{self.B_FAO}, 7, s{S_T0}")
        e(f"buffer_load_dword v{self.B_FIN}, v{self.B_FAI}, {sr(S_WS,4)}, 0 offen sc1")
        e(f"buffer_load_dword v{self.B_FOUT}, v{self.B_FAO}, {sr(S_WS,4)}, 0 offen sc1")
        self.vmq += ["F", "F"]

    def setupB2(self):
        e = self.e
        a, b, c = self.B_TMP, self.B_TMP + 1, self.B_TMP + 2
        self.tr_addr(self.B_WT, base_sreg=S_WLDS, t0=a, t1=b, t2=c)
        e(f"v_bfe_u32 v{a}, v0, 3, 1")
        e(f"v_mul_u32_u24 v{self.B_XR0}, 1088, v{a}")
        e(f"v_and_b32 v{a}, 7, v0")
        e(f"v_lshl_add_u32 v{self.B_XR0}, v{a}, 7, v{self.B_XR0}")
        e(f"v_lshrrev_b32 v{a}, 1, v{a}")
        e(f"v_lshrrev_b32 v{b}, 4, v0")
        e(f"v_xor_b32 v{a}, v{a}, v{b}")
        e(f"v_lshl_add_u32 v{self.B_XR0}, v{a}, 4, v{self.B_XR0}")
        e(f"v_add_u32 v{self.B_XR}, {XO_BASE}, v{self.B_XR0}")
        e(f"v_add_u32 v{self.B_XR0}, {KV_SLOT}, v{self.B_XR0}")
        for rb in range(4):
            e(f"s_add_u32 s{S_T0}, s{S_P}, {rb}")
            e(f"s_and_b32 s{S_T0}, s{S_T0}, 3")
            e(f"s_lshl_b32 s{S_T0}, s{S_T0}, 10")
            e(f"s_add_u32 s{S_T0}, s{S_T0}, {XO_BASE}")
            e(f"v_lshl_add_u32 v{self.B_OR+rb}, v0, 4, s{S_T0}")
        e(f"v_lshrrev_b32 v{a}, 5, v0")
        e(f"v_lshlrev_b32 v{a}, 8, v{a}")
        e(f"v_and_b32 v{b}, 15, v0")
        e(f"v_lshl_add_u32 v{a}, v{b}, 4, v{a}")
        e(f"v_bfe_u32 v{b}, v0, 4, 1")
        e(f"v_lshl_add_u32 v{a}, v{b}, 3, v{a}")
        e(f"v_add_u32 v{self.B_QW}, s{S_WLDS}, v{a}")
        e(f"v_mov_b32 v{self.B_LANE}, v0")
        e(f"v_min_u32 v{self.B_TA}, 27, v0")
        e(f"s_mul_i32 s{S_T0}, s{S_W}, 28")
        e(f"v_add_u32 v{self.B_TA}, s{S_T0}, v{self.B_TA}")
        e(f"v_lshlrev_b32 v{self.B_TA}, 12, v{self.B_TA}")
        e(f"s_lshl_b32 s{S_T0}, s{S_B}, 7")
        e(f"v_add_u32 v{self.B_TA}, s{S_T0}, v{self.B_TA}")
        for pc in range(1, 4):
            e(f"v_add_u32 v{self.B_VWO4+pc}, {(16*(pc >> 1) + 8*(pc & 1))*896 - 1024*pc}, v{self.B_VWO4}")

    def xloc(self, item, xp):
        if xp == 0 or (item == 1 and xp % 3 == 0):
            return KV_SLOT + 4 * X_SLOT
        if item == 1:
            return XO_BASE + (xp % 3 - 1) * X_SLOT
        if xp < 5:
            return KV_SLOT + (xp - 1) * X_SLOT
        return XO_BASE + (xp - 5) * X_SLOT

    def dma(self, lds_s, lds_imm, g_s, g_imm, vaddr, srd, tag, nt=False):
        def emit():
            e = self.e
            e(f"s_add_u32 m0, s{lds_s}, {lds_imm}")
            e(f"s_add_u32 s{S_T0}, s{g_s}, {g_imm}")
            e(f"buffer_load_dwordx4 v{vaddr}, {sr(srd,4)}, s{S_T0} offen{' nt' if nt else ''} lds")
            self.vmq.append(tag)
        return emit

    def H_ops(self, n):
        item, ph = n >> 4, n & 15
        slot = n & 1
        ops = []
        if self.noH:
            return ops
        for k in range(8):
            if ph < 8:
                ops.append(self.dma(S_KLDS, slot*KV_SLOT + k*1056, S_KR + (ph & 3), item*262144 + (ph // self.kst)*32768*self.kst + k*1024*self.kst,
                                    self.B_VK, S_K, f"H{n}", nt=True))
            else:
                c, half = (ph - 8) >> 1, ph & 1
                ops.append(self.dma(S_VLB, slot*KV_SLOT + k*1024, S_VC + c, item*262144 + half*131072 + k*4096*self.kst,
                                    self.B_VV, S_V, f"H{n}", nt=True))
        return ops

    def X_ops(self, xp, loc, tag, nt=False):
        return [self.dma(S_XLDS, loc + k*1088, S_XG, k*7168 + xp*128, self.B_VX, S_X, tag, nt=nt) for k in range(2)]

    def W_ops(self, wd, hs):
        ks, cbk = hs >> 1, hs & 1
        ops = []
        if self.noW and wd[:2] != ('Q', 0):
            return ops
        if wd[0] == 'Q':
            _, item, xp = wd
            g = 32*(2*xp + ks)*8192 + item*1024 + cbk*128
            vb, srd, gs = self.B_VWQ4, S_WQ, S_WCOL
        else:
            _, item, c, j = wd
            g = (item*512 + 256*j + 32*ks)*896 + cbk*128
            vb, srd, gs = self.B_VWO4, S_WO, S_WR + c
        for pc in range(4):
            def emit(pc=pc):
                e = self.e
                if pc == 0:
                    e(f"s_add_u32 m0, s{S_WLDS}, {hs*4096}")
                    e(f"s_add_u32 s{S_T0}, s{gs}, {g}")
                e(f"buffer_load_dwordx4 v{vb+pc}, {sr(srd,4)}, s{S_T0} offen offset:{pc*1024}{' nt' if self.wq0nt and wd[:2] == ('Q', 0) else ''} lds")
                self.vmq.append((wd, hs))
            ops.append(emit)
        return ops

    def wo_touch(self, nt):
        ops = []
        for item in self.hto:
            def tch(item=item):
                self.e(f"s_mov_b32 s{S_T0}, {item*458752}")
                self.e(f"buffer_load_dword v{self.B_TD}, v{self.B_TA}, {sr(S_WO,4)}, s{S_T0} offen{' nt' if nt else ''}")
                self.vmq.append("T")
            ops.append(tch)
        return ops

    def vmwait(self, need, extra=""):
        idx = -1
        for i, t in enumerate(self.vmq):
            if t in need:
                idx = i
        if idx < 0:
            if extra:
                self.e(f"s_waitcnt {extra}")
            return
        n = len(self.vmq) - 1 - idx
        assert n <= 63, n
        self.e(f"s_waitcnt vmcnt({n}) {extra}".rstrip())
        self.vmq = self.vmq[idx+1:]

    def barB_(self, name):
        sel = 10 <= self.curn <= 16 or 26 <= self.curn <= 32
        if sel:
            self.stamp(self.B_ST, f"@a{name}{self.curn}")
        self.e("s_barrier")
        if sel:
            self.stamp(self.B_ST, f"@{name}{self.curn}")
        self.barB[self.path].append(name)
        if self.prof != 2 or self.curn in self.fine or self.curn - 1 in self.fine:
            self.stamp(self.B_ST, name + str(self.curn))

    def hs_list(self, wd):
        if wd[0] == 'O' and self.path == 'w3':
            return [0, 2]
        return [0, 1, 2, 3]

    @staticmethod
    def kid(st):
        wd, hs = st
        return (wd[0], wd[1], 2*wd[2] + (hs >> 1)) if wd[0] == 'Q' else ('O', wd[1], 4*wd[2] + 2*wd[3] + (hs >> 1))

    def make_sched(self):
        P = {n: [] for n in range(34)}
        def fill(seq, base, cnt):
            k = 0
            for i, c in enumerate(cnt):
                P[base + i] += seq[k:k + c]
                k += c
            return seq[k:]
        assert not fill([(('Q', 1, xp), hs) for xp in range(7) for hs in range(4)], 0, self.qcnt)
        oseq = lambda it: [(('O', it, k >> 2, (k >> 1) & 1), 2*(k & 1) + cbk) for k in range(16) for cbk in range(2)]
        assert not fill(oseq(0), 10, self.o1cnt)
        P[32] = fill(oseq(1), 26, self.o2cnt)
        self.P = P
        self.ob = {}
        for it, base in ((0, 10), (1, 26)):
            for c in range(4):
                wp = base + 2*c
                use = [i for i, (wd, hs) in enumerate(P[wp]) if wd[:3] == ('O', it, c)]
                for n in range(wp):
                    assert not any(wd[:3] == ('O', it, c) for wd, hs in P[n])
                if use:
                    self.ob[wp] = 'early' if use[0] == 0 else 'late'
        self.xfirst, xlast = {}, {}
        for n in range(9):
            for wd, hs in P[n]:
                self.xfirst.setdefault(wd[2], n)
                xlast[wd[2]] = n
        del self.xfirst[0]
        for xp, n in self.xfirst.items():
            assert n >= 1 and (xp < 3 or xlast[xp - 3] < n - 1), (xp, n)

    def bfi(self, k):
        return k[2] % (4 if k[:2] == ('O', 0) else 3)

    def bfreg(self, k, cb4):
        b = self.bfi(k)
        return vr(self.B_TMP + 4*cb4, 4) if b == 3 else ar(self.B_BF + 16*b + 4*cb4, 4)

    def sched(self, n):
        return [st for st in self.P[n] if not (self.path == 'w3' and st[0][0] == 'O' and st[1] & 1)]

    def bf_reads(self, st):
        wd, hs = st
        k = self.kid(st)
        if k in self.bfl:
            return []
        self.bfl.add(k)
        ks = hs >> 1
        e = self.e
        ops = []
        for cb4 in range(4):
            d = self.bfreg(k, cb4)
            if wd[0] == 'Q':
                loc = self.xloc(wd[1], wd[2])
                reg = self.B_XR if loc >= XO_BASE else self.B_XR0
                off = (loc - XO_BASE if loc >= XO_BASE else loc - KV_SLOT) + cb4*2176 + ks*64
            else:
                reg = self.B_OR + cb4
                off = (2*wd[3] + ks)*4096
            ops.append(lambda d=d, off=off, reg=reg: e(f"ds_read_b128 {d}, v{reg} offset:{off}"))
        return ops

    def w_reads(self, hs, i):
        e = self.e
        ops = []
        for u in range(4):
            for t in range(2):
                d = ar(16*(i & 1) + 4*u + 2*t, 2)
                off = hs*4096 + t*2048
                ops.append(lambda d=d, off=off, u=u: e(f"ds_read_b64_tr_b16 {d}, v{self.B_WT+u} offset:{off}"))
        return ops

    def needs_ob(self, st):
        wd, hs = st
        return wd[0] == 'O' and wd[3] == 0 and hs == 0 and self.curn == (10, 26)[wd[1]] + 2*wd[2]

    def run_steps(self, steps, per_step, preload=(), upfront=()):
        e = self.e
        if self.boost:
            e(f"s_setprio {self.boost}")
        if self.wpre != steps[0]:
            self.vmwait([steps[0]])
            for op in self.w_reads(steps[0][1], 0):
                op()
        if self.needs_ob(steps[0]):
            for op in upfront:
                op()
            upfront = ()
            self.barB_("OB")
        for op in self.bf_reads(steps[0]):
            op()
        for op in upfront:
            op()
        if self.boost:
            e(f"s_setprio {self.prioB}")
        late = []
        for i, (wd, hs) in enumerate(steps):
            ks, cbk = hs >> 1, hs & 1
            kk = self.kid(steps[i])
            kb = self.bfi(kk)
            others = []
            nx = steps[i+1] if i + 1 < len(steps) else None
            if nx:
                self.vmwait([nx], "lgkmcnt(0)")
                if not self.needs_ob(nx):
                    others += self.bf_reads(nx)
                others += self.w_reads(nx[1], i + 1)
            else:
                e("s_waitcnt lgkmcnt(0)")
                for st in preload:
                    if self.bfi(self.kid(st)) != kb:
                        others += self.bf_reads(st)
                    else:
                        late += self.bf_reads(st)
            others += per_step(i)
            zero = ks == 0 and ((wd[0] == 'Q' and wd[2] == 0) or wd == ('O', 0, 0, 0))
            k = 0
            for u, cb4 in (S22 if self.s22 else [(u, c) for u in range(4) for c in range(4)]):
                d = vr(64*cbk + 16*u + 4*cb4, 4)
                if not (self.noBm and wd[:2] != ('Q', 0)):
                    e(f"v_mfma_f32_16x16x32_bf16 {d}, {ar(16*(i&1)+4*u,4)}, {self.bfreg(kk, cb4)}, {0 if zero else d}")
                if k < len(others):
                    others[k](); k += 1
            while k < len(others):
                others[k](); k += 1
            if nx and self.needs_ob(nx):
                if self.boost:
                    e(f"s_setprio {self.boost}")
                self.barB_("OB")
                for op in self.bf_reads(nx):
                    op()
                if self.boost:
                    e(f"s_setprio {self.prioB}")
        for op in late:
            op()

    def q_ops(self, cbk):
        e = self.e
        t = self.B_TMP
        ops = []
        for u in range(4):
            for cb4 in range(4):
                def op(u=u, cb4=cb4):
                    a = 64*cbk + 16*u + 4*cb4
                    d = t + 2*((4*u + cb4) % 8)
                    e(f"v_cvt_pk_bf16_f32 v{d}, v{a}, v{a+1}")
                    e(f"v_cvt_pk_bf16_f32 v{d+1}, v{a+2}, v{a+3}")
                    off = (cb4*4 + 2*cbk + (u >> 1))*1024 + (u & 1)*512
                    e(f"ds_write_b64 v{self.B_QW}, {vr(d,2)} offset:{off}")
                ops.append(op)
        return ops

    def q_write(self, cbks=(0, 1)):
        e = self.e
        e("s_nop 7" if cbks == (0, 1) else "s_nop 3")
        for cbk in cbks:
            for op in self.q_ops(cbk):
                op()
        e("s_waitcnt lgkmcnt(0)")

    def periodB(self, n):
        e = self.e
        self.curn = n
        steps = self.sched(n)
        nxt = self.sched(n + 1) if n < 32 else []
        self.vmwait([f"H{n}"] + [f"X1_{xp}" for xp, m in self.xfirst.items() if m == n])
        self.barB_("KV0" if n == 0 else "KV")
        hx = []
        if n + 1 <= 31 and not (n == 0 and self.h1h):
            hx += self.H_ops(n + 1)[self.hdone.get(n + 1, 0):]
        for xp, m in self.xfirst.items():
            if m == n + 1:
                hx += self.X_ops(xp, self.xloc(1, xp), f"X1_{xp}", self.x2nt)
        if n == 0:
            for st in steps:
                for op in self.W_ops(*st):
                    op()
        if not steps:
            for op in hx:
                op()
        if n == 8 and not steps:
            self.q_write()
        if n in (9, 25):
            self.barB_("QB2")
        todo = list(nxt[:len({hs for _, hs in nxt})])
        pre = []
        for it, base in ((0, 10), (1, 26)):
            for c in range(4):
                if n + 1 == (base + 2*c + 2 if c < 3 else (26 if it == 0 else -1)):
                    rest = [st for m in range(n + 1, 33) for st in self.sched(m) if st[0][:3] == ('O', it, c) and not st[1] & 1]
                    pre += rest
        if steps:
            def per(i):
                if n == 32:
                    rest = [st for st in steps[i+1:] if st[1] == steps[i][1]]
                    if self.tailov and self.path == 'main' and i == len(steps) - 2:
                        return [self.pub_setup]
                    if self.tailov and self.path == 'main' and i == len(steps) - 1:
                        return [lambda: None]*3 + self.pub_ops(0)
                    return self.W_ops(*rest[0]) if rest else []
                free = {hs for _, hs in steps[:i+1-self.lag]} | ({0, 1, 2, 3} - {hs for _, hs in steps})
                r = []
                if inter and i < 2:
                    nh = (len(hx) + 1)//2 if (i == 0 and len(steps) > 2) else len(hx)
                    r += hx[:nh]
                    del hx[:nh]
                while todo and todo[0][1] in free and i >= self.rin:
                    r += self.W_ops(*todo.pop(0))
                if n == 8 and i == len(steps) - 1:
                    r += self.q_ops(0)
                return r
            a_epi = n in (10, 12, 14, 16, 26, 28, 30)
            inter = self.hint and a_epi and not self.needs_ob(steps[0])
            last_k = self.kid(steps[-1])
            newk = [self.kid(st) for st in pre if self.kid(st) not in self.bfl and self.kid(st) not in map(self.kid, steps)]
            live = {self.kid(st) for m in range(n + 1, 33) for st in self.sched(m) if self.kid(st) in self.bfl or self.kid(st) in map(self.kid, steps)}
            bufs = [self.bfi(k) for k in newk] + [self.bfi(k) for k in live]
            assert len(bufs) == len(set(bufs)), (n, newk, live)
            self.run_steps(steps, per, pre, [] if inter else hx)
            if n == 8:
                self.q_write((1,))
        else:
            assert all(self.kid(st) in self.bfl for st in pre)
        for st in todo:
            for op in self.W_ops(*st):
                op()
        if pre:
            e("s_waitcnt lgkmcnt(0)")
        if self.fre and n < 32:
            e("s_barrier")
            self.barB[self.path].append("FR")
            if n + 2 <= 31:
                k = "H%d" % (n + 1)
                after = len(self.vmq) - 1 - max([i for i, t in enumerate(self.vmq) if t == k], default=-1)
                if self.path == 'main':
                    self.hdone[n + 2] = max(0, min(8, (self.cap - 4*after)//4))
                for op in self.H_ops(n + 2)[:self.hdone[n + 2]]:
                    op()
        if self.pre_rd and nxt and n + 1 in (12, 14, 16, 28, 30, 32) and self.kid(nxt[0]) in self.bfl:
            self.vmwait([f"H{n+1}", nxt[0]])
            for op in self.w_reads(nxt[0][1], 0):
                op()
            self.wpre = nxt[0]

    def epilogue_v1(self):
        e = self.e
        t = self.B_TMP
        e("s_nop 7")
        e(f"v_lshlrev_b32 v{t}, 4, v{self.B_LANE}")
        e(f"s_lshl_b32 s{S_T1}, s{S_WG}, 17")
        e(f"s_lshl_b32 s{S_T0}, s{S_W}, 15")
        e(f"s_add_u32 s{S_T1}, s{S_T1}, s{S_T0}")
        for cbk in range(1 if self.path == 'w3' else 2):
            for u in range(4):
                e(f"s_add_u32 s{S_T0}, s{S_T1}, {(cbk*4+u)*4096}")
                for cb4 in range(4):
                    e(f"buffer_store_dwordx4 {vr(64*cbk+16*u+4*cb4,4)}, v{t}, {sr(S_WS,4)}, s{S_T0} offen offset:{cb4*1024}")

    def pub_setup(self):
        e = self.e
        slot = 32768 if self.f32 else 16384
        e(f"v_lshlrev_b32 v{self.B_TMP}, 4, v{self.B_LANE}")
        e(f"s_and_b32 s{S_T1}, s{S_WG}, 0xfc")
        e(f"s_mul_i32 s{S_T1}, s{S_T1}, {4*slot}")
        e(f"s_mul_i32 s{S_T0}, s{S_W}, {slot // 4}")
        e(f"s_add_u32 s{S_T1}, s{S_T1}, s{S_T0}")
        e(f"s_mul_i32 s2, s{S_P}, {slot}")
        e(f"s_add_u32 s2, s2, s{S_T1}")
        for rb in (1, 2, 3):
            e(f"s_add_u32 s{S_T0}, s{S_P}, {rb}")
            e(f"s_and_b32 s{S_T0}, s{S_T0}, 3")
            e(f"s_mul_i32 s{S_T0}, s{S_T0}, {4*slot}")
            e(f"s_add_u32 s{S_KR+rb}, s{S_T0}, s2")

    def pub_ops(self, cbk):
        e = self.e
        L16, D, fl = self.B_TMP, self.B_TMP + 4, self.pfl
        ops = []
        if self.f32:
            for u in range(4):
                for rb in (1, 2, 3):
                    def op(u=u, rb=rb):
                        e(f"s_add_u32 s{S_T0}, s{S_KR+rb}, {cbk*4096}")
                        e(f"buffer_store_dwordx4 {vr(64*cbk+16*u+4*rb,4)}, v{L16}, {sr(S_WS,4)}, s{S_T0} offen offset:{u*1024} {fl}")
                    ops.append(op)
            return ops
        n = 0
        for u2 in range(2):
            for rb in (1, 2, 3):
                d = D + 4*(n % 3); n += 1
                a0 = 64*cbk + 32*u2 + 4*rb
                ops.append(lambda d=d, a0=a0: (e(f"v_cvt_pk_bf16_f32 v{d}, v{a0}, v{a0+1}"), e(f"v_cvt_pk_bf16_f32 v{d+1}, v{a0+2}, v{a0+3}")))
                ops.append(lambda d=d, a0=a0, rb=rb, u2=u2: (e(f"v_cvt_pk_bf16_f32 v{d+2}, v{a0+16}, v{a0+17}"), e(f"v_cvt_pk_bf16_f32 v{d+3}, v{a0+18}, v{a0+19}"),
                           e(f"buffer_store_dwordx4 {vr(d,4)}, v{L16}, {sr(S_WS,4)}, s{S_KR+rb} offen offset:{(2*cbk+u2)*1024} {fl}")))
        return ops

    def epilogue_fused(self):
        e = self.e
        t = self.B_TMP
        L16, OA = t, t + 1
        D = t + 4
        ncbk = 1 if self.path == 'w3' else 2
        slot = 32768 if self.f32 else 16384
        self.stamp(self.B_ST)
        ov = self.tailov and ncbk == 2
        if not ov:
            self.pub_setup()
        e("s_nop 7")
        for cbk in range(1 if ov else 0, ncbk):
            for op in self.pub_ops(cbk):
                op()
        e(f"v_and_b32 v{OA}, 15, v{self.B_LANE}")
        e(f"v_mul_u32_u24 v{OA}, 1792, v{OA}")
        e(f"v_lshrrev_b32 v{t+2}, 4, v{self.B_LANE}")
        e(f"v_lshl_add_u32 v{OA}, v{t+2}, 3, v{OA}")
        e("s_waitcnt vmcnt(0)")
        e("s_barrier")
        self.stamp(self.B_ST)
        if self.path == 'main':
            e(f"s_cmp_eq_u32 s{S_W}, 0")
            e("s_cbranch_scc0 L_nopoll")
            e(f"v_add_u32 v{self.B_FOUT}, 1, v{self.B_FOUT}")
            e("s_mov_b64 exec, 15")
            e(f"buffer_store_dword v{self.B_FOUT}, v{self.B_FAO}, {sr(S_WS,4)}, 0 offen sc1")
            e(f"s_mov_b32 s{S_CH}, 0")
            e.lab("L_poll")
            e(f"buffer_load_dword v{t+2}, v{self.B_FAI}, {sr(S_WS,4)}, 0 offen sc1")
            e(f"s_add_u32 s{S_CH}, s{S_CH}, 1")
            e("s_waitcnt vmcnt(0)")
            e(f"v_cmp_eq_u32 vcc, v{t+2}, v{self.B_FIN}")
            e("s_nop 0")
            e("s_cbranch_vccz L_polled")
            e(f"s_cmp_lt_u32 s{S_CH}, 0x20000")
            e("s_cbranch_scc1 L_poll")
            e.lab("L_polled")
            e("s_mov_b64 exec, -1")
            e.lab("L_nopoll")
        e("s_barrier")
        self.stamp(self.B_ST)
        e(f"s_mul_i32 s2, s{S_P}, {4*slot}")
        e(f"s_add_u32 s2, s2, s{S_T1}")
        for rb in (1, 2, 3):
            e(f"s_add_u32 s{S_T0}, s{S_P}, {rb}")
            e(f"s_and_b32 s{S_T0}, s{S_T0}, 3")
            e(f"s_mul_i32 s{S_T0}, s{S_T0}, {slot}")
            e(f"s_add_u32 s{S_T0}, s{S_T0}, s2")
            for cbk in range(ncbk):
                if self.f32:
                    if cbk:
                        e(f"s_add_u32 s{S_T0}, s{S_T0}, 4096")
                    for u in range(4):
                        e(f"buffer_load_dwordx4 {vr(64*cbk+16*u+4*rb,4)}, v{L16}, {sr(S_WS,4)}, s{S_T0} offen offset:{u*1024} {self.lfl}")
                else:
                    for u2 in range(2):
                        e(f"buffer_load_dwordx4 {vr(64*cbk+32*u2+4*rb,4)}, v{L16}, {sr(S_WS,4)}, s{S_T0} offen offset:{(2*cbk+u2)*1024} {self.lfl}")
        e(f"s_mul_i32 s2, s{S_B}, {64*1792}")
        e(f"s_mul_i32 s3, s{S_P}, {16*1792}")
        e(f"s_add_u32 s2, s2, s3")
        e(f"s_mul_i32 s3, s{S_BR}, 896")
        e(f"s_add_u32 s2, s2, s3")
        e(f"s_add_u32 s2, s2, s{S_WCOL}")
        e("s_waitcnt vmcnt(0)")
        for cbk in range(ncbk):
            for u in range(4):
                a = 64*cbk + 16*u
                for rb in (1, 2, 3):
                    if self.f32:
                        for r in range(4):
                            e(f"v_add_f32 v{a+r}, v{a+r}, v{a+4*rb+r}")
                    else:
                        src = 64*cbk + 32*(u >> 1) + 4*rb + 2*(u & 1)
                        for h in range(2):
                            e(f"v_lshlrev_b32 v{D+2*h}, 16, v{src+h}")
                            e(f"v_and_b32 v{D+2*h+1}, 0xffff0000, v{src+h}")
                        e(f"v_pk_add_f32 {vr(a,2)}, {vr(a,2)}, {vr(D,2)}")
                        e(f"v_pk_add_f32 {vr(a+2,2)}, {vr(a+2,2)}, {vr(D+2,2)}")
                e(f"v_cvt_pk_bf16_f32 v{a}, v{a}, v{a+1}")
                e(f"v_cvt_pk_bf16_f32 v{a+1}, v{a+2}, v{a+3}")
                e(f"buffer_store_dwordx2 {vr(a,2)}, v{OA}, {sr(S_OUT,4)}, s2 offen offset:{cbk*128+u*32} {self.ofl}".rstrip())

    def endB(self):
        e = self.e
        if self.fuse:
            self.epilogue_fused()
        else:
            self.epilogue_v1()
        if self.prof:
            e("s_waitcnt vmcnt(0)")
            self.stamp(self.B_ST)
            if self.path == 'main':
                e(f"s_cmp_eq_u32 s{S_W}, 0")
                e("s_cbranch_scc0 L_end")
                self.prof_store(self.B_ST, 1, 0)
        e("s_endpgm")

    def streamB(self):
        e = self.e
        e.lab("L_B")
        self.vmq = []
        self.deferred = []
        self.path = 'main'
        self.barB = {'main': [], 'w3': []}
        self.stamp(self.B_ST)
        self.setupB()
        for hs in range(4):
            for op in self.W_ops(('Q', 0, 0), hs):
                op()
        self.setupB2()
        if self.early:
            for xp in range(2, 7):
                for op in self.X_ops(xp, self.xloc(0, xp), "X0b", self.xnt):
                    op()
        if self.flate:
            self.flag_loads()
        self.stamp(self.B_ST)
        self.vmwait(["X0"])
        self.barB_("HB")
        steps = [(('Q', 0, h), hs) for h in range(7) for hs in range(4)]
        H0 = self.H_ops(0)
        if self.h1h:
            assert self.early and self.hdef is None and not self.hto
            H0 = H0 + self.H_ops(1)
        def per(i):
            if i % 2 == 1 and self.prof != 2:
                self.stamp(self.B_ST, f"h{i}")
            if i == 6 and self.early:
                assert "X0b" not in self.vmq
                return self.W_ops(*steps[i + 4]) + [lambda: self.barB_("HB2")]
            if i == 23 and self.h1h:
                return self.W_ops(*steps[i + 4]) + [lambda: self.barB_("HB3")]
            if i >= 24 and self.h1h:
                return H0[4*(i - 24):4*(i - 24) + 4]
            if i + 4 < 28:
                return self.W_ops(*steps[i + 4])
            if self.hdef is not None:
                tt = self.wo_touch(False)
                return (tt if self.hdef == i else []) + H0[2*(i - 24):2*(i - 24) + 2] + (tt if self.hdef == i + 1 == 28 else [])
            return (self.wo_touch(True) if i == 24 else []) + H0[2*(i - 24):2*(i - 24) + 2]
        def per2(i):
            return per(i) + (self.q_ops(0) if self.qov and i == 27 else [])
        self.run_steps(steps, per2)
        self.q_write((1,) if self.qov else (0, 1))
        for op in (self.wo_touch(False) if self.hdef is None else []):
            op()
        self.barB_("QB1")
        for n in range(9):
            self.periodB(n)
        e(f"s_cmp_eq_u32 s{S_W}, 3")
        e("s_cbranch_scc1 L_B3")
        save = list(self.vmq)
        save_bfl = set(self.bfl)
        assert not self.deferred
        self.barB['w3'] = list(self.barB['main'])
        for n in range(9, 33):
            self.periodB(n)
        self.endB()
        e.lab("L_B3")
        self.path = 'w3'
        self.vmq = save
        self.bfl = save_bfl
        self.wpre = None
        self.deferred = []
        for n in range(9, 33):
            self.periodB(n)
        self.endB()

    def reduce_kernel(self):
        e = self.e
        e(".globl red_kernel")
        e(".p2align 8")
        e(".type red_kernel,@function")
        e.lab("red_kernel")
        e("s_cmp_ge_u32 s2, 1792")
        e("s_cbranch_scc1 L_rend")
        e("s_load_dwordx2 s[4:5], s[0:1], 96")
        e("s_load_dwordx2 s[8:9], s[0:1], 80")
        e("s_mul_hi_u32 s12, s2, 153391690")
        e("s_mul_i32 s13, s12, 28")
        e("s_sub_u32 s13, s2, s13")
        e("s_and_b32 s14, s12, 1")
        e("s_lshr_b32 s15, s12, 1")
        e("s_lshl_b32 s16, s15, 3")
        e("s_lshl_b32 s17, s14, 2")
        e("s_add_u32 s16, s16, s17")
        e("s_lshl_b32 s16, s16, 17")
        e("s_lshl_b32 s17, s13, 12")
        e("s_add_u32 s16, s16, s17")
        e("v_lshlrev_b32 v1, 4, v0")
        e("s_mov_b32 s6, 67108864")
        e("s_mov_b32 s7, 0x20000")
        e("s_mov_b32 s10, 3670016")
        e("s_mov_b32 s11, 0x20000")
        e("s_waitcnt lgkmcnt(0)")
        for p in range(4):
            e(f"buffer_load_dwordx4 {vr(4+4*p,4)}, v1, s[4:7], s16 offen")
            e("s_add_u32 s16, s16, 131072")
        e("v_lshrrev_b32 v2, 6, v0")
        e("v_lshlrev_b32 v2, 4, v2")
        e("v_and_b32 v3, 15, v0")
        e("v_add_u32 v2, v2, v3")
        e("v_mul_u32_u24 v2, 1792, v2")
        e("v_bfe_u32 v3, v0, 4, 2")
        e("v_lshl_add_u32 v2, v3, 3, v2")
        e("s_mul_i32 s15, s15, 114688")
        e("s_mul_i32 s14, s14, 896")
        e("s_add_u32 s15, s15, s14")
        e("s_lshl_b32 s13, s13, 5")
        e("s_add_u32 s15, s15, s13")
        e("s_waitcnt vmcnt(0)")
        for r in range(4):
            e(f"v_add_f32 v{4+r}, v{4+r}, v{8+r}")
            e(f"v_add_f32 v{12+r}, v{12+r}, v{16+r}")
            e(f"v_add_f32 v{4+r}, v{4+r}, v{12+r}")
        e("v_cvt_pk_bf16_f32 v4, v4, v5")
        e("v_cvt_pk_bf16_f32 v5, v6, v7")
        e("buffer_store_dwordx2 v[4:5], v2, s[8:11], s15 offen")
        e.lab("L_rend")
        e("s_endpgm")

    def build(self):
        e = self.e
        out = [HEADER.rstrip()]
        if self.fuse:
            out.append(f"; @launch grid=(256,1,1) block=(512,1,1) lds={LDS_BYTES}")
        else:
            out.append(f"; @launch kernel={NAME}_kernel grid=(256,1,1) block=(512,1,1) lds={LDS_BYTES}")
            out.append(f"; @launch kernel=red_kernel grid=(1792,1,1) block=(256,1,1) lds=0")
        out.append('.amdgcn_target "amdgcn-amd-amdhsa--gfx950"')
        out.append(".text")
        out.append(f".globl {NAME}_kernel")
        out.append(".p2align 8")
        out.append(f".type {NAME}_kernel,@function")
        out.append(f"{NAME}_kernel:")
        self.prologue()
        self.streamB()
        self.path = None
        e.lab("L_A")
        self.streamA()
        e.lab("L_end")
        e("s_endpgm")
        if not self.fuse:
            self.reduce_kernel()
        assert self.barA == self.barB['main'] == self.barB['w3'], (self.barA, self.barB)
        if self.prof:
            out.insert(1, f"; NST {44 if self.prof == 4 else len(self.barA)+2} {len(self.namesB)} " + " ".join(self.namesB))
        out.append(e.text())
        out.append('.section .rodata,"a"')
        def kd(name, v, s, acc):
            return f""".p2align 6
.amdhsa_kernel {name}
  .amdhsa_next_free_vgpr {v}
  .amdhsa_next_free_sgpr {s}
  .amdhsa_accum_offset {acc}
  .amdhsa_group_segment_fixed_size 0
  .amdhsa_kernarg_size 104
  .amdhsa_user_sgpr_count 2
  .amdhsa_user_sgpr_kernarg_segment_ptr 1
  .amdhsa_system_sgpr_workgroup_id_x 1
.end_amdhsa_kernel"""
        out.append(kd(f"{NAME}_kernel", 256, 96, 176))
        if not self.fuse:
            out.append(kd("red_kernel", 24, 32, 24))
        return "\n".join(out) + "\n"


if __name__ == "__main__":
    kw = {}
    path = None
    for a in sys.argv[1:]:
        if "=" in a:
            k, v = a.split("=")
            kw[k] = eval(v)
        else:
            path = a
    txt = Gen(**kw).build()
    open(path or f"cdna_kernels/{NAME}.s", "w").write(txt)
    print("lines", txt.count("\n"), "bytes", len(txt))
```

```python
import sys, math

NAME = "concat_heads__gqa_block_cached__gqa_block_cached__near_ridge"
HEADER = open("cdna_kernels/%s.s.ref" % NAME).read().split("; Override launch")[0]

KV_SLOT = 33792
W_BASE = KV_SLOT + 5 * 8704
XO_BASE = W_BASE + 65536
X_SLOT = 8704
FLAG_BASE = 0x2800000
LDS_BYTES = XO_BASE + 2 * X_SLOT

S_X, S_K, S_V, S_WQ, S_WO, S_OUT, S_WS = 4, 8, 12, 16, 20, 24, 28
S_W = 60
S_B = 61
S_P = 62
S_BR = 63
S_T0, S_T1 = 64, 65
S_WLDS = 66
S_WCOL = 67
S_KLDS = 68
S_KG = 69
S_VG = 70
S_KR, S_VC, S_WR = 32, 36, 40
S_VLB = 77
S_XLDS = 71
S_XG = 72
S_HK, S_HV, S_KL, S_VL, S_HVC = 66, 67, 68, 69, 70
S_HS = 32
S_HM, S_HGS = 36, 37
S_C = 73
S_THR = 74
S_ITEM = 75
S_CH = 76
S_RET = 78
S_STAMP = 80
S_SIDX = 82
S_WG = 83
S_DBG = 88
S_JUNK = 92


S22 = [(0,0),(0,1),(1,1),(1,0),(2,0),(2,1),(3,1),(3,0),(3,2),(3,3),(2,3),(2,2),(1,2),(1,3),(0,3),(0,2)]


class Em:
    def __init__(self):
        self.l = []
    def __call__(self, s):
        self.l.append(s)
    def lab(self, s):
        self.l.append(s + ":")
    def text(self):
        return "\n".join(self.l)


def vr(a, n=1):
    return f"v{a}" if n == 1 else f"v[{a}:{a+n-1}]"
def ar(a, n=1):
    return f"a{a}" if n == 1 else f"a[{a}:{a+n-1}]"
def sr(a, n=1):
    return f"s{a}" if n == 1 else f"s[{a}:{a+n-1}]"


class Gen:
    def __init__(self, prof=False, prioA=1, npostQ=10, npostO=12, npre=6, fuse=True, pfl='sc1', f32=False, xnt=False, rin=1, nearlyQ=0, nearlyO=0, shift=1, lag=0, boost=2, hA=False, obf=26, obk=(1, 8), pre1=36, tailov=True, dropr=(0, 99), vt0=1, vto=False, xpromo=False, early=True, pre2=76, bto=False, hto=(), rot=True, hfirst=4, chB='all', w3first=False, hb2=6, wper=1, chA=True, flate=False, tlate=False, epi=False, kst=4, s22=True, fre=False, cap=48, ctouch=True, qcnt=(2,2,2,4,4,4,4,4,2), o1cnt=(2,2,2,2,4,4,0,2,2,2,2,2,2,2,2), o2cnt=(2,2,4,4,4,4), obe=3, h1h=False, pre3=150, nolt=False, hdef=None, spread=True, pre_rd=True, qov=True, x2nt=True, wq0nt=False, tp1=20, lfl='sc1', ofl='', drop=0, hint=True, wo1A=56, dyn=True, prioB=1, noH=False, noW=False, noSM=False, noBm=False, noAm=False, tnt=False):
        self.e = Em()
        self.prof = prof
        self.prioA = prioA
        self.npostQ, self.npostO, self.npre, self.pfl, self.f32 = npostQ, npostO, npre, pfl, f32
        self.fuse = fuse
        self.hfirst = hfirst
        self.chB = chB
        self.w3first, self.hb2 = w3first, hb2
        self.wper = wper
        self.chA = chA
        assert chA
        self.kst = kst
        self.ksh = {1: 9, 2: 10, 4: 11}[kst]
        self.flate, self.tlate, self.epi = flate, tlate, epi
        self.s22 = s22
        self.fre, self.cap = fre, cap
        self.hdone = {}
        self.ctouch = ctouch
        self.qcnt, self.o1cnt, self.o2cnt, self.obe = qcnt, o1cnt, o2cnt, obe
        self.make_sched()
        self.h1h, self.pre3 = h1h, pre3
        self.nolt = nolt
        self.hdef, self.spread, self.pre_rd, self.qov = hdef, spread, pre_rd, qov
        if hdef is not None:
            vto, hto = False, (1,)
        self.hto, self.rot = hto, rot
        self.bto, self.x2nt, self.wq0nt, self.tp1 = bto, x2nt, wq0nt, tp1
        self.early, self.pre2 = early, pre2
        self.xpromo = xpromo
        self.vt0, self.vto, self.lfl, self.ofl = vt0, vto, lfl, ofl
        self.drop = drop
        self.dropr = dropr
        self.obk, self.pre1, self.tailov = obk, pre1, tailov
        self.dyn = dyn
        self.prioB = prioB if dyn else 0
        if dyn:
            prioA, boost = 2, (3 if boost else 0)
            self.prioA = 2
        self.wo1A = wo1A
        self.hA, self.obf, self.hint = hA, obf, hint
        self.lag, self.boost = lag, boost
        self.xnt, self.rin, self.nearlyQ, self.nearlyO, self.shift = xnt, rin, nearlyQ, nearlyO, shift
        self.noH, self.noW, self.noSM, self.noBm, self.noAm = noH, noW, noSM, noBm, noAm
        self.tfl = ' nt' if tnt else ''
        self.barA = []
        self.barB = {}
        self.st2 = {175: 174}
        self.namesB = []
        self.curn = -1
        self.wpre = None
        self.bfl = set()
        self.wld = set()
        self.carry = []
        self.fine = (3, 4, 12, 13, 14, 29)

    def stamp(self, vreg, name="."):
        e = self.e
        if not self.prof:
            return
        if self.prof in (4, 5) and not name.startswith('@'):
            return
        if self.prof == 4 and getattr(self, 'path', None) is not None:
            return
        if self.prof == 5 and getattr(self, 'path', None) is None:
            return
        if self.prof == 6 and (getattr(self, 'path', None) is None or not (name.startswith('KV') or name in ('.', 'HB-1', 'QB1-1'))):
            return
        if self.prof == 7 and (getattr(self, 'path', None) is None or name not in ('.', 'KV00', 'KV8', 'KV16', 'KV24', 'KV32')):
            return
        if self.prof == 8 and (getattr(self, 'path', None) is None or not (name[0] in '.hHQ' or name in ('KV00', 'KV1', 'KV2', 'KV32'))):
            return
        if self.prof == 3 and (getattr(self, 'path', None) is None or not (name in ('.', 'HB-1', 'HB2-1', 'QB1-1', 'KV00', 'KV1', 'KV8', 'KV10', 'KV16', 'KV19', 'KV24', 'KV26', 'KV32', 'OB32'))):
            return
        if getattr(self, 'path', None) == 'main':
            self.namesB.append(name)
        e(f"s_memrealtime {sr(S_STAMP,2)}")
        e(f"s_memtime {sr(S_STAMP+4,2)}")
        e("s_waitcnt lgkmcnt(0)")
        e(f"s_mov_b32 m0, s{S_SIDX}")
        e(f"v_writelane_b32 v{vreg}, s{S_STAMP}, m0")
        e(f"v_writelane_b32 v{self.st2[vreg]}, s{S_STAMP+4}, m0")
        e(f"s_add_u32 s{S_SIDX}, s{S_SIDX}, 1")

    def prologue(self):
        e = self.e
        e("s_cmp_ge_u32 s2, 256")
        e("s_cbranch_scc1 L_end")
        e("s_load_dwordx16 s[32:47], s[0:1], 0")
        e("s_load_dwordx8 s[48:55], s[0:1], 64")
        e("s_load_dwordx2 s[56:57], s[0:1], 96")
        e(f"v_lshrrev_b32 v1, 6, v0")
        e(f"s_mov_b32 s{S_WG}, s2")
        e(f"s_and_b32 s{S_P}, s2, 3")
        e(f"v_readfirstlane_b32 s3, v1")
        e(f"s_lshr_b32 s{S_B}, s2, 3")
        e(f"s_bfe_u32 s{S_BR}, s2, 0x10002")
        e(f"s_mov_b32 s{S_SIDX}, 0")
        e("v_and_b32 v0, 63, v0")
        e(f"s_and_b32 s{S_W}, s3, 3")
        if self.ctouch:
            e(f"s_cmp_eq_u32 s3, 1")
            e("s_cbranch_scc0 L_noct")
            e(f"s_getpc_b64 s[58:59]")
            e.lab("L_pc")
            e(f"s_sub_u32 s58, s58, L_pc-{NAME}_kernel")
            e(f"s_subb_u32 s59, s59, 0")
            e(f"v_lshl_add_u32 v2, v0, 5, s{S_B}")
            e(f"v_lshlrev_b32 v2, 7, v2")
            e(f"v_min_u32 v2, L_end-{NAME}_kernel, v2")
            e(f"v_mov_b32 v3, s59")
            e(f"v_add_co_u32 v2, vcc, s58, v2")
            e("s_nop 1")
            e(f"v_addc_co_u32 v3, vcc, 0, v3, vcc")
            e(f"global_load_dword v4, v[2:3], off")
            e.lab("L_noct")
        e("s_waitcnt lgkmcnt(0)")
        e("s_bitcmp1_b32 s2, 2")
        e(f"s_cselect_b64 {sr(S_X,2)}, s[42:43], s[32:33]")
        e(f"s_cselect_b64 {sr(S_K,2)}, s[44:45], s[34:35]")
        e(f"s_cselect_b64 {sr(S_V,2)}, s[46:47], s[36:37]")
        e(f"s_cselect_b64 {sr(S_WQ,2)}, s[48:49], s[38:39]")
        e(f"s_cselect_b64 {sr(S_WO,2)}, s[50:51], s[40:41]")
        def addbase(srd, sreg):
            e(f"s_add_u32 s{srd}, s{srd}, s{sreg}")
            e(f"s_addc_u32 s{srd+1}, s{srd+1}, 0")
        e(f"s_mul_i32 s{S_T0}, s{S_B}, 57344")
        addbase(S_X, S_T0)
        e(f"s_lshl_b32 s{S_T0}, s{S_B}, 21")
        e(f"s_lshl_b32 s{S_T1}, s{S_P}, 19")
        e(f"s_add_u32 s{S_T0}, s{S_T0}, s{S_T1}")
        addbase(S_K, S_T0)
        addbase(S_V, S_T0)
        e(f"s_lshl_b32 s{S_T0}, s{S_P}, 11")
        addbase(S_WQ, S_T0)
        e(f"s_sub_u32 s{S_WQ+2}, 3670016, s{S_T0}")
        e(f"s_mul_i32 s{S_T0}, s{S_P}, 917504")
        addbase(S_WO, S_T0)
        e(f"s_mov_b32 s{S_X+2}, 57344")
        e(f"s_mov_b32 s{S_K+2}, 524288")
        e(f"s_mov_b32 s{S_V+2}, 524288")
        e(f"s_mov_b32 s{S_WO+2}, 917504")
        e(f"s_mov_b64 {sr(S_OUT,2)}, s[52:53]")
        e(f"s_mov_b32 s{S_OUT+2}, 3670016")
        e(f"s_mov_b64 {sr(S_WS,2)}, s[56:57]")
        e(f"s_mov_b32 s{S_WS+2}, 67108864")
        e(f"s_mov_b64 {sr(S_DBG,2)}, s[54:55]")
        e(f"s_mov_b32 s{S_DBG+2}, 256")
        for s in (S_X, S_K, S_V, S_WQ, S_WO, S_OUT, S_WS, S_DBG):
            e(f"s_mov_b32 s{s+3}, 0x20000")
        e("s_cmp_lt_u32 s3, 4")
        e("s_cbranch_scc1 L_A")

    def tr_addr(self, dst, base_imm=None, base_sreg=None, t0=None, t1=None, t2=None):
        e = self.e
        e(f"v_bfe_u32 v{t0}, v0, 2, 3")
        e(f"v_lshrrev_b32 v{t1}, 5, v0")
        e(f"v_lshlrev_b32 v{t1}, 10, v{t1}")
        e(f"v_lshl_add_u32 v{t1}, v{t0}, 7, v{t1}")
        e(f"v_and_b32 v{t2}, 3, v0")
        e(f"v_lshl_add_u32 v{t1}, v{t2}, 3, v{t1}")
        if base_imm:
            e(f"v_add_u32 v{t1}, {base_imm}, v{t1}")
        if base_sreg is not None:
            e(f"v_add_u32 v{t1}, s{base_sreg}, v{t1}")
        e(f"v_lshrrev_b32 v{t0}, 1, v{t0}")
        for u in range(4):
            e(f"v_xor_b32 v{t2}, {u}, v{t0}")
            e(f"v_lshl_add_u32 v{dst+u}, v{t2}, 5, v{t1}")

    A_P = 0
    A_S = 128
    A_T = 144
    A_KA = 160
    A_VA = 161
    A_OW = 165
    A_VX = 165
    A_VK = 166
    A_VV = 167
    A_NM = 168
    A_L = 174
    A_TS = 170
    A_ST = 175

    def barA_(self, name, times=1):
        if self.prof == 2:
            self.stamp(self.A_ST)
        self.e("s_barrier")
        self.barA.append(name)
        if self.prof != 2:
            self.stamp(self.A_ST)

    def kbuf(self, f):
        b = f % 8
        return ('a', 64 + 4*b) if b < 4 else ('v', self.A_T + 4*(b - 4))

    def vbuf(self, f, half):
        bp = ((f >> 1) + half) % 3
        return ('a', 64 + 8*bp + 4*(f & 1)) if bp < 2 else ('v', 166 + 4*(f & 1))

    @staticmethod
    def rg(b, off, n):
        return (ar if b[0] == 'a' else vr)(b[1] + off, n)

    def k_read(self, f, slot, tile):
        mt, s = f >> 3, f & 7
        off = slot * KV_SLOT + tile * 16896 + mt * 8448 + s * 64
        self.e(f"ds_read_b128 {self.rg(self.kbuf(f), 0, 4)}, v{self.A_KA} offset:{off}")

    def v_read(self, f, slot, parts=(0, 1)):
        u, T = f >> 3, f & 7
        off = slot * KV_SLOT + T * 4096
        for t in parts:
            self.e(f"ds_read_b64_tr_b16 {self.rg(self.vbuf(f, slot), 2*t, 2)}, v{self.A_VA+u} offset:{off+2048*t}")

    def lane16(self, dst, jsh, qsh, base):
        e = self.e
        e(f"v_mbcnt_lo_u32_b32 v{dst}, -1, 0")
        e(f"v_mbcnt_hi_u32_b32 v{dst}, -1, v{dst}")
        e(f"s_lshr_b32 s{S_T0}, s{S_W}, 1")
        e(f"s_and_b32 s{S_T1}, s{S_W}, 1")
        e(f"s_lshl_b32 s{S_T0}, s{S_T0}, {jsh}")
        e(f"s_lshl_b32 s{S_T1}, s{S_T1}, {qsh}")
        e(f"s_add_u32 s{S_T0}, s{S_T0}, s{S_T1}")
        e(f"s_add_u32 s{S_T0}, s{S_T0}, {base}")
        e(f"v_lshl_add_u32 v{dst}, v{dst}, 4, s{S_T0}")

    def q_read(self):
        e = self.e
        qa = self.A_OW
        e(f"v_add_u32 v{qa}, s{S_HV}, v{qa}")
        for s in range(8):
            for cb in range(2):
                off = (s >> 2) * 16384 + cb * 4096 + (s & 3) * 1024
                e(f"ds_read_b128 {ar(8*s+4*cb,4)}, v{qa} offset:{off}")
        e(f"v_subrev_u32 v{qa}, s{S_HV}, v{qa}")

    def dma_voffs(self, VX, VK, VV, VWO, VWQ, a):
        e = self.e
        b, c, d = a + 1, a + 2, a + 3
        e(f"v_lshrrev_b32 v{a}, 3, v0")
        e(f"v_bfe_u32 v{b}, v0, 4, 2")
        e(f"v_and_b32 v{c}, 7, v0")
        e(f"v_xor_b32 v{VX}, v{c}, v{b}")
        e(f"v_lshlrev_b32 v{VX}, 4, v{VX}")
        e(f"v_mul_u32_u24 v{d}, 896, v{a}")
        e(f"v_add_u32 v{VX}, v{VX}, v{d}")
        yield
        e(f"v_lshlrev_b32 v{b}, 1, v{b}")
        e(f"v_xor_b32 v{c}, v{c}, v{b}")
        e(f"v_lshlrev_b32 v{c}, 4, v{c}")
        if VWO is not None:
            e(f"v_add_u32 v{VWO}, v{c}, v{d}")
        if VV is not None:
            e(f"v_lshl_add_u32 v{VV}, v{a}, {self.ksh}, v{c}")
        e(f"v_lshrrev_b32 v{b}, 5, v0")
        if VWQ is not None:
            e(f"v_and_b32 v{d}, 3, v{a}")
            e(f"v_lshl_add_u32 v{VWQ}, v{d}, 13, v{c}")
            e(f"v_lshl_add_u32 v{VWQ}, v{b}, 16, v{VWQ}")
        e(f"v_and_b32 v{c}, 31, v0")
        e(f"v_xor_b32 v{c}, v{c}, v{b}")
        e(f"v_lshlrev_b32 v{c}, 4, v{c}")
        e(f"v_lshl_add_u32 v{VK}, v{b}, {self.ksh}, v{c}")
        yield

    def A_Hops(self, kind, slot, gs, gimm):
        e = self.e
        ops = []
        if self.noH or not self.hA:
            return [lambda pre: None]*8
        for k in range(8):
            def op(pre, k=k):
                if kind == 'K':
                    if pre:
                        e(f"s_add_u32 m0, s{S_KL}, {slot*KV_SLOT + k*1056}")
                        e(f"s_add_u32 s{S_T0}, s{gs}, {gimm + k*4096}")
                    else:
                        e(f"buffer_load_dwordx4 v{self.A_VK}, {sr(S_K,4)}, s{S_T0} offen nt lds")
                elif kind == 'V':
                    if pre:
                        if k % 4 == 0:
                            e(f"s_add_u32 m0, s{S_VL}, {slot*KV_SLOT + k*1024}")
                        e(f"s_add_u32 s{S_T0}, s{gs}, {gimm + k*16384 - (k % 4)*1024}")
                    else:
                        e(f"buffer_load_dwordx4 v{self.A_VV}, {sr(S_V,4)}, s{S_T0} offen offset:{(k%4)*1024} nt lds")
                else:
                    if pre:
                        if k:
                            e(f"s_add_u32 m0, m0, s{S_HM}")
                            e(f"s_add_u32 s{S_T1}, s{S_T1}, s{S_HGS}")
                    else:
                        e(f"buffer_load_dwordx4 v{self.A_NM}, {sr(S_HS,4)}, s{S_T1} offen nt lds")
            ops.append(op)
        return ops

    def xlane(self, op, x, t):
        e = self.e
        e(f"v_mov_b32 v{t}, v{x}")
        e("s_nop 1")
        e(f"v_permlane32_swap_b32 v{t}, v{x}")
        e("s_nop 1")
        e(f"{op} v{x}, v{x}, v{t}")
        e(f"v_mov_b32 v{t}, v{x}")
        e("s_nop 1")
        e(f"v_permlane16_swap_b32 v{t}, v{x}")
        e("s_nop 1")
        e(f"{op} v{x}, v{x}, v{t}")

    def tile_max(self, cb, dst, t):
        e = self.e
        S = self.A_S
        r = [S + 4*cb + k for k in range(4)] + [S + 8 + 4*cb + k for k in range(4)]
        e(f"v_max3_f32 v{dst}, v{r[0]}, v{r[1]}, v{r[2]}")
        e(f"v_max3_f32 v{dst}, v{dst}, v{r[3]}, v{r[4]}")
        e(f"v_max3_f32 v{dst}, v{dst}, v{r[5]}, v{r[6]}")
        e(f"v_max_f32 v{dst}, v{dst}, v{r[7]}")
        self.xlane("v_max_f32", dst, t)

    def softmax(self, T):
        e = self.e
        S, TT, P = self.A_S, self.A_T, self.A_P
        if T == 0:
            for cb in range(2):
                self.tile_max(cb, TT + cb, TT + 2)
                e(f"v_mul_f32 v{self.A_NM+cb}, s{S_C}, v{TT+cb}")
                e(f"v_sub_f32 v{self.A_NM+cb}, 0, v{self.A_NM+cb}")
                e(f"v_mov_b32 v{self.A_L+cb}, 0")
        e.lab(f"L_sm{T}")
        groups = [(0, 0), (0, 1), (1, 0), (1, 1)]
        def fma(gi):
            mt, cb = groups[gi]
            for r in range(4):
                e(f"v_fma_f32 v{TT+4*gi+r}, v{S+8*mt+4*cb+r}, s{S_C}, v{self.A_NM+cb}")
        def exp(gi):
            for r in range(4):
                e(f"v_exp_f32 v{TT+4*gi+r}, v{TT+4*gi+r}")
        def fin(gi):
            mt, cb = groups[gi]
            t = TT + 4*gi
            ts = self.A_TS + cb
            if mt == 0:
                e(f"v_add_f32 v{ts}, v{t}, v{t+1}")
            else:
                e(f"v_add_f32 v{ts}, v{ts}, v{t}")
                e(f"v_add_f32 v{ts}, v{ts}, v{t+1}")
            e(f"v_cvt_pk_bf16_f32 v{P+8*T+4*cb+2*mt}, v{t}, v{t+1}")
            e(f"v_add_f32 v{ts}, v{ts}, v{t+2}")
            e(f"v_cvt_pk_bf16_f32 v{P+8*T+4*cb+2*mt+1}, v{t+2}, v{t+3}")
            e(f"v_add_f32 v{ts}, v{ts}, v{t+3}")
        fma(0); fma(1); exp(0); fma(2); exp(1); fma(3); fin(0); exp(2); fin(1); exp(3); fin(2); fin(3)
        if T > 0:
            e(f"v_max_f32 v{TT}, v{self.A_TS}, v{self.A_TS+1}")
            e(f"v_cmp_lt_f32 vcc, s{S_THR}, v{TT}")
            e("s_nop 0")
            e(f"s_cbranch_vccz L_ok{T}")
            e(f"s_call_b64 {sr(S_RET,2)}, L_rescale")
            e(f"s_branch L_sm{T}")
            e.lab(f"L_ok{T}")
            e(f"s_mov_b32 s{S_THR}, 0x47800000")
        for cb in range(2):
            e(f"v_add_f32 v{self.A_L+cb}, v{self.A_L+cb}, v{self.A_TS+cb}")

    def rescale_routine(self):
        e = self.e
        TT, P = self.A_T, self.A_P
        e.lab("L_rescale")
        for cb in range(2):
            self.tile_max(cb, TT, TT + 2)
            e(f"v_fma_f32 v{TT}, v{TT}, s{S_C}, v{self.A_NM+cb}")
            e(f"v_ceil_f32 v{TT}, v{TT}")
            e(f"v_max_f32 v{TT}, 0, v{TT}")
            e(f"v_sub_f32 v{self.A_NM+cb}, v{self.A_NM+cb}, v{TT}")
            e(f"v_min_f32 v{TT}, 0x43800000, v{TT}")
            e(f"v_cvt_i32_f32 v{TT}, v{TT}")
            e(f"v_sub_u32 v{TT}, 0, v{TT}")
            e(f"v_ldexp_f32 v{self.A_L+cb}, v{self.A_L+cb}, v{TT}")
            for T in range(16):
                for k in range(4):
                    r = P + 8*T + 4*cb + k
                    e(f"v_lshlrev_b32 v{TT+4}, 16, v{r}")
                    e(f"v_and_b32 v{TT+5}, 0xffff0000, v{r}")
                    e(f"v_ldexp_f32 v{TT+4}, v{TT+4}, v{TT}")
                    e(f"v_ldexp_f32 v{TT+5}, v{TT+5}, v{TT}")
                    e(f"v_cvt_pk_bf16_f32 v{r}, v{TT+4}, v{TT+5}")
        e(f"s_mov_b32 s{S_THR}, 0x7f800000")
        e(f"s_setpc_b64 {sr(S_RET,2)}")

    def streamA(self):
        e = self.e
        KA, VA, OW = self.A_KA, self.A_VA, self.A_OW
        self.stamp(self.A_ST)
        if self.prioA:
            e(f"s_setprio {self.prioA}")
        t = self.A_T
        def vtouch():
            e(f"v_and_b32 v{t+12}, 31, v0")
            e(f"v_min_u32 v{t+12}, 27, v{t+12}")
            e(f"s_mul_i32 s{S_T0}, s{S_W}, 28")
            e(f"v_add_u32 v{t+12}, s{S_T0}, v{t+12}")
            if self.vt0:
                e(f"v_lshlrev_b32 v{t+13}, 15, v{t+12}")
                if self.vt0 == 3:
                    e(f"v_lshrrev_b32 v{t+14}, 5, v0")
                    e(f"v_lshl_add_u32 v{t+13}, v{t+14}, 10, v{t+13}")
                e(f"s_lshr_b32 s{S_T0}, s{S_B}, 3")
                e(f"s_lshl_b32 s{S_T0}, s{S_T0}, 13")
                e(f"s_and_b32 s{S_T1}, s{S_B}, 7")
                e(f"s_lshl_b32 s{S_T1}, s{S_T1}, 7")
                e(f"s_add_u32 s{S_T0}, s{S_T0}, s{S_T1}")
                e(f"buffer_load_dword v{t+14}, v{t+13}, {sr(S_WQ,4)}, s{S_T0} offen{' nt' if self.vt0 == 2 else ''}")
            else:
                self.stouch_wq(0, 0, 56, 1)
        if not self.tlate:
            vtouch()
        a, b, c = t + 4, t + 5, t + 6
        e(f"v_bfe_u32 v{a}, v0, 1, 3")
        e(f"v_mul_u32_u24 v{KA}, 1056, v{a}")
        e(f"v_and_b32 v{a}, 1, v0")
        e(f"v_lshl_add_u32 v{KA}, v{a}, 9, v{KA}")
        e(f"v_lshrrev_b32 v{b}, 4, v0")
        e(f"v_xor_b32 v{b}, v{b}, v{a}")
        e(f"v_lshl_add_u32 v{KA}, v{b}, 4, v{KA}")
        self.tr_addr(VA, t0=a, t1=b, t2=c)
        self.lane16(OW, 13, 11, XO_BASE)
        e(f"s_lshr_b32 s{S_T0}, s{S_W}, 1")
        e(f"s_mul_i32 s{S_T0}, s{S_T0}, {32768 - 8192}")
        e(f"s_and_b32 s{S_T1}, s{S_W}, 1")
        e(f"s_mul_i32 s{S_T1}, s{S_T1}, {8192 - 2048}")
        e(f"s_add_u32 s{S_HV}, s{S_T0}, s{S_T1}")
        e(f"s_sub_u32 s{S_HV}, s{S_HV}, {XO_BASE - W_BASE}")
        e(f"s_mov_b32 s{S_C}, 0x3db8aa3b")
        e(f"s_mov_b32 s{S_THR}, 0x47800000")
        e(f"s_mov_b32 s{S_ITEM}, 0")
        if self.tlate:
            vtouch()
        segs = [('q', 56)] if self.vt0 != 3 else []
        if 0 not in self.hto:
            segs.append(('o0', 56))
        if not self.vto and not self.bto and 1 not in self.hto:
            segs.append(('o1', self.wo1A))
        def touch_range(a, b):
            pos = 0
            for kind, n in segs:
                lo, hi = max(a - pos, 0), min(b - pos, n)
                if lo < hi:
                    if kind == 'q':
                        self.stouch_wq(1, lo, hi, 1)
                    else:
                        self.stouch_wo(int(kind[1]), lo, hi)
                pos += n
        touch_range(0, self.pre1)
        self.barA_("HB")
        if self.early:
            touch_range(self.pre1, self.pre2)
            self.barA_("HB2")
            if self.h1h:
                touch_range(self.pre2, self.pre3)
                self.barA_("HB3")
                touch_range(self.pre3, 999)
            else:
                touch_range(self.pre2, 999)
        else:
            touch_range(self.pre1, 999)
        e("s_waitcnt vmcnt(0)")
        if self.xpromo:
            e(f"v_lshlrev_b32 v{t+13}, 7, v0")
            e(f"s_lshl_b32 s{S_T0}, s{S_W}, 13")
            e(f"buffer_load_dword v{t+14}, v{t+13}, {sr(S_X,4)}, s{S_T0} offen")
            e(f"s_add_u32 s{S_T0}, s{S_T0}, 32768")
            e(f"buffer_load_dword v{t+15}, v{t+13}, {sr(S_X,4)}, s{S_T0} offen")
            e("s_waitcnt vmcnt(0)")
        self.barA_("QB1")
        self.q_read()
        e("s_waitcnt lgkmcnt(0)")
        self.barA_("KV0")
        for f in range(4):
            self.k_read(f, 0, 0)
        barA_pre = list(self.barA)
        self.barA = []
        e.lab("L_item")
        if self.dyn:
            e(f"s_setprio {self.prioA}")
        S = self.A_S
        for T in range(16):
            slot, tile = (T >> 1) & 1, T & 1
            ph = T >> 1
            e("s_waitcnt lgkmcnt(2)")
            for p in range(8):
                mt, q = p >> 2, p & 3
                c0 = q & 1
                seq = [(2*p, c0), (2*p + 1, c0), (2*p + 1, 1 - c0), (2*p, 1 - c0)]
                for k, (f, cb) in enumerate(seq):
                    d = vr(S + 8*mt + 4*cb, 4)
                    if not self.noAm:
                        e(f"v_mfma_f32_16x16x32_bf16 {d}, {self.rg(self.kbuf(f), 0, 4)}, {ar(8*(f & 7) + 4*cb, 4)}, {0 if q == 0 and k in (0, 2) else d}")
                    if k < 2:
                        fn = 2*(p + 2) + k
                        if fn < 16:
                            self.k_read(fn, slot, tile)
                        elif tile == 0:
                            self.k_read(fn - 16, slot, 1)
                if 16 in self.ob and (T, p) == ((0, 2) if self.ob[16] == 'early' else (1, 4)):
                    e(f"s_cmp_eq_u32 s{S_ITEM}, 0")
                    e("s_cbranch_scc1 L_nobk")
                    e("s_barrier")
                    e.lab("L_nobk")
                if tile == 1 and p == 6:
                    e("s_waitcnt lgkmcnt(0)")
                    if self.fre:
                        e("s_barrier")
                        self.barA.append("FR")
                    self.barA_("KV")
                    for g in range(4):
                        if T < 15:
                            self.k_read(g, slot ^ 1, 0)
                        else:
                            self.v_read(g, 0)
                elif p < 7:
                    e("s_waitcnt lgkmcnt(2)")
            if self.dyn:
                e("s_setprio 0")
            e("s_nop 1" if T else "s_nop 7")
            if not self.noSM:
                self.softmax(T)
            if self.dyn and T < 15:
                e(f"s_setprio {self.prioA}")
        TT = self.A_T
        for cb in range(2):
            self.xlane("v_add_f32", self.A_L + cb, TT)
            e(f"v_rcp_f32 v{self.A_L+cb}, v{self.A_L+cb}")
        barA_K = list(self.barA)
        self.barA = []
        e(f"s_mov_b32 s{S_CH}, 0")
        e.lab("L_chunk")
        if self.dyn:
            e(f"s_setprio {self.prioA}")
        O = self.A_S
        def epi_ops(u2):
            ops = []
            for cb in range(2):
                d = O + 16*u2 + 4*cb
                for x in list(range(d, d + 4)) + list(range(d + 8, d + 12)):
                    ops.append(lambda x=x, cb=cb: e(f"v_mul_f32 v{x}, v{x}, v{self.A_L+cb}"))
                for k, x in enumerate((d, d + 2, d + 8, d + 10)):
                    ops.append(lambda k=k, x=x, d=d: e(f"v_cvt_pk_bf16_f32 v{d+k}, v{x}, v{x+1}"))
            return ops
        epi0, nepi = epi_ops(0), [0]
        def epi_some(n):
            for op in epi0[nepi[0]:nepi[0] + n]:
                op()
            nepi[0] += n
        for half in range(2):
            if half == 1:
                e(f"s_or_b32 s{S_T0}, s{S_ITEM}, s{S_CH}")
                e(f"s_cbranch_scc1 L_noq2")
                self.q_read()
                e.lab("L_noq2")
            e("s_waitcnt lgkmcnt(4)")
            for p in range(16):
                u, q = p >> 2, p & 3
                c0 = q & 1
                seq = [(2*p, c0), (2*p + 1, c0), (2*p + 1, 1 - c0), (2*p, 1 - c0)]
                for k, (f, cb) in enumerate(seq):
                    d = vr(O + 8*u + 4*cb, 4)
                    Tg = 8*half + (f & 7)
                    if not self.noAm:
                        e(f"v_mfma_f32_16x16x32_bf16 {d}, {self.rg(self.vbuf(f, half), 0, 4)}, {vr(self.A_P + 8*Tg + 4*cb, 4)}, {0 if half == 0 and q == 0 and k in (0, 2) else d}")
                    if p + 2 < 16:
                        self.v_read(2*(p + 2) + (k >> 1), half, (k & 1,))
                    if self.epi and half == 1 and p >= 14:
                        epi_some(2)
                for kind, pos in (('early', (self.obe + 1)//2), ('late', self.obf//2)):
                    mask = sum(1 << (4*it + cc) for it in range(2) for cc in range(1, 4) if self.ob.get(8 + 2*cc + 16*it) == kind)
                    if half == 0 and p == pos and mask:
                        e(f"s_lshl2_add_u32 s{S_T0}, s{S_ITEM}, s{S_CH}")
                        e(f"s_bitcmp1_b32 {mask}, s{S_T0}")
                        e(f"s_cbranch_scc0 L_nob{kind}")
                        e("s_barrier")
                        e.lab(f"L_nob{kind}")
                if half == 1 and p == 2:
                    e(f"s_cmp_eq_u32 s{S_CH}, 0")
                    e("s_cbranch_scc0 L_nqb")
                    e("s_barrier")
                    e.lab("L_nqb")
                def nxt_reads(fs, tag):
                    if half == 0:
                        for g in fs:
                            self.v_read(g, 1)
                        return
                    e(f"s_cmp_eq_u32 s{S_CH}, 3")
                    e(f"s_cbranch_scc1 L_nk{tag}")
                    for g in fs:
                        self.v_read(g, 0)
                    e(f"s_branch L_nk2{tag}")
                    e.lab(f"L_nk{tag}")
                    for g in fs:
                        self.k_read(g, 0, 0)
                    e.lab(f"L_nk2{tag}")
                if p == 14:
                    e("s_waitcnt lgkmcnt(0)")
                    if self.fre:
                        e("s_barrier")
                        self.barA.append("FR")
                    self.barA_("KV")
                    nxt_reads((0, 1, 2, 3) if half == 0 else (0, 1), "a")
                elif p == 15:
                    if half == 1:
                        nxt_reads((2, 3), "b")
                else:
                    e(f"s_waitcnt lgkmcnt({4 if p < 14 else 0})")
        if self.dyn:
            e("s_setprio 0")
        if self.epi:
            for op in epi0[nepi[0]:]:
                op()
            for cb in range(2):
                e(f"ds_write_b128 v{OW}, {vr(O + 4*cb, 4)} offset:{cb*1024}")
        else:
            e("s_nop 7")
        for u2 in range(1 if self.epi else 0, 2):
            for op in epi_ops(u2):
                op()
            for cb in range(2):
                e(f"ds_write_b128 v{OW}, {vr(O + 16*u2 + 4*cb, 4)} offset:{u2*4096 + cb*1024}")
        barA_C = list(self.barA)
        e(f"s_add_u32 s{S_CH}, s{S_CH}, 1")
        e(f"s_cmp_lt_u32 s{S_CH}, 4")
        e("s_cbranch_scc1 L_chunk")
        e(f"s_add_u32 s{S_ITEM}, s{S_ITEM}, 1")
        e(f"s_cmp_lt_u32 s{S_ITEM}, 2")
        e("s_cbranch_scc1 L_item")
        seq = list(barA_pre)
        for it in range(2):
            seq += (["HX"] if it == 0 and self.hA else []) + (["OB"] if it == 1 and 16 in self.ob else []) + barA_K
            for c in range(4):
                x = list(barA_C)
                if c == 0:
                    x.insert(2 if self.fre else 1, "QB2")
                elif 8 + 2*c + 16*it in self.ob:
                    x.insert(0, "OB")
                seq += x
        e("s_waitcnt lgkmcnt(0)")
        self.barA_("OB")
        self.barA = seq + ["OB"]
        if self.prof:
            self.stamp(self.A_ST)
            e(f"s_cmp_eq_u32 s{S_W}, 0")
            e("s_cbranch_scc0 L_end")
            self.prof_store(self.A_ST, 0, 0)
        e("s_endpgm")
        self.rescale_routine()

    def prof_store(self, vreg, role, tmp):
        e = self.e
        e(f"v_mbcnt_lo_u32_b32 v{tmp}, -1, 0")
        e(f"v_mbcnt_hi_u32_b32 v{tmp}, -1, v{tmp}")
        e(f"v_lshlrev_b32 v{tmp}, 2, v{tmp}")
        e(f"s_lshl_b32 s{S_T0}, s{S_WG}, 9")
        e(f"s_add_u32 s{S_T0}, s{S_T0}, {0x3000000 + role*256}")
        e(f"buffer_store_dword v{vreg}, v{tmp}, {sr(S_WS,4)}, s{S_T0} offen")
        e(f"s_add_u32 s{S_T0}, s{S_T0}, 0x200000")
        e(f"buffer_store_dword v{self.st2[vreg]}, v{tmp}, {sr(S_WS,4)}, s{S_T0} offen")
        e("s_waitcnt vmcnt(0)")

    def stouch_wq(self, item, k0, k1, step):
        e = self.e
        if k0 >= k1:
            return
        e(f"s_lshl_b32 s{S_T0}, s{S_W}, 14")
        e(f"s_lshr_b32 s{S_T1}, s{S_B}, 4")
        e(f"s_lshl_b32 s{S_T1}, s{S_T1}, 13")
        e(f"s_add_u32 s{S_T0}, s{S_T0}, s{S_T1}")
        e(f"s_and_b32 s{S_T1}, s{S_B}, 15")
        e(f"s_lshl_b32 s{S_T1}, s{S_T1}, 6")
        e(f"s_add_u32 s{S_T0}, s{S_T0}, s{S_T1}")
        cur = 0
        for k in range(k0, k1, step):
            if k // 8 != cur:
                e(f"s_add_u32 s{S_T0}, s{S_T0}, {(k // 8 - cur)*8*65536}")
                cur = k // 8
            e(f"s_buffer_load_dword s{S_JUNK + k % 4}, {sr(S_WQ,4)}, s{S_T0} offset:{(k % 8)*65536 + item*1024}")

    def stouch_wo(self, item, k0, k1):
        e = self.e
        e(f"s_lshl_b32 s{S_T0}, s{S_W}, 11")
        e(f"s_lshl_b32 s{S_T1}, s{S_B}, 6")
        e(f"s_add_u32 s{S_T0}, s{S_T0}, s{S_T1}")
        for k in range(k0, k1):
            e(f"s_buffer_load_dword s{S_JUNK + k % 4}, {sr(S_WO,4)}, s{S_T0} offset:{k*8192 + item*458752}")

    B_OR = 128
    B_TMP = 132
    B_BF = 32
    B_WT = 160
    B_XR = 164
    B_XR0 = 165
    B_VWQ = 166
    B_VWO = 167
    B_VV = 168
    B_VK = 169
    B_VX = 170
    B_QW = 171
    B_LANE = 172
    B_WT3 = (164, 165, 170, 171)
    B_TA, B_TD = 166, 167
    B_FIN, B_FOUT, B_FAI, B_FAO = 148, 149, 150, 151
    B_VWQ4 = 152
    B_VWO4 = 156
    B_ST = 175

    def setupB(self):
        e = self.e
        e(f"s_mul_i32 s{S_XLDS}, s{S_W}, {2*1088}")
        e(f"s_mul_i32 s{S_XG}, s{S_W}, {16*896}")
        g = self.dma_voffs(self.B_VX, self.B_VK, self.B_VV, self.B_VWO4, self.B_VWQ4, self.B_TMP)
        next(g)
        if not self.flate:
            self.flag_loads()
        for xp in range(2 if self.early else 7):
            for op in self.X_ops(xp, self.xloc(0, xp), "X0", self.xnt):
                op()
        e(f"s_lshl_b32 s{S_WLDS}, s{S_W}, 14")
        e(f"s_add_u32 s{S_WLDS}, s{S_WLDS}, {W_BASE}")
        e(f"s_lshl_b32 s{S_WCOL}, s{S_W}, 8")
        e(f"s_mul_i32 s{S_KLDS}, s{S_W}, {8*1056}")
        e(f"s_lshl_b32 s{S_KG}, s{S_W}, {self.ksh + 4}")
        r1, r2 = 44, 45
        if self.rot:
            e(f"s_and_b32 s{r1}, s{S_B}, 3")
            e(f"s_bfe_u32 s{r2}, s{S_B}, 0x20002")
        else:
            e(f"s_mov_b32 s{r1}, 0")
            e(f"s_mov_b32 s{r2}, 0")
        K = self.kst
        e(f"s_add_u32 s{S_VG}, s{S_W}, s{r1}")
        e(f"s_and_b32 s{S_VG}, s{S_VG}, {K - 1}")
        e(f"s_lshl_b32 s{S_VG}, s{S_VG}, 9")
        e(f"s_lshr_b32 s{S_T0}, s{S_W}, {self.ksh - 9}")
        e(f"s_lshl_b32 s{S_T0}, s{S_T0}, {self.ksh + 6}")
        e(f"s_add_u32 s{S_VG}, s{S_VG}, s{S_T0}")
        for r in range(4):
            e(f"s_add_u32 s{S_T0}, s{r1}, {r}")
            e(f"s_and_b32 s{S_T0}, s{S_T0}, {K - 1}")
            e(f"s_lshl_b32 s{S_T0}, s{S_T0}, 9")
            e(f"s_add_u32 s{S_KR+r}, s{S_KG}, s{S_T0}")
            e(f"s_add_u32 s{S_T0}, s{r2}, {r}")
            e(f"s_and_b32 s{S_T0}, s{S_T0}, 3")
            e(f"s_lshl_b32 s{S_T1}, s{S_T0}, 7")
            e(f"s_add_u32 s{S_VC+r}, s{S_VG}, s{S_T1}")
            e(f"s_mul_i32 s{S_T1}, s{S_T0}, {64*896}")
            e(f"s_add_u32 s{S_WR+r}, s{S_WCOL}, s{S_T1}")
        e(f"s_lshl_b32 s{S_VLB}, s{S_W}, 13")
        next(g)
        for pc in range(1, 4):
            e(f"v_add_u32 v{self.B_VWQ4+pc}, {(16*(pc & 1) + 4*(pc >> 1))*8192 - 1024*pc}, v{self.B_VWQ4}")

    def flag_loads(self):
        e = self.e
        e(f"v_and_b32 v{self.B_FAO}, 3, v0")
        e(f"v_lshlrev_b32 v{self.B_FAI}, 2, v{self.B_FAO}")
        e(f"s_lshl_b32 s{S_T0}, s{S_WG}, 7")
        e(f"s_add_u32 s{S_T0}, s{S_T0}, {FLAG_BASE}")
        e(f"v_add_u32 v{self.B_FAI}, s{S_T0}, v{self.B_FAI}")
        e(f"s_mul_i32 s{S_T1}, s{S_P}, 124")
        e(f"s_sub_u32 s{S_T0}, s{S_T0}, s{S_T1}")
        e(f"v_lshl_add_u32 v{self.B_FAO}, v{self.B_FAO}, 7, s{S_T0}")
        e(f"buffer_load_dword v{self.B_FIN}, v{self.B_FAI}, {sr(S_WS,4)}, 0 offen sc1")
        e(f"buffer_load_dword v{self.B_FOUT}, v{self.B_FAO}, {sr(S_WS,4)}, 0 offen sc1")
        self.vmq += ["F", "F"]

    def setupB2(self):
        e = self.e
        a, b, c = self.B_TMP, self.B_TMP + 1, self.B_TMP + 2
        self.tr_addr(self.B_WT, base_sreg=S_WLDS, t0=a, t1=b, t2=c)
        e(f"v_bfe_u32 v{a}, v0, 3, 1")
        e(f"v_mul_u32_u24 v{self.B_XR0}, 1088, v{a}")
        e(f"v_and_b32 v{a}, 7, v0")
        e(f"v_lshl_add_u32 v{self.B_XR0}, v{a}, 7, v{self.B_XR0}")
        e(f"v_lshrrev_b32 v{a}, 1, v{a}")
        e(f"v_lshrrev_b32 v{b}, 4, v0")
        e(f"v_xor_b32 v{a}, v{a}, v{b}")
        e(f"v_lshl_add_u32 v{self.B_XR0}, v{a}, 4, v{self.B_XR0}")
        e(f"v_add_u32 v{self.B_XR}, {XO_BASE}, v{self.B_XR0}")
        e(f"v_add_u32 v{self.B_XR0}, {KV_SLOT}, v{self.B_XR0}")
        self.third([self.B_OR + u for u in range(4)])
        e(f"v_lshrrev_b32 v{a}, 5, v0")
        e(f"v_lshlrev_b32 v{a}, 8, v{a}")
        e(f"v_and_b32 v{b}, 15, v0")
        e(f"v_lshl_add_u32 v{a}, v{b}, 4, v{a}")
        e(f"v_bfe_u32 v{b}, v0, 4, 1")
        e(f"v_lshl_add_u32 v{a}, v{b}, 3, v{a}")
        e(f"v_add_u32 v{self.B_QW}, s{S_WLDS}, v{a}")
        e(f"v_mov_b32 v{self.B_LANE}, v0")
        e(f"v_min_u32 v{self.B_TA}, 27, v0")
        e(f"s_mul_i32 s{S_T0}, s{S_W}, 28")
        e(f"v_add_u32 v{self.B_TA}, s{S_T0}, v{self.B_TA}")
        e(f"v_lshlrev_b32 v{self.B_TA}, 12, v{self.B_TA}")
        e(f"s_lshl_b32 s{S_T0}, s{S_B}, 7")
        e(f"v_add_u32 v{self.B_TA}, s{S_T0}, v{self.B_TA}")
        for pc in range(1, 4):
            e(f"v_add_u32 v{self.B_VWO4+pc}, {(16*(pc >> 1) + 8*(pc & 1))*896 - 1024*pc}, v{self.B_VWO4}")

    def third(self, regs):
        e = self.e
        e(f"s_sub_u32 s{S_T1}, s{S_WLDS}, s{S_KLDS}")
        for u in range(4):
            e(f"v_subrev_u32 v{regs[u]}, s{S_T1}, v{self.B_WT+u}")

    def or_setup(self):
        e = self.e
        for rb in range(4):
            e(f"s_add_u32 s{S_T0}, s{S_P}, {rb}")
            e(f"s_and_b32 s{S_T0}, s{S_T0}, 3")
            e(f"s_lshl_b32 s{S_T0}, s{S_T0}, 10")
            e(f"s_add_u32 s{S_T0}, s{S_T0}, {XO_BASE}")
            e(f"v_lshl_add_u32 v{self.B_OR+rb}, v{self.B_LANE}, 4, s{S_T0}")

    def xloc(self, item, xp):
        if xp == 0 or (item == 1 and xp % 3 == 0):
            return KV_SLOT + 4 * X_SLOT
        if item == 1:
            return XO_BASE + (xp % 3 - 1) * X_SLOT
        if xp < 5:
            return KV_SLOT + (xp - 1) * X_SLOT
        return XO_BASE + (xp - 5) * X_SLOT

    def dma(self, lds_s, lds_imm, g_s, g_imm, vaddr, srd, tag, nt=False):
        def emit():
            e = self.e
            e(f"s_add_u32 m0, s{lds_s}, {lds_imm}")
            e(f"s_add_u32 s{S_T0}, s{g_s}, {g_imm}")
            e(f"buffer_load_dwordx4 v{vaddr}, {sr(srd,4)}, s{S_T0} offen{' nt' if nt else ''} lds")
            self.vmq.append(tag)
        return emit

    def H_ops(self, n):
        item, ph = n >> 4, n & 15
        slot = n & 1
        ops = []
        if self.noH:
            return ops
        for k in range(8):
            if ph < 8:
                ops.append(self.dma(S_KLDS, slot*KV_SLOT + k*1056, S_KR + (ph & 3), item*262144 + (ph // self.kst)*32768*self.kst + k*1024*self.kst,
                                    self.B_VK, S_K, f"H{n}", nt=True))
            else:
                c, half = (ph - 8) >> 1, ph & 1
                ops.append(self.dma(S_VLB, slot*KV_SLOT + k*1024, S_VC + c, item*262144 + half*131072 + k*4096*self.kst,
                                    self.B_VV, S_V, f"H{n}", nt=True))
        return ops

    def X_ops(self, xp, loc, tag, nt=False):
        return [self.dma(S_XLDS, loc + k*1088, S_XG, k*7168 + xp*128, self.B_VX, S_X, tag, nt=nt) for k in range(2)]

    def gidx(self, wd):
        return wd[2] if wd[0] == 'Q' else 2*wd[2] + wd[3]

    def pslot(self, wd, cbk):
        if wd[:2] == ('Q', 0):
            return (2*wd[2] + cbk) % 3
        if self.path == 'w3' and wd[0] == 'O':
            return self.gidx(wd) & 1
        return self.tailslot.get((wd, cbk), cbk)

    def W_ops(self, wd, cbk, kss=(0, 1)):
        ops = []
        if self.noW and wd[:2] != ('Q', 0):
            return ops
        for ks in kss:
            if wd[0] == 'Q':
                _, item, xp = wd
                g = 32*(2*xp + ks)*8192 + item*1024 + cbk*128
                vb, srd, gs = self.B_VWQ4, S_WQ, S_WCOL
            else:
                _, item, c, j = wd
                g = (item*512 + 256*j + 32*ks)*896 + cbk*128
                vb, srd, gs = self.B_VWO4, S_WO, S_WR + c
            ps = self.pslot(wd, cbk)
            lb, lo = (S_KLDS, ks*4096) if ps == 2 else (S_WLDS, (2*ps + ks)*4096)
            for pc in range(4):
                def emit(pc=pc, g=g, lb=lb, lo=lo, vb=vb, srd=srd, gs=gs):
                    e = self.e
                    if pc == 0:
                        e(f"s_add_u32 m0, s{lb}, {lo}")
                        e(f"s_add_u32 s{S_T0}, s{gs}, {g}")
                    e(f"buffer_load_dwordx4 v{vb+pc}, {sr(srd,4)}, s{S_T0} offen offset:{pc*1024} lds")
                    self.vmq.append((wd, cbk))
                ops.append(emit)
        return ops

    def wo_touch(self, nt):
        ops = []
        for item in self.hto:
            def tch(item=item):
                self.e(f"s_mov_b32 s{S_T0}, {item*458752}")
                self.e(f"buffer_load_dword v{self.B_TD}, v{self.B_TA}, {sr(S_WO,4)}, s{S_T0} offen{' nt' if nt else ''}")
                self.vmq.append("T")
            ops.append(tch)
        return ops

    def vmwait(self, need, extra=""):
        idx = -1
        for i, t in enumerate(self.vmq):
            if t in need:
                idx = i
        if idx < 0:
            if extra:
                self.e(f"s_waitcnt {extra}")
            return
        n = len(self.vmq) - 1 - idx
        assert n <= 63, n
        self.e(f"s_waitcnt vmcnt({n}) {extra}".rstrip())
        self.vmq = self.vmq[idx+1:]

    def barB_(self, name):
        sel = 10 <= self.curn <= 16 or 26 <= self.curn <= 32
        if sel:
            self.stamp(self.B_ST, f"@a{name}{self.curn}")
        self.e("s_barrier")
        if sel:
            self.stamp(self.B_ST, f"@{name}{self.curn}")
        self.barB[self.path].append(name)
        if self.prof != 2 or self.curn in self.fine or self.curn - 1 in self.fine:
            self.stamp(self.B_ST, name + str(self.curn))

    def hs_list(self, wd):
        if wd[0] == 'O' and self.path == 'w3':
            return [0, 2]
        return [0, 1, 2, 3]

    def make_sched(self):
        P = {n: [] for n in range(34)}
        def fill(seq, base, cnt):
            k = 0
            for i, c in enumerate(cnt):
                P[base + i] += seq[k:k + c]
                k += c
            return seq[k:]
        assert not fill([(('Q', 1, xp), h) for xp in range(7) for h in range(4)], 0, self.qcnt)
        oseq = lambda it: [(('O', it, g >> 1, g & 1), h) for g in range(8) for h in range(4)]
        assert not fill(oseq(0), 10, self.o1cnt)
        P[32] = fill(oseq(1), 26, self.o2cnt)
        for n in range(32):
            assert len({(wd, h >> 1) for wd, h in P[n]}) <= 2, n
        self.P = P
        tp = []
        for wd, h in P[32]:
            if (wd, h >> 1) not in tp:
                tp.append((wd, h >> 1))
        sl = []
        for k, pr in enumerate(tp):
            sl.append(pr[1] if k < 2 else (2 if k == 2 else sl[k - 3]))
        self.tailslot = dict(zip(tp, sl))
        self.ob = {}
        for it, base in ((0, 10), (1, 26)):
            for c in range(4):
                wp = base + 2*c
                use = [i for i, (wd, h) in enumerate(P[wp]) if wd[:3] == ('O', it, c)]
                for n in range(wp):
                    assert not any(wd[:3] == ('O', it, c) for wd, h in P[n])
                if use:
                    self.ob[wp] = 'early' if use[0] == 0 else 'late'
        self.xfirst = {}
        for n in range(9):
            for wd, h in P[n]:
                self.xfirst.setdefault(wd[2], n)
        xl = dict(self.xfirst)
        del self.xfirst[0]
        for xp, n in self.xfirst.items():
            assert n >= 1 and (xp < 3 or xl[xp - 3] < n - 1), (xp, n)

    def bfp(self, wd):
        return (self.gidx(wd) + (wd[:2] == ('O', 1))) & 1

    def bfreg(self, wd, ks, cb4):
        b = 2*self.bfp(wd) + ks
        return vr(self.B_TMP + 4*cb4, 4) if b == 3 else ar(self.B_BF + 16*b + 4*cb4, 4)

    def sched(self, n):
        if self.path == 'w3':
            return [(wd, h >> 1) if wd[0] == 'O' else (wd, h) for wd, h in self.P[n] if wd[0] == 'Q' or not h & 1]
        return list(self.P[n])

    def bf_reads(self, wd):
        if wd in self.bfl:
            return []
        self.bfl.add(wd)
        e = self.e
        ops = []
        for ks in range(2):
            for cb4 in range(4):
                d = self.bfreg(wd, ks, cb4)
                if wd[0] == 'Q':
                    loc = self.xloc(wd[1], wd[2])
                    reg = self.B_XR if loc >= XO_BASE else self.B_XR0
                    off = (loc - XO_BASE if loc >= XO_BASE else loc - KV_SLOT) + cb4*2176 + ks*64
                else:
                    reg = self.B_OR + cb4
                    off = (2*wd[3] + ks)*4096
                ops.append(lambda d=d, off=off, reg=reg: e(f"ds_read_b128 {d}, v{reg} offset:{off}"))
        return ops

    def w_reads(self, st, i):
        wd, h = st
        e = self.e
        ops = []
        for du in range(2):
            for ks in range(2):
                for t in range(2):
                    d = ar(16*(i & 1) + 8*du + 4*ks + 2*t, 2)
                    ps, u = self.pslot(wd, h >> 1), 2*(h & 1) + du
                    off = ((2*ps if ps < 2 else 0) + ks)*4096 + t*2048
                    reg = self.B_WT + u if ps < 2 else (self.B_OR + u if wd[0] == 'Q' else self.B_WT3[u])
                    ops.append(lambda d=d, off=off, reg=reg: e(f"ds_read_b64_tr_b16 {d}, v{reg} offset:{off}"))
        return ops

    def needs_ob(self, st):
        wd, h = st
        return wd[0] == 'O' and wd[3] == 0 and h == 0 and self.curn == (10, 26)[wd[1]] + 2*wd[2]

    def run_steps(self, steps, per_step, preload=(), upfront=()):
        e = self.e
        pair = lambda st: (st[0], st[1] >> 1)
        if self.boost:
            e(f"s_setprio {self.boost}")
        if self.hfirst:
            for op in upfront[:self.hfirst]:
                op()
            upfront = upfront[self.hfirst:]
        if self.wpre != steps[0]:
            self.vmwait([pair(steps[0])])
            for op in self.w_reads(steps[0], 0):
                op()
        if self.needs_ob(steps[0]):
            for op in upfront:
                op()
            upfront = ()
            self.barB_("OB")
        for op in self.bf_reads(steps[0][0]):
            op()
        for op in upfront:
            op()
        if self.boost:
            e(f"s_setprio {self.prioB}")
        late = []
        for i, (wd, h) in enumerate(steps):
            cbk, uh = h >> 1, h & 1
            others = []
            nx = steps[i+1] if i + 1 < len(steps) else None
            if nx:
                self.vmwait([pair(nx)], "lgkmcnt(0)")
                others += self.w_reads(nx, i + 1)
                if not self.needs_ob(nx):
                    b = self.bf_reads(nx[0])
                    others = b[:4] + others + b[4:]
            else:
                e("s_waitcnt lgkmcnt(0)")
                for g in preload:
                    if self.bfp(g) != self.bfp(wd):
                        others += self.bf_reads(g)
                    else:
                        late += self.bf_reads(g)
            others += per_step(i)
            zero = (wd[0] == 'Q' and wd[2] == 0) or wd == ('O', 0, 0, 0)
            k = 0
            for du in range(2):
                for m in range(8):
                    if self.chB == 'all' or (self.chB == 'solo' and self.curn in (-1, 32)):
                        cb4 = (m >> 1) if du == 0 else 3 - (m >> 1)
                        ks = (m & 1) ^ ((m >> 1) & 1)
                        first = not m & 1
                    else:
                        ks = (m >> 2) ^ du
                        cb4 = (m & 3) if not ((m >> 2) & 1) else 3 - (m & 3)
                        first = m < 4
                    d = vr(64*cbk + 16*(2*uh + du) + 4*cb4, 4)
                    if not (self.noBm and wd[:2] != ('Q', 0)):
                        e(f"v_mfma_f32_16x16x32_bf16 {d}, {ar(16*(i&1) + 8*du + 4*ks, 4)}, {self.bfreg(wd, ks, cb4)}, {0 if zero and first else d}")
                    if k < len(others):
                        others[k](); k += 1
            while k < len(others):
                others[k](); k += 1
            if nx and self.needs_ob(nx):
                if self.boost:
                    e(f"s_setprio {self.boost}")
                self.barB_("OB")
                for op in self.bf_reads(nx[0]):
                    op()
                if self.boost:
                    e(f"s_setprio {self.prioB}")
        for op in late:
            op()

    def q_ops(self, h):
        e = self.e
        t = self.B_TMP
        cbk = h >> 1
        ops = []
        for u in (2*(h & 1), 2*(h & 1) + 1):
            for cb4 in range(4):
                def op(u=u, cb4=cb4):
                    a = 64*cbk + 16*u + 4*cb4
                    d = t + 2*((4*u + cb4) % 8)
                    e(f"v_cvt_pk_bf16_f32 v{d}, v{a}, v{a+1}")
                    e(f"v_cvt_pk_bf16_f32 v{d+1}, v{a+2}, v{a+3}")
                    off = (cb4*4 + 2*cbk + (u >> 1))*1024 + (u & 1)*512
                    e(f"ds_write_b64 v{self.B_QW}, {vr(d,2)} offset:{off}")
                ops.append(op)
        return ops

    def q_write(self, hs):
        e = self.e
        e("s_nop 7")
        for h in hs:
            for op in self.q_ops(h):
                op()
        e("s_waitcnt lgkmcnt(0)")

    def periodB(self, n):
        e = self.e
        self.curn = n
        steps = self.sched(n)
        nxt = self.sched(n + 1) if n < 32 else []
        self.vmwait([f"H{n}"] + [f"X1_{xp}" for xp, m in self.xfirst.items() if m == n])
        self.barB_("KV0" if n == 0 else "KV")
        hx = []
        if n + 1 <= 31 and not (n == 0 and self.h1h):
            hx += self.H_ops(n + 1)[self.hdone.get(n + 1, 0):]
        for xp, m in self.xfirst.items():
            if m == n + 1:
                hx += self.X_ops(xp, self.xloc(1, xp), f"X1_{xp}", self.x2nt)
        pair = lambda st: (st[0], st[1] >> 1)
        def pairs(sts):
            r = []
            for st in sts:
                if pair(st) not in r:
                    r.append(pair(st))
            return r
        if n == 0:
            for pr in pairs(steps):
                for op in self.W_ops(*pr):
                    op()
        if not steps:
            for op in hx:
                op()
        if n == 8 and not steps:
            self.q_write((0, 1, 2, 3))
        if n == 9:
            self.or_setup()
            self.third(self.B_WT3)
        if n in (9, 25):
            self.barB_("QB2")
        todo = [(pr, ks) for pr in pairs(nxt)[:2] if pr not in pairs(steps) and pr not in self.wld for ks in range(2)]
        self.wld |= {pr for pr, _ in todo}
        pre = []
        for it, base in ((0, 10), (1, 26)):
            for c in range(4):
                if n + 1 == (base + 2*c + 2 if c < 3 else (26 if it == 0 else -1)):
                    for m in range(n + 1, 33):
                        for wd, h in self.sched(m):
                            if wd[:3] == ('O', it, c) and wd not in pre:
                                pre.append(wd)
        if steps:
            def per(i):
                last = len(steps) - 1
                if n == 32:
                    r = []
                    if steps[i][1] & 1 or (i == 0 and self.path == 'main'):
                        rest = [pr for pr in pairs(steps[i+1:]) if pr not in self.wld]
                        if rest:
                            self.wld.add(rest[0])
                            self.carry += self.W_ops(*rest[0])
                    r += self.carry[:4]
                    del self.carry[:4]
                    if self.tailov and self.path == 'main':
                        if i == last - 3:
                            r += [self.pub_setup]
                        if i >= last - 2:
                            r += [lambda: None]*3 + self.pub_ops(i - last + 2)
                    return r
                busy = {self.pslot(*pair(st)) for st in steps[i+1-self.lag:] if not (st == steps[i] and st[1] & 1 and self.lag == 0)}
                if not (steps[-1][1] & 1):
                    busy.add(self.pslot(*pair(steps[-1])))
                r = []
                if inter and i < 2:
                    nh = (len(hx) + 1)//2 if (i == 0 and len(steps) > 2) else len(hx)
                    r += hx[:nh]
                    del hx[:nh]
                k = 0
                while todo and self.pslot(*todo[0][0]) not in busy and i >= self.rin and k < self.wper:
                    pr, ks = todo.pop(0)
                    r += self.W_ops(*pr, kss=(ks,))
                    k += 1
                if n == 8 and i == last:
                    r += [lambda: None]*2 + self.q_ops(0) + self.q_ops(1) + self.q_ops(2)
                return r
            a_epi = n in (10, 12, 14, 16, 26, 28, 30)
            inter = self.hint and a_epi and not self.needs_ob(steps[0])
            cur = {wd for wd, h in steps}
            newg = [g for g in pre if g not in self.bfl and g not in cur]
            live = {wd for m in range(n + 1, 33) for wd, h in self.sched(m) if wd in self.bfl or wd in cur}
            bufs = [self.bfp(g) for g in newg] + [self.bfp(g) for g in live]
            assert len(bufs) == len(set(bufs)), (n, newg, live)
            self.run_steps(steps, per, pre, [] if inter else hx)
            if n == 8:
                self.q_write((3,))
        else:
            for g in pre:
                for op in self.bf_reads(g):
                    op()
        for pr, ks in todo:
            for op in self.W_ops(*pr, kss=(ks,)):
                op()
        if pre:
            e("s_waitcnt lgkmcnt(0)")
        if self.fre and n < 32:
            e("s_barrier")
            self.barB[self.path].append("FR")
            if n + 2 <= 31:
                k = "H%d" % (n + 1)
                after = len(self.vmq) - 1 - max([i for i, t in enumerate(self.vmq) if t == k], default=-1)
                if self.path == 'main':
                    self.hdone[n + 2] = max(0, min(8, (self.cap - 4*after)//4))
                for op in self.H_ops(n + 2)[:self.hdone[n + 2]]:
                    op()
        if self.pre_rd and nxt and n + 1 in (12, 14, 16, 28, 30, 32) and nxt[0][0] in self.bfl:
            self.vmwait([f"H{n+1}", pair(nxt[0])])
            for op in self.w_reads(nxt[0], 0):
                op()
            self.wpre = nxt[0]

    def epilogue_v1(self):
        e = self.e
        t = self.B_TMP
        e("s_nop 7")
        e(f"v_lshlrev_b32 v{t}, 4, v{self.B_LANE}")
        e(f"s_lshl_b32 s{S_T1}, s{S_WG}, 17")
        e(f"s_lshl_b32 s{S_T0}, s{S_W}, 15")
        e(f"s_add_u32 s{S_T1}, s{S_T1}, s{S_T0}")
        for cbk in range(1 if self.path == 'w3' else 2):
            for u in range(4):
                e(f"s_add_u32 s{S_T0}, s{S_T1}, {(cbk*4+u)*4096}")
                for cb4 in range(4):
                    e(f"buffer_store_dwordx4 {vr(64*cbk+16*u+4*cb4,4)}, v{t}, {sr(S_WS,4)}, s{S_T0} offen offset:{cb4*1024}")

    def pub_setup(self):
        e = self.e
        slot = 32768 if self.f32 else 16384
        e(f"v_lshlrev_b32 v{self.B_TMP}, 4, v{self.B_LANE}")
        e(f"s_and_b32 s{S_T1}, s{S_WG}, 0xfc")
        e(f"s_mul_i32 s{S_T1}, s{S_T1}, {4*slot}")
        e(f"s_mul_i32 s{S_T0}, s{S_W}, {slot // 4}")
        e(f"s_add_u32 s{S_T1}, s{S_T1}, s{S_T0}")
        e(f"s_mul_i32 s2, s{S_P}, {slot}")
        e(f"s_add_u32 s2, s2, s{S_T1}")
        for rb in (1, 2, 3):
            e(f"s_add_u32 s{S_T0}, s{S_P}, {rb}")
            e(f"s_and_b32 s{S_T0}, s{S_T0}, 3")
            e(f"s_mul_i32 s{S_T0}, s{S_T0}, {4*slot}")
            e(f"s_add_u32 s{S_KR+rb}, s{S_T0}, s2")

    def pub_ops(self, h):
        e = self.e
        L16, D, fl = self.B_TMP, self.B_TMP + 4, self.pfl
        cbk, u2 = h >> 1, h & 1
        ops = []
        for rb in (1, 2, 3):
            d = D + 4*(rb - 1)
            a0 = 64*cbk + 32*u2 + 4*rb
            ops.append(lambda d=d, a0=a0: (e(f"v_cvt_pk_bf16_f32 v{d}, v{a0}, v{a0+1}"), e(f"v_cvt_pk_bf16_f32 v{d+1}, v{a0+2}, v{a0+3}")))
            ops.append(lambda d=d, a0=a0, rb=rb: (e(f"v_cvt_pk_bf16_f32 v{d+2}, v{a0+16}, v{a0+17}"), e(f"v_cvt_pk_bf16_f32 v{d+3}, v{a0+18}, v{a0+19}"),
                       e(f"buffer_store_dwordx4 {vr(d,4)}, v{L16}, {sr(S_WS,4)}, s{S_KR+rb} offen offset:{h*1024} {fl}")))
        return ops

    def epilogue_fused(self):
        e = self.e
        t = self.B_TMP
        L16, OA = t, t + 1
        D = t + 4
        ncbk = 1 if self.path == 'w3' else 2
        slot = 16384
        assert not self.f32
        self.stamp(self.B_ST)
        ov = self.tailov and ncbk == 2
        if not ov:
            self.pub_setup()
        e("s_nop 7")
        for h in range(3 if ov else 0, 2*ncbk):
            for op in self.pub_ops(h):
                op()
        e(f"v_and_b32 v{OA}, 15, v{self.B_LANE}")
        e(f"v_mul_u32_u24 v{OA}, 1792, v{OA}")
        e(f"v_lshrrev_b32 v{t+2}, 4, v{self.B_LANE}")
        e(f"v_lshl_add_u32 v{OA}, v{t+2}, 3, v{OA}")
        e("s_waitcnt vmcnt(0)")
        e("s_barrier")
        self.stamp(self.B_ST)
        if self.path == 'main':
            e(f"s_cmp_eq_u32 s{S_W}, 0")
            e("s_cbranch_scc0 L_nopoll")
            e(f"v_add_u32 v{self.B_FOUT}, 1, v{self.B_FOUT}")
            e("s_mov_b64 exec, 15")
            e(f"buffer_store_dword v{self.B_FOUT}, v{self.B_FAO}, {sr(S_WS,4)}, 0 offen sc1")
            e(f"s_mov_b32 s{S_CH}, 0")
            e.lab("L_poll")
            e(f"buffer_load_dword v{t+2}, v{self.B_FAI}, {sr(S_WS,4)}, 0 offen sc1")
            e(f"s_add_u32 s{S_CH}, s{S_CH}, 1")
            e("s_waitcnt vmcnt(0)")
            e(f"v_cmp_eq_u32 vcc, v{t+2}, v{self.B_FIN}")
            e("s_nop 0")
            e("s_cbranch_vccz L_polled")
            e(f"s_cmp_lt_u32 s{S_CH}, 0x20000")
            e("s_cbranch_scc1 L_poll")
            e.lab("L_polled")
            e("s_mov_b64 exec, -1")
            e.lab("L_nopoll")
        e("s_barrier")
        self.stamp(self.B_ST)
        e(f"s_mul_i32 s2, s{S_P}, {4*slot}")
        e(f"s_add_u32 s2, s2, s{S_T1}")
        for rb in (1, 2, 3):
            e(f"s_add_u32 s{S_T0}, s{S_P}, {rb}")
            e(f"s_and_b32 s{S_T0}, s{S_T0}, 3")
            e(f"s_mul_i32 s{S_T0}, s{S_T0}, {slot}")
            e(f"s_add_u32 s{S_T0}, s{S_T0}, s2")
            for cbk in range(ncbk):
                if self.f32:
                    if cbk:
                        e(f"s_add_u32 s{S_T0}, s{S_T0}, 4096")
                    for u in range(4):
                        e(f"buffer_load_dwordx4 {vr(64*cbk+16*u+4*rb,4)}, v{L16}, {sr(S_WS,4)}, s{S_T0} offen offset:{u*1024} {self.lfl}")
                else:
                    for u2 in range(2):
                        e(f"buffer_load_dwordx4 {vr(64*cbk+32*u2+4*rb,4)}, v{L16}, {sr(S_WS,4)}, s{S_T0} offen offset:{(2*cbk+u2)*1024} {self.lfl}")
        e(f"s_mul_i32 s2, s{S_B}, {64*1792}")
        e(f"s_mul_i32 s3, s{S_P}, {16*1792}")
        e(f"s_add_u32 s2, s2, s3")
        e(f"s_mul_i32 s3, s{S_BR}, 896")
        e(f"s_add_u32 s2, s2, s3")
        e(f"s_add_u32 s2, s2, s{S_WCOL}")
        e("s_waitcnt vmcnt(0)")
        for cbk in range(ncbk):
            for u in range(4):
                a = 64*cbk + 16*u
                for rb in (1, 2, 3):
                    if self.f32:
                        for r in range(4):
                            e(f"v_add_f32 v{a+r}, v{a+r}, v{a+4*rb+r}")
                    else:
                        src = 64*cbk + 32*(u >> 1) + 4*rb + 2*(u & 1)
                        for h in range(2):
                            e(f"v_lshlrev_b32 v{D+2*h}, 16, v{src+h}")
                            e(f"v_and_b32 v{D+2*h+1}, 0xffff0000, v{src+h}")
                        e(f"v_pk_add_f32 {vr(a,2)}, {vr(a,2)}, {vr(D,2)}")
                        e(f"v_pk_add_f32 {vr(a+2,2)}, {vr(a+2,2)}, {vr(D+2,2)}")
                e(f"v_cvt_pk_bf16_f32 v{a}, v{a}, v{a+1}")
                e(f"v_cvt_pk_bf16_f32 v{a+1}, v{a+2}, v{a+3}")
                e(f"buffer_store_dwordx2 {vr(a,2)}, v{OA}, {sr(S_OUT,4)}, s2 offen offset:{cbk*128+u*32} {self.ofl}".rstrip())

    def endB(self):
        e = self.e
        if self.fuse:
            self.epilogue_fused()
        else:
            self.epilogue_v1()
        if self.prof:
            e("s_waitcnt vmcnt(0)")
            self.stamp(self.B_ST)
            if self.path == 'main':
                e(f"s_cmp_eq_u32 s{S_W}, 0")
                e("s_cbranch_scc0 L_end")
                self.prof_store(self.B_ST, 1, 0)
        e("s_endpgm")

    def streamB(self):
        e = self.e
        e.lab("L_B")
        self.vmq = []
        self.deferred = []
        self.path = 'main'
        self.barB = {'main': [], 'w3': []}
        self.stamp(self.B_ST)
        self.setupB()
        for cbk in range(2):
            for op in self.W_ops(('Q', 0, 0), cbk):
                op()
        hw = self.W_ops(('Q', 0, 1), 0)
        self.setupB2()
        for op in (hw if self.w3first else []):
            op()
        if self.early:
            for xp in range(2, 7):
                for op in self.X_ops(xp, self.xloc(0, xp), "X0b", self.xnt):
                    op()
        for op in ([] if self.w3first else hw):
            op()
        if self.flate:
            self.flag_loads()
        self.stamp(self.B_ST)
        self.vmwait(["X0"])
        self.barB_("HB")
        steps = [(('Q', 0, h), hs) for h in range(7) for hs in range(4)]
        H0 = self.H_ops(0)
        if self.h1h:
            assert self.early and self.hdef is None and not self.hto
            H0 = H0 + self.H_ops(1)
        def per(i):
            if i % 2 == 1:
                self.stamp(self.B_ST, f"h{i}")
            r = []
            if i & 1 and i + 5 < 28:
                self.carry = self.W_ops(steps[i + 5][0], steps[i + 5][1] >> 1)
            r += self.carry[:4]
            del self.carry[:4]
            if i == self.hb2 and self.early:
                assert "X0b" not in self.vmq
                r.append(lambda: self.barB_("HB2"))
            if i >= 24:
                r += H0[2*(i - 24):2*(i - 24) + 2]
            if i == 27:
                r += self.q_ops(0) + self.q_ops(1) + self.q_ops(2)
            return r
        assert not self.h1h
        self.run_steps(steps, per)
        self.q_write((3,))
        self.barB_("QB1")
        for n in range(9):
            self.periodB(n)
        e(f"s_cmp_eq_u32 s{S_W}, 3")
        e("s_cbranch_scc1 L_B3")
        save = list(self.vmq)
        save_bfl = set(self.bfl)
        save_wld = set(self.wld)
        assert not self.deferred
        self.barB['w3'] = list(self.barB['main'])
        for n in range(9, 33):
            self.periodB(n)
        self.endB()
        e.lab("L_B3")
        self.path = 'w3'
        self.vmq = save
        self.bfl = save_bfl
        self.wld = save_wld
        self.carry = []
        self.wpre = None
        self.deferred = []
        for n in range(9, 33):
            self.periodB(n)
        self.endB()

    def reduce_kernel(self):
        e = self.e
        e(".globl red_kernel")
        e(".p2align 8")
        e(".type red_kernel,@function")
        e.lab("red_kernel")
        e("s_cmp_ge_u32 s2, 1792")
        e("s_cbranch_scc1 L_rend")
        e("s_load_dwordx2 s[4:5], s[0:1], 96")
        e("s_load_dwordx2 s[8:9], s[0:1], 80")
        e("s_mul_hi_u32 s12, s2, 153391690")
        e("s_mul_i32 s13, s12, 28")
        e("s_sub_u32 s13, s2, s13")
        e("s_and_b32 s14, s12, 1")
        e("s_lshr_b32 s15, s12, 1")
        e("s_lshl_b32 s16, s15, 3")
        e("s_lshl_b32 s17, s14, 2")
        e("s_add_u32 s16, s16, s17")
        e("s_lshl_b32 s16, s16, 17")
        e("s_lshl_b32 s17, s13, 12")
        e("s_add_u32 s16, s16, s17")
        e("v_lshlrev_b32 v1, 4, v0")
        e("s_mov_b32 s6, 67108864")
        e("s_mov_b32 s7, 0x20000")
        e("s_mov_b32 s10, 3670016")
        e("s_mov_b32 s11, 0x20000")
        e("s_waitcnt lgkmcnt(0)")
        for p in range(4):
            e(f"buffer_load_dwordx4 {vr(4+4*p,4)}, v1, s[4:7], s16 offen")
            e("s_add_u32 s16, s16, 131072")
        e("v_lshrrev_b32 v2, 6, v0")
        e("v_lshlrev_b32 v2, 4, v2")
        e("v_and_b32 v3, 15, v0")
        e("v_add_u32 v2, v2, v3")
        e("v_mul_u32_u24 v2, 1792, v2")
        e("v_bfe_u32 v3, v0, 4, 2")
        e("v_lshl_add_u32 v2, v3, 3, v2")
        e("s_mul_i32 s15, s15, 114688")
        e("s_mul_i32 s14, s14, 896")
        e("s_add_u32 s15, s15, s14")
        e("s_lshl_b32 s13, s13, 5")
        e("s_add_u32 s15, s15, s13")
        e("s_waitcnt vmcnt(0)")
        for r in range(4):
            e(f"v_add_f32 v{4+r}, v{4+r}, v{8+r}")
            e(f"v_add_f32 v{12+r}, v{12+r}, v{16+r}")
            e(f"v_add_f32 v{4+r}, v{4+r}, v{12+r}")
        e("v_cvt_pk_bf16_f32 v4, v4, v5")
        e("v_cvt_pk_bf16_f32 v5, v6, v7")
        e("buffer_store_dwordx2 v[4:5], v2, s[8:11], s15 offen")
        e.lab("L_rend")
        e("s_endpgm")

    def build(self):
        e = self.e
        out = [HEADER.rstrip()]
        if self.fuse:
            out.append(f"; @launch grid=(256,1,1) block=(512,1,1) lds={LDS_BYTES}")
        else:
            out.append(f"; @launch kernel={NAME}_kernel grid=(256,1,1) block=(512,1,1) lds={LDS_BYTES}")
            out.append(f"; @launch kernel=red_kernel grid=(1792,1,1) block=(256,1,1) lds=0")
        out.append('.amdgcn_target "amdgcn-amd-amdhsa--gfx950"')
        out.append(".text")
        out.append(f".globl {NAME}_kernel")
        out.append(".p2align 8")
        out.append(f".type {NAME}_kernel,@function")
        out.append(f"{NAME}_kernel:")
        self.prologue()
        self.streamB()
        self.path = None
        e.lab("L_A")
        self.streamA()
        e.lab("L_end")
        e("s_endpgm")
        if not self.fuse:
            self.reduce_kernel()
        assert self.barA == self.barB['main'] == self.barB['w3'], (self.barA, self.barB)
        if self.prof:
            out.insert(1, f"; NST {44 if self.prof == 4 else len(self.barA)+2} {len(self.namesB)} " + " ".join(self.namesB))
        out.append(e.text())
        out.append('.section .rodata,"a"')
        def kd(name, v, s, acc):
            return f""".p2align 6
.amdhsa_kernel {name}
  .amdhsa_next_free_vgpr {v}
  .amdhsa_next_free_sgpr {s}
  .amdhsa_accum_offset {acc}
  .amdhsa_group_segment_fixed_size 0
  .amdhsa_kernarg_size 104
  .amdhsa_user_sgpr_count 2
  .amdhsa_user_sgpr_kernarg_segment_ptr 1
  .amdhsa_system_sgpr_workgroup_id_x 1
.end_amdhsa_kernel"""
        out.append(kd(f"{NAME}_kernel", 256, 96, 176))
        if not self.fuse:
            out.append(kd("red_kernel", 24, 32, 24))
        return "\n".join(out) + "\n"


if __name__ == "__main__":
    kw = {}
    path = None
    for a in sys.argv[1:]:
        if "=" in a:
            k, v = a.split("=")
            kw[k] = eval(v)
        else:
            path = a
    txt = Gen(**kw).build()
    open(path or f"cdna_kernels/{NAME}.s", "w").write(txt)
    print("lines", txt.count("\n"), "bytes", len(txt))
```

```python
import sys, math

NAME = "concat_heads__gqa_block_cached__gqa_block_cached__near_ridge"
HEADER = open("cdna_kernels/%s.s.ref" % NAME).read().split("; Override launch")[0]

KV_SLOT = 33792
W_BASE = KV_SLOT + 5 * 8704
XO_BASE = W_BASE + 65536
X_SLOT = 8704
FLAG_BASE = 0x2800000
LDS_BYTES = XO_BASE + 2 * X_SLOT

S_X, S_K, S_V, S_WQ, S_WO, S_OUT, S_WS = 4, 8, 12, 16, 20, 24, 28
S_W = 60
S_B = 61
S_P = 62
S_BR = 63
S_T0, S_T1 = 64, 65
S_WLDS = 66
S_WCOL = 67
S_KLDS = 68
S_KG = 69
S_VG = 70
S_KR, S_VC, S_WR = 32, 36, 40
S_VLB = 77
S_XLDS = 71
S_XG = 72
S_HK, S_HV, S_KL, S_VL, S_HVC = 66, 67, 68, 69, 70
S_HS = 32
S_HM, S_HGS = 36, 37
S_C = 73
S_THR = 74
S_ITEM = 75
S_CH = 76
S_RET = 78
S_STAMP = 80
S_SIDX = 82
S_WG = 83
S_DBG = 88
S_JUNK = 92


S22 = [(0,0),(0,1),(1,1),(1,0),(2,0),(2,1),(3,1),(3,0),(3,2),(3,3),(2,3),(2,2),(1,2),(1,3),(0,3),(0,2)]


class Em:
    def __init__(self):
        self.l = []
    def __call__(self, s):
        self.l.append(s)
    def lab(self, s):
        self.l.append(s + ":")
    def text(self):
        return "\n".join(self.l)


def vr(a, n=1):
    return f"v{a}" if n == 1 else f"v[{a}:{a+n-1}]"
def ar(a, n=1):
    return f"a{a}" if n == 1 else f"a[{a}:{a+n-1}]"
def sr(a, n=1):
    return f"s{a}" if n == 1 else f"s[{a}:{a+n-1}]"


class Gen:
    def __init__(self, prof=False, prioA=1, npostQ=10, npostO=12, npre=6, fuse=True, pfl='sc1', f32=False, xnt=False, rin=1, nearlyQ=0, nearlyO=0, shift=1, lag=1, boost=2, hA=False, obf=26, obk=(1, 8), pre1=36, tailov=True, dropr=(0, 99), vt0=1, vto=False, xpromo=False, early=True, pre2=76, bto=False, hto=(), rot=True, hfirst=0, chA=True, flate=False, tlate=False, epi=True, kst=4, s22=True, fre=False, cap=48, ctouch=True, qcnt=(2,2,2,3,4,4,4,4,3), o1cnt=(2,2,2,2,4,4,0,2,2,2,2,2,2,2,2), o2cnt=(2,2,3,3,4,4), obe=3, h1h=False, pre3=150, nolt=False, hdef=None, spread=True, pre_rd=True, qov=True, x2nt=True, wq0nt=False, tp1=20, lfl='sc1', ofl='', drop=0, hint=True, wo1A=56, dyn=True, prioB=1, noH=False, noW=False, noSM=False, noBm=False, noAm=False, tnt=False):
        self.e = Em()
        self.prof = prof
        self.prioA = prioA
        self.npostQ, self.npostO, self.npre, self.pfl, self.f32 = npostQ, npostO, npre, pfl, f32
        self.fuse = fuse
        self.hfirst = hfirst
        self.chA = chA
        assert chA
        self.kst = kst
        self.ksh = {1: 9, 2: 10, 4: 11}[kst]
        self.flate, self.tlate, self.epi = flate, tlate, epi
        self.s22 = s22
        self.fre, self.cap = fre, cap
        self.hdone = {}
        self.ctouch = ctouch
        self.qcnt, self.o1cnt, self.o2cnt, self.obe = qcnt, o1cnt, o2cnt, obe
        self.make_sched()
        self.h1h, self.pre3 = h1h, pre3
        self.nolt = nolt
        self.hdef, self.spread, self.pre_rd, self.qov = hdef, spread, pre_rd, qov
        if hdef is not None:
            vto, hto = False, (1,)
        self.hto, self.rot = hto, rot
        self.bto, self.x2nt, self.wq0nt, self.tp1 = bto, x2nt, wq0nt, tp1
        self.early, self.pre2 = early, pre2
        self.xpromo = xpromo
        self.vt0, self.vto, self.lfl, self.ofl = vt0, vto, lfl, ofl
        self.drop = drop
        self.dropr = dropr
        self.obk, self.pre1, self.tailov = obk, pre1, tailov
        self.dyn = dyn
        self.prioB = prioB if dyn else 0
        if dyn:
            prioA, boost = 2, (3 if boost else 0)
            self.prioA = 2
        self.wo1A = wo1A
        self.hA, self.obf, self.hint = hA, obf, hint
        self.lag, self.boost = lag, boost
        self.xnt, self.rin, self.nearlyQ, self.nearlyO, self.shift = xnt, rin, nearlyQ, nearlyO, shift
        self.noH, self.noW, self.noSM, self.noBm, self.noAm = noH, noW, noSM, noBm, noAm
        self.tfl = ' nt' if tnt else ''
        self.barA = []
        self.barB = {}
        self.st2 = {175: 174}
        self.namesB = []
        self.curn = -1
        self.wpre = None
        self.bfl = set()
        self.fine = (3, 4, 12, 13, 14, 29)

    def stamp(self, vreg, name="."):
        e = self.e
        if not self.prof:
            return
        if self.prof in (4, 5) and not name.startswith('@'):
            return
        if self.prof == 4 and getattr(self, 'path', None) is not None:
            return
        if self.prof == 5 and getattr(self, 'path', None) is None:
            return
        if self.prof == 6 and (getattr(self, 'path', None) is None or not (name.startswith('KV') or name in ('.', 'HB-1', 'QB1-1'))):
            return
        if self.prof == 7 and (getattr(self, 'path', None) is None or name not in ('.', 'KV00', 'KV8', 'KV16', 'KV24', 'KV32')):
            return
        if self.prof == 8 and (getattr(self, 'path', None) is None or not (name[0] in '.hHQ' or name in ('KV00', 'KV1', 'KV2', 'KV32'))):
            return
        if self.prof == 3 and (getattr(self, 'path', None) is None or not (name in ('.', 'HB-1', 'HB2-1', 'QB1-1', 'KV00', 'KV1', 'KV8', 'KV10', 'KV16', 'KV19', 'KV24', 'KV26', 'KV32', 'OB32'))):
            return
        if getattr(self, 'path', None) == 'main':
            self.namesB.append(name)
        e(f"s_memrealtime {sr(S_STAMP,2)}")
        e(f"s_memtime {sr(S_STAMP+4,2)}")
        e("s_waitcnt lgkmcnt(0)")
        e(f"s_mov_b32 m0, s{S_SIDX}")
        e(f"v_writelane_b32 v{vreg}, s{S_STAMP}, m0")
        e(f"v_writelane_b32 v{self.st2[vreg]}, s{S_STAMP+4}, m0")
        e(f"s_add_u32 s{S_SIDX}, s{S_SIDX}, 1")

    def prologue(self):
        e = self.e
        e("s_cmp_ge_u32 s2, 256")
        e("s_cbranch_scc1 L_end")
        e("s_load_dwordx16 s[32:47], s[0:1], 0")
        e("s_load_dwordx8 s[48:55], s[0:1], 64")
        e("s_load_dwordx2 s[56:57], s[0:1], 96")
        e(f"v_lshrrev_b32 v1, 6, v0")
        e(f"s_mov_b32 s{S_WG}, s2")
        e(f"s_and_b32 s{S_P}, s2, 3")
        e(f"v_readfirstlane_b32 s3, v1")
        e(f"s_lshr_b32 s{S_B}, s2, 3")
        e(f"s_bfe_u32 s{S_BR}, s2, 0x10002")
        e(f"s_mov_b32 s{S_SIDX}, 0")
        e("v_and_b32 v0, 63, v0")
        e(f"s_and_b32 s{S_W}, s3, 3")
        if self.ctouch:
            e(f"s_cmp_eq_u32 s3, 1")
            e("s_cbranch_scc0 L_noct")
            e(f"s_getpc_b64 s[58:59]")
            e.lab("L_pc")
            e(f"s_sub_u32 s58, s58, L_pc-{NAME}_kernel")
            e(f"s_subb_u32 s59, s59, 0")
            e(f"v_lshl_add_u32 v2, v0, 5, s{S_B}")
            e(f"v_lshlrev_b32 v2, 7, v2")
            e(f"v_min_u32 v2, L_end-{NAME}_kernel, v2")
            e(f"v_mov_b32 v3, s59")
            e(f"v_add_co_u32 v2, vcc, s58, v2")
            e("s_nop 1")
            e(f"v_addc_co_u32 v3, vcc, 0, v3, vcc")
            e(f"global_load_dword v4, v[2:3], off")
            e.lab("L_noct")
        e("s_waitcnt lgkmcnt(0)")
        e("s_bitcmp1_b32 s2, 2")
        e(f"s_cselect_b64 {sr(S_X,2)}, s[42:43], s[32:33]")
        e(f"s_cselect_b64 {sr(S_K,2)}, s[44:45], s[34:35]")
        e(f"s_cselect_b64 {sr(S_V,2)}, s[46:47], s[36:37]")
        e(f"s_cselect_b64 {sr(S_WQ,2)}, s[48:49], s[38:39]")
        e(f"s_cselect_b64 {sr(S_WO,2)}, s[50:51], s[40:41]")
        def addbase(srd, sreg):
            e(f"s_add_u32 s{srd}, s{srd}, s{sreg}")
            e(f"s_addc_u32 s{srd+1}, s{srd+1}, 0")
        e(f"s_mul_i32 s{S_T0}, s{S_B}, 57344")
        addbase(S_X, S_T0)
        e(f"s_lshl_b32 s{S_T0}, s{S_B}, 21")
        e(f"s_lshl_b32 s{S_T1}, s{S_P}, 19")
        e(f"s_add_u32 s{S_T0}, s{S_T0}, s{S_T1}")
        addbase(S_K, S_T0)
        addbase(S_V, S_T0)
        e(f"s_lshl_b32 s{S_T0}, s{S_P}, 11")
        addbase(S_WQ, S_T0)
        e(f"s_sub_u32 s{S_WQ+2}, 3670016, s{S_T0}")
        e(f"s_mul_i32 s{S_T0}, s{S_P}, 917504")
        addbase(S_WO, S_T0)
        e(f"s_mov_b32 s{S_X+2}, 57344")
        e(f"s_mov_b32 s{S_K+2}, 524288")
        e(f"s_mov_b32 s{S_V+2}, 524288")
        e(f"s_mov_b32 s{S_WO+2}, 917504")
        e(f"s_mov_b64 {sr(S_OUT,2)}, s[52:53]")
        e(f"s_mov_b32 s{S_OUT+2}, 3670016")
        e(f"s_mov_b64 {sr(S_WS,2)}, s[56:57]")
        e(f"s_mov_b32 s{S_WS+2}, 67108864")
        e(f"s_mov_b64 {sr(S_DBG,2)}, s[54:55]")
        e(f"s_mov_b32 s{S_DBG+2}, 256")
        for s in (S_X, S_K, S_V, S_WQ, S_WO, S_OUT, S_WS, S_DBG):
            e(f"s_mov_b32 s{s+3}, 0x20000")
        e("s_cmp_lt_u32 s3, 4")
        e("s_cbranch_scc1 L_A")

    def tr_addr(self, dst, base_imm=None, base_sreg=None, t0=None, t1=None, t2=None):
        e = self.e
        e(f"v_bfe_u32 v{t0}, v0, 2, 3")
        e(f"v_lshrrev_b32 v{t1}, 5, v0")
        e(f"v_lshlrev_b32 v{t1}, 10, v{t1}")
        e(f"v_lshl_add_u32 v{t1}, v{t0}, 7, v{t1}")
        e(f"v_and_b32 v{t2}, 3, v0")
        e(f"v_lshl_add_u32 v{t1}, v{t2}, 3, v{t1}")
        if base_imm:
            e(f"v_add_u32 v{t1}, {base_imm}, v{t1}")
        if base_sreg is not None:
            e(f"v_add_u32 v{t1}, s{base_sreg}, v{t1}")
        e(f"v_lshrrev_b32 v{t0}, 1, v{t0}")
        for u in range(4):
            e(f"v_xor_b32 v{t2}, {u}, v{t0}")
            e(f"v_lshl_add_u32 v{dst+u}, v{t2}, 5, v{t1}")

    A_P = 0
    A_S = 128
    A_T = 144
    A_KA = 160
    A_VA = 161
    A_OW = 165
    A_VX = 165
    A_VK = 166
    A_VV = 167
    A_NM = 168
    A_L = 174
    A_TS = 170
    A_ST = 175

    def barA_(self, name, times=1):
        if self.prof == 2:
            self.stamp(self.A_ST)
        self.e("s_barrier")
        self.barA.append(name)
        if self.prof != 2:
            self.stamp(self.A_ST)

    def kbuf(self, f):
        b = f % 8
        return ('a', 64 + 4*b) if b < 4 else ('v', self.A_T + 4*(b - 4))

    def vbuf(self, f, half):
        bp = ((f >> 1) + half) % 3
        return ('a', 64 + 8*bp + 4*(f & 1)) if bp < 2 else ('v', 166 + 4*(f & 1))

    @staticmethod
    def rg(b, off, n):
        return (ar if b[0] == 'a' else vr)(b[1] + off, n)

    def k_read(self, f, slot, tile):
        mt, s = f >> 3, f & 7
        off = slot * KV_SLOT + tile * 16896 + mt * 8448 + s * 64
        self.e(f"ds_read_b128 {self.rg(self.kbuf(f), 0, 4)}, v{self.A_KA} offset:{off}")

    def v_read(self, f, slot, parts=(0, 1)):
        u, T = f >> 3, f & 7
        off = slot * KV_SLOT + T * 4096
        for t in parts:
            self.e(f"ds_read_b64_tr_b16 {self.rg(self.vbuf(f, slot), 2*t, 2)}, v{self.A_VA+u} offset:{off+2048*t}")

    def lane16(self, dst, jsh, qsh, base):
        e = self.e
        e(f"v_mbcnt_lo_u32_b32 v{dst}, -1, 0")
        e(f"v_mbcnt_hi_u32_b32 v{dst}, -1, v{dst}")
        e(f"s_lshr_b32 s{S_T0}, s{S_W}, 1")
        e(f"s_and_b32 s{S_T1}, s{S_W}, 1")
        e(f"s_lshl_b32 s{S_T0}, s{S_T0}, {jsh}")
        e(f"s_lshl_b32 s{S_T1}, s{S_T1}, {qsh}")
        e(f"s_add_u32 s{S_T0}, s{S_T0}, s{S_T1}")
        e(f"s_add_u32 s{S_T0}, s{S_T0}, {base}")
        e(f"v_lshl_add_u32 v{dst}, v{dst}, 4, s{S_T0}")

    def q_read(self):
        e = self.e
        qa = self.A_OW
        e(f"v_add_u32 v{qa}, s{S_HV}, v{qa}")
        for s in range(8):
            for cb in range(2):
                off = (s >> 2) * 16384 + cb * 4096 + (s & 3) * 1024
                e(f"ds_read_b128 {ar(8*s+4*cb,4)}, v{qa} offset:{off}")
        e(f"v_subrev_u32 v{qa}, s{S_HV}, v{qa}")

    def dma_voffs(self, VX, VK, VV, VWO, VWQ, a):
        e = self.e
        b, c, d = a + 1, a + 2, a + 3
        e(f"v_lshrrev_b32 v{a}, 3, v0")
        e(f"v_bfe_u32 v{b}, v0, 4, 2")
        e(f"v_and_b32 v{c}, 7, v0")
        e(f"v_xor_b32 v{VX}, v{c}, v{b}")
        e(f"v_lshlrev_b32 v{VX}, 4, v{VX}")
        e(f"v_mul_u32_u24 v{d}, 896, v{a}")
        e(f"v_add_u32 v{VX}, v{VX}, v{d}")
        yield
        e(f"v_lshlrev_b32 v{b}, 1, v{b}")
        e(f"v_xor_b32 v{c}, v{c}, v{b}")
        e(f"v_lshlrev_b32 v{c}, 4, v{c}")
        if VWO is not None:
            e(f"v_add_u32 v{VWO}, v{c}, v{d}")
        if VV is not None:
            e(f"v_lshl_add_u32 v{VV}, v{a}, {self.ksh}, v{c}")
        e(f"v_lshrrev_b32 v{b}, 5, v0")
        if VWQ is not None:
            e(f"v_and_b32 v{d}, 3, v{a}")
            e(f"v_lshl_add_u32 v{VWQ}, v{d}, 13, v{c}")
            e(f"v_lshl_add_u32 v{VWQ}, v{b}, 16, v{VWQ}")
        e(f"v_and_b32 v{c}, 31, v0")
        e(f"v_xor_b32 v{c}, v{c}, v{b}")
        e(f"v_lshlrev_b32 v{c}, 4, v{c}")
        e(f"v_lshl_add_u32 v{VK}, v{b}, {self.ksh}, v{c}")
        yield

    def A_Hops(self, kind, slot, gs, gimm):
        e = self.e
        ops = []
        if self.noH or not self.hA:
            return [lambda pre: None]*8
        for k in range(8):
            def op(pre, k=k):
                if kind == 'K':
                    if pre:
                        e(f"s_add_u32 m0, s{S_KL}, {slot*KV_SLOT + k*1056}")
                        e(f"s_add_u32 s{S_T0}, s{gs}, {gimm + k*4096}")
                    else:
                        e(f"buffer_load_dwordx4 v{self.A_VK}, {sr(S_K,4)}, s{S_T0} offen nt lds")
                elif kind == 'V':
                    if pre:
                        if k % 4 == 0:
                            e(f"s_add_u32 m0, s{S_VL}, {slot*KV_SLOT + k*1024}")
                        e(f"s_add_u32 s{S_T0}, s{gs}, {gimm + k*16384 - (k % 4)*1024}")
                    else:
                        e(f"buffer_load_dwordx4 v{self.A_VV}, {sr(S_V,4)}, s{S_T0} offen offset:{(k%4)*1024} nt lds")
                else:
                    if pre:
                        if k:
                            e(f"s_add_u32 m0, m0, s{S_HM}")
                            e(f"s_add_u32 s{S_T1}, s{S_T1}, s{S_HGS}")
                    else:
                        e(f"buffer_load_dwordx4 v{self.A_NM}, {sr(S_HS,4)}, s{S_T1} offen nt lds")
            ops.append(op)
        return ops

    def xlane(self, op, x, t):
        e = self.e
        e(f"v_mov_b32 v{t}, v{x}")
        e("s_nop 1")
        e(f"v_permlane32_swap_b32 v{t}, v{x}")
        e("s_nop 1")
        e(f"{op} v{x}, v{x}, v{t}")
        e(f"v_mov_b32 v{t}, v{x}")
        e("s_nop 1")
        e(f"v_permlane16_swap_b32 v{t}, v{x}")
        e("s_nop 1")
        e(f"{op} v{x}, v{x}, v{t}")

    def tile_max(self, cb, dst, t):
        e = self.e
        S = self.A_S
        r = [S + 4*cb + k for k in range(4)] + [S + 8 + 4*cb + k for k in range(4)]
        e(f"v_max3_f32 v{dst}, v{r[0]}, v{r[1]}, v{r[2]}")
        e(f"v_max3_f32 v{dst}, v{dst}, v{r[3]}, v{r[4]}")
        e(f"v_max3_f32 v{dst}, v{dst}, v{r[5]}, v{r[6]}")
        e(f"v_max_f32 v{dst}, v{dst}, v{r[7]}")
        self.xlane("v_max_f32", dst, t)

    def softmax(self, T):
        e = self.e
        S, TT, P = self.A_S, self.A_T, self.A_P
        if T == 0:
            for cb in range(2):
                self.tile_max(cb, TT + cb, TT + 2)
                e(f"v_mul_f32 v{self.A_NM+cb}, s{S_C}, v{TT+cb}")
                e(f"v_sub_f32 v{self.A_NM+cb}, 0, v{self.A_NM+cb}")
                e(f"v_mov_b32 v{self.A_L+cb}, 0")
        e.lab(f"L_sm{T}")
        groups = [(0, 0), (0, 1), (1, 0), (1, 1)]
        def fma(gi):
            mt, cb = groups[gi]
            for r in range(4):
                e(f"v_fma_f32 v{TT+4*gi+r}, v{S+8*mt+4*cb+r}, s{S_C}, v{self.A_NM+cb}")
        def exp(gi):
            for r in range(4):
                e(f"v_exp_f32 v{TT+4*gi+r}, v{TT+4*gi+r}")
        def fin(gi):
            mt, cb = groups[gi]
            t = TT + 4*gi
            ts = self.A_TS + cb
            if mt == 0:
                e(f"v_add_f32 v{ts}, v{t}, v{t+1}")
            else:
                e(f"v_add_f32 v{ts}, v{ts}, v{t}")
                e(f"v_add_f32 v{ts}, v{ts}, v{t+1}")
            e(f"v_cvt_pk_bf16_f32 v{P+8*T+4*cb+2*mt}, v{t}, v{t+1}")
            e(f"v_add_f32 v{ts}, v{ts}, v{t+2}")
            e(f"v_cvt_pk_bf16_f32 v{P+8*T+4*cb+2*mt+1}, v{t+2}, v{t+3}")
            e(f"v_add_f32 v{ts}, v{ts}, v{t+3}")
        fma(0); fma(1); exp(0); fma(2); exp(1); fma(3); fin(0); exp(2); fin(1); exp(3); fin(2); fin(3)
        if T > 0:
            e(f"v_max_f32 v{TT}, v{self.A_TS}, v{self.A_TS+1}")
            e(f"v_cmp_lt_f32 vcc, s{S_THR}, v{TT}")
            e("s_nop 0")
            e(f"s_cbranch_vccz L_ok{T}")
            e(f"s_call_b64 {sr(S_RET,2)}, L_rescale")
            e(f"s_branch L_sm{T}")
            e.lab(f"L_ok{T}")
            e(f"s_mov_b32 s{S_THR}, 0x47800000")
        for cb in range(2):
            e(f"v_add_f32 v{self.A_L+cb}, v{self.A_L+cb}, v{self.A_TS+cb}")

    def rescale_routine(self):
        e = self.e
        TT, P = self.A_T, self.A_P
        e.lab("L_rescale")
        for cb in range(2):
            self.tile_max(cb, TT, TT + 2)
            e(f"v_fma_f32 v{TT}, v{TT}, s{S_C}, v{self.A_NM+cb}")
            e(f"v_ceil_f32 v{TT}, v{TT}")
            e(f"v_max_f32 v{TT}, 0, v{TT}")
            e(f"v_sub_f32 v{self.A_NM+cb}, v{self.A_NM+cb}, v{TT}")
            e(f"v_min_f32 v{TT}, 0x43800000, v{TT}")
            e(f"v_cvt_i32_f32 v{TT}, v{TT}")
            e(f"v_sub_u32 v{TT}, 0, v{TT}")
            e(f"v_ldexp_f32 v{self.A_L+cb}, v{self.A_L+cb}, v{TT}")
            for T in range(16):
                for k in range(4):
                    r = P + 8*T + 4*cb + k
                    e(f"v_lshlrev_b32 v{TT+4}, 16, v{r}")
                    e(f"v_and_b32 v{TT+5}, 0xffff0000, v{r}")
                    e(f"v_ldexp_f32 v{TT+4}, v{TT+4}, v{TT}")
                    e(f"v_ldexp_f32 v{TT+5}, v{TT+5}, v{TT}")
                    e(f"v_cvt_pk_bf16_f32 v{r}, v{TT+4}, v{TT+5}")
        e(f"s_mov_b32 s{S_THR}, 0x7f800000")
        e(f"s_setpc_b64 {sr(S_RET,2)}")

    def streamA(self):
        e = self.e
        KA, VA, OW = self.A_KA, self.A_VA, self.A_OW
        self.stamp(self.A_ST)
        if self.prioA:
            e(f"s_setprio {self.prioA}")
        t = self.A_T
        def vtouch():
            e(f"v_and_b32 v{t+12}, 31, v0")
            e(f"v_min_u32 v{t+12}, 27, v{t+12}")
            e(f"s_mul_i32 s{S_T0}, s{S_W}, 28")
            e(f"v_add_u32 v{t+12}, s{S_T0}, v{t+12}")
            if self.vt0:
                e(f"v_lshlrev_b32 v{t+13}, 15, v{t+12}")
                if self.vt0 == 3:
                    e(f"v_lshrrev_b32 v{t+14}, 5, v0")
                    e(f"v_lshl_add_u32 v{t+13}, v{t+14}, 10, v{t+13}")
                e(f"s_lshr_b32 s{S_T0}, s{S_B}, 3")
                e(f"s_lshl_b32 s{S_T0}, s{S_T0}, 13")
                e(f"s_and_b32 s{S_T1}, s{S_B}, 7")
                e(f"s_lshl_b32 s{S_T1}, s{S_T1}, 7")
                e(f"s_add_u32 s{S_T0}, s{S_T0}, s{S_T1}")
                e(f"buffer_load_dword v{t+14}, v{t+13}, {sr(S_WQ,4)}, s{S_T0} offen{' nt' if self.vt0 == 2 else ''}")
            else:
                self.stouch_wq(0, 0, 56, 1)
        if not self.tlate:
            vtouch()
        a, b, c = t + 4, t + 5, t + 6
        e(f"v_bfe_u32 v{a}, v0, 1, 3")
        e(f"v_mul_u32_u24 v{KA}, 1056, v{a}")
        e(f"v_and_b32 v{a}, 1, v0")
        e(f"v_lshl_add_u32 v{KA}, v{a}, 9, v{KA}")
        e(f"v_lshrrev_b32 v{b}, 4, v0")
        e(f"v_xor_b32 v{b}, v{b}, v{a}")
        e(f"v_lshl_add_u32 v{KA}, v{b}, 4, v{KA}")
        self.tr_addr(VA, t0=a, t1=b, t2=c)
        self.lane16(OW, 13, 11, XO_BASE)
        e(f"s_lshr_b32 s{S_T0}, s{S_W}, 1")
        e(f"s_mul_i32 s{S_T0}, s{S_T0}, {32768 - 8192}")
        e(f"s_and_b32 s{S_T1}, s{S_W}, 1")
        e(f"s_mul_i32 s{S_T1}, s{S_T1}, {8192 - 2048}")
        e(f"s_add_u32 s{S_HV}, s{S_T0}, s{S_T1}")
        e(f"s_sub_u32 s{S_HV}, s{S_HV}, {XO_BASE - W_BASE}")
        e(f"s_mov_b32 s{S_C}, 0x3db8aa3b")
        e(f"s_mov_b32 s{S_THR}, 0x47800000")
        e(f"s_mov_b32 s{S_ITEM}, 0")
        if self.tlate:
            vtouch()
        segs = [('q', 56)] if self.vt0 != 3 else []
        if 0 not in self.hto:
            segs.append(('o0', 56))
        if not self.vto and not self.bto and 1 not in self.hto:
            segs.append(('o1', self.wo1A))
        def touch_range(a, b):
            pos = 0
            for kind, n in segs:
                lo, hi = max(a - pos, 0), min(b - pos, n)
                if lo < hi:
                    if kind == 'q':
                        self.stouch_wq(1, lo, hi, 1)
                    else:
                        self.stouch_wo(int(kind[1]), lo, hi)
                pos += n
        touch_range(0, self.pre1)
        self.barA_("HB")
        if self.early:
            touch_range(self.pre1, self.pre2)
            self.barA_("HB2")
            if self.h1h:
                touch_range(self.pre2, self.pre3)
                self.barA_("HB3")
                touch_range(self.pre3, 999)
            else:
                touch_range(self.pre2, 999)
        else:
            touch_range(self.pre1, 999)
        e("s_waitcnt vmcnt(0)")
        if self.xpromo:
            e(f"v_lshlrev_b32 v{t+13}, 7, v0")
            e(f"s_lshl_b32 s{S_T0}, s{S_W}, 13")
            e(f"buffer_load_dword v{t+14}, v{t+13}, {sr(S_X,4)}, s{S_T0} offen")
            e(f"s_add_u32 s{S_T0}, s{S_T0}, 32768")
            e(f"buffer_load_dword v{t+15}, v{t+13}, {sr(S_X,4)}, s{S_T0} offen")
            e("s_waitcnt vmcnt(0)")
        self.barA_("QB1")
        self.q_read()
        e("s_waitcnt lgkmcnt(0)")
        self.barA_("KV0")
        for f in range(4):
            self.k_read(f, 0, 0)
        barA_pre = list(self.barA)
        self.barA = []
        e.lab("L_item")
        if self.dyn:
            e(f"s_setprio {self.prioA}")
        S = self.A_S
        for T in range(16):
            slot, tile = (T >> 1) & 1, T & 1
            ph = T >> 1
            e("s_waitcnt lgkmcnt(2)")
            for p in range(8):
                mt, q = p >> 2, p & 3
                c0 = q & 1
                seq = [(2*p, c0), (2*p + 1, c0), (2*p + 1, 1 - c0), (2*p, 1 - c0)]
                for k, (f, cb) in enumerate(seq):
                    d = vr(S + 8*mt + 4*cb, 4)
                    if not self.noAm:
                        e(f"v_mfma_f32_16x16x32_bf16 {d}, {self.rg(self.kbuf(f), 0, 4)}, {ar(8*(f & 7) + 4*cb, 4)}, {0 if q == 0 and k in (0, 2) else d}")
                    if k < 2:
                        fn = 2*(p + 2) + k
                        if fn < 16:
                            self.k_read(fn, slot, tile)
                        elif tile == 0:
                            self.k_read(fn - 16, slot, 1)
                if 16 in self.ob and (T, p) == ((0, 2) if self.ob[16] == 'early' else (1, 4)):
                    e(f"s_cmp_eq_u32 s{S_ITEM}, 0")
                    e("s_cbranch_scc1 L_nobk")
                    e("s_barrier")
                    e.lab("L_nobk")
                if tile == 1 and p == 6:
                    e("s_waitcnt lgkmcnt(0)")
                    if self.fre:
                        e("s_barrier")
                        self.barA.append("FR")
                    self.barA_("KV")
                    for g in range(4):
                        if T < 15:
                            self.k_read(g, slot ^ 1, 0)
                        else:
                            self.v_read(g, 0)
                elif p < 7:
                    e("s_waitcnt lgkmcnt(2)")
            if self.dyn:
                e("s_setprio 0")
            e("s_nop 1" if T else "s_nop 7")
            if not self.noSM:
                self.softmax(T)
            if self.dyn and T < 15:
                e(f"s_setprio {self.prioA}")
        TT = self.A_T
        for cb in range(2):
            self.xlane("v_add_f32", self.A_L + cb, TT)
            e(f"v_rcp_f32 v{self.A_L+cb}, v{self.A_L+cb}")
        barA_K = list(self.barA)
        self.barA = []
        e(f"s_mov_b32 s{S_CH}, 0")
        e.lab("L_chunk")
        if self.dyn:
            e(f"s_setprio {self.prioA}")
        O = self.A_S
        def epi_ops(u2):
            ops = []
            for cb in range(2):
                d = O + 16*u2 + 4*cb
                for x in list(range(d, d + 4)) + list(range(d + 8, d + 12)):
                    ops.append(lambda x=x, cb=cb: e(f"v_mul_f32 v{x}, v{x}, v{self.A_L+cb}"))
                for k, x in enumerate((d, d + 2, d + 8, d + 10)):
                    ops.append(lambda k=k, x=x, d=d: e(f"v_cvt_pk_bf16_f32 v{d+k}, v{x}, v{x+1}"))
            return ops
        epi0, nepi = epi_ops(0), [0]
        def epi_some(n):
            for op in epi0[nepi[0]:nepi[0] + n]:
                op()
            nepi[0] += n
        for half in range(2):
            if half == 1:
                e(f"s_or_b32 s{S_T0}, s{S_ITEM}, s{S_CH}")
                e(f"s_cbranch_scc1 L_noq2")
                self.q_read()
                e.lab("L_noq2")
            e("s_waitcnt lgkmcnt(4)")
            for p in range(16):
                u, q = p >> 2, p & 3
                c0 = q & 1
                seq = [(2*p, c0), (2*p + 1, c0), (2*p + 1, 1 - c0), (2*p, 1 - c0)]
                for k, (f, cb) in enumerate(seq):
                    d = vr(O + 8*u + 4*cb, 4)
                    Tg = 8*half + (f & 7)
                    if not self.noAm:
                        e(f"v_mfma_f32_16x16x32_bf16 {d}, {self.rg(self.vbuf(f, half), 0, 4)}, {vr(self.A_P + 8*Tg + 4*cb, 4)}, {0 if half == 0 and q == 0 and k in (0, 2) else d}")
                    if p + 2 < 16:
                        self.v_read(2*(p + 2) + (k >> 1), half, (k & 1,))
                    if self.epi and half == 1 and p >= 14:
                        epi_some(2)
                for kind, pos in (('early', (self.obe + 1)//2), ('late', self.obf//2)):
                    mask = sum(1 << (4*it + cc) for it in range(2) for cc in range(1, 4) if self.ob.get(8 + 2*cc + 16*it) == kind)
                    if half == 0 and p == pos and mask:
                        e(f"s_lshl2_add_u32 s{S_T0}, s{S_ITEM}, s{S_CH}")
                        e(f"s_bitcmp1_b32 {mask}, s{S_T0}")
                        e(f"s_cbranch_scc0 L_nob{kind}")
                        e("s_barrier")
                        e.lab(f"L_nob{kind}")
                if half == 1 and p == 2:
                    e(f"s_cmp_eq_u32 s{S_CH}, 0")
                    e("s_cbranch_scc0 L_nqb")
                    e("s_barrier")
                    e.lab("L_nqb")
                def nxt_reads(fs, tag):
                    if half == 0:
                        for g in fs:
                            self.v_read(g, 1)
                        return
                    e(f"s_cmp_eq_u32 s{S_CH}, 3")
                    e(f"s_cbranch_scc1 L_nk{tag}")
                    for g in fs:
                        self.v_read(g, 0)
                    e(f"s_branch L_nk2{tag}")
                    e.lab(f"L_nk{tag}")
                    for g in fs:
                        self.k_read(g, 0, 0)
                    e.lab(f"L_nk2{tag}")
                if p == 14:
                    e("s_waitcnt lgkmcnt(0)")
                    if self.fre:
                        e("s_barrier")
                        self.barA.append("FR")
                    self.barA_("KV")
                    nxt_reads((0, 1, 2, 3) if half == 0 else (0, 1), "a")
                elif p == 15:
                    if half == 1:
                        nxt_reads((2, 3), "b")
                else:
                    e(f"s_waitcnt lgkmcnt({4 if p < 14 else 0})")
        if self.dyn:
            e("s_setprio 0")
        if self.epi:
            for op in epi0[nepi[0]:]:
                op()
            for cb in range(2):
                e(f"ds_write_b128 v{OW}, {vr(O + 4*cb, 4)} offset:{cb*1024}")
        else:
            e("s_nop 7")
        for u2 in range(1 if self.epi else 0, 2):
            for op in epi_ops(u2):
                op()
            for cb in range(2):
                e(f"ds_write_b128 v{OW}, {vr(O + 16*u2 + 4*cb, 4)} offset:{u2*4096 + cb*1024}")
        barA_C = list(self.barA)
        e(f"s_add_u32 s{S_CH}, s{S_CH}, 1")
        e(f"s_cmp_lt_u32 s{S_CH}, 4")
        e("s_cbranch_scc1 L_chunk")
        e(f"s_add_u32 s{S_ITEM}, s{S_ITEM}, 1")
        e(f"s_cmp_lt_u32 s{S_ITEM}, 2")
        e("s_cbranch_scc1 L_item")
        seq = list(barA_pre)
        for it in range(2):
            seq += (["HX"] if it == 0 and self.hA else []) + (["OB"] if it == 1 and 16 in self.ob else []) + barA_K
            for c in range(4):
                x = list(barA_C)
                if c == 0:
                    x.insert(2 if self.fre else 1, "QB2")
                elif 8 + 2*c + 16*it in self.ob:
                    x.insert(0, "OB")
                seq += x
        e("s_waitcnt lgkmcnt(0)")
        self.barA_("OB")
        self.barA = seq + ["OB"]
        if self.prof:
            self.stamp(self.A_ST)
            e(f"s_cmp_eq_u32 s{S_W}, 0")
            e("s_cbranch_scc0 L_end")
            self.prof_store(self.A_ST, 0, 0)
        e("s_endpgm")
        self.rescale_routine()

    def prof_store(self, vreg, role, tmp):
        e = self.e
        e(f"v_mbcnt_lo_u32_b32 v{tmp}, -1, 0")
        e(f"v_mbcnt_hi_u32_b32 v{tmp}, -1, v{tmp}")
        e(f"v_lshlrev_b32 v{tmp}, 2, v{tmp}")
        e(f"s_lshl_b32 s{S_T0}, s{S_WG}, 9")
        e(f"s_add_u32 s{S_T0}, s{S_T0}, {0x3000000 + role*256}")
        e(f"buffer_store_dword v{vreg}, v{tmp}, {sr(S_WS,4)}, s{S_T0} offen")
        e(f"s_add_u32 s{S_T0}, s{S_T0}, 0x200000")
        e(f"buffer_store_dword v{self.st2[vreg]}, v{tmp}, {sr(S_WS,4)}, s{S_T0} offen")
        e("s_waitcnt vmcnt(0)")

    def stouch_wq(self, item, k0, k1, step):
        e = self.e
        if k0 >= k1:
            return
        e(f"s_lshl_b32 s{S_T0}, s{S_W}, 14")
        e(f"s_lshr_b32 s{S_T1}, s{S_B}, 4")
        e(f"s_lshl_b32 s{S_T1}, s{S_T1}, 13")
        e(f"s_add_u32 s{S_T0}, s{S_T0}, s{S_T1}")
        e(f"s_and_b32 s{S_T1}, s{S_B}, 15")
        e(f"s_lshl_b32 s{S_T1}, s{S_T1}, 6")
        e(f"s_add_u32 s{S_T0}, s{S_T0}, s{S_T1}")
        cur = 0
        for k in range(k0, k1, step):
            if k // 8 != cur:
                e(f"s_add_u32 s{S_T0}, s{S_T0}, {(k // 8 - cur)*8*65536}")
                cur = k // 8
            e(f"s_buffer_load_dword s{S_JUNK + k % 4}, {sr(S_WQ,4)}, s{S_T0} offset:{(k % 8)*65536 + item*1024}")

    def stouch_wo(self, item, k0, k1):
        e = self.e
        e(f"s_lshl_b32 s{S_T0}, s{S_W}, 11")
        e(f"s_lshl_b32 s{S_T1}, s{S_B}, 6")
        e(f"s_add_u32 s{S_T0}, s{S_T0}, s{S_T1}")
        for k in range(k0, k1):
            e(f"s_buffer_load_dword s{S_JUNK + k % 4}, {sr(S_WO,4)}, s{S_T0} offset:{k*8192 + item*458752}")

    B_OR = 128
    B_TMP = 132
    B_BF = 32
    B_WT = 160
    B_XR = 164
    B_XR0 = 165
    B_VWQ = 166
    B_VWO = 167
    B_VV = 168
    B_VK = 169
    B_VX = 170
    B_QW = 171
    B_LANE = 172
    B_TA, B_TD = 166, 167
    B_FIN, B_FOUT, B_FAI, B_FAO = 148, 149, 150, 151
    B_VWQ4 = 152
    B_VWO4 = 156
    B_ST = 175

    def setupB(self):
        e = self.e
        e(f"s_mul_i32 s{S_XLDS}, s{S_W}, {2*1088}")
        e(f"s_mul_i32 s{S_XG}, s{S_W}, {16*896}")
        g = self.dma_voffs(self.B_VX, self.B_VK, self.B_VV, self.B_VWO4, self.B_VWQ4, self.B_TMP)
        next(g)
        if not self.flate:
            self.flag_loads()
        for xp in range(2 if self.early else 7):
            for op in self.X_ops(xp, self.xloc(0, xp), "X0", self.xnt):
                op()
        e(f"s_lshl_b32 s{S_WLDS}, s{S_W}, 14")
        e(f"s_add_u32 s{S_WLDS}, s{S_WLDS}, {W_BASE}")
        e(f"s_lshl_b32 s{S_WCOL}, s{S_W}, 8")
        e(f"s_mul_i32 s{S_KLDS}, s{S_W}, {8*1056}")
        e(f"s_lshl_b32 s{S_KG}, s{S_W}, {self.ksh + 4}")
        r1, r2 = 44, 45
        if self.rot:
            e(f"s_and_b32 s{r1}, s{S_B}, 3")
            e(f"s_bfe_u32 s{r2}, s{S_B}, 0x20002")
        else:
            e(f"s_mov_b32 s{r1}, 0")
            e(f"s_mov_b32 s{r2}, 0")
        K = self.kst
        e(f"s_add_u32 s{S_VG}, s{S_W}, s{r1}")
        e(f"s_and_b32 s{S_VG}, s{S_VG}, {K - 1}")
        e(f"s_lshl_b32 s{S_VG}, s{S_VG}, 9")
        e(f"s_lshr_b32 s{S_T0}, s{S_W}, {self.ksh - 9}")
        e(f"s_lshl_b32 s{S_T0}, s{S_T0}, {self.ksh + 6}")
        e(f"s_add_u32 s{S_VG}, s{S_VG}, s{S_T0}")
        for r in range(4):
            e(f"s_add_u32 s{S_T0}, s{r1}, {r}")
            e(f"s_and_b32 s{S_T0}, s{S_T0}, {K - 1}")
            e(f"s_lshl_b32 s{S_T0}, s{S_T0}, 9")
            e(f"s_add_u32 s{S_KR+r}, s{S_KG}, s{S_T0}")
            e(f"s_add_u32 s{S_T0}, s{r2}, {r}")
            e(f"s_and_b32 s{S_T0}, s{S_T0}, 3")
            e(f"s_lshl_b32 s{S_T1}, s{S_T0}, 7")
            e(f"s_add_u32 s{S_VC+r}, s{S_VG}, s{S_T1}")
            e(f"s_mul_i32 s{S_T1}, s{S_T0}, {64*896}")
            e(f"s_add_u32 s{S_WR+r}, s{S_WCOL}, s{S_T1}")
        e(f"s_lshl_b32 s{S_VLB}, s{S_W}, 13")
        next(g)
        for pc in range(1, 4):
            e(f"v_add_u32 v{self.B_VWQ4+pc}, {(16*(pc & 1) + 4*(pc >> 1))*8192 - 1024*pc}, v{self.B_VWQ4}")

    def flag_loads(self):
        e = self.e
        e(f"v_and_b32 v{self.B_FAO}, 3, v0")
        e(f"v_lshlrev_b32 v{self.B_FAI}, 2, v{self.B_FAO}")
        e(f"s_lshl_b32 s{S_T0}, s{S_WG}, 7")
        e(f"s_add_u32 s{S_T0}, s{S_T0}, {FLAG_BASE}")
        e(f"v_add_u32 v{self.B_FAI}, s{S_T0}, v{self.B_FAI}")
        e(f"s_mul_i32 s{S_T1}, s{S_P}, 124")
        e(f"s_sub_u32 s{S_T0}, s{S_T0}, s{S_T1}")
        e(f"v_lshl_add_u32 v{self.B_FAO}, v{self.B_FAO}, 7, s{S_T0}")
        e(f"buffer_load_dword v{self.B_FIN}, v{self.B_FAI}, {sr(S_WS,4)}, 0 offen sc1")
        e(f"buffer_load_dword v{self.B_FOUT}, v{self.B_FAO}, {sr(S_WS,4)}, 0 offen sc1")
        self.vmq += ["F", "F"]

    def setupB2(self):
        e = self.e
        a, b, c = self.B_TMP, self.B_TMP + 1, self.B_TMP + 2
        self.tr_addr(self.B_WT, base_sreg=S_WLDS, t0=a, t1=b, t2=c)
        e(f"v_bfe_u32 v{a}, v0, 3, 1")
        e(f"v_mul_u32_u24 v{self.B_XR0}, 1088, v{a}")
        e(f"v_and_b32 v{a}, 7, v0")
        e(f"v_lshl_add_u32 v{self.B_XR0}, v{a}, 7, v{self.B_XR0}")
        e(f"v_lshrrev_b32 v{a}, 1, v{a}")
        e(f"v_lshrrev_b32 v{b}, 4, v0")
        e(f"v_xor_b32 v{a}, v{a}, v{b}")
        e(f"v_lshl_add_u32 v{self.B_XR0}, v{a}, 4, v{self.B_XR0}")
        e(f"v_add_u32 v{self.B_XR}, {XO_BASE}, v{self.B_XR0}")
        e(f"v_add_u32 v{self.B_XR0}, {KV_SLOT}, v{self.B_XR0}")
        for rb in range(4):
            e(f"s_add_u32 s{S_T0}, s{S_P}, {rb}")
            e(f"s_and_b32 s{S_T0}, s{S_T0}, 3")
            e(f"s_lshl_b32 s{S_T0}, s{S_T0}, 10")
            e(f"s_add_u32 s{S_T0}, s{S_T0}, {XO_BASE}")
            e(f"v_lshl_add_u32 v{self.B_OR+rb}, v0, 4, s{S_T0}")
        e(f"v_lshrrev_b32 v{a}, 5, v0")
        e(f"v_lshlrev_b32 v{a}, 8, v{a}")
        e(f"v_and_b32 v{b}, 15, v0")
        e(f"v_lshl_add_u32 v{a}, v{b}, 4, v{a}")
        e(f"v_bfe_u32 v{b}, v0, 4, 1")
        e(f"v_lshl_add_u32 v{a}, v{b}, 3, v{a}")
        e(f"v_add_u32 v{self.B_QW}, s{S_WLDS}, v{a}")
        e(f"v_mov_b32 v{self.B_LANE}, v0")
        e(f"v_min_u32 v{self.B_TA}, 27, v0")
        e(f"s_mul_i32 s{S_T0}, s{S_W}, 28")
        e(f"v_add_u32 v{self.B_TA}, s{S_T0}, v{self.B_TA}")
        e(f"v_lshlrev_b32 v{self.B_TA}, 12, v{self.B_TA}")
        e(f"s_lshl_b32 s{S_T0}, s{S_B}, 7")
        e(f"v_add_u32 v{self.B_TA}, s{S_T0}, v{self.B_TA}")
        for pc in range(1, 4):
            e(f"v_add_u32 v{self.B_VWO4+pc}, {(16*(pc >> 1) + 8*(pc & 1))*896 - 1024*pc}, v{self.B_VWO4}")

    def xloc(self, item, xp):
        if xp == 0 or (item == 1 and xp % 3 == 0):
            return KV_SLOT + 4 * X_SLOT
        if item == 1:
            return XO_BASE + (xp % 3 - 1) * X_SLOT
        if xp < 5:
            return KV_SLOT + (xp - 1) * X_SLOT
        return XO_BASE + (xp - 5) * X_SLOT

    def dma(self, lds_s, lds_imm, g_s, g_imm, vaddr, srd, tag, nt=False):
        def emit():
            e = self.e
            e(f"s_add_u32 m0, s{lds_s}, {lds_imm}")
            e(f"s_add_u32 s{S_T0}, s{g_s}, {g_imm}")
            e(f"buffer_load_dwordx4 v{vaddr}, {sr(srd,4)}, s{S_T0} offen{' nt' if nt else ''} lds")
            self.vmq.append(tag)
        return emit

    def H_ops(self, n):
        item, ph = n >> 4, n & 15
        slot = n & 1
        ops = []
        if self.noH:
            return ops
        for k in range(8):
            if ph < 8:
                ops.append(self.dma(S_KLDS, slot*KV_SLOT + k*1056, S_KR + (ph & 3), item*262144 + (ph // self.kst)*32768*self.kst + k*1024*self.kst,
                                    self.B_VK, S_K, f"H{n}", nt=True))
            else:
                c, half = (ph - 8) >> 1, ph & 1
                ops.append(self.dma(S_VLB, slot*KV_SLOT + k*1024, S_VC + c, item*262144 + half*131072 + k*4096*self.kst,
                                    self.B_VV, S_V, f"H{n}", nt=True))
        return ops

    def X_ops(self, xp, loc, tag, nt=False):
        return [self.dma(S_XLDS, loc + k*1088, S_XG, k*7168 + xp*128, self.B_VX, S_X, tag, nt=nt) for k in range(2)]

    def W_ops(self, wd, hs):
        ks, cbk = hs >> 1, hs & 1
        ops = []
        if self.noW and wd[:2] != ('Q', 0):
            return ops
        if wd[0] == 'Q':
            _, item, xp = wd
            g = 32*(2*xp + ks)*8192 + item*1024 + cbk*128
            vb, srd, gs = self.B_VWQ4, S_WQ, S_WCOL
        else:
            _, item, c, j = wd
            g = (item*512 + 256*j + 32*ks)*896 + cbk*128
            vb, srd, gs = self.B_VWO4, S_WO, S_WR + c
        for pc in range(4):
            def emit(pc=pc):
                e = self.e
                if pc == 0:
                    e(f"s_add_u32 m0, s{S_WLDS}, {hs*4096}")
                    e(f"s_add_u32 s{S_T0}, s{gs}, {g}")
                e(f"buffer_load_dwordx4 v{vb+pc}, {sr(srd,4)}, s{S_T0} offen offset:{pc*1024}{' nt' if self.wq0nt and wd[:2] == ('Q', 0) else ''} lds")
                self.vmq.append((wd, hs))
            ops.append(emit)
        return ops

    def wo_touch(self, nt):
        ops = []
        for item in self.hto:
            def tch(item=item):
                self.e(f"s_mov_b32 s{S_T0}, {item*458752}")
                self.e(f"buffer_load_dword v{self.B_TD}, v{self.B_TA}, {sr(S_WO,4)}, s{S_T0} offen{' nt' if nt else ''}")
                self.vmq.append("T")
            ops.append(tch)
        return ops

    def vmwait(self, need, extra=""):
        idx = -1
        for i, t in enumerate(self.vmq):
            if t in need:
                idx = i
        if idx < 0:
            if extra:
                self.e(f"s_waitcnt {extra}")
            return
        n = len(self.vmq) - 1 - idx
        assert n <= 63, n
        self.e(f"s_waitcnt vmcnt({n}) {extra}".rstrip())
        self.vmq = self.vmq[idx+1:]

    def barB_(self, name):
        sel = 10 <= self.curn <= 16 or 26 <= self.curn <= 32
        if sel:
            self.stamp(self.B_ST, f"@a{name}{self.curn}")
        self.e("s_barrier")
        if sel:
            self.stamp(self.B_ST, f"@{name}{self.curn}")
        self.barB[self.path].append(name)
        if self.prof != 2 or self.curn in self.fine or self.curn - 1 in self.fine:
            self.stamp(self.B_ST, name + str(self.curn))

    def hs_list(self, wd):
        if wd[0] == 'O' and self.path == 'w3':
            return [0, 2]
        return [0, 1, 2, 3]

    @staticmethod
    def kid(st):
        wd, hs = st
        return (wd[0], wd[1], 2*wd[2] + (hs >> 1)) if wd[0] == 'Q' else ('O', wd[1], 4*wd[2] + 2*wd[3] + (hs >> 1))

    def make_sched(self):
        P = {n: [] for n in range(34)}
        def fill(seq, base, cnt):
            k = 0
            for i, c in enumerate(cnt):
                P[base + i] += seq[k:k + c]
                k += c
            return seq[k:]
        assert not fill([(('Q', 1, xp), hs) for xp in range(7) for hs in range(4)], 0, self.qcnt)
        oseq = lambda it: [(('O', it, k >> 2, (k >> 1) & 1), 2*(k & 1) + cbk) for k in range(16) for cbk in range(2)]
        assert not fill(oseq(0), 10, self.o1cnt)
        P[32] = fill(oseq(1), 26, self.o2cnt)
        self.P = P
        self.ob = {}
        for it, base in ((0, 10), (1, 26)):
            for c in range(4):
                wp = base + 2*c
                use = [i for i, (wd, hs) in enumerate(P[wp]) if wd[:3] == ('O', it, c)]
                for n in range(wp):
                    assert not any(wd[:3] == ('O', it, c) for wd, hs in P[n])
                if use:
                    self.ob[wp] = 'early' if use[0] == 0 else 'late'
        self.xfirst, xlast = {}, {}
        for n in range(9):
            for wd, hs in P[n]:
                self.xfirst.setdefault(wd[2], n)
                xlast[wd[2]] = n
        del self.xfirst[0]
        for xp, n in self.xfirst.items():
            assert n >= 1 and (xp < 3 or xlast[xp - 3] < n - 1), (xp, n)

    def bfi(self, k):
        return k[2] % (4 if k[:2] == ('O', 0) else 3)

    def bfreg(self, k, cb4):
        b = self.bfi(k)
        return vr(self.B_TMP + 4*cb4, 4) if b == 3 else ar(self.B_BF + 16*b + 4*cb4, 4)

    def sched(self, n):
        return [st for st in self.P[n] if not (self.path == 'w3' and st[0][0] == 'O' and st[1] & 1)]

    def bf_reads(self, st):
        wd, hs = st
        k = self.kid(st)
        if k in self.bfl:
            return []
        self.bfl.add(k)
        ks = hs >> 1
        e = self.e
        ops = []
        for cb4 in range(4):
            d = self.bfreg(k, cb4)
            if wd[0] == 'Q':
                loc = self.xloc(wd[1], wd[2])
                reg = self.B_XR if loc >= XO_BASE else self.B_XR0
                off = (loc - XO_BASE if loc >= XO_BASE else loc - KV_SLOT) + cb4*2176 + ks*64
            else:
                reg = self.B_OR + cb4
                off = (2*wd[3] + ks)*4096
            ops.append(lambda d=d, off=off, reg=reg: e(f"ds_read_b128 {d}, v{reg} offset:{off}"))
        return ops

    def w_reads(self, hs, i):
        e = self.e
        ops = []
        for u in range(4):
            for t in range(2):
                d = ar(16*(i & 1) + 4*u + 2*t, 2)
                off = hs*4096 + t*2048
                ops.append(lambda d=d, off=off, u=u: e(f"ds_read_b64_tr_b16 {d}, v{self.B_WT+u} offset:{off}"))
        return ops

    def needs_ob(self, st):
        wd, hs = st
        return wd[0] == 'O' and wd[3] == 0 and hs == 0 and self.curn == (10, 26)[wd[1]] + 2*wd[2]

    def run_steps(self, steps, per_step, preload=(), upfront=()):
        e = self.e
        if self.boost:
            e(f"s_setprio {self.boost}")
        if self.hfirst:
            for op in upfront[:self.hfirst]:
                op()
            upfront = upfront[self.hfirst:]
        if self.wpre != steps[0]:
            self.vmwait([steps[0]])
            for op in self.w_reads(steps[0][1], 0):
                op()
        if self.needs_ob(steps[0]):
            for op in upfront:
                op()
            upfront = ()
            self.barB_("OB")
        for op in self.bf_reads(steps[0]):
            op()
        for op in upfront:
            op()
        if self.boost:
            e(f"s_setprio {self.prioB}")
        late = []
        for i, (wd, hs) in enumerate(steps):
            ks, cbk = hs >> 1, hs & 1
            kk = self.kid(steps[i])
            kb = self.bfi(kk)
            others = []
            nx = steps[i+1] if i + 1 < len(steps) else None
            if nx:
                self.vmwait([nx], "lgkmcnt(0)")
                if not self.needs_ob(nx):
                    others += self.bf_reads(nx)
                others += self.w_reads(nx[1], i + 1)
            else:
                e("s_waitcnt lgkmcnt(0)")
                for st in preload:
                    if self.bfi(self.kid(st)) != kb:
                        others += self.bf_reads(st)
                    else:
                        late += self.bf_reads(st)
            others += per_step(i)
            zero = ks == 0 and ((wd[0] == 'Q' and wd[2] == 0) or wd == ('O', 0, 0, 0))
            k = 0
            for u, cb4 in (S22 if self.s22 else [(u, c) for u in range(4) for c in range(4)]):
                d = vr(64*cbk + 16*u + 4*cb4, 4)
                if not (self.noBm and wd[:2] != ('Q', 0)):
                    e(f"v_mfma_f32_16x16x32_bf16 {d}, {ar(16*(i&1)+4*u,4)}, {self.bfreg(kk, cb4)}, {0 if zero else d}")
                if k < len(others):
                    others[k](); k += 1
            while k < len(others):
                others[k](); k += 1
            if nx and self.needs_ob(nx):
                if self.boost:
                    e(f"s_setprio {self.boost}")
                self.barB_("OB")
                for op in self.bf_reads(nx):
                    op()
                if self.boost:
                    e(f"s_setprio {self.prioB}")
        for op in late:
            op()

    def q_ops(self, cbk):
        e = self.e
        t = self.B_TMP
        ops = []
        for u in range(4):
            for cb4 in range(4):
                def op(u=u, cb4=cb4):
                    a = 64*cbk + 16*u + 4*cb4
                    d = t + 2*((4*u + cb4) % 8)
                    e(f"v_cvt_pk_bf16_f32 v{d}, v{a}, v{a+1}")
                    e(f"v_cvt_pk_bf16_f32 v{d+1}, v{a+2}, v{a+3}")
                    off = (cb4*4 + 2*cbk + (u >> 1))*1024 + (u & 1)*512
                    e(f"ds_write_b64 v{self.B_QW}, {vr(d,2)} offset:{off}")
                ops.append(op)
        return ops

    def q_write(self, cbks=(0, 1)):
        e = self.e
        e("s_nop 7" if cbks == (0, 1) else "s_nop 3")
        for cbk in cbks:
            for op in self.q_ops(cbk):
                op()
        e("s_waitcnt lgkmcnt(0)")

    def periodB(self, n):
        e = self.e
        self.curn = n
        steps = self.sched(n)
        nxt = self.sched(n + 1) if n < 32 else []
        self.vmwait([f"H{n}"] + [f"X1_{xp}" for xp, m in self.xfirst.items() if m == n])
        self.barB_("KV0" if n == 0 else "KV")
        hx = []
        if n + 1 <= 31 and not (n == 0 and self.h1h):
            hx += self.H_ops(n + 1)[self.hdone.get(n + 1, 0):]
        for xp, m in self.xfirst.items():
            if m == n + 1:
                hx += self.X_ops(xp, self.xloc(1, xp), f"X1_{xp}", self.x2nt)
        if n == 0:
            for st in steps:
                for op in self.W_ops(*st):
                    op()
        if not steps:
            for op in hx:
                op()
        if n == 8 and not steps:
            self.q_write()
        if n in (9, 25):
            self.barB_("QB2")
        todo = list(nxt[:len({hs for _, hs in nxt})])
        pre = []
        for it, base in ((0, 10), (1, 26)):
            for c in range(4):
                if n + 1 == (base + 2*c + 2 if c < 3 else (26 if it == 0 else -1)):
                    rest = [st for m in range(n + 1, 33) for st in self.sched(m) if st[0][:3] == ('O', it, c) and not st[1] & 1]
                    pre += rest
        if steps:
            def per(i):
                if n == 32:
                    rest = [st for st in steps[i+1:] if st[1] == steps[i][1]]
                    if self.tailov and self.path == 'main' and i == len(steps) - 2:
                        return [self.pub_setup]
                    if self.tailov and self.path == 'main' and i == len(steps) - 1:
                        return [lambda: None]*3 + self.pub_ops(0)
                    return self.W_ops(*rest[0]) if rest else []
                free = {hs for _, hs in steps[:i+1-self.lag]} | ({0, 1, 2, 3} - {hs for _, hs in steps})
                r = []
                if inter and i < 2:
                    nh = (len(hx) + 1)//2 if (i == 0 and len(steps) > 2) else len(hx)
                    r += hx[:nh]
                    del hx[:nh]
                while todo and todo[0][1] in free and i >= self.rin:
                    r += self.W_ops(*todo.pop(0))
                if n == 8 and i == len(steps) - 1:
                    r += self.q_ops(0)
                return r
            a_epi = n in (10, 12, 14, 16, 26, 28, 30)
            inter = self.hint and a_epi and not self.needs_ob(steps[0])
            last_k = self.kid(steps[-1])
            newk = [self.kid(st) for st in pre if self.kid(st) not in self.bfl and self.kid(st) not in map(self.kid, steps)]
            live = {self.kid(st) for m in range(n + 1, 33) for st in self.sched(m) if self.kid(st) in self.bfl or self.kid(st) in map(self.kid, steps)}
            bufs = [self.bfi(k) for k in newk] + [self.bfi(k) for k in live]
            assert len(bufs) == len(set(bufs)), (n, newk, live)
            self.run_steps(steps, per, pre, [] if inter else hx)
            if n == 8:
                self.q_write((1,))
        else:
            assert all(self.kid(st) in self.bfl for st in pre)
        for st in todo:
            for op in self.W_ops(*st):
                op()
        if pre:
            e("s_waitcnt lgkmcnt(0)")
        if self.fre and n < 32:
            e("s_barrier")
            self.barB[self.path].append("FR")
            if n + 2 <= 31:
                k = "H%d" % (n + 1)
                after = len(self.vmq) - 1 - max([i for i, t in enumerate(self.vmq) if t == k], default=-1)
                if self.path == 'main':
                    self.hdone[n + 2] = max(0, min(8, (self.cap - 4*after)//4))
                for op in self.H_ops(n + 2)[:self.hdone[n + 2]]:
                    op()
        if self.pre_rd and nxt and n + 1 in (12, 14, 16, 28, 30, 32) and self.kid(nxt[0]) in self.bfl:
            self.vmwait([f"H{n+1}", nxt[0]])
            for op in self.w_reads(nxt[0][1], 0):
                op()
            self.wpre = nxt[0]

    def epilogue_v1(self):
        e = self.e
        t = self.B_TMP
        e("s_nop 7")
        e(f"v_lshlrev_b32 v{t}, 4, v{self.B_LANE}")
        e(f"s_lshl_b32 s{S_T1}, s{S_WG}, 17")
        e(f"s_lshl_b32 s{S_T0}, s{S_W}, 15")
        e(f"s_add_u32 s{S_T1}, s{S_T1}, s{S_T0}")
        for cbk in range(1 if self.path == 'w3' else 2):
            for u in range(4):
                e(f"s_add_u32 s{S_T0}, s{S_T1}, {(cbk*4+u)*4096}")
                for cb4 in range(4):
                    e(f"buffer_store_dwordx4 {vr(64*cbk+16*u+4*cb4,4)}, v{t}, {sr(S_WS,4)}, s{S_T0} offen offset:{cb4*1024}")

    def pub_setup(self):
        e = self.e
        slot = 32768 if self.f32 else 16384
        e(f"v_lshlrev_b32 v{self.B_TMP}, 4, v{self.B_LANE}")
        e(f"s_and_b32 s{S_T1}, s{S_WG}, 0xfc")
        e(f"s_mul_i32 s{S_T1}, s{S_T1}, {4*slot}")
        e(f"s_mul_i32 s{S_T0}, s{S_W}, {slot // 4}")
        e(f"s_add_u32 s{S_T1}, s{S_T1}, s{S_T0}")
        e(f"s_mul_i32 s2, s{S_P}, {slot}")
        e(f"s_add_u32 s2, s2, s{S_T1}")
        for rb in (1, 2, 3):
            e(f"s_add_u32 s{S_T0}, s{S_P}, {rb}")
            e(f"s_and_b32 s{S_T0}, s{S_T0}, 3")
            e(f"s_mul_i32 s{S_T0}, s{S_T0}, {4*slot}")
            e(f"s_add_u32 s{S_KR+rb}, s{S_T0}, s2")

    def pub_ops(self, cbk):
        e = self.e
        L16, D, fl = self.B_TMP, self.B_TMP + 4, self.pfl
        ops = []
        if self.f32:
            for u in range(4):
                for rb in (1, 2, 3):
                    def op(u=u, rb=rb):
                        e(f"s_add_u32 s{S_T0}, s{S_KR+rb}, {cbk*4096}")
                        e(f"buffer_store_dwordx4 {vr(64*cbk+16*u+4*rb,4)}, v{L16}, {sr(S_WS,4)}, s{S_T0} offen offset:{u*1024} {fl}")
                    ops.append(op)
            return ops
        n = 0
        for u2 in range(2):
            for rb in (1, 2, 3):
                d = D + 4*(n % 3); n += 1
                a0 = 64*cbk + 32*u2 + 4*rb
                ops.append(lambda d=d, a0=a0: (e(f"v_cvt_pk_bf16_f32 v{d}, v{a0}, v{a0+1}"), e(f"v_cvt_pk_bf16_f32 v{d+1}, v{a0+2}, v{a0+3}")))
                ops.append(lambda d=d, a0=a0, rb=rb, u2=u2: (e(f"v_cvt_pk_bf16_f32 v{d+2}, v{a0+16}, v{a0+17}"), e(f"v_cvt_pk_bf16_f32 v{d+3}, v{a0+18}, v{a0+19}"),
                           e(f"buffer_store_dwordx4 {vr(d,4)}, v{L16}, {sr(S_WS,4)}, s{S_KR+rb} offen offset:{(2*cbk+u2)*1024} {fl}")))
        return ops

    def epilogue_fused(self):
        e = self.e
        t = self.B_TMP
        L16, OA = t, t + 1
        D = t + 4
        ncbk = 1 if self.path == 'w3' else 2
        slot = 32768 if self.f32 else 16384
        self.stamp(self.B_ST)
        ov = self.tailov and ncbk == 2
        if not ov:
            self.pub_setup()
        e("s_nop 7")
        for cbk in range(1 if ov else 0, ncbk):
            for op in self.pub_ops(cbk):
                op()
        e(f"v_and_b32 v{OA}, 15, v{self.B_LANE}")
        e(f"v_mul_u32_u24 v{OA}, 1792, v{OA}")
        e(f"v_lshrrev_b32 v{t+2}, 4, v{self.B_LANE}")
        e(f"v_lshl_add_u32 v{OA}, v{t+2}, 3, v{OA}")
        e("s_waitcnt vmcnt(0)")
        e("s_barrier")
        self.stamp(self.B_ST)
        if self.path == 'main':
            e(f"s_cmp_eq_u32 s{S_W}, 0")
            e("s_cbranch_scc0 L_nopoll")
            e(f"v_add_u32 v{self.B_FOUT}, 1, v{self.B_FOUT}")
            e("s_mov_b64 exec, 15")
            e(f"buffer_store_dword v{self.B_FOUT}, v{self.B_FAO}, {sr(S_WS,4)}, 0 offen sc1")
            e(f"s_mov_b32 s{S_CH}, 0")
            e.lab("L_poll")
            e(f"buffer_load_dword v{t+2}, v{self.B_FAI}, {sr(S_WS,4)}, 0 offen sc1")
            e(f"s_add_u32 s{S_CH}, s{S_CH}, 1")
            e("s_waitcnt vmcnt(0)")
            e(f"v_cmp_eq_u32 vcc, v{t+2}, v{self.B_FIN}")
            e("s_nop 0")
            e("s_cbranch_vccz L_polled")
            e(f"s_cmp_lt_u32 s{S_CH}, 0x20000")
            e("s_cbranch_scc1 L_poll")
            e.lab("L_polled")
            e("s_mov_b64 exec, -1")
            e.lab("L_nopoll")
        e("s_barrier")
        self.stamp(self.B_ST)
        e(f"s_mul_i32 s2, s{S_P}, {4*slot}")
        e(f"s_add_u32 s2, s2, s{S_T1}")
        for rb in (1, 2, 3):
            e(f"s_add_u32 s{S_T0}, s{S_P}, {rb}")
            e(f"s_and_b32 s{S_T0}, s{S_T0}, 3")
            e(f"s_mul_i32 s{S_T0}, s{S_T0}, {slot}")
            e(f"s_add_u32 s{S_T0}, s{S_T0}, s2")
            for cbk in range(ncbk):
                if self.f32:
                    if cbk:
                        e(f"s_add_u32 s{S_T0}, s{S_T0}, 4096")
                    for u in range(4):
                        e(f"buffer_load_dwordx4 {vr(64*cbk+16*u+4*rb,4)}, v{L16}, {sr(S_WS,4)}, s{S_T0} offen offset:{u*1024} {self.lfl}")
                else:
                    for u2 in range(2):
                        e(f"buffer_load_dwordx4 {vr(64*cbk+32*u2+4*rb,4)}, v{L16}, {sr(S_WS,4)}, s{S_T0} offen offset:{(2*cbk+u2)*1024} {self.lfl}")
        e(f"s_mul_i32 s2, s{S_B}, {64*1792}")
        e(f"s_mul_i32 s3, s{S_P}, {16*1792}")
        e(f"s_add_u32 s2, s2, s3")
        e(f"s_mul_i32 s3, s{S_BR}, 896")
        e(f"s_add_u32 s2, s2, s3")
        e(f"s_add_u32 s2, s2, s{S_WCOL}")
        e("s_waitcnt vmcnt(0)")
        for cbk in range(ncbk):
            for u in range(4):
                a = 64*cbk + 16*u
                for rb in (1, 2, 3):
                    if self.f32:
                        for r in range(4):
                            e(f"v_add_f32 v{a+r}, v{a+r}, v{a+4*rb+r}")
                    else:
                        src = 64*cbk + 32*(u >> 1) + 4*rb + 2*(u & 1)
                        for h in range(2):
                            e(f"v_lshlrev_b32 v{D+2*h}, 16, v{src+h}")
                            e(f"v_and_b32 v{D+2*h+1}, 0xffff0000, v{src+h}")
                        e(f"v_pk_add_f32 {vr(a,2)}, {vr(a,2)}, {vr(D,2)}")
                        e(f"v_pk_add_f32 {vr(a+2,2)}, {vr(a+2,2)}, {vr(D+2,2)}")
                e(f"v_cvt_pk_bf16_f32 v{a}, v{a}, v{a+1}")
                e(f"v_cvt_pk_bf16_f32 v{a+1}, v{a+2}, v{a+3}")
                e(f"buffer_store_dwordx2 {vr(a,2)}, v{OA}, {sr(S_OUT,4)}, s2 offen offset:{cbk*128+u*32} {self.ofl}".rstrip())

    def endB(self):
        e = self.e
        if self.fuse:
            self.epilogue_fused()
        else:
            self.epilogue_v1()
        if self.prof:
            e("s_waitcnt vmcnt(0)")
            self.stamp(self.B_ST)
            if self.path == 'main':
                e(f"s_cmp_eq_u32 s{S_W}, 0")
                e("s_cbranch_scc0 L_end")
                self.prof_store(self.B_ST, 1, 0)
        e("s_endpgm")

    def streamB(self):
        e = self.e
        e.lab("L_B")
        self.vmq = []
        self.deferred = []
        self.path = 'main'
        self.barB = {'main': [], 'w3': []}
        self.stamp(self.B_ST)
        self.setupB()
        for hs in range(4):
            for op in self.W_ops(('Q', 0, 0), hs):
                op()
        self.setupB2()
        if self.early:
            for xp in range(2, 7):
                for op in self.X_ops(xp, self.xloc(0, xp), "X0b", self.xnt):
                    op()
        if self.flate:
            self.flag_loads()
        self.stamp(self.B_ST)
        self.vmwait(["X0"])
        self.barB_("HB")
        steps = [(('Q', 0, h), hs) for h in range(7) for hs in range(4)]
        H0 = self.H_ops(0)
        if self.h1h:
            assert self.early and self.hdef is None and not self.hto
            H0 = H0 + self.H_ops(1)
        def per(i):
            if i % 2 == 1 and self.prof != 2:
                self.stamp(self.B_ST, f"h{i}")
            if i == 6 and self.early:
                assert "X0b" not in self.vmq
                return self.W_ops(*steps[i + 4]) + [lambda: self.barB_("HB2")]
            if i == 23 and self.h1h:
                return self.W_ops(*steps[i + 4]) + [lambda: self.barB_("HB3")]
            if i >= 24 and self.h1h:
                return H0[4*(i - 24):4*(i - 24) + 4]
            if i + 4 < 28:
                return self.W_ops(*steps[i + 4])
            if self.hdef is not None:
                tt = self.wo_touch(False)
                return (tt if self.hdef == i else []) + H0[2*(i - 24):2*(i - 24) + 2] + (tt if self.hdef == i + 1 == 28 else [])
            return (self.wo_touch(True) if i == 24 else []) + H0[2*(i - 24):2*(i - 24) + 2]
        def per2(i):
            return per(i) + (self.q_ops(0) if self.qov and i == 27 else [])
        self.run_steps(steps, per2)
        self.q_write((1,) if self.qov else (0, 1))
        for op in (self.wo_touch(False) if self.hdef is None else []):
            op()
        self.barB_("QB1")
        for n in range(9):
            self.periodB(n)
        e(f"s_cmp_eq_u32 s{S_W}, 3")
        e("s_cbranch_scc1 L_B3")
        save = list(self.vmq)
        save_bfl = set(self.bfl)
        assert not self.deferred
        self.barB['w3'] = list(self.barB['main'])
        for n in range(9, 33):
            self.periodB(n)
        self.endB()
        e.lab("L_B3")
        self.path = 'w3'
        self.vmq = save
        self.bfl = save_bfl
        self.wpre = None
        self.deferred = []
        for n in range(9, 33):
            self.periodB(n)
        self.endB()

    def reduce_kernel(self):
        e = self.e
        e(".globl red_kernel")
        e(".p2align 8")
        e(".type red_kernel,@function")
        e.lab("red_kernel")
        e("s_cmp_ge_u32 s2, 1792")
        e("s_cbranch_scc1 L_rend")
        e("s_load_dwordx2 s[4:5], s[0:1], 96")
        e("s_load_dwordx2 s[8:9], s[0:1], 80")
        e("s_mul_hi_u32 s12, s2, 153391690")
        e("s_mul_i32 s13, s12, 28")
        e("s_sub_u32 s13, s2, s13")
        e("s_and_b32 s14, s12, 1")
        e("s_lshr_b32 s15, s12, 1")
        e("s_lshl_b32 s16, s15, 3")
        e("s_lshl_b32 s17, s14, 2")
        e("s_add_u32 s16, s16, s17")
        e("s_lshl_b32 s16, s16, 17")
        e("s_lshl_b32 s17, s13, 12")
        e("s_add_u32 s16, s16, s17")
        e("v_lshlrev_b32 v1, 4, v0")
        e("s_mov_b32 s6, 67108864")
        e("s_mov_b32 s7, 0x20000")
        e("s_mov_b32 s10, 3670016")
        e("s_mov_b32 s11, 0x20000")
        e("s_waitcnt lgkmcnt(0)")
        for p in range(4):
            e(f"buffer_load_dwordx4 {vr(4+4*p,4)}, v1, s[4:7], s16 offen")
            e("s_add_u32 s16, s16, 131072")
        e("v_lshrrev_b32 v2, 6, v0")
        e("v_lshlrev_b32 v2, 4, v2")
        e("v_and_b32 v3, 15, v0")
        e("v_add_u32 v2, v2, v3")
        e("v_mul_u32_u24 v2, 1792, v2")
        e("v_bfe_u32 v3, v0, 4, 2")
        e("v_lshl_add_u32 v2, v3, 3, v2")
        e("s_mul_i32 s15, s15, 114688")
        e("s_mul_i32 s14, s14, 896")
        e("s_add_u32 s15, s15, s14")
        e("s_lshl_b32 s13, s13, 5")
        e("s_add_u32 s15, s15, s13")
        e("s_waitcnt vmcnt(0)")
        for r in range(4):
            e(f"v_add_f32 v{4+r}, v{4+r}, v{8+r}")
            e(f"v_add_f32 v{12+r}, v{12+r}, v{16+r}")
            e(f"v_add_f32 v{4+r}, v{4+r}, v{12+r}")
        e("v_cvt_pk_bf16_f32 v4, v4, v5")
        e("v_cvt_pk_bf16_f32 v5, v6, v7")
        e("buffer_store_dwordx2 v[4:5], v2, s[8:11], s15 offen")
        e.lab("L_rend")
        e("s_endpgm")

    def build(self):
        e = self.e
        out = [HEADER.rstrip()]
        if self.fuse:
            out.append(f"; @launch grid=(256,1,1) block=(512,1,1) lds={LDS_BYTES}")
        else:
            out.append(f"; @launch kernel={NAME}_kernel grid=(256,1,1) block=(512,1,1) lds={LDS_BYTES}")
            out.append(f"; @launch kernel=red_kernel grid=(1792,1,1) block=(256,1,1) lds=0")
        out.append('.amdgcn_target "amdgcn-amd-amdhsa--gfx950"')
        out.append(".text")
        out.append(f".globl {NAME}_kernel")
        out.append(".p2align 8")
        out.append(f".type {NAME}_kernel,@function")
        out.append(f"{NAME}_kernel:")
        self.prologue()
        self.streamB()
        self.path = None
        e.lab("L_A")
        self.streamA()
        e.lab("L_end")
        e("s_endpgm")
        if not self.fuse:
            self.reduce_kernel()
        assert self.barA == self.barB['main'] == self.barB['w3'], (self.barA, self.barB)
        if self.prof:
            out.insert(1, f"; NST {44 if self.prof == 4 else len(self.barA)+2} {len(self.namesB)} " + " ".join(self.namesB))
        out.append(e.text())
        out.append('.section .rodata,"a"')
        def kd(name, v, s, acc):
            return f""".p2align 6
.amdhsa_kernel {name}
  .amdhsa_next_free_vgpr {v}
  .amdhsa_next_free_sgpr {s}
  .amdhsa_accum_offset {acc}
  .amdhsa_group_segment_fixed_size 0
  .amdhsa_kernarg_size 104
  .amdhsa_user_sgpr_count 2
  .amdhsa_user_sgpr_kernarg_segment_ptr 1
  .amdhsa_system_sgpr_workgroup_id_x 1
.end_amdhsa_kernel"""
        out.append(kd(f"{NAME}_kernel", 256, 96, 176))
        if not self.fuse:
            out.append(kd("red_kernel", 24, 32, 24))
        return "\n".join(out) + "\n"


if __name__ == "__main__":
    kw = {}
    path = None
    for a in sys.argv[1:]:
        if "=" in a:
            k, v = a.split("=")
            kw[k] = eval(v)
        else:
            path = a
    txt = Gen(**kw).build()
    open(path or f"cdna_kernels/{NAME}.s", "w").write(txt)
    print("lines", txt.count("\n"), "bytes", len(txt))
```

```python
import sys, math

NAME = "concat_heads__gqa_block_cached__gqa_block_cached__near_ridge"
HEADER = open("cdna_kernels/%s.s.ref" % NAME).read().split("; Override launch")[0]

KV_SLOT = 33792
W_BASE = KV_SLOT + 5 * 8704
XO_BASE = W_BASE + 65536
X_SLOT = 8704
FLAG_BASE = 0x2800000
LDS_BYTES = XO_BASE + 2 * X_SLOT

S_X, S_K, S_V, S_WQ, S_WO, S_OUT, S_WS = 4, 8, 12, 16, 20, 24, 28
S_W = 60
S_B = 61
S_P = 62
S_BR = 63
S_T0, S_T1 = 64, 65
S_WLDS = 66
S_WCOL = 67
S_KLDS = 68
S_KG = 69
S_VG = 70
S_KR, S_VC, S_WR = 32, 36, 40
S_VLB = 77
S_XLDS = 71
S_XG = 72
S_HK, S_HV, S_KL, S_VL, S_HVC = 66, 67, 68, 69, 70
S_HS = 32
S_HM, S_HGS = 36, 37
S_C = 73
S_THR = 74
S_ITEM = 75
S_CH = 76
S_RET = 78
S_STAMP = 80
S_SIDX = 82
S_WG = 83
S_DBG = 88
S_JUNK = 92


S22 = [(0,0),(0,1),(1,1),(1,0),(2,0),(2,1),(3,1),(3,0),(3,2),(3,3),(2,3),(2,2),(1,2),(1,3),(0,3),(0,2)]


class Em:
    def __init__(self):
        self.l = []
    def __call__(self, s):
        self.l.append(s)
    def lab(self, s):
        self.l.append(s + ":")
    def text(self):
        return "\n".join(self.l)


def vr(a, n=1):
    return f"v{a}" if n == 1 else f"v[{a}:{a+n-1}]"
def ar(a, n=1):
    return f"a{a}" if n == 1 else f"a[{a}:{a+n-1}]"
def sr(a, n=1):
    return f"s{a}" if n == 1 else f"s[{a}:{a+n-1}]"


class Gen:
    def __init__(self, prof=False, prioA=1, npostQ=10, npostO=12, npre=6, fuse=True, pfl='sc1', f32=False, xnt=False, rin=1, nearlyQ=0, nearlyO=0, shift=1, lag=1, boost=2, hA=False, obf=26, obk=(1, 8), pre1=36, tailov=True, dropr=(0, 99), vt0=1, vto=False, xpromo=False, early=True, pre2=76, bto=False, hto=(), rot=True, nohf=(0,1,2,3,4,17,18,19,20,21,22,23,24), hfirst=4, chA=True, flate=False, tlate=False, epi=True, kst=4, s22=True, fre=False, cap=48, ctouch=True, qcnt=(2,2,2,3,4,4,4,4,3), o1cnt=(2,2,2,2,4,4,0,2,2,2,2,2,2,2,2), o2cnt=(2,2,3,3,4,4), obe=3, h1h=False, pre3=150, nolt=False, hdef=None, spread=True, pre_rd=True, qov=True, x2nt=True, wq0nt=False, tp1=20, lfl='sc1', ofl='', drop=0, hint=True, wo1A=56, dyn=True, prioB=1, noH=False, noW=False, noSM=False, noBm=False, noAm=False, tnt=False):
        self.e = Em()
        self.prof = prof
        self.prioA = prioA
        self.npostQ, self.npostO, self.npre, self.pfl, self.f32 = npostQ, npostO, npre, pfl, f32
        self.fuse = fuse
        self.nohf = nohf
        self.hfirst = hfirst
        self.chA = chA
        assert chA
        self.kst = kst
        self.ksh = {1: 9, 2: 10, 4: 11}[kst]
        self.flate, self.tlate, self.epi = flate, tlate, epi
        self.s22 = s22
        self.fre, self.cap = fre, cap
        self.hdone = {}
        self.ctouch = ctouch
        self.qcnt, self.o1cnt, self.o2cnt, self.obe = qcnt, o1cnt, o2cnt, obe
        self.make_sched()
        self.h1h, self.pre3 = h1h, pre3
        self.nolt = nolt
        self.hdef, self.spread, self.pre_rd, self.qov = hdef, spread, pre_rd, qov
        if hdef is not None:
            vto, hto = False, (1,)
        self.hto, self.rot = hto, rot
        self.bto, self.x2nt, self.wq0nt, self.tp1 = bto, x2nt, wq0nt, tp1
        self.early, self.pre2 = early, pre2
        self.xpromo = xpromo
        self.vt0, self.vto, self.lfl, self.ofl = vt0, vto, lfl, ofl
        self.drop = drop
        self.dropr = dropr
        self.obk, self.pre1, self.tailov = obk, pre1, tailov
        self.dyn = dyn
        self.prioB = prioB if dyn else 0
        if dyn:
            prioA, boost = 2, (3 if boost else 0)
            self.prioA = 2
        self.wo1A = wo1A
        self.hA, self.obf, self.hint = hA, obf, hint
        self.lag, self.boost = lag, boost
        self.xnt, self.rin, self.nearlyQ, self.nearlyO, self.shift = xnt, rin, nearlyQ, nearlyO, shift
        self.noH, self.noW, self.noSM, self.noBm, self.noAm = noH, noW, noSM, noBm, noAm
        self.tfl = ' nt' if tnt else ''
        self.barA = []
        self.barB = {}
        self.st2 = {175: 174}
        self.namesB = []
        self.curn = -1
        self.wpre = None
        self.bfl = set()
        self.fine = (3, 4, 12, 13, 14, 29)

    def stamp(self, vreg, name="."):
        e = self.e
        if not self.prof:
            return
        if self.prof in (4, 5) and not name.startswith('@'):
            return
        if self.prof == 4 and getattr(self, 'path', None) is not None:
            return
        if self.prof == 5 and getattr(self, 'path', None) is None:
            return
        if self.prof == 6 and (getattr(self, 'path', None) is None or not (name.startswith('KV') or name in ('.', 'HB-1', 'QB1-1'))):
            return
        if self.prof == 7 and (getattr(self, 'path', None) is None or name not in ('.', 'KV00', 'KV8', 'KV16', 'KV24', 'KV32')):
            return
        if self.prof == 8 and (getattr(self, 'path', None) is None or not (name[0] in '.hHQ' or name in ('KV00', 'KV1', 'KV2', 'KV32'))):
            return
        if self.prof == 3 and (getattr(self, 'path', None) is None or not (name in ('.', 'HB-1', 'HB2-1', 'QB1-1', 'KV00', 'KV1', 'KV8', 'KV10', 'KV16', 'KV19', 'KV24', 'KV26', 'KV32', 'OB32'))):
            return
        if getattr(self, 'path', None) == 'main':
            self.namesB.append(name)
        e(f"s_memrealtime {sr(S_STAMP,2)}")
        e(f"s_memtime {sr(S_STAMP+4,2)}")
        e("s_waitcnt lgkmcnt(0)")
        e(f"s_mov_b32 m0, s{S_SIDX}")
        e(f"v_writelane_b32 v{vreg}, s{S_STAMP}, m0")
        e(f"v_writelane_b32 v{self.st2[vreg]}, s{S_STAMP+4}, m0")
        e(f"s_add_u32 s{S_SIDX}, s{S_SIDX}, 1")

    def prologue(self):
        e = self.e
        e("s_cmp_ge_u32 s2, 256")
        e("s_cbranch_scc1 L_end")
        e("s_load_dwordx16 s[32:47], s[0:1], 0")
        e("s_load_dwordx8 s[48:55], s[0:1], 64")
        e("s_load_dwordx2 s[56:57], s[0:1], 96")
        e(f"v_lshrrev_b32 v1, 6, v0")
        e(f"s_mov_b32 s{S_WG}, s2")
        e(f"s_and_b32 s{S_P}, s2, 3")
        e(f"v_readfirstlane_b32 s3, v1")
        e(f"s_lshr_b32 s{S_B}, s2, 3")
        e(f"s_bfe_u32 s{S_BR}, s2, 0x10002")
        e(f"s_mov_b32 s{S_SIDX}, 0")
        e("v_and_b32 v0, 63, v0")
        e(f"s_and_b32 s{S_W}, s3, 3")
        if self.ctouch:
            e(f"s_cmp_eq_u32 s3, 1")
            e("s_cbranch_scc0 L_noct")
            e(f"s_getpc_b64 s[58:59]")
            e.lab("L_pc")
            e(f"s_sub_u32 s58, s58, L_pc-{NAME}_kernel")
            e(f"s_subb_u32 s59, s59, 0")
            e(f"v_lshl_add_u32 v2, v0, 5, s{S_B}")
            e(f"v_lshlrev_b32 v2, 7, v2")
            e(f"v_min_u32 v2, L_end-{NAME}_kernel, v2")
            e(f"v_mov_b32 v3, s59")
            e(f"v_add_co_u32 v2, vcc, s58, v2")
            e("s_nop 1")
            e(f"v_addc_co_u32 v3, vcc, 0, v3, vcc")
            e(f"global_load_dword v4, v[2:3], off")
            e.lab("L_noct")
        e("s_waitcnt lgkmcnt(0)")
        e("s_bitcmp1_b32 s2, 2")
        e(f"s_cselect_b64 {sr(S_X,2)}, s[42:43], s[32:33]")
        e(f"s_cselect_b64 {sr(S_K,2)}, s[44:45], s[34:35]")
        e(f"s_cselect_b64 {sr(S_V,2)}, s[46:47], s[36:37]")
        e(f"s_cselect_b64 {sr(S_WQ,2)}, s[48:49], s[38:39]")
        e(f"s_cselect_b64 {sr(S_WO,2)}, s[50:51], s[40:41]")
        def addbase(srd, sreg):
            e(f"s_add_u32 s{srd}, s{srd}, s{sreg}")
            e(f"s_addc_u32 s{srd+1}, s{srd+1}, 0")
        e(f"s_mul_i32 s{S_T0}, s{S_B}, 57344")
        addbase(S_X, S_T0)
        e(f"s_lshl_b32 s{S_T0}, s{S_B}, 21")
        e(f"s_lshl_b32 s{S_T1}, s{S_P}, 19")
        e(f"s_add_u32 s{S_T0}, s{S_T0}, s{S_T1}")
        addbase(S_K, S_T0)
        addbase(S_V, S_T0)
        e(f"s_lshl_b32 s{S_T0}, s{S_P}, 11")
        addbase(S_WQ, S_T0)
        e(f"s_sub_u32 s{S_WQ+2}, 3670016, s{S_T0}")
        e(f"s_mul_i32 s{S_T0}, s{S_P}, 917504")
        addbase(S_WO, S_T0)
        e(f"s_mov_b32 s{S_X+2}, 57344")
        e(f"s_mov_b32 s{S_K+2}, 524288")
        e(f"s_mov_b32 s{S_V+2}, 524288")
        e(f"s_mov_b32 s{S_WO+2}, 917504")
        e(f"s_mov_b64 {sr(S_OUT,2)}, s[52:53]")
        e(f"s_mov_b32 s{S_OUT+2}, 3670016")
        e(f"s_mov_b64 {sr(S_WS,2)}, s[56:57]")
        e(f"s_mov_b32 s{S_WS+2}, 67108864")
        e(f"s_mov_b64 {sr(S_DBG,2)}, s[54:55]")
        e(f"s_mov_b32 s{S_DBG+2}, 256")
        for s in (S_X, S_K, S_V, S_WQ, S_WO, S_OUT, S_WS, S_DBG):
            e(f"s_mov_b32 s{s+3}, 0x20000")
        e("s_cmp_lt_u32 s3, 4")
        e("s_cbranch_scc1 L_A")

    def tr_addr(self, dst, base_imm=None, base_sreg=None, t0=None, t1=None, t2=None):
        e = self.e
        e(f"v_bfe_u32 v{t0}, v0, 2, 3")
        e(f"v_lshrrev_b32 v{t1}, 5, v0")
        e(f"v_lshlrev_b32 v{t1}, 10, v{t1}")
        e(f"v_lshl_add_u32 v{t1}, v{t0}, 7, v{t1}")
        e(f"v_and_b32 v{t2}, 3, v0")
        e(f"v_lshl_add_u32 v{t1}, v{t2}, 3, v{t1}")
        if base_imm:
            e(f"v_add_u32 v{t1}, {base_imm}, v{t1}")
        if base_sreg is not None:
            e(f"v_add_u32 v{t1}, s{base_sreg}, v{t1}")
        e(f"v_lshrrev_b32 v{t0}, 1, v{t0}")
        for u in range(4):
            e(f"v_xor_b32 v{t2}, {u}, v{t0}")
            e(f"v_lshl_add_u32 v{dst+u}, v{t2}, 5, v{t1}")

    A_P = 0
    A_S = 128
    A_T = 144
    A_KA = 160
    A_VA = 161
    A_OW = 165
    A_VX = 165
    A_VK = 166
    A_VV = 167
    A_NM = 168
    A_L = 174
    A_TS = 170
    A_ST = 175

    def barA_(self, name, times=1):
        if self.prof == 2:
            self.stamp(self.A_ST)
        self.e("s_barrier")
        self.barA.append(name)
        if self.prof != 2:
            self.stamp(self.A_ST)

    def kbuf(self, f):
        b = f % 8
        return ('a', 64 + 4*b) if b < 4 else ('v', self.A_T + 4*(b - 4))

    def vbuf(self, f, half):
        bp = ((f >> 1) + half) % 3
        return ('a', 64 + 8*bp + 4*(f & 1)) if bp < 2 else ('v', 166 + 4*(f & 1))

    @staticmethod
    def rg(b, off, n):
        return (ar if b[0] == 'a' else vr)(b[1] + off, n)

    def k_read(self, f, slot, tile):
        mt, s = f >> 3, f & 7
        off = slot * KV_SLOT + tile * 16896 + mt * 8448 + s * 64
        self.e(f"ds_read_b128 {self.rg(self.kbuf(f), 0, 4)}, v{self.A_KA} offset:{off}")

    def v_read(self, f, slot, parts=(0, 1)):
        u, T = f >> 3, f & 7
        off = slot * KV_SLOT + T * 4096
        for t in parts:
            self.e(f"ds_read_b64_tr_b16 {self.rg(self.vbuf(f, slot), 2*t, 2)}, v{self.A_VA+u} offset:{off+2048*t}")

    def lane16(self, dst, jsh, qsh, base):
        e = self.e
        e(f"v_mbcnt_lo_u32_b32 v{dst}, -1, 0")
        e(f"v_mbcnt_hi_u32_b32 v{dst}, -1, v{dst}")
        e(f"s_lshr_b32 s{S_T0}, s{S_W}, 1")
        e(f"s_and_b32 s{S_T1}, s{S_W}, 1")
        e(f"s_lshl_b32 s{S_T0}, s{S_T0}, {jsh}")
        e(f"s_lshl_b32 s{S_T1}, s{S_T1}, {qsh}")
        e(f"s_add_u32 s{S_T0}, s{S_T0}, s{S_T1}")
        e(f"s_add_u32 s{S_T0}, s{S_T0}, {base}")
        e(f"v_lshl_add_u32 v{dst}, v{dst}, 4, s{S_T0}")

    def q_read(self):
        e = self.e
        qa = self.A_OW
        e(f"v_add_u32 v{qa}, s{S_HV}, v{qa}")
        for s in range(8):
            for cb in range(2):
                off = (s >> 2) * 16384 + cb * 4096 + (s & 3) * 1024
                e(f"ds_read_b128 {ar(8*s+4*cb,4)}, v{qa} offset:{off}")
        e(f"v_subrev_u32 v{qa}, s{S_HV}, v{qa}")

    def dma_voffs(self, VX, VK, VV, VWO, VWQ, a):
        e = self.e
        b, c, d = a + 1, a + 2, a + 3
        e(f"v_lshrrev_b32 v{a}, 3, v0")
        e(f"v_bfe_u32 v{b}, v0, 4, 2")
        e(f"v_and_b32 v{c}, 7, v0")
        e(f"v_xor_b32 v{VX}, v{c}, v{b}")
        e(f"v_lshlrev_b32 v{VX}, 4, v{VX}")
        e(f"v_mul_u32_u24 v{d}, 896, v{a}")
        e(f"v_add_u32 v{VX}, v{VX}, v{d}")
        yield
        e(f"v_lshlrev_b32 v{b}, 1, v{b}")
        e(f"v_xor_b32 v{c}, v{c}, v{b}")
        e(f"v_lshlrev_b32 v{c}, 4, v{c}")
        if VWO is not None:
            e(f"v_add_u32 v{VWO}, v{c}, v{d}")
        if VV is not None:
            e(f"v_lshl_add_u32 v{VV}, v{a}, {self.ksh}, v{c}")
        e(f"v_lshrrev_b32 v{b}, 5, v0")
        if VWQ is not None:
            e(f"v_and_b32 v{d}, 3, v{a}")
            e(f"v_lshl_add_u32 v{VWQ}, v{d}, 13, v{c}")
            e(f"v_lshl_add_u32 v{VWQ}, v{b}, 16, v{VWQ}")
        e(f"v_and_b32 v{c}, 31, v0")
        e(f"v_xor_b32 v{c}, v{c}, v{b}")
        e(f"v_lshlrev_b32 v{c}, 4, v{c}")
        e(f"v_lshl_add_u32 v{VK}, v{b}, {self.ksh}, v{c}")
        yield

    def A_Hops(self, kind, slot, gs, gimm):
        e = self.e
        ops = []
        if self.noH or not self.hA:
            return [lambda pre: None]*8
        for k in range(8):
            def op(pre, k=k):
                if kind == 'K':
                    if pre:
                        e(f"s_add_u32 m0, s{S_KL}, {slot*KV_SLOT + k*1056}")
                        e(f"s_add_u32 s{S_T0}, s{gs}, {gimm + k*4096}")
                    else:
                        e(f"buffer_load_dwordx4 v{self.A_VK}, {sr(S_K,4)}, s{S_T0} offen nt lds")
                elif kind == 'V':
                    if pre:
                        if k % 4 == 0:
                            e(f"s_add_u32 m0, s{S_VL}, {slot*KV_SLOT + k*1024}")
                        e(f"s_add_u32 s{S_T0}, s{gs}, {gimm + k*16384 - (k % 4)*1024}")
                    else:
                        e(f"buffer_load_dwordx4 v{self.A_VV}, {sr(S_V,4)}, s{S_T0} offen offset:{(k%4)*1024} nt lds")
                else:
                    if pre:
                        if k:
                            e(f"s_add_u32 m0, m0, s{S_HM}")
                            e(f"s_add_u32 s{S_T1}, s{S_T1}, s{S_HGS}")
                    else:
                        e(f"buffer_load_dwordx4 v{self.A_NM}, {sr(S_HS,4)}, s{S_T1} offen nt lds")
            ops.append(op)
        return ops

    def xlane(self, op, x, t):
        e = self.e
        e(f"v_mov_b32 v{t}, v{x}")
        e("s_nop 1")
        e(f"v_permlane32_swap_b32 v{t}, v{x}")
        e("s_nop 1")
        e(f"{op} v{x}, v{x}, v{t}")
        e(f"v_mov_b32 v{t}, v{x}")
        e("s_nop 1")
        e(f"v_permlane16_swap_b32 v{t}, v{x}")
        e("s_nop 1")
        e(f"{op} v{x}, v{x}, v{t}")

    def tile_max(self, cb, dst, t):
        e = self.e
        S = self.A_S
        r = [S + 4*cb + k for k in range(4)] + [S + 8 + 4*cb + k for k in range(4)]
        e(f"v_max3_f32 v{dst}, v{r[0]}, v{r[1]}, v{r[2]}")
        e(f"v_max3_f32 v{dst}, v{dst}, v{r[3]}, v{r[4]}")
        e(f"v_max3_f32 v{dst}, v{dst}, v{r[5]}, v{r[6]}")
        e(f"v_max_f32 v{dst}, v{dst}, v{r[7]}")
        self.xlane("v_max_f32", dst, t)

    def softmax(self, T):
        e = self.e
        S, TT, P = self.A_S, self.A_T, self.A_P
        if T == 0:
            for cb in range(2):
                self.tile_max(cb, TT + cb, TT + 2)
                e(f"v_mul_f32 v{self.A_NM+cb}, s{S_C}, v{TT+cb}")
                e(f"v_sub_f32 v{self.A_NM+cb}, 0, v{self.A_NM+cb}")
                e(f"v_mov_b32 v{self.A_L+cb}, 0")
        e.lab(f"L_sm{T}")
        groups = [(0, 0), (0, 1), (1, 0), (1, 1)]
        def fma(gi):
            mt, cb = groups[gi]
            for r in range(4):
                e(f"v_fma_f32 v{TT+4*gi+r}, v{S+8*mt+4*cb+r}, s{S_C}, v{self.A_NM+cb}")
        def exp(gi):
            for r in range(4):
                e(f"v_exp_f32 v{TT+4*gi+r}, v{TT+4*gi+r}")
        def fin(gi):
            mt, cb = groups[gi]
            t = TT + 4*gi
            ts = self.A_TS + cb
            if mt == 0:
                e(f"v_add_f32 v{ts}, v{t}, v{t+1}")
            else:
                e(f"v_add_f32 v{ts}, v{ts}, v{t}")
                e(f"v_add_f32 v{ts}, v{ts}, v{t+1}")
            e(f"v_cvt_pk_bf16_f32 v{P+8*T+4*cb+2*mt}, v{t}, v{t+1}")
            e(f"v_add_f32 v{ts}, v{ts}, v{t+2}")
            e(f"v_cvt_pk_bf16_f32 v{P+8*T+4*cb+2*mt+1}, v{t+2}, v{t+3}")
            e(f"v_add_f32 v{ts}, v{ts}, v{t+3}")
        fma(0); fma(1); exp(0); fma(2); exp(1); fma(3); fin(0); exp(2); fin(1); exp(3); fin(2); fin(3)
        if T > 0:
            e(f"v_max_f32 v{TT}, v{self.A_TS}, v{self.A_TS+1}")
            e(f"v_cmp_lt_f32 vcc, s{S_THR}, v{TT}")
            e("s_nop 0")
            e(f"s_cbranch_vccz L_ok{T}")
            e(f"s_call_b64 {sr(S_RET,2)}, L_rescale")
            e(f"s_branch L_sm{T}")
            e.lab(f"L_ok{T}")
            e(f"s_mov_b32 s{S_THR}, 0x47800000")
        for cb in range(2):
            e(f"v_add_f32 v{self.A_L+cb}, v{self.A_L+cb}, v{self.A_TS+cb}")

    def rescale_routine(self):
        e = self.e
        TT, P = self.A_T, self.A_P
        e.lab("L_rescale")
        for cb in range(2):
            self.tile_max(cb, TT, TT + 2)
            e(f"v_fma_f32 v{TT}, v{TT}, s{S_C}, v{self.A_NM+cb}")
            e(f"v_ceil_f32 v{TT}, v{TT}")
            e(f"v_max_f32 v{TT}, 0, v{TT}")
            e(f"v_sub_f32 v{self.A_NM+cb}, v{self.A_NM+cb}, v{TT}")
            e(f"v_min_f32 v{TT}, 0x43800000, v{TT}")
            e(f"v_cvt_i32_f32 v{TT}, v{TT}")
            e(f"v_sub_u32 v{TT}, 0, v{TT}")
            e(f"v_ldexp_f32 v{self.A_L+cb}, v{self.A_L+cb}, v{TT}")
            for T in range(16):
                for k in range(4):
                    r = P + 8*T + 4*cb + k
                    e(f"v_lshlrev_b32 v{TT+4}, 16, v{r}")
                    e(f"v_and_b32 v{TT+5}, 0xffff0000, v{r}")
                    e(f"v_ldexp_f32 v{TT+4}, v{TT+4}, v{TT}")
                    e(f"v_ldexp_f32 v{TT+5}, v{TT+5}, v{TT}")
                    e(f"v_cvt_pk_bf16_f32 v{r}, v{TT+4}, v{TT+5}")
        e(f"s_mov_b32 s{S_THR}, 0x7f800000")
        e(f"s_setpc_b64 {sr(S_RET,2)}")

    def streamA(self):
        e = self.e
        KA, VA, OW = self.A_KA, self.A_VA, self.A_OW
        self.stamp(self.A_ST)
        if self.prioA:
            e(f"s_setprio {self.prioA}")
        t = self.A_T
        def vtouch():
            e(f"v_and_b32 v{t+12}, 31, v0")
            e(f"v_min_u32 v{t+12}, 27, v{t+12}")
            e(f"s_mul_i32 s{S_T0}, s{S_W}, 28")
            e(f"v_add_u32 v{t+12}, s{S_T0}, v{t+12}")
            if self.vt0:
                e(f"v_lshlrev_b32 v{t+13}, 15, v{t+12}")
                if self.vt0 == 3:
                    e(f"v_lshrrev_b32 v{t+14}, 5, v0")
                    e(f"v_lshl_add_u32 v{t+13}, v{t+14}, 10, v{t+13}")
                e(f"s_lshr_b32 s{S_T0}, s{S_B}, 3")
                e(f"s_lshl_b32 s{S_T0}, s{S_T0}, 13")
                e(f"s_and_b32 s{S_T1}, s{S_B}, 7")
                e(f"s_lshl_b32 s{S_T1}, s{S_T1}, 7")
                e(f"s_add_u32 s{S_T0}, s{S_T0}, s{S_T1}")
                e(f"buffer_load_dword v{t+14}, v{t+13}, {sr(S_WQ,4)}, s{S_T0} offen{' nt' if self.vt0 == 2 else ''}")
            else:
                self.stouch_wq(0, 0, 56, 1)
        if not self.tlate:
            vtouch()
        a, b, c = t + 4, t + 5, t + 6
        e(f"v_bfe_u32 v{a}, v0, 1, 3")
        e(f"v_mul_u32_u24 v{KA}, 1056, v{a}")
        e(f"v_and_b32 v{a}, 1, v0")
        e(f"v_lshl_add_u32 v{KA}, v{a}, 9, v{KA}")
        e(f"v_lshrrev_b32 v{b}, 4, v0")
        e(f"v_xor_b32 v{b}, v{b}, v{a}")
        e(f"v_lshl_add_u32 v{KA}, v{b}, 4, v{KA}")
        self.tr_addr(VA, t0=a, t1=b, t2=c)
        self.lane16(OW, 13, 11, XO_BASE)
        e(f"s_lshr_b32 s{S_T0}, s{S_W}, 1")
        e(f"s_mul_i32 s{S_T0}, s{S_T0}, {32768 - 8192}")
        e(f"s_and_b32 s{S_T1}, s{S_W}, 1")
        e(f"s_mul_i32 s{S_T1}, s{S_T1}, {8192 - 2048}")
        e(f"s_add_u32 s{S_HV}, s{S_T0}, s{S_T1}")
        e(f"s_sub_u32 s{S_HV}, s{S_HV}, {XO_BASE - W_BASE}")
        e(f"s_mov_b32 s{S_C}, 0x3db8aa3b")
        e(f"s_mov_b32 s{S_THR}, 0x47800000")
        e(f"s_mov_b32 s{S_ITEM}, 0")
        if self.tlate:
            vtouch()
        segs = [('q', 56)] if self.vt0 != 3 else []
        if 0 not in self.hto:
            segs.append(('o0', 56))
        if not self.vto and not self.bto and 1 not in self.hto:
            segs.append(('o1', self.wo1A))
        def touch_range(a, b):
            pos = 0
            for kind, n in segs:
                lo, hi = max(a - pos, 0), min(b - pos, n)
                if lo < hi:
                    if kind == 'q':
                        self.stouch_wq(1, lo, hi, 1)
                    else:
                        self.stouch_wo(int(kind[1]), lo, hi)
                pos += n
        touch_range(0, self.pre1)
        self.barA_("HB")
        if self.early:
            touch_range(self.pre1, self.pre2)
            self.barA_("HB2")
            if self.h1h:
                touch_range(self.pre2, self.pre3)
                self.barA_("HB3")
                touch_range(self.pre3, 999)
            else:
                touch_range(self.pre2, 999)
        else:
            touch_range(self.pre1, 999)
        e("s_waitcnt vmcnt(0)")
        if self.xpromo:
            e(f"v_lshlrev_b32 v{t+13}, 7, v0")
            e(f"s_lshl_b32 s{S_T0}, s{S_W}, 13")
            e(f"buffer_load_dword v{t+14}, v{t+13}, {sr(S_X,4)}, s{S_T0} offen")
            e(f"s_add_u32 s{S_T0}, s{S_T0}, 32768")
            e(f"buffer_load_dword v{t+15}, v{t+13}, {sr(S_X,4)}, s{S_T0} offen")
            e("s_waitcnt vmcnt(0)")
        self.barA_("QB1")
        self.q_read()
        e("s_waitcnt lgkmcnt(0)")
        self.barA_("KV0")
        for f in range(4):
            self.k_read(f, 0, 0)
        barA_pre = list(self.barA)
        self.barA = []
        e.lab("L_item")
        if self.dyn:
            e(f"s_setprio {self.prioA}")
        S = self.A_S
        for T in range(16):
            slot, tile = (T >> 1) & 1, T & 1
            ph = T >> 1
            e("s_waitcnt lgkmcnt(2)")
            for p in range(8):
                mt, q = p >> 2, p & 3
                c0 = q & 1
                seq = [(2*p, c0), (2*p + 1, c0), (2*p + 1, 1 - c0), (2*p, 1 - c0)]
                for k, (f, cb) in enumerate(seq):
                    d = vr(S + 8*mt + 4*cb, 4)
                    if not self.noAm:
                        e(f"v_mfma_f32_16x16x32_bf16 {d}, {self.rg(self.kbuf(f), 0, 4)}, {ar(8*(f & 7) + 4*cb, 4)}, {0 if q == 0 and k in (0, 2) else d}")
                    if k < 2:
                        fn = 2*(p + 2) + k
                        if fn < 16:
                            self.k_read(fn, slot, tile)
                        elif tile == 0:
                            self.k_read(fn - 16, slot, 1)
                if 16 in self.ob and (T, p) == ((0, 2) if self.ob[16] == 'early' else (1, 4)):
                    e(f"s_cmp_eq_u32 s{S_ITEM}, 0")
                    e("s_cbranch_scc1 L_nobk")
                    e("s_barrier")
                    e.lab("L_nobk")
                if tile == 1 and p == 6:
                    e("s_waitcnt lgkmcnt(0)")
                    if self.fre:
                        e("s_barrier")
                        self.barA.append("FR")
                    self.barA_("KV")
                    for g in range(4):
                        if T < 15:
                            self.k_read(g, slot ^ 1, 0)
                        else:
                            self.v_read(g, 0)
                elif p < 7:
                    e("s_waitcnt lgkmcnt(2)")
            if self.dyn:
                e("s_setprio 0")
            e("s_nop 1" if T else "s_nop 7")
            if not self.noSM:
                self.softmax(T)
            if self.dyn and T < 15:
                e(f"s_setprio {self.prioA}")
        TT = self.A_T
        for cb in range(2):
            self.xlane("v_add_f32", self.A_L + cb, TT)
            e(f"v_rcp_f32 v{self.A_L+cb}, v{self.A_L+cb}")
        barA_K = list(self.barA)
        self.barA = []
        e(f"s_mov_b32 s{S_CH}, 0")
        e.lab("L_chunk")
        if self.dyn:
            e(f"s_setprio {self.prioA}")
        O = self.A_S
        def epi_ops(u2):
            ops = []
            for cb in range(2):
                d = O + 16*u2 + 4*cb
                for x in list(range(d, d + 4)) + list(range(d + 8, d + 12)):
                    ops.append(lambda x=x, cb=cb: e(f"v_mul_f32 v{x}, v{x}, v{self.A_L+cb}"))
                for k, x in enumerate((d, d + 2, d + 8, d + 10)):
                    ops.append(lambda k=k, x=x, d=d: e(f"v_cvt_pk_bf16_f32 v{d+k}, v{x}, v{x+1}"))
            return ops
        epi0, nepi = epi_ops(0), [0]
        def epi_some(n):
            for op in epi0[nepi[0]:nepi[0] + n]:
                op()
            nepi[0] += n
        for half in range(2):
            if half == 1:
                e(f"s_or_b32 s{S_T0}, s{S_ITEM}, s{S_CH}")
                e(f"s_cbranch_scc1 L_noq2")
                self.q_read()
                e.lab("L_noq2")
            e("s_waitcnt lgkmcnt(4)")
            for p in range(16):
                u, q = p >> 2, p & 3
                c0 = q & 1
                seq = [(2*p, c0), (2*p + 1, c0), (2*p + 1, 1 - c0), (2*p, 1 - c0)]
                for k, (f, cb) in enumerate(seq):
                    d = vr(O + 8*u + 4*cb, 4)
                    Tg = 8*half + (f & 7)
                    if not self.noAm:
                        e(f"v_mfma_f32_16x16x32_bf16 {d}, {self.rg(self.vbuf(f, half), 0, 4)}, {vr(self.A_P + 8*Tg + 4*cb, 4)}, {0 if half == 0 and q == 0 and k in (0, 2) else d}")
                    if p + 2 < 16:
                        self.v_read(2*(p + 2) + (k >> 1), half, (k & 1,))
                    if self.epi and half == 1 and p >= 14:
                        epi_some(2)
                for kind, pos in (('early', (self.obe + 1)//2), ('late', self.obf//2)):
                    mask = sum(1 << (4*it + cc) for it in range(2) for cc in range(1, 4) if self.ob.get(8 + 2*cc + 16*it) == kind)
                    if half == 0 and p == pos and mask:
                        e(f"s_lshl2_add_u32 s{S_T0}, s{S_ITEM}, s{S_CH}")
                        e(f"s_bitcmp1_b32 {mask}, s{S_T0}")
                        e(f"s_cbranch_scc0 L_nob{kind}")
                        e("s_barrier")
                        e.lab(f"L_nob{kind}")
                if half == 1 and p == 2:
                    e(f"s_cmp_eq_u32 s{S_CH}, 0")
                    e("s_cbranch_scc0 L_nqb")
                    e("s_barrier")
                    e.lab("L_nqb")
                def nxt_reads(fs, tag):
                    if half == 0:
                        for g in fs:
                            self.v_read(g, 1)
                        return
                    e(f"s_cmp_eq_u32 s{S_CH}, 3")
                    e(f"s_cbranch_scc1 L_nk{tag}")
                    for g in fs:
                        self.v_read(g, 0)
                    e(f"s_branch L_nk2{tag}")
                    e.lab(f"L_nk{tag}")
                    for g in fs:
                        self.k_read(g, 0, 0)
                    e.lab(f"L_nk2{tag}")
                if p == 14:
                    e("s_waitcnt lgkmcnt(0)")
                    if self.fre:
                        e("s_barrier")
                        self.barA.append("FR")
                    self.barA_("KV")
                    nxt_reads((0, 1, 2, 3) if half == 0 else (0, 1), "a")
                elif p == 15:
                    if half == 1:
                        nxt_reads((2, 3), "b")
                else:
                    e(f"s_waitcnt lgkmcnt({4 if p < 14 else 0})")
        if self.dyn:
            e("s_setprio 0")
        if self.epi:
            for op in epi0[nepi[0]:]:
                op()
            for cb in range(2):
                e(f"ds_write_b128 v{OW}, {vr(O + 4*cb, 4)} offset:{cb*1024}")
        else:
            e("s_nop 7")
        for u2 in range(1 if self.epi else 0, 2):
            for op in epi_ops(u2):
                op()
            for cb in range(2):
                e(f"ds_write_b128 v{OW}, {vr(O + 16*u2 + 4*cb, 4)} offset:{u2*4096 + cb*1024}")
        barA_C = list(self.barA)
        e(f"s_add_u32 s{S_CH}, s{S_CH}, 1")
        e(f"s_cmp_lt_u32 s{S_CH}, 4")
        e("s_cbranch_scc1 L_chunk")
        e(f"s_add_u32 s{S_ITEM}, s{S_ITEM}, 1")
        e(f"s_cmp_lt_u32 s{S_ITEM}, 2")
        e("s_cbranch_scc1 L_item")
        seq = list(barA_pre)
        for it in range(2):
            seq += (["HX"] if it == 0 and self.hA else []) + (["OB"] if it == 1 and 16 in self.ob else []) + barA_K
            for c in range(4):
                x = list(barA_C)
                if c == 0:
                    x.insert(2 if self.fre else 1, "QB2")
                elif 8 + 2*c + 16*it in self.ob:
                    x.insert(0, "OB")
                seq += x
        e("s_waitcnt lgkmcnt(0)")
        self.barA_("OB")
        self.barA = seq + ["OB"]
        if self.prof:
            self.stamp(self.A_ST)
            e(f"s_cmp_eq_u32 s{S_W}, 0")
            e("s_cbranch_scc0 L_end")
            self.prof_store(self.A_ST, 0, 0)
        e("s_endpgm")
        self.rescale_routine()

    def prof_store(self, vreg, role, tmp):
        e = self.e
        e(f"v_mbcnt_lo_u32_b32 v{tmp}, -1, 0")
        e(f"v_mbcnt_hi_u32_b32 v{tmp}, -1, v{tmp}")
        e(f"v_lshlrev_b32 v{tmp}, 2, v{tmp}")
        e(f"s_lshl_b32 s{S_T0}, s{S_WG}, 9")
        e(f"s_add_u32 s{S_T0}, s{S_T0}, {0x3000000 + role*256}")
        e(f"buffer_store_dword v{vreg}, v{tmp}, {sr(S_WS,4)}, s{S_T0} offen")
        e(f"s_add_u32 s{S_T0}, s{S_T0}, 0x200000")
        e(f"buffer_store_dword v{self.st2[vreg]}, v{tmp}, {sr(S_WS,4)}, s{S_T0} offen")
        e("s_waitcnt vmcnt(0)")

    def stouch_wq(self, item, k0, k1, step):
        e = self.e
        if k0 >= k1:
            return
        e(f"s_lshl_b32 s{S_T0}, s{S_W}, 14")
        e(f"s_lshr_b32 s{S_T1}, s{S_B}, 4")
        e(f"s_lshl_b32 s{S_T1}, s{S_T1}, 13")
        e(f"s_add_u32 s{S_T0}, s{S_T0}, s{S_T1}")
        e(f"s_and_b32 s{S_T1}, s{S_B}, 15")
        e(f"s_lshl_b32 s{S_T1}, s{S_T1}, 6")
        e(f"s_add_u32 s{S_T0}, s{S_T0}, s{S_T1}")
        cur = 0
        for k in range(k0, k1, step):
            if k // 8 != cur:
                e(f"s_add_u32 s{S_T0}, s{S_T0}, {(k // 8 - cur)*8*65536}")
                cur = k // 8
            e(f"s_buffer_load_dword s{S_JUNK + k % 4}, {sr(S_WQ,4)}, s{S_T0} offset:{(k % 8)*65536 + item*1024}")

    def stouch_wo(self, item, k0, k1):
        e = self.e
        e(f"s_lshl_b32 s{S_T0}, s{S_W}, 11")
        e(f"s_lshl_b32 s{S_T1}, s{S_B}, 6")
        e(f"s_add_u32 s{S_T0}, s{S_T0}, s{S_T1}")
        for k in range(k0, k1):
            e(f"s_buffer_load_dword s{S_JUNK + k % 4}, {sr(S_WO,4)}, s{S_T0} offset:{k*8192 + item*458752}")

    B_OR = 128
    B_TMP = 132
    B_BF = 32
    B_WT = 160
    B_XR = 164
    B_XR0 = 165
    B_VWQ = 166
    B_VWO = 167
    B_VV = 168
    B_VK = 169
    B_VX = 170
    B_QW = 171
    B_LANE = 172
    B_TA, B_TD = 166, 167
    B_FIN, B_FOUT, B_FAI, B_FAO = 148, 149, 150, 151
    B_VWQ4 = 152
    B_VWO4 = 156
    B_ST = 175

    def setupB(self):
        e = self.e
        e(f"s_mul_i32 s{S_XLDS}, s{S_W}, {2*1088}")
        e(f"s_mul_i32 s{S_XG}, s{S_W}, {16*896}")
        g = self.dma_voffs(self.B_VX, self.B_VK, self.B_VV, self.B_VWO4, self.B_VWQ4, self.B_TMP)
        next(g)
        if not self.flate:
            self.flag_loads()
        for xp in range(2 if self.early else 7):
            for op in self.X_ops(xp, self.xloc(0, xp), "X0", self.xnt):
                op()
        e(f"s_lshl_b32 s{S_WLDS}, s{S_W}, 14")
        e(f"s_add_u32 s{S_WLDS}, s{S_WLDS}, {W_BASE}")
        e(f"s_lshl_b32 s{S_WCOL}, s{S_W}, 8")
        e(f"s_mul_i32 s{S_KLDS}, s{S_W}, {8*1056}")
        e(f"s_lshl_b32 s{S_KG}, s{S_W}, {self.ksh + 4}")
        r1, r2 = 44, 45
        if self.rot:
            e(f"s_and_b32 s{r1}, s{S_B}, 3")
            e(f"s_bfe_u32 s{r2}, s{S_B}, 0x20002")
        else:
            e(f"s_mov_b32 s{r1}, 0")
            e(f"s_mov_b32 s{r2}, 0")
        K = self.kst
        e(f"s_add_u32 s{S_VG}, s{S_W}, s{r1}")
        e(f"s_and_b32 s{S_VG}, s{S_VG}, {K - 1}")
        e(f"s_lshl_b32 s{S_VG}, s{S_VG}, 9")
        e(f"s_lshr_b32 s{S_T0}, s{S_W}, {self.ksh - 9}")
        e(f"s_lshl_b32 s{S_T0}, s{S_T0}, {self.ksh + 6}")
        e(f"s_add_u32 s{S_VG}, s{S_VG}, s{S_T0}")
        for r in range(4):
            e(f"s_add_u32 s{S_T0}, s{r1}, {r}")
            e(f"s_and_b32 s{S_T0}, s{S_T0}, {K - 1}")
            e(f"s_lshl_b32 s{S_T0}, s{S_T0}, 9")
            e(f"s_add_u32 s{S_KR+r}, s{S_KG}, s{S_T0}")
            e(f"s_add_u32 s{S_T0}, s{r2}, {r}")
            e(f"s_and_b32 s{S_T0}, s{S_T0}, 3")
            e(f"s_lshl_b32 s{S_T1}, s{S_T0}, 7")
            e(f"s_add_u32 s{S_VC+r}, s{S_VG}, s{S_T1}")
            e(f"s_mul_i32 s{S_T1}, s{S_T0}, {64*896}")
            e(f"s_add_u32 s{S_WR+r}, s{S_WCOL}, s{S_T1}")
        e(f"s_lshl_b32 s{S_VLB}, s{S_W}, 13")
        next(g)
        for pc in range(1, 4):
            e(f"v_add_u32 v{self.B_VWQ4+pc}, {(16*(pc & 1) + 4*(pc >> 1))*8192 - 1024*pc}, v{self.B_VWQ4}")

    def flag_loads(self):
        e = self.e
        e(f"v_and_b32 v{self.B_FAO}, 3, v0")
        e(f"v_lshlrev_b32 v{self.B_FAI}, 2, v{self.B_FAO}")
        e(f"s_lshl_b32 s{S_T0}, s{S_WG}, 7")
        e(f"s_add_u32 s{S_T0}, s{S_T0}, {FLAG_BASE}")
        e(f"v_add_u32 v{self.B_FAI}, s{S_T0}, v{self.B_FAI}")
        e(f"s_mul_i32 s{S_T1}, s{S_P}, 124")
        e(f"s_sub_u32 s{S_T0}, s{S_T0}, s{S_T1}")
        e(f"v_lshl_add_u32 v{self.B_FAO}, v{self.B_FAO}, 7, s{S_T0}")
        e(f"buffer_load_dword v{self.B_FIN}, v{self.B_FAI}, {sr(S_WS,4)}, 0 offen sc1")
        e(f"buffer_load_dword v{self.B_FOUT}, v{self.B_FAO}, {sr(S_WS,4)}, 0 offen sc1")
        self.vmq += ["F", "F"]

    def setupB2(self):
        e = self.e
        a, b, c = self.B_TMP, self.B_TMP + 1, self.B_TMP + 2
        self.tr_addr(self.B_WT, base_sreg=S_WLDS, t0=a, t1=b, t2=c)
        e(f"v_bfe_u32 v{a}, v0, 3, 1")
        e(f"v_mul_u32_u24 v{self.B_XR0}, 1088, v{a}")
        e(f"v_and_b32 v{a}, 7, v0")
        e(f"v_lshl_add_u32 v{self.B_XR0}, v{a}, 7, v{self.B_XR0}")
        e(f"v_lshrrev_b32 v{a}, 1, v{a}")
        e(f"v_lshrrev_b32 v{b}, 4, v0")
        e(f"v_xor_b32 v{a}, v{a}, v{b}")
        e(f"v_lshl_add_u32 v{self.B_XR0}, v{a}, 4, v{self.B_XR0}")
        e(f"v_add_u32 v{self.B_XR}, {XO_BASE}, v{self.B_XR0}")
        e(f"v_add_u32 v{self.B_XR0}, {KV_SLOT}, v{self.B_XR0}")
        for rb in range(4):
            e(f"s_add_u32 s{S_T0}, s{S_P}, {rb}")
            e(f"s_and_b32 s{S_T0}, s{S_T0}, 3")
            e(f"s_lshl_b32 s{S_T0}, s{S_T0}, 10")
            e(f"s_add_u32 s{S_T0}, s{S_T0}, {XO_BASE}")
            e(f"v_lshl_add_u32 v{self.B_OR+rb}, v0, 4, s{S_T0}")
        e(f"v_lshrrev_b32 v{a}, 5, v0")
        e(f"v_lshlrev_b32 v{a}, 8, v{a}")
        e(f"v_and_b32 v{b}, 15, v0")
        e(f"v_lshl_add_u32 v{a}, v{b}, 4, v{a}")
        e(f"v_bfe_u32 v{b}, v0, 4, 1")
        e(f"v_lshl_add_u32 v{a}, v{b}, 3, v{a}")
        e(f"v_add_u32 v{self.B_QW}, s{S_WLDS}, v{a}")
        e(f"v_mov_b32 v{self.B_LANE}, v0")
        e(f"v_min_u32 v{self.B_TA}, 27, v0")
        e(f"s_mul_i32 s{S_T0}, s{S_W}, 28")
        e(f"v_add_u32 v{self.B_TA}, s{S_T0}, v{self.B_TA}")
        e(f"v_lshlrev_b32 v{self.B_TA}, 12, v{self.B_TA}")
        e(f"s_lshl_b32 s{S_T0}, s{S_B}, 7")
        e(f"v_add_u32 v{self.B_TA}, s{S_T0}, v{self.B_TA}")
        for pc in range(1, 4):
            e(f"v_add_u32 v{self.B_VWO4+pc}, {(16*(pc >> 1) + 8*(pc & 1))*896 - 1024*pc}, v{self.B_VWO4}")

    def xloc(self, item, xp):
        if xp == 0 or (item == 1 and xp % 3 == 0):
            return KV_SLOT + 4 * X_SLOT
        if item == 1:
            return XO_BASE + (xp % 3 - 1) * X_SLOT
        if xp < 5:
            return KV_SLOT + (xp - 1) * X_SLOT
        return XO_BASE + (xp - 5) * X_SLOT

    def dma(self, lds_s, lds_imm, g_s, g_imm, vaddr, srd, tag, nt=False):
        def emit():
            e = self.e
            e(f"s_add_u32 m0, s{lds_s}, {lds_imm}")
            e(f"s_add_u32 s{S_T0}, s{g_s}, {g_imm}")
            e(f"buffer_load_dwordx4 v{vaddr}, {sr(srd,4)}, s{S_T0} offen{' nt' if nt else ''} lds")
            self.vmq.append(tag)
        return emit

    def H_ops(self, n):
        item, ph = n >> 4, n & 15
        slot = n & 1
        ops = []
        if self.noH:
            return ops
        for k in range(8):
            if ph < 8:
                ops.append(self.dma(S_KLDS, slot*KV_SLOT + k*1056, S_KR + (ph & 3), item*262144 + (ph // self.kst)*32768*self.kst + k*1024*self.kst,
                                    self.B_VK, S_K, f"H{n}", nt=True))
            else:
                c, half = (ph - 8) >> 1, ph & 1
                ops.append(self.dma(S_VLB, slot*KV_SLOT + k*1024, S_VC + c, item*262144 + half*131072 + k*4096*self.kst,
                                    self.B_VV, S_V, f"H{n}", nt=True))
        return ops

    def X_ops(self, xp, loc, tag, nt=False):
        return [self.dma(S_XLDS, loc + k*1088, S_XG, k*7168 + xp*128, self.B_VX, S_X, tag, nt=nt) for k in range(2)]

    def W_ops(self, wd, hs):
        ks, cbk = hs >> 1, hs & 1
        ops = []
        if self.noW and wd[:2] != ('Q', 0):
            return ops
        if wd[0] == 'Q':
            _, item, xp = wd
            g = 32*(2*xp + ks)*8192 + item*1024 + cbk*128
            vb, srd, gs = self.B_VWQ4, S_WQ, S_WCOL
        else:
            _, item, c, j = wd
            g = (item*512 + 256*j + 32*ks)*896 + cbk*128
            vb, srd, gs = self.B_VWO4, S_WO, S_WR + c
        for pc in range(4):
            def emit(pc=pc):
                e = self.e
                if pc == 0:
                    e(f"s_add_u32 m0, s{S_WLDS}, {hs*4096}")
                    e(f"s_add_u32 s{S_T0}, s{gs}, {g}")
                e(f"buffer_load_dwordx4 v{vb+pc}, {sr(srd,4)}, s{S_T0} offen offset:{pc*1024}{' nt' if self.wq0nt and wd[:2] == ('Q', 0) else ''} lds")
                self.vmq.append((wd, hs))
            ops.append(emit)
        return ops

    def wo_touch(self, nt):
        ops = []
        for item in self.hto:
            def tch(item=item):
                self.e(f"s_mov_b32 s{S_T0}, {item*458752}")
                self.e(f"buffer_load_dword v{self.B_TD}, v{self.B_TA}, {sr(S_WO,4)}, s{S_T0} offen{' nt' if nt else ''}")
                self.vmq.append("T")
            ops.append(tch)
        return ops

    def vmwait(self, need, extra=""):
        idx = -1
        for i, t in enumerate(self.vmq):
            if t in need:
                idx = i
        if idx < 0:
            if extra:
                self.e(f"s_waitcnt {extra}")
            return
        n = len(self.vmq) - 1 - idx
        assert n <= 63, n
        self.e(f"s_waitcnt vmcnt({n}) {extra}".rstrip())
        self.vmq = self.vmq[idx+1:]

    def barB_(self, name):
        sel = 10 <= self.curn <= 16 or 26 <= self.curn <= 32
        if sel:
            self.stamp(self.B_ST, f"@a{name}{self.curn}")
        self.e("s_barrier")
        if sel:
            self.stamp(self.B_ST, f"@{name}{self.curn}")
        self.barB[self.path].append(name)
        if self.prof != 2 or self.curn in self.fine or self.curn - 1 in self.fine:
            self.stamp(self.B_ST, name + str(self.curn))

    def hs_list(self, wd):
        if wd[0] == 'O' and self.path == 'w3':
            return [0, 2]
        return [0, 1, 2, 3]

    @staticmethod
    def kid(st):
        wd, hs = st
        return (wd[0], wd[1], 2*wd[2] + (hs >> 1)) if wd[0] == 'Q' else ('O', wd[1], 4*wd[2] + 2*wd[3] + (hs >> 1))

    def make_sched(self):
        P = {n: [] for n in range(34)}
        def fill(seq, base, cnt):
            k = 0
            for i, c in enumerate(cnt):
                P[base + i] += seq[k:k + c]
                k += c
            return seq[k:]
        assert not fill([(('Q', 1, xp), hs) for xp in range(7) for hs in range(4)], 0, self.qcnt)
        oseq = lambda it: [(('O', it, k >> 2, (k >> 1) & 1), 2*(k & 1) + cbk) for k in range(16) for cbk in range(2)]
        assert not fill(oseq(0), 10, self.o1cnt)
        P[32] = fill(oseq(1), 26, self.o2cnt)
        self.P = P
        self.ob = {}
        for it, base in ((0, 10), (1, 26)):
            for c in range(4):
                wp = base + 2*c
                use = [i for i, (wd, hs) in enumerate(P[wp]) if wd[:3] == ('O', it, c)]
                for n in range(wp):
                    assert not any(wd[:3] == ('O', it, c) for wd, hs in P[n])
                if use:
                    self.ob[wp] = 'early' if use[0] == 0 else 'late'
        self.xfirst, xlast = {}, {}
        for n in range(9):
            for wd, hs in P[n]:
                self.xfirst.setdefault(wd[2], n)
                xlast[wd[2]] = n
        del self.xfirst[0]
        for xp, n in self.xfirst.items():
            assert n >= 1 and (xp < 3 or xlast[xp - 3] < n - 1), (xp, n)

    def bfi(self, k):
        return k[2] % (4 if k[:2] == ('O', 0) else 3)

    def bfreg(self, k, cb4):
        b = self.bfi(k)
        return vr(self.B_TMP + 4*cb4, 4) if b == 3 else ar(self.B_BF + 16*b + 4*cb4, 4)

    def sched(self, n):
        return [st for st in self.P[n] if not (self.path == 'w3' and st[0][0] == 'O' and st[1] & 1)]

    def bf_reads(self, st):
        wd, hs = st
        k = self.kid(st)
        if k in self.bfl:
            return []
        self.bfl.add(k)
        ks = hs >> 1
        e = self.e
        ops = []
        for cb4 in range(4):
            d = self.bfreg(k, cb4)
            if wd[0] == 'Q':
                loc = self.xloc(wd[1], wd[2])
                reg = self.B_XR if loc >= XO_BASE else self.B_XR0
                off = (loc - XO_BASE if loc >= XO_BASE else loc - KV_SLOT) + cb4*2176 + ks*64
            else:
                reg = self.B_OR + cb4
                off = (2*wd[3] + ks)*4096
            ops.append(lambda d=d, off=off, reg=reg: e(f"ds_read_b128 {d}, v{reg} offset:{off}"))
        return ops

    def w_reads(self, hs, i):
        e = self.e
        ops = []
        for u in range(4):
            for t in range(2):
                d = ar(16*(i & 1) + 4*u + 2*t, 2)
                off = hs*4096 + t*2048
                ops.append(lambda d=d, off=off, u=u: e(f"ds_read_b64_tr_b16 {d}, v{self.B_WT+u} offset:{off}"))
        return ops

    def needs_ob(self, st):
        wd, hs = st
        return wd[0] == 'O' and wd[3] == 0 and hs == 0 and self.curn == (10, 26)[wd[1]] + 2*wd[2]

    def run_steps(self, steps, per_step, preload=(), upfront=()):
        e = self.e
        if self.boost:
            e(f"s_setprio {self.boost}")
        hf = self.hfirst if self.curn not in self.nohf else 0
        for op in upfront[:hf]:
            op()
        upfront = upfront[hf:]
        if self.wpre != steps[0]:
            self.vmwait([steps[0]])
            for op in self.w_reads(steps[0][1], 0):
                op()
        if self.needs_ob(steps[0]):
            for op in upfront:
                op()
            upfront = ()
            self.barB_("OB")
        for op in self.bf_reads(steps[0]):
            op()
        for op in upfront:
            op()
        if self.boost:
            e(f"s_setprio {self.prioB}")
        late = []
        for i, (wd, hs) in enumerate(steps):
            ks, cbk = hs >> 1, hs & 1
            kk = self.kid(steps[i])
            kb = self.bfi(kk)
            others = []
            nx = steps[i+1] if i + 1 < len(steps) else None
            if nx:
                self.vmwait([nx], "lgkmcnt(0)")
                if not self.needs_ob(nx):
                    others += self.bf_reads(nx)
                others += self.w_reads(nx[1], i + 1)
            else:
                e("s_waitcnt lgkmcnt(0)")
                for st in preload:
                    if self.bfi(self.kid(st)) != kb:
                        others += self.bf_reads(st)
                    else:
                        late += self.bf_reads(st)
            others += per_step(i)
            zero = ks == 0 and ((wd[0] == 'Q' and wd[2] == 0) or wd == ('O', 0, 0, 0))
            k = 0
            for u, cb4 in (S22 if self.s22 else [(u, c) for u in range(4) for c in range(4)]):
                d = vr(64*cbk + 16*u + 4*cb4, 4)
                if not (self.noBm and wd[:2] != ('Q', 0)):
                    e(f"v_mfma_f32_16x16x32_bf16 {d}, {ar(16*(i&1)+4*u,4)}, {self.bfreg(kk, cb4)}, {0 if zero else d}")
                if k < len(others):
                    others[k](); k += 1
            while k < len(others):
                others[k](); k += 1
            if nx and self.needs_ob(nx):
                if self.boost:
                    e(f"s_setprio {self.boost}")
                self.barB_("OB")
                for op in self.bf_reads(nx):
                    op()
                if self.boost:
                    e(f"s_setprio {self.prioB}")
        for op in late:
            op()

    def q_ops(self, cbk):
        e = self.e
        t = self.B_TMP
        ops = []
        for u in range(4):
            for cb4 in range(4):
                def op(u=u, cb4=cb4):
                    a = 64*cbk + 16*u + 4*cb4
                    d = t + 2*((4*u + cb4) % 8)
                    e(f"v_cvt_pk_bf16_f32 v{d}, v{a}, v{a+1}")
                    e(f"v_cvt_pk_bf16_f32 v{d+1}, v{a+2}, v{a+3}")
                    off = (cb4*4 + 2*cbk + (u >> 1))*1024 + (u & 1)*512
                    e(f"ds_write_b64 v{self.B_QW}, {vr(d,2)} offset:{off}")
                ops.append(op)
        return ops

    def q_write(self, cbks=(0, 1)):
        e = self.e
        e("s_nop 7" if cbks == (0, 1) else "s_nop 3")
        for cbk in cbks:
            for op in self.q_ops(cbk):
                op()
        e("s_waitcnt lgkmcnt(0)")

    def periodB(self, n):
        e = self.e
        self.curn = n
        steps = self.sched(n)
        nxt = self.sched(n + 1) if n < 32 else []
        self.vmwait([f"H{n}"] + [f"X1_{xp}" for xp, m in self.xfirst.items() if m == n])
        self.barB_("KV0" if n == 0 else "KV")
        hx = []
        if n + 1 <= 31 and not (n == 0 and self.h1h):
            hx += self.H_ops(n + 1)[self.hdone.get(n + 1, 0):]
        for xp, m in self.xfirst.items():
            if m == n + 1:
                hx += self.X_ops(xp, self.xloc(1, xp), f"X1_{xp}", self.x2nt)
        if n == 0:
            for st in steps:
                for op in self.W_ops(*st):
                    op()
        if not steps:
            for op in hx:
                op()
        if n == 8 and not steps:
            self.q_write()
        if n in (9, 25):
            self.barB_("QB2")
        todo = list(nxt[:len({hs for _, hs in nxt})])
        pre = []
        for it, base in ((0, 10), (1, 26)):
            for c in range(4):
                if n + 1 == (base + 2*c + 2 if c < 3 else (26 if it == 0 else -1)):
                    rest = [st for m in range(n + 1, 33) for st in self.sched(m) if st[0][:3] == ('O', it, c) and not st[1] & 1]
                    pre += rest
        if steps:
            def per(i):
                if n == 32:
                    rest = [st for st in steps[i+1:] if st[1] == steps[i][1]]
                    if self.tailov and self.path == 'main' and i == len(steps) - 2:
                        return [self.pub_setup]
                    if self.tailov and self.path == 'main' and i == len(steps) - 1:
                        return [lambda: None]*3 + self.pub_ops(0)
                    return self.W_ops(*rest[0]) if rest else []
                free = {hs for _, hs in steps[:i+1-self.lag]} | ({0, 1, 2, 3} - {hs for _, hs in steps})
                r = []
                if inter and i < 2:
                    nh = (len(hx) + 1)//2 if (i == 0 and len(steps) > 2) else len(hx)
                    r += hx[:nh]
                    del hx[:nh]
                while todo and todo[0][1] in free and i >= self.rin:
                    r += self.W_ops(*todo.pop(0))
                if n == 8 and i == len(steps) - 1:
                    r += self.q_ops(0)
                return r
            a_epi = n in (10, 12, 14, 16, 26, 28, 30)
            inter = self.hint and a_epi and not self.needs_ob(steps[0])
            last_k = self.kid(steps[-1])
            newk = [self.kid(st) for st in pre if self.kid(st) not in self.bfl and self.kid(st) not in map(self.kid, steps)]
            live = {self.kid(st) for m in range(n + 1, 33) for st in self.sched(m) if self.kid(st) in self.bfl or self.kid(st) in map(self.kid, steps)}
            bufs = [self.bfi(k) for k in newk] + [self.bfi(k) for k in live]
            assert len(bufs) == len(set(bufs)), (n, newk, live)
            self.run_steps(steps, per, pre, [] if inter else hx)
            if n == 8:
                self.q_write((1,))
        else:
            assert all(self.kid(st) in self.bfl for st in pre)
        for st in todo:
            for op in self.W_ops(*st):
                op()
        if pre:
            e("s_waitcnt lgkmcnt(0)")
        if self.fre and n < 32:
            e("s_barrier")
            self.barB[self.path].append("FR")
            if n + 2 <= 31:
                k = "H%d" % (n + 1)
                after = len(self.vmq) - 1 - max([i for i, t in enumerate(self.vmq) if t == k], default=-1)
                if self.path == 'main':
                    self.hdone[n + 2] = max(0, min(8, (self.cap - 4*after)//4))
                for op in self.H_ops(n + 2)[:self.hdone[n + 2]]:
                    op()
        if self.pre_rd and nxt and n + 1 in (12, 14, 16, 28, 30, 32) and self.kid(nxt[0]) in self.bfl:
            self.vmwait([f"H{n+1}", nxt[0]])
            for op in self.w_reads(nxt[0][1], 0):
                op()
            self.wpre = nxt[0]

    def epilogue_v1(self):
        e = self.e
        t = self.B_TMP
        e("s_nop 7")
        e(f"v_lshlrev_b32 v{t}, 4, v{self.B_LANE}")
        e(f"s_lshl_b32 s{S_T1}, s{S_WG}, 17")
        e(f"s_lshl_b32 s{S_T0}, s{S_W}, 15")
        e(f"s_add_u32 s{S_T1}, s{S_T1}, s{S_T0}")
        for cbk in range(1 if self.path == 'w3' else 2):
            for u in range(4):
                e(f"s_add_u32 s{S_T0}, s{S_T1}, {(cbk*4+u)*4096}")
                for cb4 in range(4):
                    e(f"buffer_store_dwordx4 {vr(64*cbk+16*u+4*cb4,4)}, v{t}, {sr(S_WS,4)}, s{S_T0} offen offset:{cb4*1024}")

    def pub_setup(self):
        e = self.e
        slot = 32768 if self.f32 else 16384
        e(f"v_lshlrev_b32 v{self.B_TMP}, 4, v{self.B_LANE}")
        e(f"s_and_b32 s{S_T1}, s{S_WG}, 0xfc")
        e(f"s_mul_i32 s{S_T1}, s{S_T1}, {4*slot}")
        e(f"s_mul_i32 s{S_T0}, s{S_W}, {slot // 4}")
        e(f"s_add_u32 s{S_T1}, s{S_T1}, s{S_T0}")
        e(f"s_mul_i32 s2, s{S_P}, {slot}")
        e(f"s_add_u32 s2, s2, s{S_T1}")
        for rb in (1, 2, 3):
            e(f"s_add_u32 s{S_T0}, s{S_P}, {rb}")
            e(f"s_and_b32 s{S_T0}, s{S_T0}, 3")
            e(f"s_mul_i32 s{S_T0}, s{S_T0}, {4*slot}")
            e(f"s_add_u32 s{S_KR+rb}, s{S_T0}, s2")

    def pub_ops(self, cbk):
        e = self.e
        L16, D, fl = self.B_TMP, self.B_TMP + 4, self.pfl
        ops = []
        if self.f32:
            for u in range(4):
                for rb in (1, 2, 3):
                    def op(u=u, rb=rb):
                        e(f"s_add_u32 s{S_T0}, s{S_KR+rb}, {cbk*4096}")
                        e(f"buffer_store_dwordx4 {vr(64*cbk+16*u+4*rb,4)}, v{L16}, {sr(S_WS,4)}, s{S_T0} offen offset:{u*1024} {fl}")
                    ops.append(op)
            return ops
        n = 0
        for u2 in range(2):
            for rb in (1, 2, 3):
                d = D + 4*(n % 3); n += 1
                a0 = 64*cbk + 32*u2 + 4*rb
                ops.append(lambda d=d, a0=a0: (e(f"v_cvt_pk_bf16_f32 v{d}, v{a0}, v{a0+1}"), e(f"v_cvt_pk_bf16_f32 v{d+1}, v{a0+2}, v{a0+3}")))
                ops.append(lambda d=d, a0=a0, rb=rb, u2=u2: (e(f"v_cvt_pk_bf16_f32 v{d+2}, v{a0+16}, v{a0+17}"), e(f"v_cvt_pk_bf16_f32 v{d+3}, v{a0+18}, v{a0+19}"),
                           e(f"buffer_store_dwordx4 {vr(d,4)}, v{L16}, {sr(S_WS,4)}, s{S_KR+rb} offen offset:{(2*cbk+u2)*1024} {fl}")))
        return ops

    def epilogue_fused(self):
        e = self.e
        t = self.B_TMP
        L16, OA = t, t + 1
        D = t + 4
        ncbk = 1 if self.path == 'w3' else 2
        slot = 32768 if self.f32 else 16384
        self.stamp(self.B_ST)
        ov = self.tailov and ncbk == 2
        if not ov:
            self.pub_setup()
        e("s_nop 7")
        for cbk in range(1 if ov else 0, ncbk):
            for op in self.pub_ops(cbk):
                op()
        e(f"v_and_b32 v{OA}, 15, v{self.B_LANE}")
        e(f"v_mul_u32_u24 v{OA}, 1792, v{OA}")
        e(f"v_lshrrev_b32 v{t+2}, 4, v{self.B_LANE}")
        e(f"v_lshl_add_u32 v{OA}, v{t+2}, 3, v{OA}")
        e("s_waitcnt vmcnt(0)")
        e("s_barrier")
        self.stamp(self.B_ST)
        if self.path == 'main':
            e(f"s_cmp_eq_u32 s{S_W}, 0")
            e("s_cbranch_scc0 L_nopoll")
            e(f"v_add_u32 v{self.B_FOUT}, 1, v{self.B_FOUT}")
            e("s_mov_b64 exec, 15")
            e(f"buffer_store_dword v{self.B_FOUT}, v{self.B_FAO}, {sr(S_WS,4)}, 0 offen sc1")
            e(f"s_mov_b32 s{S_CH}, 0")
            e.lab("L_poll")
            e(f"buffer_load_dword v{t+2}, v{self.B_FAI}, {sr(S_WS,4)}, 0 offen sc1")
            e(f"s_add_u32 s{S_CH}, s{S_CH}, 1")
            e("s_waitcnt vmcnt(0)")
            e(f"v_cmp_eq_u32 vcc, v{t+2}, v{self.B_FIN}")
            e("s_nop 0")
            e("s_cbranch_vccz L_polled")
            e(f"s_cmp_lt_u32 s{S_CH}, 0x20000")
            e("s_cbranch_scc1 L_poll")
            e.lab("L_polled")
            e("s_mov_b64 exec, -1")
            e.lab("L_nopoll")
        e("s_barrier")
        self.stamp(self.B_ST)
        e(f"s_mul_i32 s2, s{S_P}, {4*slot}")
        e(f"s_add_u32 s2, s2, s{S_T1}")
        for rb in (1, 2, 3):
            e(f"s_add_u32 s{S_T0}, s{S_P}, {rb}")
            e(f"s_and_b32 s{S_T0}, s{S_T0}, 3")
            e(f"s_mul_i32 s{S_T0}, s{S_T0}, {slot}")
            e(f"s_add_u32 s{S_T0}, s{S_T0}, s2")
            for cbk in range(ncbk):
                if self.f32:
                    if cbk:
                        e(f"s_add_u32 s{S_T0}, s{S_T0}, 4096")
                    for u in range(4):
                        e(f"buffer_load_dwordx4 {vr(64*cbk+16*u+4*rb,4)}, v{L16}, {sr(S_WS,4)}, s{S_T0} offen offset:{u*1024} {self.lfl}")
                else:
                    for u2 in range(2):
                        e(f"buffer_load_dwordx4 {vr(64*cbk+32*u2+4*rb,4)}, v{L16}, {sr(S_WS,4)}, s{S_T0} offen offset:{(2*cbk+u2)*1024} {self.lfl}")
        e(f"s_mul_i32 s2, s{S_B}, {64*1792}")
        e(f"s_mul_i32 s3, s{S_P}, {16*1792}")
        e(f"s_add_u32 s2, s2, s3")
        e(f"s_mul_i32 s3, s{S_BR}, 896")
        e(f"s_add_u32 s2, s2, s3")
        e(f"s_add_u32 s2, s2, s{S_WCOL}")
        e("s_waitcnt vmcnt(0)")
        for cbk in range(ncbk):
            for u in range(4):
                a = 64*cbk + 16*u
                for rb in (1, 2, 3):
                    if self.f32:
                        for r in range(4):
                            e(f"v_add_f32 v{a+r}, v{a+r}, v{a+4*rb+r}")
                    else:
                        src = 64*cbk + 32*(u >> 1) + 4*rb + 2*(u & 1)
                        for h in range(2):
                            e(f"v_lshlrev_b32 v{D+2*h}, 16, v{src+h}")
                            e(f"v_and_b32 v{D+2*h+1}, 0xffff0000, v{src+h}")
                        e(f"v_pk_add_f32 {vr(a,2)}, {vr(a,2)}, {vr(D,2)}")
                        e(f"v_pk_add_f32 {vr(a+2,2)}, {vr(a+2,2)}, {vr(D+2,2)}")
                e(f"v_cvt_pk_bf16_f32 v{a}, v{a}, v{a+1}")
                e(f"v_cvt_pk_bf16_f32 v{a+1}, v{a+2}, v{a+3}")
                e(f"buffer_store_dwordx2 {vr(a,2)}, v{OA}, {sr(S_OUT,4)}, s2 offen offset:{cbk*128+u*32} {self.ofl}".rstrip())

    def endB(self):
        e = self.e
        if self.fuse:
            self.epilogue_fused()
        else:
            self.epilogue_v1()
        if self.prof:
            e("s_waitcnt vmcnt(0)")
            self.stamp(self.B_ST)
            if self.path == 'main':
                e(f"s_cmp_eq_u32 s{S_W}, 0")
                e("s_cbranch_scc0 L_end")
                self.prof_store(self.B_ST, 1, 0)
        e("s_endpgm")

    def streamB(self):
        e = self.e
        e.lab("L_B")
        self.vmq = []
        self.deferred = []
        self.path = 'main'
        self.barB = {'main': [], 'w3': []}
        self.stamp(self.B_ST)
        self.setupB()
        for hs in range(4):
            for op in self.W_ops(('Q', 0, 0), hs):
                op()
        self.setupB2()
        if self.early:
            for xp in range(2, 7):
                for op in self.X_ops(xp, self.xloc(0, xp), "X0b", self.xnt):
                    op()
        if self.flate:
            self.flag_loads()
        self.stamp(self.B_ST)
        self.vmwait(["X0"])
        self.barB_("HB")
        steps = [(('Q', 0, h), hs) for h in range(7) for hs in range(4)]
        H0 = self.H_ops(0)
        if self.h1h:
            assert self.early and self.hdef is None and not self.hto
            H0 = H0 + self.H_ops(1)
        def per(i):
            if i % 2 == 1 and self.prof != 2:
                self.stamp(self.B_ST, f"h{i}")
            if i == 6 and self.early:
                assert "X0b" not in self.vmq
                return self.W_ops(*steps[i + 4]) + [lambda: self.barB_("HB2")]
            if i == 23 and self.h1h:
                return self.W_ops(*steps[i + 4]) + [lambda: self.barB_("HB3")]
            if i >= 24 and self.h1h:
                return H0[4*(i - 24):4*(i - 24) + 4]
            if i + 4 < 28:
                return self.W_ops(*steps[i + 4])
            if self.hdef is not None:
                tt = self.wo_touch(False)
                return (tt if self.hdef == i else []) + H0[2*(i - 24):2*(i - 24) + 2] + (tt if self.hdef == i + 1 == 28 else [])
            return (self.wo_touch(True) if i == 24 else []) + H0[2*(i - 24):2*(i - 24) + 2]
        def per2(i):
            return per(i) + (self.q_ops(0) if self.qov and i == 27 else [])
        self.run_steps(steps, per2)
        self.q_write((1,) if self.qov else (0, 1))
        for op in (self.wo_touch(False) if self.hdef is None else []):
            op()
        self.barB_("QB1")
        for n in range(9):
            self.periodB(n)
        e(f"s_cmp_eq_u32 s{S_W}, 3")
        e("s_cbranch_scc1 L_B3")
        save = list(self.vmq)
        save_bfl = set(self.bfl)
        assert not self.deferred
        self.barB['w3'] = list(self.barB['main'])
        for n in range(9, 33):
            self.periodB(n)
        self.endB()
        e.lab("L_B3")
        self.path = 'w3'
        self.vmq = save
        self.bfl = save_bfl
        self.wpre = None
        self.deferred = []
        for n in range(9, 33):
            self.periodB(n)
        self.endB()

    def reduce_kernel(self):
        e = self.e
        e(".globl red_kernel")
        e(".p2align 8")
        e(".type red_kernel,@function")
        e.lab("red_kernel")
        e("s_cmp_ge_u32 s2, 1792")
        e("s_cbranch_scc1 L_rend")
        e("s_load_dwordx2 s[4:5], s[0:1], 96")
        e("s_load_dwordx2 s[8:9], s[0:1], 80")
        e("s_mul_hi_u32 s12, s2, 153391690")
        e("s_mul_i32 s13, s12, 28")
        e("s_sub_u32 s13, s2, s13")
        e("s_and_b32 s14, s12, 1")
        e("s_lshr_b32 s15, s12, 1")
        e("s_lshl_b32 s16, s15, 3")
        e("s_lshl_b32 s17, s14, 2")
        e("s_add_u32 s16, s16, s17")
        e("s_lshl_b32 s16, s16, 17")
        e("s_lshl_b32 s17, s13, 12")
        e("s_add_u32 s16, s16, s17")
        e("v_lshlrev_b32 v1, 4, v0")
        e("s_mov_b32 s6, 67108864")
        e("s_mov_b32 s7, 0x20000")
        e("s_mov_b32 s10, 3670016")
        e("s_mov_b32 s11, 0x20000")
        e("s_waitcnt lgkmcnt(0)")
        for p in range(4):
            e(f"buffer_load_dwordx4 {vr(4+4*p,4)}, v1, s[4:7], s16 offen")
            e("s_add_u32 s16, s16, 131072")
        e("v_lshrrev_b32 v2, 6, v0")
        e("v_lshlrev_b32 v2, 4, v2")
        e("v_and_b32 v3, 15, v0")
        e("v_add_u32 v2, v2, v3")
        e("v_mul_u32_u24 v2, 1792, v2")
        e("v_bfe_u32 v3, v0, 4, 2")
        e("v_lshl_add_u32 v2, v3, 3, v2")
        e("s_mul_i32 s15, s15, 114688")
        e("s_mul_i32 s14, s14, 896")
        e("s_add_u32 s15, s15, s14")
        e("s_lshl_b32 s13, s13, 5")
        e("s_add_u32 s15, s15, s13")
        e("s_waitcnt vmcnt(0)")
        for r in range(4):
            e(f"v_add_f32 v{4+r}, v{4+r}, v{8+r}")
            e(f"v_add_f32 v{12+r}, v{12+r}, v{16+r}")
            e(f"v_add_f32 v{4+r}, v{4+r}, v{12+r}")
        e("v_cvt_pk_bf16_f32 v4, v4, v5")
        e("v_cvt_pk_bf16_f32 v5, v6, v7")
        e("buffer_store_dwordx2 v[4:5], v2, s[8:11], s15 offen")
        e.lab("L_rend")
        e("s_endpgm")

    def build(self):
        e = self.e
        out = [HEADER.rstrip()]
        if self.fuse:
            out.append(f"; @launch grid=(256,1,1) block=(512,1,1) lds={LDS_BYTES}")
        else:
            out.append(f"; @launch kernel={NAME}_kernel grid=(256,1,1) block=(512,1,1) lds={LDS_BYTES}")
            out.append(f"; @launch kernel=red_kernel grid=(1792,1,1) block=(256,1,1) lds=0")
        out.append('.amdgcn_target "amdgcn-amd-amdhsa--gfx950"')
        out.append(".text")
        out.append(f".globl {NAME}_kernel")
        out.append(".p2align 8")
        out.append(f".type {NAME}_kernel,@function")
        out.append(f"{NAME}_kernel:")
        self.prologue()
        self.streamB()
        self.path = None
        e.lab("L_A")
        self.streamA()
        e.lab("L_end")
        e("s_endpgm")
        if not self.fuse:
            self.reduce_kernel()
        assert self.barA == self.barB['main'] == self.barB['w3'], (self.barA, self.barB)
        if self.prof:
            out.insert(1, f"; NST {44 if self.prof == 4 else len(self.barA)+2} {len(self.namesB)} " + " ".join(self.namesB))
        out.append(e.text())
        out.append('.section .rodata,"a"')
        def kd(name, v, s, acc):
            return f""".p2align 6
.amdhsa_kernel {name}
  .amdhsa_next_free_vgpr {v}
  .amdhsa_next_free_sgpr {s}
  .amdhsa_accum_offset {acc}
  .amdhsa_group_segment_fixed_size 0
  .amdhsa_kernarg_size 104
  .amdhsa_user_sgpr_count 2
  .amdhsa_user_sgpr_kernarg_segment_ptr 1
  .amdhsa_system_sgpr_workgroup_id_x 1
.end_amdhsa_kernel"""
        out.append(kd(f"{NAME}_kernel", 256, 96, 176))
        if not self.fuse:
            out.append(kd("red_kernel", 24, 32, 24))
        return "\n".join(out) + "\n"


if __name__ == "__main__":
    kw = {}
    path = None
    for a in sys.argv[1:]:
        if "=" in a:
            k, v = a.split("=")
            kw[k] = eval(v)
        else:
            path = a
    txt = Gen(**kw).build()
    open(path or f"cdna_kernels/{NAME}.s", "w").write(txt)
    print("lines", txt.count("\n"), "bytes", len(txt))
```

```python
import sys, math

NAME = "concat_heads__gqa_block_cached__gqa_block_cached__near_ridge"
HEADER = open("cdna_kernels/%s.s.ref" % NAME).read().split("; Override launch")[0]

KV_SLOT = 33792
W_BASE = KV_SLOT + 5 * 8704
XO_BASE = W_BASE + 65536
X_SLOT = 8704
FLAG_BASE = 0x2800000
LDS_BYTES = XO_BASE + 2 * X_SLOT

S_X, S_K, S_V, S_WQ, S_WO, S_OUT, S_WS = 4, 8, 12, 16, 20, 24, 28
S_W = 60
S_B = 61
S_P = 62
S_BR = 63
S_T0, S_T1 = 64, 65
S_WLDS = 66
S_WCOL = 67
S_KLDS = 68
S_KG = 69
S_VG = 70
S_KR, S_VC, S_WR = 32, 36, 40
S_VLB = 77
S_XLDS = 71
S_XG = 72
S_HK, S_HV, S_KL, S_VL, S_HVC = 66, 67, 68, 69, 70
S_HS = 32
S_HM, S_HGS = 36, 37
S_C = 73
S_THR = 74
S_ITEM = 75
S_CH = 76
S_RET = 78
S_STAMP = 80
S_SIDX = 82
S_WG = 83
S_DBG = 88
S_JUNK = 92


S22 = [(0,0),(0,1),(1,1),(1,0),(2,0),(2,1),(3,1),(3,0),(3,2),(3,3),(2,3),(2,2),(1,2),(1,3),(0,3),(0,2)]


class Em:
    def __init__(self):
        self.l = []
    def __call__(self, s):
        self.l.append(s)
    def lab(self, s):
        self.l.append(s + ":")
    def text(self):
        return "\n".join(self.l)


def vr(a, n=1):
    return f"v{a}" if n == 1 else f"v[{a}:{a+n-1}]"
def ar(a, n=1):
    return f"a{a}" if n == 1 else f"a[{a}:{a+n-1}]"
def sr(a, n=1):
    return f"s{a}" if n == 1 else f"s[{a}:{a+n-1}]"


class Gen:
    def __init__(self, prof=False, prioA=1, npostQ=10, npostO=12, npre=6, fuse=True, pfl='sc1', f32=False, xnt=False, rin=1, nearlyQ=0, nearlyO=0, shift=1, lag=1, boost=2, hA=False, obf=26, obk=(1, 8), pre1=36, tailov=True, dropr=(0, 99), vt0=1, vto=False, xpromo=False, early=True, pre2=76, bto=False, hto=(), rot=True, xpark=True, nohf=(0,1,2,3,4,17,18,19,20,21,22,23,24), hfirst=4, chA=True, flate=False, tlate=False, epi=True, kst=4, s22=True, fre=False, cap=48, ctouch=True, qcnt=(2,2,2,3,4,4,4,4,3), o1cnt=(2,2,2,2,4,4,0,2,2,2,2,2,2,2,2), o2cnt=(2,2,3,3,4,4), obe=3, h1h=False, pre3=150, nolt=False, hdef=None, spread=True, pre_rd=True, qov=True, x2nt=True, wq0nt=False, tp1=20, lfl='sc1', ofl='', drop=0, hint=True, wo1A=56, dyn=True, prioB=1, noH=False, noW=False, noSM=False, noBm=False, noAm=False, tnt=False):
        self.e = Em()
        self.prof = prof
        self.prioA = prioA
        self.npostQ, self.npostO, self.npre, self.pfl, self.f32 = npostQ, npostO, npre, pfl, f32
        self.fuse = fuse
        self.xpark = xpark
        self.nohf = nohf
        self.hfirst = hfirst
        self.chA = chA
        assert chA
        self.kst = kst
        self.ksh = {1: 9, 2: 10, 4: 11}[kst]
        self.flate, self.tlate, self.epi = flate, tlate, epi
        self.s22 = s22
        self.fre, self.cap = fre, cap
        self.hdone = {}
        self.ctouch = ctouch
        self.qcnt, self.o1cnt, self.o2cnt, self.obe = qcnt, o1cnt, o2cnt, obe
        self.make_sched()
        self.h1h, self.pre3 = h1h, pre3
        self.nolt = nolt
        self.hdef, self.spread, self.pre_rd, self.qov = hdef, spread, pre_rd, qov
        if hdef is not None:
            vto, hto = False, (1,)
        self.hto, self.rot = hto, rot
        self.bto, self.x2nt, self.wq0nt, self.tp1 = bto, x2nt, wq0nt, tp1
        self.early, self.pre2 = early, pre2
        self.xpromo = xpromo
        self.vt0, self.vto, self.lfl, self.ofl = vt0, vto, lfl, ofl
        self.drop = drop
        self.dropr = dropr
        self.obk, self.pre1, self.tailov = obk, pre1, tailov
        self.dyn = dyn
        self.prioB = prioB if dyn else 0
        if dyn:
            prioA, boost = 2, (3 if boost else 0)
            self.prioA = 2
        self.wo1A = wo1A
        self.hA, self.obf, self.hint = hA, obf, hint
        self.lag, self.boost = lag, boost
        self.xnt, self.rin, self.nearlyQ, self.nearlyO, self.shift = xnt, rin, nearlyQ, nearlyO, shift
        self.noH, self.noW, self.noSM, self.noBm, self.noAm = noH, noW, noSM, noBm, noAm
        self.tfl = ' nt' if tnt else ''
        self.barA = []
        self.barB = {}
        self.st2 = {175: 174}
        self.namesB = []
        self.curn = -1
        self.wpre = None
        self.bfl = set()
        self.fine = (3, 4, 12, 13, 14, 29)

    def stamp(self, vreg, name="."):
        e = self.e
        if not self.prof:
            return
        if self.prof in (4, 5) and not name.startswith('@'):
            return
        if self.prof == 4 and getattr(self, 'path', None) is not None:
            return
        if self.prof == 5 and getattr(self, 'path', None) is None:
            return
        if self.prof == 6 and (getattr(self, 'path', None) is None or not (name.startswith('KV') or name in ('.', 'HB-1', 'QB1-1'))):
            return
        if self.prof == 7 and (getattr(self, 'path', None) is None or name not in ('.', 'KV00', 'KV8', 'KV16', 'KV24', 'KV32')):
            return
        if self.prof == 8 and (getattr(self, 'path', None) is None or not (name[0] in '.hHQ' or name in ('KV00', 'KV1', 'KV2', 'KV32'))):
            return
        if self.prof == 3 and (getattr(self, 'path', None) is None or not (name in ('.', 'HB-1', 'HB2-1', 'QB1-1', 'KV00', 'KV1', 'KV8', 'KV10', 'KV16', 'KV19', 'KV24', 'KV26', 'KV32', 'OB32'))):
            return
        if getattr(self, 'path', None) == 'main':
            self.namesB.append(name)
        e(f"s_memrealtime {sr(S_STAMP,2)}")
        e(f"s_memtime {sr(S_STAMP+4,2)}")
        e("s_waitcnt lgkmcnt(0)")
        e(f"s_mov_b32 m0, s{S_SIDX}")
        e(f"v_writelane_b32 v{vreg}, s{S_STAMP}, m0")
        e(f"v_writelane_b32 v{self.st2[vreg]}, s{S_STAMP+4}, m0")
        e(f"s_add_u32 s{S_SIDX}, s{S_SIDX}, 1")

    def prologue(self):
        e = self.e
        e("s_cmp_ge_u32 s2, 256")
        e("s_cbranch_scc1 L_end")
        e("s_load_dwordx16 s[32:47], s[0:1], 0")
        e("s_load_dwordx8 s[48:55], s[0:1], 64")
        e("s_load_dwordx2 s[56:57], s[0:1], 96")
        e(f"v_lshrrev_b32 v1, 6, v0")
        e(f"s_mov_b32 s{S_WG}, s2")
        e(f"s_and_b32 s{S_P}, s2, 3")
        e(f"v_readfirstlane_b32 s3, v1")
        e(f"s_lshr_b32 s{S_B}, s2, 3")
        e(f"s_bfe_u32 s{S_BR}, s2, 0x10002")
        e(f"s_mov_b32 s{S_SIDX}, 0")
        e("v_and_b32 v0, 63, v0")
        e(f"s_and_b32 s{S_W}, s3, 3")
        if self.ctouch:
            e(f"s_cmp_eq_u32 s3, 1")
            e("s_cbranch_scc0 L_noct")
            e(f"s_getpc_b64 s[58:59]")
            e.lab("L_pc")
            e(f"s_sub_u32 s58, s58, L_pc-{NAME}_kernel")
            e(f"s_subb_u32 s59, s59, 0")
            e(f"v_lshl_add_u32 v2, v0, 5, s{S_B}")
            e(f"v_lshlrev_b32 v2, 7, v2")
            e(f"v_min_u32 v2, L_end-{NAME}_kernel, v2")
            e(f"v_mov_b32 v3, s59")
            e(f"v_add_co_u32 v2, vcc, s58, v2")
            e("s_nop 1")
            e(f"v_addc_co_u32 v3, vcc, 0, v3, vcc")
            e(f"global_load_dword v4, v[2:3], off")
            e.lab("L_noct")
        e("s_waitcnt lgkmcnt(0)")
        e("s_bitcmp1_b32 s2, 2")
        e(f"s_cselect_b64 {sr(S_X,2)}, s[42:43], s[32:33]")
        e(f"s_cselect_b64 {sr(S_K,2)}, s[44:45], s[34:35]")
        e(f"s_cselect_b64 {sr(S_V,2)}, s[46:47], s[36:37]")
        e(f"s_cselect_b64 {sr(S_WQ,2)}, s[48:49], s[38:39]")
        e(f"s_cselect_b64 {sr(S_WO,2)}, s[50:51], s[40:41]")
        def addbase(srd, sreg):
            e(f"s_add_u32 s{srd}, s{srd}, s{sreg}")
            e(f"s_addc_u32 s{srd+1}, s{srd+1}, 0")
        e(f"s_mul_i32 s{S_T0}, s{S_B}, 57344")
        addbase(S_X, S_T0)
        e(f"s_lshl_b32 s{S_T0}, s{S_B}, 21")
        e(f"s_lshl_b32 s{S_T1}, s{S_P}, 19")
        e(f"s_add_u32 s{S_T0}, s{S_T0}, s{S_T1}")
        addbase(S_K, S_T0)
        addbase(S_V, S_T0)
        e(f"s_lshl_b32 s{S_T0}, s{S_P}, 11")
        addbase(S_WQ, S_T0)
        e(f"s_sub_u32 s{S_WQ+2}, 3670016, s{S_T0}")
        e(f"s_mul_i32 s{S_T0}, s{S_P}, 917504")
        addbase(S_WO, S_T0)
        e(f"s_mov_b32 s{S_X+2}, 57344")
        e(f"s_mov_b32 s{S_K+2}, 524288")
        e(f"s_mov_b32 s{S_V+2}, 524288")
        e(f"s_mov_b32 s{S_WO+2}, 917504")
        e(f"s_mov_b64 {sr(S_OUT,2)}, s[52:53]")
        e(f"s_mov_b32 s{S_OUT+2}, 3670016")
        e(f"s_mov_b64 {sr(S_WS,2)}, s[56:57]")
        e(f"s_mov_b32 s{S_WS+2}, 67108864")
        e(f"s_mov_b64 {sr(S_DBG,2)}, s[54:55]")
        e(f"s_mov_b32 s{S_DBG+2}, 256")
        for s in (S_X, S_K, S_V, S_WQ, S_WO, S_OUT, S_WS, S_DBG):
            e(f"s_mov_b32 s{s+3}, 0x20000")
        e("s_cmp_lt_u32 s3, 4")
        e("s_cbranch_scc1 L_A")

    def tr_addr(self, dst, base_imm=None, base_sreg=None, t0=None, t1=None, t2=None):
        e = self.e
        e(f"v_bfe_u32 v{t0}, v0, 2, 3")
        e(f"v_lshrrev_b32 v{t1}, 5, v0")
        e(f"v_lshlrev_b32 v{t1}, 10, v{t1}")
        e(f"v_lshl_add_u32 v{t1}, v{t0}, 7, v{t1}")
        e(f"v_and_b32 v{t2}, 3, v0")
        e(f"v_lshl_add_u32 v{t1}, v{t2}, 3, v{t1}")
        if base_imm:
            e(f"v_add_u32 v{t1}, {base_imm}, v{t1}")
        if base_sreg is not None:
            e(f"v_add_u32 v{t1}, s{base_sreg}, v{t1}")
        e(f"v_lshrrev_b32 v{t0}, 1, v{t0}")
        for u in range(4):
            e(f"v_xor_b32 v{t2}, {u}, v{t0}")
            e(f"v_lshl_add_u32 v{dst+u}, v{t2}, 5, v{t1}")

    A_P = 0
    A_S = 128
    A_T = 144
    A_KA = 160
    A_VA = 161
    A_OW = 165
    A_VX = 165
    A_VK = 166
    A_VV = 167
    A_NM = 168
    A_L = 174
    A_TS = 170
    A_ST = 175

    def barA_(self, name, times=1):
        if self.prof == 2:
            self.stamp(self.A_ST)
        self.e("s_barrier")
        self.barA.append(name)
        if self.prof != 2:
            self.stamp(self.A_ST)

    def xreg(self, xp):
        tile = 2*self.xfirst[xp] + (sorted(x for x in self.xfirst if self.xfirst[x] == self.xfirst[xp]).index(xp))
        assert tile < 16 and tile <= 2*self.xfirst[xp] + 1
        return self.A_P + 8*tile

    def kbuf(self, f):
        b = f % 8
        return ('a', 64 + 4*b) if b < 4 else ('v', self.A_T + 4*(b - 4))

    def vbuf(self, f, half):
        bp = ((f >> 1) + half) % 3
        return ('a', 64 + 8*bp + 4*(f & 1)) if bp < 2 else ('v', 166 + 4*(f & 1))

    @staticmethod
    def rg(b, off, n):
        return (ar if b[0] == 'a' else vr)(b[1] + off, n)

    def k_read(self, f, slot, tile):
        mt, s = f >> 3, f & 7
        off = slot * KV_SLOT + tile * 16896 + mt * 8448 + s * 64
        self.e(f"ds_read_b128 {self.rg(self.kbuf(f), 0, 4)}, v{self.A_KA} offset:{off}")

    def v_read(self, f, slot, parts=(0, 1)):
        u, T = f >> 3, f & 7
        off = slot * KV_SLOT + T * 4096
        for t in parts:
            self.e(f"ds_read_b64_tr_b16 {self.rg(self.vbuf(f, slot), 2*t, 2)}, v{self.A_VA+u} offset:{off+2048*t}")

    def lane16(self, dst, jsh, qsh, base):
        e = self.e
        e(f"v_mbcnt_lo_u32_b32 v{dst}, -1, 0")
        e(f"v_mbcnt_hi_u32_b32 v{dst}, -1, v{dst}")
        e(f"s_lshr_b32 s{S_T0}, s{S_W}, 1")
        e(f"s_and_b32 s{S_T1}, s{S_W}, 1")
        e(f"s_lshl_b32 s{S_T0}, s{S_T0}, {jsh}")
        e(f"s_lshl_b32 s{S_T1}, s{S_T1}, {qsh}")
        e(f"s_add_u32 s{S_T0}, s{S_T0}, s{S_T1}")
        e(f"s_add_u32 s{S_T0}, s{S_T0}, {base}")
        e(f"v_lshl_add_u32 v{dst}, v{dst}, 4, s{S_T0}")

    def q_read(self):
        e = self.e
        qa = self.A_OW
        e(f"v_add_u32 v{qa}, s{S_HV}, v{qa}")
        for s in range(8):
            for cb in range(2):
                off = (s >> 2) * 16384 + cb * 4096 + (s & 3) * 1024
                e(f"ds_read_b128 {ar(8*s+4*cb,4)}, v{qa} offset:{off}")
        e(f"v_subrev_u32 v{qa}, s{S_HV}, v{qa}")

    def dma_voffs(self, VX, VK, VV, VWO, VWQ, a):
        e = self.e
        b, c, d = a + 1, a + 2, a + 3
        e(f"v_lshrrev_b32 v{a}, 3, v0")
        e(f"v_bfe_u32 v{b}, v0, 4, 2")
        e(f"v_and_b32 v{c}, 7, v0")
        e(f"v_xor_b32 v{VX}, v{c}, v{b}")
        e(f"v_lshlrev_b32 v{VX}, 4, v{VX}")
        e(f"v_mul_u32_u24 v{d}, 896, v{a}")
        e(f"v_add_u32 v{VX}, v{VX}, v{d}")
        yield
        e(f"v_lshlrev_b32 v{b}, 1, v{b}")
        e(f"v_xor_b32 v{c}, v{c}, v{b}")
        e(f"v_lshlrev_b32 v{c}, 4, v{c}")
        if VWO is not None:
            e(f"v_add_u32 v{VWO}, v{c}, v{d}")
        if VV is not None:
            e(f"v_lshl_add_u32 v{VV}, v{a}, {self.ksh}, v{c}")
        e(f"v_lshrrev_b32 v{b}, 5, v0")
        if VWQ is not None:
            e(f"v_and_b32 v{d}, 3, v{a}")
            e(f"v_lshl_add_u32 v{VWQ}, v{d}, 13, v{c}")
            e(f"v_lshl_add_u32 v{VWQ}, v{b}, 16, v{VWQ}")
        e(f"v_and_b32 v{c}, 31, v0")
        e(f"v_xor_b32 v{c}, v{c}, v{b}")
        e(f"v_lshlrev_b32 v{c}, 4, v{c}")
        e(f"v_lshl_add_u32 v{VK}, v{b}, {self.ksh}, v{c}")
        yield

    def A_Hops(self, kind, slot, gs, gimm):
        e = self.e
        ops = []
        if self.noH or not self.hA:
            return [lambda pre: None]*8
        for k in range(8):
            def op(pre, k=k):
                if kind == 'K':
                    if pre:
                        e(f"s_add_u32 m0, s{S_KL}, {slot*KV_SLOT + k*1056}")
                        e(f"s_add_u32 s{S_T0}, s{gs}, {gimm + k*4096}")
                    else:
                        e(f"buffer_load_dwordx4 v{self.A_VK}, {sr(S_K,4)}, s{S_T0} offen nt lds")
                elif kind == 'V':
                    if pre:
                        if k % 4 == 0:
                            e(f"s_add_u32 m0, s{S_VL}, {slot*KV_SLOT + k*1024}")
                        e(f"s_add_u32 s{S_T0}, s{gs}, {gimm + k*16384 - (k % 4)*1024}")
                    else:
                        e(f"buffer_load_dwordx4 v{self.A_VV}, {sr(S_V,4)}, s{S_T0} offen offset:{(k%4)*1024} nt lds")
                else:
                    if pre:
                        if k:
                            e(f"s_add_u32 m0, m0, s{S_HM}")
                            e(f"s_add_u32 s{S_T1}, s{S_T1}, s{S_HGS}")
                    else:
                        e(f"buffer_load_dwordx4 v{self.A_NM}, {sr(S_HS,4)}, s{S_T1} offen nt lds")
            ops.append(op)
        return ops

    def xlane(self, op, x, t):
        e = self.e
        e(f"v_mov_b32 v{t}, v{x}")
        e("s_nop 1")
        e(f"v_permlane32_swap_b32 v{t}, v{x}")
        e("s_nop 1")
        e(f"{op} v{x}, v{x}, v{t}")
        e(f"v_mov_b32 v{t}, v{x}")
        e("s_nop 1")
        e(f"v_permlane16_swap_b32 v{t}, v{x}")
        e("s_nop 1")
        e(f"{op} v{x}, v{x}, v{t}")

    def tile_max(self, cb, dst, t):
        e = self.e
        S = self.A_S
        r = [S + 4*cb + k for k in range(4)] + [S + 8 + 4*cb + k for k in range(4)]
        e(f"v_max3_f32 v{dst}, v{r[0]}, v{r[1]}, v{r[2]}")
        e(f"v_max3_f32 v{dst}, v{dst}, v{r[3]}, v{r[4]}")
        e(f"v_max3_f32 v{dst}, v{dst}, v{r[5]}, v{r[6]}")
        e(f"v_max_f32 v{dst}, v{dst}, v{r[7]}")
        self.xlane("v_max_f32", dst, t)

    def softmax(self, T):
        e = self.e
        S, TT, P = self.A_S, self.A_T, self.A_P
        if T == 0:
            for cb in range(2):
                self.tile_max(cb, TT + cb, TT + 2)
                e(f"v_mul_f32 v{self.A_NM+cb}, s{S_C}, v{TT+cb}")
                e(f"v_sub_f32 v{self.A_NM+cb}, 0, v{self.A_NM+cb}")
                e(f"v_mov_b32 v{self.A_L+cb}, 0")
        e.lab(f"L_sm{T}")
        groups = [(0, 0), (0, 1), (1, 0), (1, 1)]
        def fma(gi):
            mt, cb = groups[gi]
            for r in range(4):
                e(f"v_fma_f32 v{TT+4*gi+r}, v{S+8*mt+4*cb+r}, s{S_C}, v{self.A_NM+cb}")
        def exp(gi):
            for r in range(4):
                e(f"v_exp_f32 v{TT+4*gi+r}, v{TT+4*gi+r}")
        def fin(gi):
            mt, cb = groups[gi]
            t = TT + 4*gi
            ts = self.A_TS + cb
            if mt == 0:
                e(f"v_add_f32 v{ts}, v{t}, v{t+1}")
            else:
                e(f"v_add_f32 v{ts}, v{ts}, v{t}")
                e(f"v_add_f32 v{ts}, v{ts}, v{t+1}")
            e(f"v_cvt_pk_bf16_f32 v{P+8*T+4*cb+2*mt}, v{t}, v{t+1}")
            e(f"v_add_f32 v{ts}, v{ts}, v{t+2}")
            e(f"v_cvt_pk_bf16_f32 v{P+8*T+4*cb+2*mt+1}, v{t+2}, v{t+3}")
            e(f"v_add_f32 v{ts}, v{ts}, v{t+3}")
        fma(0); fma(1); exp(0); fma(2); exp(1); fma(3); fin(0); exp(2); fin(1); exp(3); fin(2); fin(3)
        if T > 0:
            e(f"v_max_f32 v{TT}, v{self.A_TS}, v{self.A_TS+1}")
            e(f"v_cmp_lt_f32 vcc, s{S_THR}, v{TT}")
            e("s_nop 0")
            e(f"s_cbranch_vccz L_ok{T}")
            e(f"s_mov_b32 s{S_T1}, {T}")
            e(f"s_call_b64 {sr(S_RET,2)}, L_rescale")
            e(f"s_branch L_sm{T}")
            e.lab(f"L_ok{T}")
            e(f"s_mov_b32 s{S_THR}, 0x47800000")
        for cb in range(2):
            e(f"v_add_f32 v{self.A_L+cb}, v{self.A_L+cb}, v{self.A_TS+cb}")

    def rescale_routine(self):
        e = self.e
        TT, P = self.A_T, self.A_P
        e.lab("L_rescale")
        for cb in range(2):
            self.tile_max(cb, TT, TT + 2)
            e(f"v_fma_f32 v{TT}, v{TT}, s{S_C}, v{self.A_NM+cb}")
            e(f"v_ceil_f32 v{TT}, v{TT}")
            e(f"v_max_f32 v{TT}, 0, v{TT}")
            e(f"v_sub_f32 v{self.A_NM+cb}, v{self.A_NM+cb}, v{TT}")
            e(f"v_min_f32 v{TT}, 0x43800000, v{TT}")
            e(f"v_cvt_i32_f32 v{TT}, v{TT}")
            e(f"v_sub_u32 v{TT}, 0, v{TT}")
            e(f"v_ldexp_f32 v{self.A_L+cb}, v{self.A_L+cb}, v{TT}")
            for T in range(15):
                if T:
                    e(f"s_cmp_le_u32 s{S_T1}, {T}")
                    e(f"s_cbranch_scc1 L_rsd{cb}")
                for k in range(4):
                    r = P + 8*T + 4*cb + k
                    e(f"v_lshlrev_b32 v{TT+4}, 16, v{r}")
                    e(f"v_and_b32 v{TT+5}, 0xffff0000, v{r}")
                    e(f"v_ldexp_f32 v{TT+4}, v{TT+4}, v{TT}")
                    e(f"v_ldexp_f32 v{TT+5}, v{TT+5}, v{TT}")
                    e(f"v_cvt_pk_bf16_f32 v{r}, v{TT+4}, v{TT+5}")
            e.lab(f"L_rsd{cb}")
        e(f"s_mov_b32 s{S_THR}, 0x7f800000")
        e(f"s_setpc_b64 {sr(S_RET,2)}")

    def streamA(self):
        e = self.e
        KA, VA, OW = self.A_KA, self.A_VA, self.A_OW
        self.stamp(self.A_ST)
        if self.prioA:
            e(f"s_setprio {self.prioA}")
        t = self.A_T
        def vtouch():
            e(f"v_and_b32 v{t+12}, 31, v0")
            e(f"v_min_u32 v{t+12}, 27, v{t+12}")
            e(f"s_mul_i32 s{S_T0}, s{S_W}, 28")
            e(f"v_add_u32 v{t+12}, s{S_T0}, v{t+12}")
            if self.vt0:
                e(f"v_lshlrev_b32 v{t+13}, 15, v{t+12}")
                if self.vt0 == 3:
                    e(f"v_lshrrev_b32 v{t+14}, 5, v0")
                    e(f"v_lshl_add_u32 v{t+13}, v{t+14}, 10, v{t+13}")
                e(f"s_lshr_b32 s{S_T0}, s{S_B}, 3")
                e(f"s_lshl_b32 s{S_T0}, s{S_T0}, 13")
                e(f"s_and_b32 s{S_T1}, s{S_B}, 7")
                e(f"s_lshl_b32 s{S_T1}, s{S_T1}, 7")
                e(f"s_add_u32 s{S_T0}, s{S_T0}, s{S_T1}")
                e(f"buffer_load_dword v{t+14}, v{t+13}, {sr(S_WQ,4)}, s{S_T0} offen{' nt' if self.vt0 == 2 else ''}")
            else:
                self.stouch_wq(0, 0, 56, 1)
        if not self.tlate:
            vtouch()
        a, b, c = t + 4, t + 5, t + 6
        e(f"v_bfe_u32 v{a}, v0, 1, 3")
        e(f"v_mul_u32_u24 v{KA}, 1056, v{a}")
        e(f"v_and_b32 v{a}, 1, v0")
        e(f"v_lshl_add_u32 v{KA}, v{a}, 9, v{KA}")
        e(f"v_lshrrev_b32 v{b}, 4, v0")
        e(f"v_xor_b32 v{b}, v{b}, v{a}")
        e(f"v_lshl_add_u32 v{KA}, v{b}, 4, v{KA}")
        self.tr_addr(VA, t0=a, t1=b, t2=c)
        self.lane16(OW, 13, 11, XO_BASE)
        e(f"s_lshr_b32 s{S_T0}, s{S_W}, 1")
        e(f"s_mul_i32 s{S_T0}, s{S_T0}, {32768 - 8192}")
        e(f"s_and_b32 s{S_T1}, s{S_W}, 1")
        e(f"s_mul_i32 s{S_T1}, s{S_T1}, {8192 - 2048}")
        e(f"s_add_u32 s{S_HV}, s{S_T0}, s{S_T1}")
        e(f"s_sub_u32 s{S_HV}, s{S_HV}, {XO_BASE - W_BASE}")
        e(f"s_mov_b32 s{S_C}, 0x3db8aa3b")
        e(f"s_mov_b32 s{S_THR}, 0x47800000")
        e(f"s_mov_b32 s{S_ITEM}, 0")
        if self.tlate:
            vtouch()
        segs = [('q', 56)] if self.vt0 != 3 else []
        if 0 not in self.hto:
            segs.append(('o0', 56))
        if not self.vto and not self.bto and 1 not in self.hto:
            segs.append(('o1', self.wo1A))
        def touch_range(a, b):
            pos = 0
            for kind, n in segs:
                lo, hi = max(a - pos, 0), min(b - pos, n)
                if lo < hi:
                    if kind == 'q':
                        self.stouch_wq(1, lo, hi, 1)
                    else:
                        self.stouch_wo(int(kind[1]), lo, hi)
                pos += n
        touch_range(0, self.pre1)
        self.barA_("HB")
        if self.early:
            touch_range(self.pre1, self.pre2)
            self.barA_("HB2")
            if self.xpark:
                e(f"s_mul_i32 s{S_T0}, s{S_W}, {2*1088}")
                e(f"v_lshl_add_u32 v{t+8}, v0, 4, s{S_T0}")
                e(f"v_add_u32 v166, {self.xloc(1, 0)}, v{t+8}")
                e(f"v_add_u32 v167, {XO_BASE}, v{t+8}")
                e(f"v_add_u32 v{t+8}, {KV_SLOT}, v{t+8}")
                for xp in range(1, 7):
                    loc = self.xloc(0, xp)
                    reg, off = (167, loc - XO_BASE) if loc >= XO_BASE else (t + 8, loc - KV_SLOT)
                    for k in range(2):
                        e(f"ds_read_b128 {vr(self.xreg(xp) + 4*k, 4)}, v{reg} offset:{off + k*1088}")
            if self.h1h:
                touch_range(self.pre2, self.pre3)
                self.barA_("HB3")
                touch_range(self.pre3, 999)
            else:
                touch_range(self.pre2, 999)
        else:
            touch_range(self.pre1, 999)
        e("s_waitcnt vmcnt(0)")
        if self.xpromo:
            e(f"v_lshlrev_b32 v{t+13}, 7, v0")
            e(f"s_lshl_b32 s{S_T0}, s{S_W}, 13")
            e(f"buffer_load_dword v{t+14}, v{t+13}, {sr(S_X,4)}, s{S_T0} offen")
            e(f"s_add_u32 s{S_T0}, s{S_T0}, 32768")
            e(f"buffer_load_dword v{t+15}, v{t+13}, {sr(S_X,4)}, s{S_T0} offen")
            e("s_waitcnt vmcnt(0)")
        self.barA_("QB1")
        self.q_read()
        e("s_waitcnt lgkmcnt(0)")
        self.barA_("KV0")
        for f in range(4):
            self.k_read(f, 0, 0)
        barA_pre = list(self.barA)
        self.barA = []
        e.lab("L_item")
        if self.dyn:
            e(f"s_setprio {self.prioA}")
        S = self.A_S
        for T in range(16):
            slot, tile = (T >> 1) & 1, T & 1
            ph = T >> 1
            e("s_waitcnt lgkmcnt(2)")
            for p in range(8):
                mt, q = p >> 2, p & 3
                c0 = q & 1
                seq = [(2*p, c0), (2*p + 1, c0), (2*p + 1, 1 - c0), (2*p, 1 - c0)]
                for k, (f, cb) in enumerate(seq):
                    d = vr(S + 8*mt + 4*cb, 4)
                    if not self.noAm:
                        e(f"v_mfma_f32_16x16x32_bf16 {d}, {self.rg(self.kbuf(f), 0, 4)}, {ar(8*(f & 7) + 4*cb, 4)}, {0 if q == 0 and k in (0, 2) else d}")
                    if k < 2:
                        fn = 2*(p + 2) + k
                        if fn < 16:
                            self.k_read(fn, slot, tile)
                        elif tile == 0:
                            self.k_read(fn - 16, slot, 1)
                xw = [xp for xp, m in self.xfirst.items() if m == ph + 1]
                if self.xpark and tile == 0 and p == 0 and xw:
                    e(f"s_cmp_eq_u32 s{S_ITEM}, 0")
                    e(f"s_cbranch_scc0 L_nxw{ph}")
                    for xp in xw:
                        loc = self.xloc(1, xp)
                        reg, off = (167, loc - XO_BASE) if loc >= XO_BASE else (166, 0)
                        for k in range(2):
                            e(f"ds_write_b128 v{reg}, {vr(self.xreg(xp) + 4*k, 4)} offset:{off + k*1088}")
                    e.lab(f"L_nxw{ph}")
                if 16 in self.ob and (T, p) == ((0, 2) if self.ob[16] == 'early' else (1, 4)):
                    e(f"s_cmp_eq_u32 s{S_ITEM}, 0")
                    e("s_cbranch_scc1 L_nobk")
                    e("s_barrier")
                    e.lab("L_nobk")
                if tile == 1 and p == 6:
                    e("s_waitcnt lgkmcnt(0)")
                    if self.fre:
                        e("s_barrier")
                        self.barA.append("FR")
                    self.barA_("KV")
                    for g in range(4):
                        if T < 15:
                            self.k_read(g, slot ^ 1, 0)
                        else:
                            self.v_read(g, 0)
                elif p < 7:
                    e("s_waitcnt lgkmcnt(2)")
            if self.dyn:
                e("s_setprio 0")
            e("s_nop 1" if T else "s_nop 7")
            if not self.noSM:
                self.softmax(T)
            if self.dyn and T < 15:
                e(f"s_setprio {self.prioA}")
        TT = self.A_T
        for cb in range(2):
            self.xlane("v_add_f32", self.A_L + cb, TT)
            e(f"v_rcp_f32 v{self.A_L+cb}, v{self.A_L+cb}")
        barA_K = list(self.barA)
        self.barA = []
        e(f"s_mov_b32 s{S_CH}, 0")
        e.lab("L_chunk")
        if self.dyn:
            e(f"s_setprio {self.prioA}")
        O = self.A_S
        def epi_ops(u2):
            ops = []
            for cb in range(2):
                d = O + 16*u2 + 4*cb
                for x in list(range(d, d + 4)) + list(range(d + 8, d + 12)):
                    ops.append(lambda x=x, cb=cb: e(f"v_mul_f32 v{x}, v{x}, v{self.A_L+cb}"))
                for k, x in enumerate((d, d + 2, d + 8, d + 10)):
                    ops.append(lambda k=k, x=x, d=d: e(f"v_cvt_pk_bf16_f32 v{d+k}, v{x}, v{x+1}"))
            return ops
        epi0, nepi = epi_ops(0), [0]
        def epi_some(n):
            for op in epi0[nepi[0]:nepi[0] + n]:
                op()
            nepi[0] += n
        for half in range(2):
            if half == 1:
                e(f"s_or_b32 s{S_T0}, s{S_ITEM}, s{S_CH}")
                e(f"s_cbranch_scc1 L_noq2")
                self.q_read()
                e.lab("L_noq2")
            e("s_waitcnt lgkmcnt(4)")
            for p in range(16):
                u, q = p >> 2, p & 3
                c0 = q & 1
                seq = [(2*p, c0), (2*p + 1, c0), (2*p + 1, 1 - c0), (2*p, 1 - c0)]
                for k, (f, cb) in enumerate(seq):
                    d = vr(O + 8*u + 4*cb, 4)
                    Tg = 8*half + (f & 7)
                    if not self.noAm:
                        e(f"v_mfma_f32_16x16x32_bf16 {d}, {self.rg(self.vbuf(f, half), 0, 4)}, {vr(self.A_P + 8*Tg + 4*cb, 4)}, {0 if half == 0 and q == 0 and k in (0, 2) else d}")
                    if p + 2 < 16:
                        self.v_read(2*(p + 2) + (k >> 1), half, (k & 1,))
                    if self.epi and half == 1 and p >= 14:
                        epi_some(2)
                for kind, pos in (('early', (self.obe + 1)//2), ('late', self.obf//2)):
                    mask = sum(1 << (4*it + cc) for it in range(2) for cc in range(1, 4) if self.ob.get(8 + 2*cc + 16*it) == kind)
                    if half == 0 and p == pos and mask:
                        e(f"s_lshl2_add_u32 s{S_T0}, s{S_ITEM}, s{S_CH}")
                        e(f"s_bitcmp1_b32 {mask}, s{S_T0}")
                        e(f"s_cbranch_scc0 L_nob{kind}")
                        e("s_barrier")
                        e.lab(f"L_nob{kind}")
                if half == 1 and p == 2:
                    e(f"s_cmp_eq_u32 s{S_CH}, 0")
                    e("s_cbranch_scc0 L_nqb")
                    e("s_barrier")
                    e.lab("L_nqb")
                def nxt_reads(fs, tag):
                    if half == 0:
                        for g in fs:
                            self.v_read(g, 1)
                        return
                    e(f"s_cmp_eq_u32 s{S_CH}, 3")
                    e(f"s_cbranch_scc1 L_nk{tag}")
                    for g in fs:
                        self.v_read(g, 0)
                    e(f"s_branch L_nk2{tag}")
                    e.lab(f"L_nk{tag}")
                    for g in fs:
                        self.k_read(g, 0, 0)
                    e.lab(f"L_nk2{tag}")
                if p == 14:
                    e("s_waitcnt lgkmcnt(0)")
                    if self.fre:
                        e("s_barrier")
                        self.barA.append("FR")
                    self.barA_("KV")
                    nxt_reads((0, 1, 2, 3) if half == 0 else (0, 1), "a")
                elif p == 15:
                    if half == 1:
                        nxt_reads((2, 3), "b")
                else:
                    e(f"s_waitcnt lgkmcnt({4 if p < 14 else 0})")
        if self.dyn:
            e("s_setprio 0")
        if self.epi:
            for op in epi0[nepi[0]:]:
                op()
            for cb in range(2):
                e(f"ds_write_b128 v{OW}, {vr(O + 4*cb, 4)} offset:{cb*1024}")
        else:
            e("s_nop 7")
        for u2 in range(1 if self.epi else 0, 2):
            for op in epi_ops(u2):
                op()
            for cb in range(2):
                e(f"ds_write_b128 v{OW}, {vr(O + 16*u2 + 4*cb, 4)} offset:{u2*4096 + cb*1024}")
        barA_C = list(self.barA)
        e(f"s_add_u32 s{S_CH}, s{S_CH}, 1")
        e(f"s_cmp_lt_u32 s{S_CH}, 4")
        e("s_cbranch_scc1 L_chunk")
        e(f"s_add_u32 s{S_ITEM}, s{S_ITEM}, 1")
        e(f"s_cmp_lt_u32 s{S_ITEM}, 2")
        e("s_cbranch_scc1 L_item")
        seq = list(barA_pre)
        for it in range(2):
            seq += (["HX"] if it == 0 and self.hA else []) + (["OB"] if it == 1 and 16 in self.ob else []) + barA_K
            for c in range(4):
                x = list(barA_C)
                if c == 0:
                    x.insert(2 if self.fre else 1, "QB2")
                elif 8 + 2*c + 16*it in self.ob:
                    x.insert(0, "OB")
                seq += x
        e("s_waitcnt lgkmcnt(0)")
        self.barA_("OB")
        self.barA = seq + ["OB"]
        if self.prof:
            self.stamp(self.A_ST)
            e(f"s_cmp_eq_u32 s{S_W}, 0")
            e("s_cbranch_scc0 L_end")
            self.prof_store(self.A_ST, 0, 0)
        e("s_endpgm")
        self.rescale_routine()

    def prof_store(self, vreg, role, tmp):
        e = self.e
        e(f"v_mbcnt_lo_u32_b32 v{tmp}, -1, 0")
        e(f"v_mbcnt_hi_u32_b32 v{tmp}, -1, v{tmp}")
        e(f"v_lshlrev_b32 v{tmp}, 2, v{tmp}")
        e(f"s_lshl_b32 s{S_T0}, s{S_WG}, 9")
        e(f"s_add_u32 s{S_T0}, s{S_T0}, {0x3000000 + role*256}")
        e(f"buffer_store_dword v{vreg}, v{tmp}, {sr(S_WS,4)}, s{S_T0} offen")
        e(f"s_add_u32 s{S_T0}, s{S_T0}, 0x200000")
        e(f"buffer_store_dword v{self.st2[vreg]}, v{tmp}, {sr(S_WS,4)}, s{S_T0} offen")
        e("s_waitcnt vmcnt(0)")

    def stouch_wq(self, item, k0, k1, step):
        e = self.e
        if k0 >= k1:
            return
        e(f"s_lshl_b32 s{S_T0}, s{S_W}, 14")
        e(f"s_lshr_b32 s{S_T1}, s{S_B}, 4")
        e(f"s_lshl_b32 s{S_T1}, s{S_T1}, 13")
        e(f"s_add_u32 s{S_T0}, s{S_T0}, s{S_T1}")
        e(f"s_and_b32 s{S_T1}, s{S_B}, 15")
        e(f"s_lshl_b32 s{S_T1}, s{S_T1}, 6")
        e(f"s_add_u32 s{S_T0}, s{S_T0}, s{S_T1}")
        cur = 0
        for k in range(k0, k1, step):
            if k // 8 != cur:
                e(f"s_add_u32 s{S_T0}, s{S_T0}, {(k // 8 - cur)*8*65536}")
                cur = k // 8
            e(f"s_buffer_load_dword s{S_JUNK + k % 4}, {sr(S_WQ,4)}, s{S_T0} offset:{(k % 8)*65536 + item*1024}")

    def stouch_wo(self, item, k0, k1):
        e = self.e
        e(f"s_lshl_b32 s{S_T0}, s{S_W}, 11")
        e(f"s_lshl_b32 s{S_T1}, s{S_B}, 6")
        e(f"s_add_u32 s{S_T0}, s{S_T0}, s{S_T1}")
        for k in range(k0, k1):
            e(f"s_buffer_load_dword s{S_JUNK + k % 4}, {sr(S_WO,4)}, s{S_T0} offset:{k*8192 + item*458752}")

    B_OR = 128
    B_TMP = 132
    B_BF = 32
    B_WT = 160
    B_XR = 164
    B_XR0 = 165
    B_VWQ = 166
    B_VWO = 167
    B_VV = 168
    B_VK = 169
    B_VX = 170
    B_QW = 171
    B_LANE = 172
    B_TA, B_TD = 166, 167
    B_FIN, B_FOUT, B_FAI, B_FAO = 148, 149, 150, 151
    B_VWQ4 = 152
    B_VWO4 = 156
    B_ST = 175

    def setupB(self):
        e = self.e
        e(f"s_mul_i32 s{S_XLDS}, s{S_W}, {2*1088}")
        e(f"s_mul_i32 s{S_XG}, s{S_W}, {16*896}")
        g = self.dma_voffs(self.B_VX, self.B_VK, self.B_VV, self.B_VWO4, self.B_VWQ4, self.B_TMP)
        next(g)
        if not self.flate:
            self.flag_loads()
        for xp in range(2 if self.early else 7):
            for op in self.X_ops(xp, self.xloc(0, xp), "X0", self.xnt):
                op()
        e(f"s_lshl_b32 s{S_WLDS}, s{S_W}, 14")
        e(f"s_add_u32 s{S_WLDS}, s{S_WLDS}, {W_BASE}")
        e(f"s_lshl_b32 s{S_WCOL}, s{S_W}, 8")
        e(f"s_mul_i32 s{S_KLDS}, s{S_W}, {8*1056}")
        e(f"s_lshl_b32 s{S_KG}, s{S_W}, {self.ksh + 4}")
        r1, r2 = 44, 45
        if self.rot:
            e(f"s_and_b32 s{r1}, s{S_B}, 3")
            e(f"s_bfe_u32 s{r2}, s{S_B}, 0x20002")
        else:
            e(f"s_mov_b32 s{r1}, 0")
            e(f"s_mov_b32 s{r2}, 0")
        K = self.kst
        e(f"s_add_u32 s{S_VG}, s{S_W}, s{r1}")
        e(f"s_and_b32 s{S_VG}, s{S_VG}, {K - 1}")
        e(f"s_lshl_b32 s{S_VG}, s{S_VG}, 9")
        e(f"s_lshr_b32 s{S_T0}, s{S_W}, {self.ksh - 9}")
        e(f"s_lshl_b32 s{S_T0}, s{S_T0}, {self.ksh + 6}")
        e(f"s_add_u32 s{S_VG}, s{S_VG}, s{S_T0}")
        for r in range(4):
            e(f"s_add_u32 s{S_T0}, s{r1}, {r}")
            e(f"s_and_b32 s{S_T0}, s{S_T0}, {K - 1}")
            e(f"s_lshl_b32 s{S_T0}, s{S_T0}, 9")
            e(f"s_add_u32 s{S_KR+r}, s{S_KG}, s{S_T0}")
            e(f"s_add_u32 s{S_T0}, s{r2}, {r}")
            e(f"s_and_b32 s{S_T0}, s{S_T0}, 3")
            e(f"s_lshl_b32 s{S_T1}, s{S_T0}, 7")
            e(f"s_add_u32 s{S_VC+r}, s{S_VG}, s{S_T1}")
            e(f"s_mul_i32 s{S_T1}, s{S_T0}, {64*896}")
            e(f"s_add_u32 s{S_WR+r}, s{S_WCOL}, s{S_T1}")
        e(f"s_lshl_b32 s{S_VLB}, s{S_W}, 13")
        next(g)
        for pc in range(1, 4):
            e(f"v_add_u32 v{self.B_VWQ4+pc}, {(16*(pc & 1) + 4*(pc >> 1))*8192 - 1024*pc}, v{self.B_VWQ4}")

    def flag_loads(self):
        e = self.e
        e(f"v_and_b32 v{self.B_FAO}, 3, v0")
        e(f"v_lshlrev_b32 v{self.B_FAI}, 2, v{self.B_FAO}")
        e(f"s_lshl_b32 s{S_T0}, s{S_WG}, 7")
        e(f"s_add_u32 s{S_T0}, s{S_T0}, {FLAG_BASE}")
        e(f"v_add_u32 v{self.B_FAI}, s{S_T0}, v{self.B_FAI}")
        e(f"s_mul_i32 s{S_T1}, s{S_P}, 124")
        e(f"s_sub_u32 s{S_T0}, s{S_T0}, s{S_T1}")
        e(f"v_lshl_add_u32 v{self.B_FAO}, v{self.B_FAO}, 7, s{S_T0}")
        e(f"buffer_load_dword v{self.B_FIN}, v{self.B_FAI}, {sr(S_WS,4)}, 0 offen sc1")
        e(f"buffer_load_dword v{self.B_FOUT}, v{self.B_FAO}, {sr(S_WS,4)}, 0 offen sc1")
        self.vmq += ["F", "F"]

    def setupB2(self):
        e = self.e
        a, b, c = self.B_TMP, self.B_TMP + 1, self.B_TMP + 2
        self.tr_addr(self.B_WT, base_sreg=S_WLDS, t0=a, t1=b, t2=c)
        e(f"v_bfe_u32 v{a}, v0, 3, 1")
        e(f"v_mul_u32_u24 v{self.B_XR0}, 1088, v{a}")
        e(f"v_and_b32 v{a}, 7, v0")
        e(f"v_lshl_add_u32 v{self.B_XR0}, v{a}, 7, v{self.B_XR0}")
        e(f"v_lshrrev_b32 v{a}, 1, v{a}")
        e(f"v_lshrrev_b32 v{b}, 4, v0")
        e(f"v_xor_b32 v{a}, v{a}, v{b}")
        e(f"v_lshl_add_u32 v{self.B_XR0}, v{a}, 4, v{self.B_XR0}")
        e(f"v_add_u32 v{self.B_XR}, {XO_BASE}, v{self.B_XR0}")
        e(f"v_add_u32 v{self.B_XR0}, {KV_SLOT}, v{self.B_XR0}")
        for rb in range(4):
            e(f"s_add_u32 s{S_T0}, s{S_P}, {rb}")
            e(f"s_and_b32 s{S_T0}, s{S_T0}, 3")
            e(f"s_lshl_b32 s{S_T0}, s{S_T0}, 10")
            e(f"s_add_u32 s{S_T0}, s{S_T0}, {XO_BASE}")
            e(f"v_lshl_add_u32 v{self.B_OR+rb}, v0, 4, s{S_T0}")
        e(f"v_lshrrev_b32 v{a}, 5, v0")
        e(f"v_lshlrev_b32 v{a}, 8, v{a}")
        e(f"v_and_b32 v{b}, 15, v0")
        e(f"v_lshl_add_u32 v{a}, v{b}, 4, v{a}")
        e(f"v_bfe_u32 v{b}, v0, 4, 1")
        e(f"v_lshl_add_u32 v{a}, v{b}, 3, v{a}")
        e(f"v_add_u32 v{self.B_QW}, s{S_WLDS}, v{a}")
        e(f"v_mov_b32 v{self.B_LANE}, v0")
        e(f"v_min_u32 v{self.B_TA}, 27, v0")
        e(f"s_mul_i32 s{S_T0}, s{S_W}, 28")
        e(f"v_add_u32 v{self.B_TA}, s{S_T0}, v{self.B_TA}")
        e(f"v_lshlrev_b32 v{self.B_TA}, 12, v{self.B_TA}")
        e(f"s_lshl_b32 s{S_T0}, s{S_B}, 7")
        e(f"v_add_u32 v{self.B_TA}, s{S_T0}, v{self.B_TA}")
        for pc in range(1, 4):
            e(f"v_add_u32 v{self.B_VWO4+pc}, {(16*(pc >> 1) + 8*(pc & 1))*896 - 1024*pc}, v{self.B_VWO4}")

    def xloc(self, item, xp):
        if xp == 0 or (item == 1 and xp % 3 == 0):
            return KV_SLOT + 4 * X_SLOT
        if item == 1:
            return XO_BASE + (xp % 3 - 1) * X_SLOT
        if xp < 5:
            return KV_SLOT + (xp - 1) * X_SLOT
        return XO_BASE + (xp - 5) * X_SLOT

    def dma(self, lds_s, lds_imm, g_s, g_imm, vaddr, srd, tag, nt=False):
        def emit():
            e = self.e
            e(f"s_add_u32 m0, s{lds_s}, {lds_imm}")
            e(f"s_add_u32 s{S_T0}, s{g_s}, {g_imm}")
            e(f"buffer_load_dwordx4 v{vaddr}, {sr(srd,4)}, s{S_T0} offen{' nt' if nt else ''} lds")
            self.vmq.append(tag)
        return emit

    def H_ops(self, n):
        item, ph = n >> 4, n & 15
        slot = n & 1
        ops = []
        if self.noH:
            return ops
        for k in range(8):
            if ph < 8:
                ops.append(self.dma(S_KLDS, slot*KV_SLOT + k*1056, S_KR + (ph & 3), item*262144 + (ph // self.kst)*32768*self.kst + k*1024*self.kst,
                                    self.B_VK, S_K, f"H{n}", nt=True))
            else:
                c, half = (ph - 8) >> 1, ph & 1
                ops.append(self.dma(S_VLB, slot*KV_SLOT + k*1024, S_VC + c, item*262144 + half*131072 + k*4096*self.kst,
                                    self.B_VV, S_V, f"H{n}", nt=True))
        return ops

    def X_ops(self, xp, loc, tag, nt=False):
        return [self.dma(S_XLDS, loc + k*1088, S_XG, k*7168 + xp*128, self.B_VX, S_X, tag, nt=nt) for k in range(2)]

    def W_ops(self, wd, hs):
        ks, cbk = hs >> 1, hs & 1
        ops = []
        if self.noW and wd[:2] != ('Q', 0):
            return ops
        if wd[0] == 'Q':
            _, item, xp = wd
            g = 32*(2*xp + ks)*8192 + item*1024 + cbk*128
            vb, srd, gs = self.B_VWQ4, S_WQ, S_WCOL
        else:
            _, item, c, j = wd
            g = (item*512 + 256*j + 32*ks)*896 + cbk*128
            vb, srd, gs = self.B_VWO4, S_WO, S_WR + c
        for pc in range(4):
            def emit(pc=pc):
                e = self.e
                if pc == 0:
                    e(f"s_add_u32 m0, s{S_WLDS}, {hs*4096}")
                    e(f"s_add_u32 s{S_T0}, s{gs}, {g}")
                e(f"buffer_load_dwordx4 v{vb+pc}, {sr(srd,4)}, s{S_T0} offen offset:{pc*1024}{' nt' if self.wq0nt and wd[:2] == ('Q', 0) else ''} lds")
                self.vmq.append((wd, hs))
            ops.append(emit)
        return ops

    def wo_touch(self, nt):
        ops = []
        for item in self.hto:
            def tch(item=item):
                self.e(f"s_mov_b32 s{S_T0}, {item*458752}")
                self.e(f"buffer_load_dword v{self.B_TD}, v{self.B_TA}, {sr(S_WO,4)}, s{S_T0} offen{' nt' if nt else ''}")
                self.vmq.append("T")
            ops.append(tch)
        return ops

    def vmwait(self, need, extra=""):
        idx = -1
        for i, t in enumerate(self.vmq):
            if t in need:
                idx = i
        if idx < 0:
            if extra:
                self.e(f"s_waitcnt {extra}")
            return
        n = len(self.vmq) - 1 - idx
        assert n <= 63, n
        self.e(f"s_waitcnt vmcnt({n}) {extra}".rstrip())
        self.vmq = self.vmq[idx+1:]

    def barB_(self, name):
        sel = 10 <= self.curn <= 16 or 26 <= self.curn <= 32
        if sel:
            self.stamp(self.B_ST, f"@a{name}{self.curn}")
        self.e("s_barrier")
        if sel:
            self.stamp(self.B_ST, f"@{name}{self.curn}")
        self.barB[self.path].append(name)
        if self.prof != 2 or self.curn in self.fine or self.curn - 1 in self.fine:
            self.stamp(self.B_ST, name + str(self.curn))

    def hs_list(self, wd):
        if wd[0] == 'O' and self.path == 'w3':
            return [0, 2]
        return [0, 1, 2, 3]

    @staticmethod
    def kid(st):
        wd, hs = st
        return (wd[0], wd[1], 2*wd[2] + (hs >> 1)) if wd[0] == 'Q' else ('O', wd[1], 4*wd[2] + 2*wd[3] + (hs >> 1))

    def make_sched(self):
        P = {n: [] for n in range(34)}
        def fill(seq, base, cnt):
            k = 0
            for i, c in enumerate(cnt):
                P[base + i] += seq[k:k + c]
                k += c
            return seq[k:]
        assert not fill([(('Q', 1, xp), hs) for xp in range(7) for hs in range(4)], 0, self.qcnt)
        oseq = lambda it: [(('O', it, k >> 2, (k >> 1) & 1), 2*(k & 1) + cbk) for k in range(16) for cbk in range(2)]
        assert not fill(oseq(0), 10, self.o1cnt)
        P[32] = fill(oseq(1), 26, self.o2cnt)
        self.P = P
        self.ob = {}
        for it, base in ((0, 10), (1, 26)):
            for c in range(4):
                wp = base + 2*c
                use = [i for i, (wd, hs) in enumerate(P[wp]) if wd[:3] == ('O', it, c)]
                for n in range(wp):
                    assert not any(wd[:3] == ('O', it, c) for wd, hs in P[n])
                if use:
                    self.ob[wp] = 'early' if use[0] == 0 else 'late'
        self.xfirst, xlast = {}, {}
        for n in range(9):
            for wd, hs in P[n]:
                self.xfirst.setdefault(wd[2], n)
                xlast[wd[2]] = n
        del self.xfirst[0]
        for xp, n in self.xfirst.items():
            assert n >= 1 and (xp < 3 or xlast[xp - 3] < n - 1), (xp, n)

    def bfi(self, k):
        return k[2] % (4 if k[:2] == ('O', 0) else 3)

    def bfreg(self, k, cb4):
        b = self.bfi(k)
        return vr(self.B_TMP + 4*cb4, 4) if b == 3 else ar(self.B_BF + 16*b + 4*cb4, 4)

    def sched(self, n):
        return [st for st in self.P[n] if not (self.path == 'w3' and st[0][0] == 'O' and st[1] & 1)]

    def bf_reads(self, st):
        wd, hs = st
        k = self.kid(st)
        if k in self.bfl:
            return []
        self.bfl.add(k)
        ks = hs >> 1
        e = self.e
        ops = []
        for cb4 in range(4):
            d = self.bfreg(k, cb4)
            if wd[0] == 'Q':
                loc = self.xloc(wd[1], wd[2])
                reg = self.B_XR if loc >= XO_BASE else self.B_XR0
                off = (loc - XO_BASE if loc >= XO_BASE else loc - KV_SLOT) + cb4*2176 + ks*64
            else:
                reg = self.B_OR + cb4
                off = (2*wd[3] + ks)*4096
            ops.append(lambda d=d, off=off, reg=reg: e(f"ds_read_b128 {d}, v{reg} offset:{off}"))
        return ops

    def w_reads(self, hs, i):
        e = self.e
        ops = []
        for u in range(4):
            for t in range(2):
                d = ar(16*(i & 1) + 4*u + 2*t, 2)
                off = hs*4096 + t*2048
                ops.append(lambda d=d, off=off, u=u: e(f"ds_read_b64_tr_b16 {d}, v{self.B_WT+u} offset:{off}"))
        return ops

    def needs_ob(self, st):
        wd, hs = st
        return wd[0] == 'O' and wd[3] == 0 and hs == 0 and self.curn == (10, 26)[wd[1]] + 2*wd[2]

    def run_steps(self, steps, per_step, preload=(), upfront=()):
        e = self.e
        if self.boost:
            e(f"s_setprio {self.boost}")
        hf = self.hfirst if self.curn not in self.nohf else 0
        for op in upfront[:hf]:
            op()
        upfront = upfront[hf:]
        if self.wpre != steps[0]:
            self.vmwait([steps[0]])
            for op in self.w_reads(steps[0][1], 0):
                op()
        if self.needs_ob(steps[0]):
            for op in upfront:
                op()
            upfront = ()
            self.barB_("OB")
        for op in self.bf_reads(steps[0]):
            op()
        for op in upfront:
            op()
        if self.boost:
            e(f"s_setprio {self.prioB}")
        late = []
        for i, (wd, hs) in enumerate(steps):
            ks, cbk = hs >> 1, hs & 1
            kk = self.kid(steps[i])
            kb = self.bfi(kk)
            others = []
            nx = steps[i+1] if i + 1 < len(steps) else None
            if nx:
                self.vmwait([nx], "lgkmcnt(0)")
                if not self.needs_ob(nx):
                    others += self.bf_reads(nx)
                others += self.w_reads(nx[1], i + 1)
            else:
                e("s_waitcnt lgkmcnt(0)")
                for st in preload:
                    if self.bfi(self.kid(st)) != kb:
                        others += self.bf_reads(st)
                    else:
                        late += self.bf_reads(st)
            others += per_step(i)
            zero = ks == 0 and ((wd[0] == 'Q' and wd[2] == 0) or wd == ('O', 0, 0, 0))
            k = 0
            for u, cb4 in (S22 if self.s22 else [(u, c) for u in range(4) for c in range(4)]):
                d = vr(64*cbk + 16*u + 4*cb4, 4)
                if not (self.noBm and wd[:2] != ('Q', 0)):
                    e(f"v_mfma_f32_16x16x32_bf16 {d}, {ar(16*(i&1)+4*u,4)}, {self.bfreg(kk, cb4)}, {0 if zero else d}")
                if k < len(others):
                    others[k](); k += 1
            while k < len(others):
                others[k](); k += 1
            if nx and self.needs_ob(nx):
                if self.boost:
                    e(f"s_setprio {self.boost}")
                self.barB_("OB")
                for op in self.bf_reads(nx):
                    op()
                if self.boost:
                    e(f"s_setprio {self.prioB}")
        for op in late:
            op()

    def q_ops(self, cbk):
        e = self.e
        t = self.B_TMP
        ops = []
        for u in range(4):
            for cb4 in range(4):
                def op(u=u, cb4=cb4):
                    a = 64*cbk + 16*u + 4*cb4
                    d = t + 2*((4*u + cb4) % 8)
                    e(f"v_cvt_pk_bf16_f32 v{d}, v{a}, v{a+1}")
                    e(f"v_cvt_pk_bf16_f32 v{d+1}, v{a+2}, v{a+3}")
                    off = (cb4*4 + 2*cbk + (u >> 1))*1024 + (u & 1)*512
                    e(f"ds_write_b64 v{self.B_QW}, {vr(d,2)} offset:{off}")
                ops.append(op)
        return ops

    def q_write(self, cbks=(0, 1)):
        e = self.e
        e("s_nop 7" if cbks == (0, 1) else "s_nop 3")
        for cbk in cbks:
            for op in self.q_ops(cbk):
                op()
        e("s_waitcnt lgkmcnt(0)")

    def periodB(self, n):
        e = self.e
        self.curn = n
        steps = self.sched(n)
        nxt = self.sched(n + 1) if n < 32 else []
        self.vmwait([f"H{n}"] + [f"X1_{xp}" for xp, m in self.xfirst.items() if m == n])
        self.barB_("KV0" if n == 0 else "KV")
        hx = []
        if n + 1 <= 31 and not (n == 0 and self.h1h):
            hx += self.H_ops(n + 1)[self.hdone.get(n + 1, 0):]
        for xp, m in self.xfirst.items():
            if m == n + 1 and not self.xpark:
                hx += self.X_ops(xp, self.xloc(1, xp), f"X1_{xp}", self.x2nt)
        if n == 0:
            for st in steps:
                for op in self.W_ops(*st):
                    op()
        if not steps:
            for op in hx:
                op()
        if n == 8 and not steps:
            self.q_write()
        if n in (9, 25):
            self.barB_("QB2")
        todo = list(nxt[:len({hs for _, hs in nxt})])
        pre = []
        for it, base in ((0, 10), (1, 26)):
            for c in range(4):
                if n + 1 == (base + 2*c + 2 if c < 3 else (26 if it == 0 else -1)):
                    rest = [st for m in range(n + 1, 33) for st in self.sched(m) if st[0][:3] == ('O', it, c) and not st[1] & 1]
                    pre += rest
        if steps:
            def per(i):
                if n == 32:
                    rest = [st for st in steps[i+1:] if st[1] == steps[i][1]]
                    if self.tailov and self.path == 'main' and i == len(steps) - 2:
                        return [self.pub_setup]
                    if self.tailov and self.path == 'main' and i == len(steps) - 1:
                        return [lambda: None]*3 + self.pub_ops(0)
                    return self.W_ops(*rest[0]) if rest else []
                free = {hs for _, hs in steps[:i+1-self.lag]} | ({0, 1, 2, 3} - {hs for _, hs in steps})
                r = []
                if inter and i < 2:
                    nh = (len(hx) + 1)//2 if (i == 0 and len(steps) > 2) else len(hx)
                    r += hx[:nh]
                    del hx[:nh]
                while todo and todo[0][1] in free and i >= self.rin:
                    r += self.W_ops(*todo.pop(0))
                if n == 8 and i == len(steps) - 1:
                    r += self.q_ops(0)
                return r
            a_epi = n in (10, 12, 14, 16, 26, 28, 30)
            inter = self.hint and a_epi and not self.needs_ob(steps[0])
            last_k = self.kid(steps[-1])
            newk = [self.kid(st) for st in pre if self.kid(st) not in self.bfl and self.kid(st) not in map(self.kid, steps)]
            live = {self.kid(st) for m in range(n + 1, 33) for st in self.sched(m) if self.kid(st) in self.bfl or self.kid(st) in map(self.kid, steps)}
            bufs = [self.bfi(k) for k in newk] + [self.bfi(k) for k in live]
            assert len(bufs) == len(set(bufs)), (n, newk, live)
            self.run_steps(steps, per, pre, [] if inter else hx)
            if n == 8:
                self.q_write((1,))
        else:
            assert all(self.kid(st) in self.bfl for st in pre)
        for st in todo:
            for op in self.W_ops(*st):
                op()
        if pre:
            e("s_waitcnt lgkmcnt(0)")
        if self.fre and n < 32:
            e("s_barrier")
            self.barB[self.path].append("FR")
            if n + 2 <= 31:
                k = "H%d" % (n + 1)
                after = len(self.vmq) - 1 - max([i for i, t in enumerate(self.vmq) if t == k], default=-1)
                if self.path == 'main':
                    self.hdone[n + 2] = max(0, min(8, (self.cap - 4*after)//4))
                for op in self.H_ops(n + 2)[:self.hdone[n + 2]]:
                    op()
        if self.pre_rd and nxt and n + 1 in (12, 14, 16, 28, 30, 32) and self.kid(nxt[0]) in self.bfl:
            self.vmwait([f"H{n+1}", nxt[0]])
            for op in self.w_reads(nxt[0][1], 0):
                op()
            self.wpre = nxt[0]

    def epilogue_v1(self):
        e = self.e
        t = self.B_TMP
        e("s_nop 7")
        e(f"v_lshlrev_b32 v{t}, 4, v{self.B_LANE}")
        e(f"s_lshl_b32 s{S_T1}, s{S_WG}, 17")
        e(f"s_lshl_b32 s{S_T0}, s{S_W}, 15")
        e(f"s_add_u32 s{S_T1}, s{S_T1}, s{S_T0}")
        for cbk in range(1 if self.path == 'w3' else 2):
            for u in range(4):
                e(f"s_add_u32 s{S_T0}, s{S_T1}, {(cbk*4+u)*4096}")
                for cb4 in range(4):
                    e(f"buffer_store_dwordx4 {vr(64*cbk+16*u+4*cb4,4)}, v{t}, {sr(S_WS,4)}, s{S_T0} offen offset:{cb4*1024}")

    def pub_setup(self):
        e = self.e
        slot = 32768 if self.f32 else 16384
        e(f"v_lshlrev_b32 v{self.B_TMP}, 4, v{self.B_LANE}")
        e(f"s_and_b32 s{S_T1}, s{S_WG}, 0xfc")
        e(f"s_mul_i32 s{S_T1}, s{S_T1}, {4*slot}")
        e(f"s_mul_i32 s{S_T0}, s{S_W}, {slot // 4}")
        e(f"s_add_u32 s{S_T1}, s{S_T1}, s{S_T0}")
        e(f"s_mul_i32 s2, s{S_P}, {slot}")
        e(f"s_add_u32 s2, s2, s{S_T1}")
        for rb in (1, 2, 3):
            e(f"s_add_u32 s{S_T0}, s{S_P}, {rb}")
            e(f"s_and_b32 s{S_T0}, s{S_T0}, 3")
            e(f"s_mul_i32 s{S_T0}, s{S_T0}, {4*slot}")
            e(f"s_add_u32 s{S_KR+rb}, s{S_T0}, s2")

    def pub_ops(self, cbk):
        e = self.e
        L16, D, fl = self.B_TMP, self.B_TMP + 4, self.pfl
        ops = []
        if self.f32:
            for u in range(4):
                for rb in (1, 2, 3):
                    def op(u=u, rb=rb):
                        e(f"s_add_u32 s{S_T0}, s{S_KR+rb}, {cbk*4096}")
                        e(f"buffer_store_dwordx4 {vr(64*cbk+16*u+4*rb,4)}, v{L16}, {sr(S_WS,4)}, s{S_T0} offen offset:{u*1024} {fl}")
                    ops.append(op)
            return ops
        n = 0
        for u2 in range(2):
            for rb in (1, 2, 3):
                d = D + 4*(n % 3); n += 1
                a0 = 64*cbk + 32*u2 + 4*rb
                ops.append(lambda d=d, a0=a0: (e(f"v_cvt_pk_bf16_f32 v{d}, v{a0}, v{a0+1}"), e(f"v_cvt_pk_bf16_f32 v{d+1}, v{a0+2}, v{a0+3}")))
                ops.append(lambda d=d, a0=a0, rb=rb, u2=u2: (e(f"v_cvt_pk_bf16_f32 v{d+2}, v{a0+16}, v{a0+17}"), e(f"v_cvt_pk_bf16_f32 v{d+3}, v{a0+18}, v{a0+19}"),
                           e(f"buffer_store_dwordx4 {vr(d,4)}, v{L16}, {sr(S_WS,4)}, s{S_KR+rb} offen offset:{(2*cbk+u2)*1024} {fl}")))
        return ops

    def epilogue_fused(self):
        e = self.e
        t = self.B_TMP
        L16, OA = t, t + 1
        D = t + 4
        ncbk = 1 if self.path == 'w3' else 2
        slot = 32768 if self.f32 else 16384
        self.stamp(self.B_ST)
        ov = self.tailov and ncbk == 2
        if not ov:
            self.pub_setup()
        e("s_nop 7")
        for cbk in range(1 if ov else 0, ncbk):
            for op in self.pub_ops(cbk):
                op()
        e(f"v_and_b32 v{OA}, 15, v{self.B_LANE}")
        e(f"v_mul_u32_u24 v{OA}, 1792, v{OA}")
        e(f"v_lshrrev_b32 v{t+2}, 4, v{self.B_LANE}")
        e(f"v_lshl_add_u32 v{OA}, v{t+2}, 3, v{OA}")
        e("s_waitcnt vmcnt(0)")
        e("s_barrier")
        self.stamp(self.B_ST)
        if self.path == 'main':
            e(f"s_cmp_eq_u32 s{S_W}, 0")
            e("s_cbranch_scc0 L_nopoll")
            e(f"v_add_u32 v{self.B_FOUT}, 1, v{self.B_FOUT}")
            e("s_mov_b64 exec, 15")
            e(f"buffer_store_dword v{self.B_FOUT}, v{self.B_FAO}, {sr(S_WS,4)}, 0 offen sc1")
            e(f"s_mov_b32 s{S_CH}, 0")
            e.lab("L_poll")
            e(f"buffer_load_dword v{t+2}, v{self.B_FAI}, {sr(S_WS,4)}, 0 offen sc1")
            e(f"s_add_u32 s{S_CH}, s{S_CH}, 1")
            e("s_waitcnt vmcnt(0)")
            e(f"v_cmp_eq_u32 vcc, v{t+2}, v{self.B_FIN}")
            e("s_nop 0")
            e("s_cbranch_vccz L_polled")
            e(f"s_cmp_lt_u32 s{S_CH}, 0x20000")
            e("s_cbranch_scc1 L_poll")
            e.lab("L_polled")
            e("s_mov_b64 exec, -1")
            e.lab("L_nopoll")
        e("s_barrier")
        self.stamp(self.B_ST)
        e(f"s_mul_i32 s2, s{S_P}, {4*slot}")
        e(f"s_add_u32 s2, s2, s{S_T1}")
        for rb in (1, 2, 3):
            e(f"s_add_u32 s{S_T0}, s{S_P}, {rb}")
            e(f"s_and_b32 s{S_T0}, s{S_T0}, 3")
            e(f"s_mul_i32 s{S_T0}, s{S_T0}, {slot}")
            e(f"s_add_u32 s{S_T0}, s{S_T0}, s2")
            for cbk in range(ncbk):
                if self.f32:
                    if cbk:
                        e(f"s_add_u32 s{S_T0}, s{S_T0}, 4096")
                    for u in range(4):
                        e(f"buffer_load_dwordx4 {vr(64*cbk+16*u+4*rb,4)}, v{L16}, {sr(S_WS,4)}, s{S_T0} offen offset:{u*1024} {self.lfl}")
                else:
                    for u2 in range(2):
                        e(f"buffer_load_dwordx4 {vr(64*cbk+32*u2+4*rb,4)}, v{L16}, {sr(S_WS,4)}, s{S_T0} offen offset:{(2*cbk+u2)*1024} {self.lfl}")
        e(f"s_mul_i32 s2, s{S_B}, {64*1792}")
        e(f"s_mul_i32 s3, s{S_P}, {16*1792}")
        e(f"s_add_u32 s2, s2, s3")
        e(f"s_mul_i32 s3, s{S_BR}, 896")
        e(f"s_add_u32 s2, s2, s3")
        e(f"s_add_u32 s2, s2, s{S_WCOL}")
        e("s_waitcnt vmcnt(0)")
        for cbk in range(ncbk):
            for u in range(4):
                a = 64*cbk + 16*u
                for rb in (1, 2, 3):
                    if self.f32:
                        for r in range(4):
                            e(f"v_add_f32 v{a+r}, v{a+r}, v{a+4*rb+r}")
                    else:
                        src = 64*cbk + 32*(u >> 1) + 4*rb + 2*(u & 1)
                        for h in range(2):
                            e(f"v_lshlrev_b32 v{D+2*h}, 16, v{src+h}")
                            e(f"v_and_b32 v{D+2*h+1}, 0xffff0000, v{src+h}")
                        e(f"v_pk_add_f32 {vr(a,2)}, {vr(a,2)}, {vr(D,2)}")
                        e(f"v_pk_add_f32 {vr(a+2,2)}, {vr(a+2,2)}, {vr(D+2,2)}")
                e(f"v_cvt_pk_bf16_f32 v{a}, v{a}, v{a+1}")
                e(f"v_cvt_pk_bf16_f32 v{a+1}, v{a+2}, v{a+3}")
                e(f"buffer_store_dwordx2 {vr(a,2)}, v{OA}, {sr(S_OUT,4)}, s2 offen offset:{cbk*128+u*32} {self.ofl}".rstrip())

    def endB(self):
        e = self.e
        if self.fuse:
            self.epilogue_fused()
        else:
            self.epilogue_v1()
        if self.prof:
            e("s_waitcnt vmcnt(0)")
            self.stamp(self.B_ST)
            if self.path == 'main':
                e(f"s_cmp_eq_u32 s{S_W}, 0")
                e("s_cbranch_scc0 L_end")
                self.prof_store(self.B_ST, 1, 0)
        e("s_endpgm")

    def streamB(self):
        e = self.e
        e.lab("L_B")
        self.vmq = []
        self.deferred = []
        self.path = 'main'
        self.barB = {'main': [], 'w3': []}
        self.stamp(self.B_ST)
        self.setupB()
        for hs in range(4):
            for op in self.W_ops(('Q', 0, 0), hs):
                op()
        self.setupB2()
        if self.early:
            for xp in range(2, 7):
                for op in self.X_ops(xp, self.xloc(0, xp), "X0b", self.xnt):
                    op()
        if self.flate:
            self.flag_loads()
        self.stamp(self.B_ST)
        self.vmwait(["X0"])
        self.barB_("HB")
        steps = [(('Q', 0, h), hs) for h in range(7) for hs in range(4)]
        H0 = self.H_ops(0)
        if self.h1h:
            assert self.early and self.hdef is None and not self.hto
            H0 = H0 + self.H_ops(1)
        def per(i):
            if i % 2 == 1 and self.prof != 2:
                self.stamp(self.B_ST, f"h{i}")
            if i == 6 and self.early:
                assert "X0b" not in self.vmq
                return self.W_ops(*steps[i + 4]) + [lambda: self.barB_("HB2")]
            if i == 23 and self.h1h:
                return self.W_ops(*steps[i + 4]) + [lambda: self.barB_("HB3")]
            if i >= 24 and self.h1h:
                return H0[4*(i - 24):4*(i - 24) + 4]
            if i + 4 < 28:
                return self.W_ops(*steps[i + 4])
            if self.hdef is not None:
                tt = self.wo_touch(False)
                return (tt if self.hdef == i else []) + H0[2*(i - 24):2*(i - 24) + 2] + (tt if self.hdef == i + 1 == 28 else [])
            return (self.wo_touch(True) if i == 24 else []) + H0[2*(i - 24):2*(i - 24) + 2]
        def per2(i):
            return per(i) + (self.q_ops(0) if self.qov and i == 27 else [])
        self.run_steps(steps, per2)
        self.q_write((1,) if self.qov else (0, 1))
        for op in (self.wo_touch(False) if self.hdef is None else []):
            op()
        self.barB_("QB1")
        for n in range(9):
            self.periodB(n)
        e(f"s_cmp_eq_u32 s{S_W}, 3")
        e("s_cbranch_scc1 L_B3")
        save = list(self.vmq)
        save_bfl = set(self.bfl)
        assert not self.deferred
        self.barB['w3'] = list(self.barB['main'])
        for n in range(9, 33):
            self.periodB(n)
        self.endB()
        e.lab("L_B3")
        self.path = 'w3'
        self.vmq = save
        self.bfl = save_bfl
        self.wpre = None
        self.deferred = []
        for n in range(9, 33):
            self.periodB(n)
        self.endB()

    def reduce_kernel(self):
        e = self.e
        e(".globl red_kernel")
        e(".p2align 8")
        e(".type red_kernel,@function")
        e.lab("red_kernel")
        e("s_cmp_ge_u32 s2, 1792")
        e("s_cbranch_scc1 L_rend")
        e("s_load_dwordx2 s[4:5], s[0:1], 96")
        e("s_load_dwordx2 s[8:9], s[0:1], 80")
        e("s_mul_hi_u32 s12, s2, 153391690")
        e("s_mul_i32 s13, s12, 28")
        e("s_sub_u32 s13, s2, s13")
        e("s_and_b32 s14, s12, 1")
        e("s_lshr_b32 s15, s12, 1")
        e("s_lshl_b32 s16, s15, 3")
        e("s_lshl_b32 s17, s14, 2")
        e("s_add_u32 s16, s16, s17")
        e("s_lshl_b32 s16, s16, 17")
        e("s_lshl_b32 s17, s13, 12")
        e("s_add_u32 s16, s16, s17")
        e("v_lshlrev_b32 v1, 4, v0")
        e("s_mov_b32 s6, 67108864")
        e("s_mov_b32 s7, 0x20000")
        e("s_mov_b32 s10, 3670016")
        e("s_mov_b32 s11, 0x20000")
        e("s_waitcnt lgkmcnt(0)")
        for p in range(4):
            e(f"buffer_load_dwordx4 {vr(4+4*p,4)}, v1, s[4:7], s16 offen")
            e("s_add_u32 s16, s16, 131072")
        e("v_lshrrev_b32 v2, 6, v0")
        e("v_lshlrev_b32 v2, 4, v2")
        e("v_and_b32 v3, 15, v0")
        e("v_add_u32 v2, v2, v3")
        e("v_mul_u32_u24 v2, 1792, v2")
        e("v_bfe_u32 v3, v0, 4, 2")
        e("v_lshl_add_u32 v2, v3, 3, v2")
        e("s_mul_i32 s15, s15, 114688")
        e("s_mul_i32 s14, s14, 896")
        e("s_add_u32 s15, s15, s14")
        e("s_lshl_b32 s13, s13, 5")
        e("s_add_u32 s15, s15, s13")
        e("s_waitcnt vmcnt(0)")
        for r in range(4):
            e(f"v_add_f32 v{4+r}, v{4+r}, v{8+r}")
            e(f"v_add_f32 v{12+r}, v{12+r}, v{16+r}")
            e(f"v_add_f32 v{4+r}, v{4+r}, v{12+r}")
        e("v_cvt_pk_bf16_f32 v4, v4, v5")
        e("v_cvt_pk_bf16_f32 v5, v6, v7")
        e("buffer_store_dwordx2 v[4:5], v2, s[8:11], s15 offen")
        e.lab("L_rend")
        e("s_endpgm")

    def build(self):
        e = self.e
        out = [HEADER.rstrip()]
        if self.fuse:
            out.append(f"; @launch grid=(256,1,1) block=(512,1,1) lds={LDS_BYTES}")
        else:
            out.append(f"; @launch kernel={NAME}_kernel grid=(256,1,1) block=(512,1,1) lds={LDS_BYTES}")
            out.append(f"; @launch kernel=red_kernel grid=(1792,1,1) block=(256,1,1) lds=0")
        out.append('.amdgcn_target "amdgcn-amd-amdhsa--gfx950"')
        out.append(".text")
        out.append(f".globl {NAME}_kernel")
        out.append(".p2align 8")
        out.append(f".type {NAME}_kernel,@function")
        out.append(f"{NAME}_kernel:")
        self.prologue()
        self.streamB()
        self.path = None
        e.lab("L_A")
        self.streamA()
        e.lab("L_end")
        e("s_endpgm")
        if not self.fuse:
            self.reduce_kernel()
        assert self.barA == self.barB['main'] == self.barB['w3'], (self.barA, self.barB)
        if self.prof:
            out.insert(1, f"; NST {44 if self.prof == 4 else len(self.barA)+2} {len(self.namesB)} " + " ".join(self.namesB))
        out.append(e.text())
        out.append('.section .rodata,"a"')
        def kd(name, v, s, acc):
            return f""".p2align 6
.amdhsa_kernel {name}
  .amdhsa_next_free_vgpr {v}
  .amdhsa_next_free_sgpr {s}
  .amdhsa_accum_offset {acc}
  .amdhsa_group_segment_fixed_size 0
  .amdhsa_kernarg_size 104
  .amdhsa_user_sgpr_count 2
  .amdhsa_user_sgpr_kernarg_segment_ptr 1
  .amdhsa_system_sgpr_workgroup_id_x 1
.end_amdhsa_kernel"""
        out.append(kd(f"{NAME}_kernel", 256, 96, 176))
        if not self.fuse:
            out.append(kd("red_kernel", 24, 32, 24))
        return "\n".join(out) + "\n"


if __name__ == "__main__":
    kw = {}
    path = None
    for a in sys.argv[1:]:
        if "=" in a:
            k, v = a.split("=")
            kw[k] = eval(v)
        else:
            path = a
    txt = Gen(**kw).build()
    open(path or f"cdna_kernels/{NAME}.s", "w").write(txt)
    print("lines", txt.count("\n"), "bytes", len(txt))
```

```python
import sys, math

NAME = "concat_heads__gqa_block_cached__gqa_block_cached__near_ridge"
HEADER = open("cdna_kernels/%s.s.ref" % NAME).read().split("; Override launch")[0]

KV_SLOT = 33792
W_BASE = KV_SLOT + 5 * 8704
XO_BASE = W_BASE + 65536
X_SLOT = 8704
FLAG_BASE = 0x2800000
LDS_BYTES = XO_BASE + 2 * X_SLOT

S_X, S_K, S_V, S_WQ, S_WO, S_OUT, S_WS = 4, 8, 12, 16, 20, 24, 28
S_W = 60
S_B = 61
S_P = 62
S_BR = 63
S_T0, S_T1 = 64, 65
S_WLDS = 66
S_WCOL = 67
S_KLDS = 68
S_KG = 69
S_VG = 70
S_KR, S_VC, S_WR = 32, 36, 40
S_VLB = 77
S_XLDS = 71
S_XG = 72
S_HK, S_HV, S_KL, S_VL, S_HVC = 66, 67, 68, 69, 70
S_HS = 32
S_HM, S_HGS = 36, 37
S_C = 73
S_THR = 74
S_ITEM = 75
S_CH = 76
S_RET = 78
S_STAMP = 80
S_SIDX = 82
S_WG = 83
S_DBG = 88
S_JUNK = 92


S22 = [(0,0),(0,1),(1,1),(1,0),(2,0),(2,1),(3,1),(3,0),(3,2),(3,3),(2,3),(2,2),(1,2),(1,3),(0,3),(0,2)]


class Em:
    def __init__(self):
        self.l = []
    def __call__(self, s):
        self.l.append(s)
    def lab(self, s):
        self.l.append(s + ":")
    def text(self):
        return "\n".join(self.l)


def vr(a, n=1):
    return f"v{a}" if n == 1 else f"v[{a}:{a+n-1}]"
def ar(a, n=1):
    return f"a{a}" if n == 1 else f"a[{a}:{a+n-1}]"
def sr(a, n=1):
    return f"s{a}" if n == 1 else f"s[{a}:{a+n-1}]"


class Gen:
    def __init__(self, prof=False, prioA=1, npostQ=10, npostO=12, npre=6, fuse=True, pfl='sc1', f32=False, xnt=False, rin=1, nearlyQ=0, nearlyO=0, shift=1, lag=1, boost=2, hA=False, obf=26, obk=(1, 8), pre1=36, tailov=True, dropr=(0, 99), vt0=1, vto=False, xpromo=False, early=True, pre2=76, bto=False, hto=(), rot=True, smi=False, smT=(1, 14), xpark=True, nohf=(0,1,2,3,4,17,18,19,20,21,22,23,24), hfirst=4, chA=True, flate=False, tlate=False, epi=True, kst=4, s22=True, fre=False, cap=48, ctouch=True, qcnt=(2,2,2,3,4,4,4,4,3), o1cnt=(2,2,2,2,4,4,0,2,2,2,2,2,2,2,2), o2cnt=(2,2,3,3,4,4), obe=3, h1h=False, pre3=150, nolt=False, hdef=None, spread=True, pre_rd=True, qov=True, x2nt=True, wq0nt=False, tp1=20, lfl='sc1', ofl='', drop=0, hint=True, wo1A=56, dyn=True, prioB=1, noH=False, noW=False, noSM=False, noBm=False, noAm=False, tnt=False):
        self.e = Em()
        self.prof = prof
        self.prioA = prioA
        self.npostQ, self.npostO, self.npre, self.pfl, self.f32 = npostQ, npostO, npre, pfl, f32
        self.fuse = fuse
        self.smi, self.smT = smi, smT
        self.xpark = xpark
        self.nohf = nohf
        self.hfirst = hfirst
        self.chA = chA
        assert chA
        self.kst = kst
        self.ksh = {1: 9, 2: 10, 4: 11}[kst]
        self.flate, self.tlate, self.epi = flate, tlate, epi
        self.s22 = s22
        self.fre, self.cap = fre, cap
        self.hdone = {}
        self.ctouch = ctouch
        self.qcnt, self.o1cnt, self.o2cnt, self.obe = qcnt, o1cnt, o2cnt, obe
        self.make_sched()
        self.h1h, self.pre3 = h1h, pre3
        self.nolt = nolt
        self.hdef, self.spread, self.pre_rd, self.qov = hdef, spread, pre_rd, qov
        if hdef is not None:
            vto, hto = False, (1,)
        self.hto, self.rot = hto, rot
        self.bto, self.x2nt, self.wq0nt, self.tp1 = bto, x2nt, wq0nt, tp1
        self.early, self.pre2 = early, pre2
        self.xpromo = xpromo
        self.vt0, self.vto, self.lfl, self.ofl = vt0, vto, lfl, ofl
        self.drop = drop
        self.dropr = dropr
        self.obk, self.pre1, self.tailov = obk, pre1, tailov
        self.dyn = dyn
        self.prioB = prioB if dyn else 0
        if dyn:
            prioA, boost = 2, (3 if boost else 0)
            self.prioA = 2
        self.wo1A = wo1A
        self.hA, self.obf, self.hint = hA, obf, hint
        self.lag, self.boost = lag, boost
        self.xnt, self.rin, self.nearlyQ, self.nearlyO, self.shift = xnt, rin, nearlyQ, nearlyO, shift
        self.noH, self.noW, self.noSM, self.noBm, self.noAm = noH, noW, noSM, noBm, noAm
        self.tfl = ' nt' if tnt else ''
        self.barA = []
        self.barB = {}
        self.st2 = {175: 174}
        self.namesB = []
        self.curn = -1
        self.wpre = None
        self.bfl = set()
        self.fine = (3, 4, 12, 13, 14, 29)

    def stamp(self, vreg, name="."):
        e = self.e
        if not self.prof:
            return
        if self.prof in (4, 5) and not name.startswith('@'):
            return
        if self.prof == 4 and getattr(self, 'path', None) is not None:
            return
        if self.prof == 5 and getattr(self, 'path', None) is None:
            return
        if self.prof == 6 and (getattr(self, 'path', None) is None or not (name.startswith('KV') or name in ('.', 'HB-1', 'QB1-1'))):
            return
        if self.prof == 7 and (getattr(self, 'path', None) is None or name not in ('.', 'KV00', 'KV8', 'KV16', 'KV24', 'KV32')):
            return
        if self.prof == 8 and (getattr(self, 'path', None) is None or not (name[0] in '.hHQ' or name in ('KV00', 'KV1', 'KV2', 'KV32'))):
            return
        if self.prof == 3 and (getattr(self, 'path', None) is None or not (name in ('.', 'HB-1', 'HB2-1', 'QB1-1', 'KV00', 'KV1', 'KV8', 'KV10', 'KV16', 'KV19', 'KV24', 'KV26', 'KV32', 'OB32'))):
            return
        if getattr(self, 'path', None) == 'main':
            self.namesB.append(name)
        e(f"s_memrealtime {sr(S_STAMP,2)}")
        e(f"s_memtime {sr(S_STAMP+4,2)}")
        e("s_waitcnt lgkmcnt(0)")
        e(f"s_mov_b32 m0, s{S_SIDX}")
        e(f"v_writelane_b32 v{vreg}, s{S_STAMP}, m0")
        e(f"v_writelane_b32 v{self.st2[vreg]}, s{S_STAMP+4}, m0")
        e(f"s_add_u32 s{S_SIDX}, s{S_SIDX}, 1")

    def prologue(self):
        e = self.e
        e("s_cmp_ge_u32 s2, 256")
        e("s_cbranch_scc1 L_end")
        e("s_load_dwordx16 s[32:47], s[0:1], 0")
        e("s_load_dwordx8 s[48:55], s[0:1], 64")
        e("s_load_dwordx2 s[56:57], s[0:1], 96")
        e(f"v_lshrrev_b32 v1, 6, v0")
        e(f"s_mov_b32 s{S_WG}, s2")
        e(f"s_and_b32 s{S_P}, s2, 3")
        e(f"v_readfirstlane_b32 s3, v1")
        e(f"s_lshr_b32 s{S_B}, s2, 3")
        e(f"s_bfe_u32 s{S_BR}, s2, 0x10002")
        e(f"s_mov_b32 s{S_SIDX}, 0")
        e("v_and_b32 v0, 63, v0")
        e(f"s_and_b32 s{S_W}, s3, 3")
        if self.ctouch:
            e(f"s_cmp_eq_u32 s3, 1")
            e("s_cbranch_scc0 L_noct")
            e(f"s_getpc_b64 s[58:59]")
            e.lab("L_pc")
            e(f"s_sub_u32 s58, s58, L_pc-{NAME}_kernel")
            e(f"s_subb_u32 s59, s59, 0")
            e(f"v_lshl_add_u32 v2, v0, 5, s{S_B}")
            e(f"v_lshlrev_b32 v2, 7, v2")
            e(f"v_min_u32 v2, L_end-{NAME}_kernel, v2")
            e(f"v_mov_b32 v3, s59")
            e(f"v_add_co_u32 v2, vcc, s58, v2")
            e("s_nop 1")
            e(f"v_addc_co_u32 v3, vcc, 0, v3, vcc")
            e(f"global_load_dword v4, v[2:3], off")
            e.lab("L_noct")
        e("s_waitcnt lgkmcnt(0)")
        e("s_bitcmp1_b32 s2, 2")
        e(f"s_cselect_b64 {sr(S_X,2)}, s[42:43], s[32:33]")
        e(f"s_cselect_b64 {sr(S_K,2)}, s[44:45], s[34:35]")
        e(f"s_cselect_b64 {sr(S_V,2)}, s[46:47], s[36:37]")
        e(f"s_cselect_b64 {sr(S_WQ,2)}, s[48:49], s[38:39]")
        e(f"s_cselect_b64 {sr(S_WO,2)}, s[50:51], s[40:41]")
        def addbase(srd, sreg):
            e(f"s_add_u32 s{srd}, s{srd}, s{sreg}")
            e(f"s_addc_u32 s{srd+1}, s{srd+1}, 0")
        e(f"s_mul_i32 s{S_T0}, s{S_B}, 57344")
        addbase(S_X, S_T0)
        e(f"s_lshl_b32 s{S_T0}, s{S_B}, 21")
        e(f"s_lshl_b32 s{S_T1}, s{S_P}, 19")
        e(f"s_add_u32 s{S_T0}, s{S_T0}, s{S_T1}")
        addbase(S_K, S_T0)
        addbase(S_V, S_T0)
        e(f"s_lshl_b32 s{S_T0}, s{S_P}, 11")
        addbase(S_WQ, S_T0)
        e(f"s_sub_u32 s{S_WQ+2}, 3670016, s{S_T0}")
        e(f"s_mul_i32 s{S_T0}, s{S_P}, 917504")
        addbase(S_WO, S_T0)
        e(f"s_mov_b32 s{S_X+2}, 57344")
        e(f"s_mov_b32 s{S_K+2}, 524288")
        e(f"s_mov_b32 s{S_V+2}, 524288")
        e(f"s_mov_b32 s{S_WO+2}, 917504")
        e(f"s_mov_b64 {sr(S_OUT,2)}, s[52:53]")
        e(f"s_mov_b32 s{S_OUT+2}, 3670016")
        e(f"s_mov_b64 {sr(S_WS,2)}, s[56:57]")
        e(f"s_mov_b32 s{S_WS+2}, 67108864")
        e(f"s_mov_b64 {sr(S_DBG,2)}, s[54:55]")
        e(f"s_mov_b32 s{S_DBG+2}, 256")
        for s in (S_X, S_K, S_V, S_WQ, S_WO, S_OUT, S_WS, S_DBG):
            e(f"s_mov_b32 s{s+3}, 0x20000")
        e("s_cmp_lt_u32 s3, 4")
        e("s_cbranch_scc1 L_A")

    def tr_addr(self, dst, base_imm=None, base_sreg=None, t0=None, t1=None, t2=None):
        e = self.e
        e(f"v_bfe_u32 v{t0}, v0, 2, 3")
        e(f"v_lshrrev_b32 v{t1}, 5, v0")
        e(f"v_lshlrev_b32 v{t1}, 10, v{t1}")
        e(f"v_lshl_add_u32 v{t1}, v{t0}, 7, v{t1}")
        e(f"v_and_b32 v{t2}, 3, v0")
        e(f"v_lshl_add_u32 v{t1}, v{t2}, 3, v{t1}")
        if base_imm:
            e(f"v_add_u32 v{t1}, {base_imm}, v{t1}")
        if base_sreg is not None:
            e(f"v_add_u32 v{t1}, s{base_sreg}, v{t1}")
        e(f"v_lshrrev_b32 v{t0}, 1, v{t0}")
        for u in range(4):
            e(f"v_xor_b32 v{t2}, {u}, v{t0}")
            e(f"v_lshl_add_u32 v{dst+u}, v{t2}, 5, v{t1}")

    A_P = 0
    A_S = 128
    A_T = 144
    A_KA = 160
    A_VA = 161
    A_OW = 165
    A_VX = 165
    A_VK = 166
    A_VV = 167
    A_NM = 168
    A_L = 174
    A_TS = 170
    A_ST = 175

    def barA_(self, name, times=1):
        if self.prof == 2:
            self.stamp(self.A_ST)
        self.e("s_barrier")
        self.barA.append(name)
        if self.prof != 2:
            self.stamp(self.A_ST)

    def xreg(self, xp):
        tile = 2*self.xfirst[xp] + (sorted(x for x in self.xfirst if self.xfirst[x] == self.xfirst[xp]).index(xp))
        assert tile < 16 and tile <= 2*self.xfirst[xp] + 1
        return self.A_P + 8*tile

    def kbuf(self, f):
        b = f % 8
        return ('a', 64 + 4*b) if b < 4 else ('v', self.A_T + 4*(b - 4))

    def vbuf(self, f, half):
        bp = ((f >> 1) + half) % 3
        return ('a', 64 + 8*bp + 4*(f & 1)) if bp < 2 else ('v', 166 + 4*(f & 1))

    @staticmethod
    def rg(b, off, n):
        return (ar if b[0] == 'a' else vr)(b[1] + off, n)

    def k_read(self, f, slot, tile):
        mt, s = f >> 3, f & 7
        off = slot * KV_SLOT + tile * 16896 + mt * 8448 + s * 64
        self.e(f"ds_read_b128 {self.rg(self.kbuf(f), 0, 4)}, v{self.A_KA} offset:{off}")

    def v_read(self, f, slot, parts=(0, 1)):
        u, T = f >> 3, f & 7
        off = slot * KV_SLOT + T * 4096
        for t in parts:
            self.e(f"ds_read_b64_tr_b16 {self.rg(self.vbuf(f, slot), 2*t, 2)}, v{self.A_VA+u} offset:{off+2048*t}")

    def lane16(self, dst, jsh, qsh, base):
        e = self.e
        e(f"v_mbcnt_lo_u32_b32 v{dst}, -1, 0")
        e(f"v_mbcnt_hi_u32_b32 v{dst}, -1, v{dst}")
        e(f"s_lshr_b32 s{S_T0}, s{S_W}, 1")
        e(f"s_and_b32 s{S_T1}, s{S_W}, 1")
        e(f"s_lshl_b32 s{S_T0}, s{S_T0}, {jsh}")
        e(f"s_lshl_b32 s{S_T1}, s{S_T1}, {qsh}")
        e(f"s_add_u32 s{S_T0}, s{S_T0}, s{S_T1}")
        e(f"s_add_u32 s{S_T0}, s{S_T0}, {base}")
        e(f"v_lshl_add_u32 v{dst}, v{dst}, 4, s{S_T0}")

    def q_read(self):
        e = self.e
        qa = self.A_OW
        e(f"v_add_u32 v{qa}, s{S_HV}, v{qa}")
        for s in range(8):
            for cb in range(2):
                off = (s >> 2) * 16384 + cb * 4096 + (s & 3) * 1024
                e(f"ds_read_b128 {ar(8*s+4*cb,4)}, v{qa} offset:{off}")
        e(f"v_subrev_u32 v{qa}, s{S_HV}, v{qa}")

    def dma_voffs(self, VX, VK, VV, VWO, VWQ, a):
        e = self.e
        b, c, d = a + 1, a + 2, a + 3
        e(f"v_lshrrev_b32 v{a}, 3, v0")
        e(f"v_bfe_u32 v{b}, v0, 4, 2")
        e(f"v_and_b32 v{c}, 7, v0")
        e(f"v_xor_b32 v{VX}, v{c}, v{b}")
        e(f"v_lshlrev_b32 v{VX}, 4, v{VX}")
        e(f"v_mul_u32_u24 v{d}, 896, v{a}")
        e(f"v_add_u32 v{VX}, v{VX}, v{d}")
        yield
        e(f"v_lshlrev_b32 v{b}, 1, v{b}")
        e(f"v_xor_b32 v{c}, v{c}, v{b}")
        e(f"v_lshlrev_b32 v{c}, 4, v{c}")
        if VWO is not None:
            e(f"v_add_u32 v{VWO}, v{c}, v{d}")
        if VV is not None:
            e(f"v_lshl_add_u32 v{VV}, v{a}, {self.ksh}, v{c}")
        e(f"v_lshrrev_b32 v{b}, 5, v0")
        if VWQ is not None:
            e(f"v_and_b32 v{d}, 3, v{a}")
            e(f"v_lshl_add_u32 v{VWQ}, v{d}, 13, v{c}")
            e(f"v_lshl_add_u32 v{VWQ}, v{b}, 16, v{VWQ}")
        e(f"v_and_b32 v{c}, 31, v0")
        e(f"v_xor_b32 v{c}, v{c}, v{b}")
        e(f"v_lshlrev_b32 v{c}, 4, v{c}")
        e(f"v_lshl_add_u32 v{VK}, v{b}, {self.ksh}, v{c}")
        yield

    def A_Hops(self, kind, slot, gs, gimm):
        e = self.e
        ops = []
        if self.noH or not self.hA:
            return [lambda pre: None]*8
        for k in range(8):
            def op(pre, k=k):
                if kind == 'K':
                    if pre:
                        e(f"s_add_u32 m0, s{S_KL}, {slot*KV_SLOT + k*1056}")
                        e(f"s_add_u32 s{S_T0}, s{gs}, {gimm + k*4096}")
                    else:
                        e(f"buffer_load_dwordx4 v{self.A_VK}, {sr(S_K,4)}, s{S_T0} offen nt lds")
                elif kind == 'V':
                    if pre:
                        if k % 4 == 0:
                            e(f"s_add_u32 m0, s{S_VL}, {slot*KV_SLOT + k*1024}")
                        e(f"s_add_u32 s{S_T0}, s{gs}, {gimm + k*16384 - (k % 4)*1024}")
                    else:
                        e(f"buffer_load_dwordx4 v{self.A_VV}, {sr(S_V,4)}, s{S_T0} offen offset:{(k%4)*1024} nt lds")
                else:
                    if pre:
                        if k:
                            e(f"s_add_u32 m0, m0, s{S_HM}")
                            e(f"s_add_u32 s{S_T1}, s{S_T1}, s{S_HGS}")
                    else:
                        e(f"buffer_load_dwordx4 v{self.A_NM}, {sr(S_HS,4)}, s{S_T1} offen nt lds")
            ops.append(op)
        return ops

    def xlane(self, op, x, t):
        e = self.e
        e(f"v_mov_b32 v{t}, v{x}")
        e("s_nop 1")
        e(f"v_permlane32_swap_b32 v{t}, v{x}")
        e("s_nop 1")
        e(f"{op} v{x}, v{x}, v{t}")
        e(f"v_mov_b32 v{t}, v{x}")
        e("s_nop 1")
        e(f"v_permlane16_swap_b32 v{t}, v{x}")
        e("s_nop 1")
        e(f"{op} v{x}, v{x}, v{t}")

    def tile_max(self, cb, dst, t):
        e = self.e
        S = self.A_S
        r = [S + 4*cb + k for k in range(4)] + [S + 8 + 4*cb + k for k in range(4)]
        e(f"v_max3_f32 v{dst}, v{r[0]}, v{r[1]}, v{r[2]}")
        e(f"v_max3_f32 v{dst}, v{dst}, v{r[3]}, v{r[4]}")
        e(f"v_max3_f32 v{dst}, v{dst}, v{r[5]}, v{r[6]}")
        e(f"v_max_f32 v{dst}, v{dst}, v{r[7]}")
        self.xlane("v_max_f32", dst, t)

    def sm_split(self, T):
        return self.smi and self.smT[0] <= T <= self.smT[1]

    def sm_tmp(self, T, gi):
        return self.A_P + 8*(T + 1) + 4*gi if (self.sm_split(T) and gi < 2) else self.A_T + 4*gi

    def sm_fma(self, T, gi):
        mt, cb, t = gi >> 1, gi & 1, self.sm_tmp(T, gi)
        return [lambda r=r: self.e(f"v_fma_f32 v{t+r}, v{self.A_S+8*mt+4*cb+r}, s{S_C}, v{self.A_NM+cb}") for r in range(4)]

    def sm_exp(self, T, gi):
        t = self.sm_tmp(T, gi)
        return [lambda r=r: self.e(f"v_exp_f32 v{t+r}, v{t+r}") for r in range(4)]

    def softmax(self, T):
        e = self.e
        S, TT, P = self.A_S, self.A_T, self.A_P
        if T == 0:
            for cb in range(2):
                self.tile_max(cb, TT + cb, TT + 2)
                e(f"v_mul_f32 v{self.A_NM+cb}, s{S_C}, v{TT+cb}")
                e(f"v_sub_f32 v{self.A_NM+cb}, 0, v{self.A_NM+cb}")
                e(f"v_mov_b32 v{self.A_L+cb}, 0")
        e.lab(f"L_sm{T}")
        split = self.sm_split(T)
        fma = lambda gi: [op() for op in self.sm_fma(T, gi)]
        exp = lambda gi: [op() for op in self.sm_exp(T, gi)]
        def fin(gi):
            mt, cb = gi >> 1, gi & 1
            t = self.sm_tmp(T, gi)
            ts = self.A_TS + cb
            if mt == 0:
                e(f"v_add_f32 v{ts}, v{t}, v{t+1}")
            else:
                e(f"v_add_f32 v{ts}, v{ts}, v{t}")
                e(f"v_add_f32 v{ts}, v{ts}, v{t+1}")
            e(f"v_cvt_pk_bf16_f32 v{P+8*T+4*cb+2*mt}, v{t}, v{t+1}")
            e(f"v_add_f32 v{ts}, v{ts}, v{t+2}")
            e(f"v_cvt_pk_bf16_f32 v{P+8*T+4*cb+2*mt+1}, v{t+2}, v{t+3}")
            e(f"v_add_f32 v{ts}, v{ts}, v{t+3}")
        if split:
            fin(0); fma(3); fin(1); fma(2); exp(3); exp(2); fin(3); fin(2)
        else:
            fma(0); fma(1); exp(0); fma(2); exp(1); fma(3); fin(0); exp(2); fin(1); exp(3); fin(2); fin(3)
        if T > 0:
            e(f"v_max_f32 v{TT}, v{self.A_TS}, v{self.A_TS+1}")
            e(f"v_cmp_lt_f32 vcc, s{S_THR}, v{TT}")
            e("s_nop 0")
            e(f"s_cbranch_vccz L_ok{T}")
            e(f"s_mov_b32 s{S_T1}, {T}")
            e(f"s_call_b64 {sr(S_RET,2)}, L_rescale")
            if split:
                fma(0); fma(1); exp(0); exp(1)
            e(f"s_branch L_sm{T}")
            e.lab(f"L_ok{T}")
            e(f"s_mov_b32 s{S_THR}, 0x47800000")
        for cb in range(2):
            e(f"v_add_f32 v{self.A_L+cb}, v{self.A_L+cb}, v{self.A_TS+cb}")

    def rescale_routine(self):
        e = self.e
        TT, P = self.A_T, self.A_P
        e.lab("L_rescale")
        for cb in range(2):
            self.tile_max(cb, TT, TT + 2)
            e(f"v_fma_f32 v{TT}, v{TT}, s{S_C}, v{self.A_NM+cb}")
            e(f"v_ceil_f32 v{TT}, v{TT}")
            e(f"v_max_f32 v{TT}, 0, v{TT}")
            e(f"v_sub_f32 v{self.A_NM+cb}, v{self.A_NM+cb}, v{TT}")
            e(f"v_min_f32 v{TT}, 0x43800000, v{TT}")
            e(f"v_cvt_i32_f32 v{TT}, v{TT}")
            e(f"v_sub_u32 v{TT}, 0, v{TT}")
            e(f"v_ldexp_f32 v{self.A_L+cb}, v{self.A_L+cb}, v{TT}")
            for T in range(15):
                if T:
                    e(f"s_cmp_le_u32 s{S_T1}, {T}")
                    e(f"s_cbranch_scc1 L_rsd{cb}")
                for k in range(4):
                    r = P + 8*T + 4*cb + k
                    e(f"v_lshlrev_b32 v{TT+4}, 16, v{r}")
                    e(f"v_and_b32 v{TT+5}, 0xffff0000, v{r}")
                    e(f"v_ldexp_f32 v{TT+4}, v{TT+4}, v{TT}")
                    e(f"v_ldexp_f32 v{TT+5}, v{TT+5}, v{TT}")
                    e(f"v_cvt_pk_bf16_f32 v{r}, v{TT+4}, v{TT+5}")
            e.lab(f"L_rsd{cb}")
        e(f"s_mov_b32 s{S_THR}, 0x7f800000")
        e(f"s_setpc_b64 {sr(S_RET,2)}")

    def streamA(self):
        e = self.e
        KA, VA, OW = self.A_KA, self.A_VA, self.A_OW
        self.stamp(self.A_ST)
        if self.prioA:
            e(f"s_setprio {self.prioA}")
        t = self.A_T
        def vtouch():
            e(f"v_and_b32 v{t+12}, 31, v0")
            e(f"v_min_u32 v{t+12}, 27, v{t+12}")
            e(f"s_mul_i32 s{S_T0}, s{S_W}, 28")
            e(f"v_add_u32 v{t+12}, s{S_T0}, v{t+12}")
            if self.vt0:
                e(f"v_lshlrev_b32 v{t+13}, 15, v{t+12}")
                if self.vt0 == 3:
                    e(f"v_lshrrev_b32 v{t+14}, 5, v0")
                    e(f"v_lshl_add_u32 v{t+13}, v{t+14}, 10, v{t+13}")
                e(f"s_lshr_b32 s{S_T0}, s{S_B}, 3")
                e(f"s_lshl_b32 s{S_T0}, s{S_T0}, 13")
                e(f"s_and_b32 s{S_T1}, s{S_B}, 7")
                e(f"s_lshl_b32 s{S_T1}, s{S_T1}, 7")
                e(f"s_add_u32 s{S_T0}, s{S_T0}, s{S_T1}")
                e(f"buffer_load_dword v{t+14}, v{t+13}, {sr(S_WQ,4)}, s{S_T0} offen{' nt' if self.vt0 == 2 else ''}")
            else:
                self.stouch_wq(0, 0, 56, 1)
        if not self.tlate:
            vtouch()
        a, b, c = t + 4, t + 5, t + 6
        e(f"v_bfe_u32 v{a}, v0, 1, 3")
        e(f"v_mul_u32_u24 v{KA}, 1056, v{a}")
        e(f"v_and_b32 v{a}, 1, v0")
        e(f"v_lshl_add_u32 v{KA}, v{a}, 9, v{KA}")
        e(f"v_lshrrev_b32 v{b}, 4, v0")
        e(f"v_xor_b32 v{b}, v{b}, v{a}")
        e(f"v_lshl_add_u32 v{KA}, v{b}, 4, v{KA}")
        self.tr_addr(VA, t0=a, t1=b, t2=c)
        self.lane16(OW, 13, 11, XO_BASE)
        e(f"s_lshr_b32 s{S_T0}, s{S_W}, 1")
        e(f"s_mul_i32 s{S_T0}, s{S_T0}, {32768 - 8192}")
        e(f"s_and_b32 s{S_T1}, s{S_W}, 1")
        e(f"s_mul_i32 s{S_T1}, s{S_T1}, {8192 - 2048}")
        e(f"s_add_u32 s{S_HV}, s{S_T0}, s{S_T1}")
        e(f"s_sub_u32 s{S_HV}, s{S_HV}, {XO_BASE - W_BASE}")
        e(f"s_mov_b32 s{S_C}, 0x3db8aa3b")
        e(f"s_mov_b32 s{S_THR}, 0x47800000")
        e(f"s_mov_b32 s{S_ITEM}, 0")
        if self.tlate:
            vtouch()
        segs = [('q', 56)] if self.vt0 != 3 else []
        if 0 not in self.hto:
            segs.append(('o0', 56))
        if not self.vto and not self.bto and 1 not in self.hto:
            segs.append(('o1', self.wo1A))
        def touch_range(a, b):
            pos = 0
            for kind, n in segs:
                lo, hi = max(a - pos, 0), min(b - pos, n)
                if lo < hi:
                    if kind == 'q':
                        self.stouch_wq(1, lo, hi, 1)
                    else:
                        self.stouch_wo(int(kind[1]), lo, hi)
                pos += n
        touch_range(0, self.pre1)
        self.barA_("HB")
        if self.early:
            touch_range(self.pre1, self.pre2)
            self.barA_("HB2")
            if self.xpark:
                e(f"s_mul_i32 s{S_T0}, s{S_W}, {2*1088}")
                e(f"v_lshl_add_u32 v{t+8}, v0, 4, s{S_T0}")
                e(f"v_add_u32 v166, {self.xloc(1, 0)}, v{t+8}")
                e(f"v_add_u32 v167, {XO_BASE}, v{t+8}")
                e(f"v_add_u32 v{t+8}, {KV_SLOT}, v{t+8}")
                for xp in range(1, 7):
                    loc = self.xloc(0, xp)
                    reg, off = (167, loc - XO_BASE) if loc >= XO_BASE else (t + 8, loc - KV_SLOT)
                    for k in range(2):
                        e(f"ds_read_b128 {vr(self.xreg(xp) + 4*k, 4)}, v{reg} offset:{off + k*1088}")
            if self.h1h:
                touch_range(self.pre2, self.pre3)
                self.barA_("HB3")
                touch_range(self.pre3, 999)
            else:
                touch_range(self.pre2, 999)
        else:
            touch_range(self.pre1, 999)
        e("s_waitcnt vmcnt(0)")
        if self.xpromo:
            e(f"v_lshlrev_b32 v{t+13}, 7, v0")
            e(f"s_lshl_b32 s{S_T0}, s{S_W}, 13")
            e(f"buffer_load_dword v{t+14}, v{t+13}, {sr(S_X,4)}, s{S_T0} offen")
            e(f"s_add_u32 s{S_T0}, s{S_T0}, 32768")
            e(f"buffer_load_dword v{t+15}, v{t+13}, {sr(S_X,4)}, s{S_T0} offen")
            e("s_waitcnt vmcnt(0)")
        self.barA_("QB1")
        self.q_read()
        e("s_waitcnt lgkmcnt(0)")
        self.barA_("KV0")
        for f in range(4):
            self.k_read(f, 0, 0)
        barA_pre = list(self.barA)
        self.barA = []
        e.lab("L_item")
        if self.dyn:
            e(f"s_setprio {self.prioA}")
        S = self.A_S
        for T in range(16):
            slot, tile = (T >> 1) & 1, T & 1
            ph = T >> 1
            e("s_waitcnt lgkmcnt(2)")
            early = []
            if self.sm_split(T) and not self.noSM:
                early = self.sm_fma(T, 1) + self.sm_fma(T, 0) + self.sm_exp(T, 1) + self.sm_exp(T, 0)
            plan = {(4, 2): 2, (4, 3): 1, (5, 0): 1, (5, 1): 1, (5, 2): 2, (5, 3): 1, (6, 0): 1, (6, 1): 1, (6, 2): 1, (6, 3): 1,
                    (7, 0): 1, (7, 1): 1, (7, 2): 1, (7, 3): 1}
            for p in range(8):
                mt, q = p >> 2, p & 3
                c0 = q & 1
                seq = [(2*p, c0), (2*p + 1, c0), (2*p + 1, 1 - c0), (2*p, 1 - c0)]
                for k, (f, cb) in enumerate(seq):
                    d = vr(S + 8*mt + 4*cb, 4)
                    if not self.noAm:
                        e(f"v_mfma_f32_16x16x32_bf16 {d}, {self.rg(self.kbuf(f), 0, 4)}, {ar(8*(f & 7) + 4*cb, 4)}, {0 if q == 0 and k in (0, 2) else d}")
                    if k < 2:
                        fn = 2*(p + 2) + k
                        if fn < 16:
                            self.k_read(fn, slot, tile)
                        elif tile == 0:
                            self.k_read(fn - 16, slot, 1)
                    for _ in range(plan.get((p, k), 0)):
                        if early:
                            early.pop(0)()
                xw = [xp for xp, m in self.xfirst.items() if m == ph + 1]
                if self.xpark and tile == 0 and p == 0 and xw:
                    e(f"s_cmp_eq_u32 s{S_ITEM}, 0")
                    e(f"s_cbranch_scc0 L_nxw{ph}")
                    for xp in xw:
                        loc = self.xloc(1, xp)
                        reg, off = (167, loc - XO_BASE) if loc >= XO_BASE else (166, 0)
                        for k in range(2):
                            e(f"ds_write_b128 v{reg}, {vr(self.xreg(xp) + 4*k, 4)} offset:{off + k*1088}")
                    e.lab(f"L_nxw{ph}")
                if 16 in self.ob and (T, p) == ((0, 2) if self.ob[16] == 'early' else (1, 4)):
                    e(f"s_cmp_eq_u32 s{S_ITEM}, 0")
                    e("s_cbranch_scc1 L_nobk")
                    e("s_barrier")
                    e.lab("L_nobk")
                if tile == 1 and p == 6:
                    e("s_waitcnt lgkmcnt(0)")
                    if self.fre:
                        e("s_barrier")
                        self.barA.append("FR")
                    self.barA_("KV")
                    for g in range(4):
                        if T < 15:
                            self.k_read(g, slot ^ 1, 0)
                        else:
                            self.v_read(g, 0)
                elif p < 7:
                    e("s_waitcnt lgkmcnt(2)")
            if self.dyn:
                e("s_setprio 0")
            assert not early
            e("s_nop 1" if T else "s_nop 7")
            if not self.noSM:
                self.softmax(T)
            if self.dyn and T < 15:
                e(f"s_setprio {self.prioA}")
        TT = self.A_T
        for cb in range(2):
            self.xlane("v_add_f32", self.A_L + cb, TT)
            e(f"v_rcp_f32 v{self.A_L+cb}, v{self.A_L+cb}")
        barA_K = list(self.barA)
        self.barA = []
        e(f"s_mov_b32 s{S_CH}, 0")
        e.lab("L_chunk")
        if self.dyn:
            e(f"s_setprio {self.prioA}")
        O = self.A_S
        def epi_ops(u2):
            ops = []
            for cb in range(2):
                d = O + 16*u2 + 4*cb
                for x in list(range(d, d + 4)) + list(range(d + 8, d + 12)):
                    ops.append(lambda x=x, cb=cb: e(f"v_mul_f32 v{x}, v{x}, v{self.A_L+cb}"))
                for k, x in enumerate((d, d + 2, d + 8, d + 10)):
                    ops.append(lambda k=k, x=x, d=d: e(f"v_cvt_pk_bf16_f32 v{d+k}, v{x}, v{x+1}"))
            return ops
        epi0, nepi = epi_ops(0), [0]
        def epi_some(n):
            for op in epi0[nepi[0]:nepi[0] + n]:
                op()
            nepi[0] += n
        for half in range(2):
            if half == 1:
                e(f"s_or_b32 s{S_T0}, s{S_ITEM}, s{S_CH}")
                e(f"s_cbranch_scc1 L_noq2")
                self.q_read()
                e.lab("L_noq2")
            e("s_waitcnt lgkmcnt(4)")
            for p in range(16):
                u, q = p >> 2, p & 3
                c0 = q & 1
                seq = [(2*p, c0), (2*p + 1, c0), (2*p + 1, 1 - c0), (2*p, 1 - c0)]
                for k, (f, cb) in enumerate(seq):
                    d = vr(O + 8*u + 4*cb, 4)
                    Tg = 8*half + (f & 7)
                    if not self.noAm:
                        e(f"v_mfma_f32_16x16x32_bf16 {d}, {self.rg(self.vbuf(f, half), 0, 4)}, {vr(self.A_P + 8*Tg + 4*cb, 4)}, {0 if half == 0 and q == 0 and k in (0, 2) else d}")
                    if p + 2 < 16:
                        self.v_read(2*(p + 2) + (k >> 1), half, (k & 1,))
                    if self.epi and half == 1 and p >= 14:
                        epi_some(2)
                for kind, pos in (('early', (self.obe + 1)//2), ('late', self.obf//2)):
                    mask = sum(1 << (4*it + cc) for it in range(2) for cc in range(1, 4) if self.ob.get(8 + 2*cc + 16*it) == kind)
                    if half == 0 and p == pos and mask:
                        e(f"s_lshl2_add_u32 s{S_T0}, s{S_ITEM}, s{S_CH}")
                        e(f"s_bitcmp1_b32 {mask}, s{S_T0}")
                        e(f"s_cbranch_scc0 L_nob{kind}")
                        e("s_barrier")
                        e.lab(f"L_nob{kind}")
                if half == 1 and p == 2:
                    e(f"s_cmp_eq_u32 s{S_CH}, 0")
                    e("s_cbranch_scc0 L_nqb")
                    e("s_barrier")
                    e.lab("L_nqb")
                def nxt_reads(fs, tag):
                    if half == 0:
                        for g in fs:
                            self.v_read(g, 1)
                        return
                    e(f"s_cmp_eq_u32 s{S_CH}, 3")
                    e(f"s_cbranch_scc1 L_nk{tag}")
                    for g in fs:
                        self.v_read(g, 0)
                    e(f"s_branch L_nk2{tag}")
                    e.lab(f"L_nk{tag}")
                    for g in fs:
                        self.k_read(g, 0, 0)
                    e.lab(f"L_nk2{tag}")
                if p == 14:
                    e("s_waitcnt lgkmcnt(0)")
                    if self.fre:
                        e("s_barrier")
                        self.barA.append("FR")
                    self.barA_("KV")
                    nxt_reads((0, 1, 2, 3) if half == 0 else (0, 1), "a")
                elif p == 15:
                    if half == 1:
                        nxt_reads((2, 3), "b")
                else:
                    e(f"s_waitcnt lgkmcnt({4 if p < 14 else 0})")
        if self.dyn:
            e("s_setprio 0")
        if self.epi:
            for op in epi0[nepi[0]:]:
                op()
            for cb in range(2):
                e(f"ds_write_b128 v{OW}, {vr(O + 4*cb, 4)} offset:{cb*1024}")
        else:
            e("s_nop 7")
        for u2 in range(1 if self.epi else 0, 2):
            for op in epi_ops(u2):
                op()
            for cb in range(2):
                e(f"ds_write_b128 v{OW}, {vr(O + 16*u2 + 4*cb, 4)} offset:{u2*4096 + cb*1024}")
        barA_C = list(self.barA)
        e(f"s_add_u32 s{S_CH}, s{S_CH}, 1")
        e(f"s_cmp_lt_u32 s{S_CH}, 4")
        e("s_cbranch_scc1 L_chunk")
        e(f"s_add_u32 s{S_ITEM}, s{S_ITEM}, 1")
        e(f"s_cmp_lt_u32 s{S_ITEM}, 2")
        e("s_cbranch_scc1 L_item")
        seq = list(barA_pre)
        for it in range(2):
            seq += (["HX"] if it == 0 and self.hA else []) + (["OB"] if it == 1 and 16 in self.ob else []) + barA_K
            for c in range(4):
                x = list(barA_C)
                if c == 0:
                    x.insert(2 if self.fre else 1, "QB2")
                elif 8 + 2*c + 16*it in self.ob:
                    x.insert(0, "OB")
                seq += x
        e("s_waitcnt lgkmcnt(0)")
        self.barA_("OB")
        self.barA = seq + ["OB"]
        if self.prof:
            self.stamp(self.A_ST)
            e(f"s_cmp_eq_u32 s{S_W}, 0")
            e("s_cbranch_scc0 L_end")
            self.prof_store(self.A_ST, 0, 0)
        e("s_endpgm")
        self.rescale_routine()

    def prof_store(self, vreg, role, tmp):
        e = self.e
        e(f"v_mbcnt_lo_u32_b32 v{tmp}, -1, 0")
        e(f"v_mbcnt_hi_u32_b32 v{tmp}, -1, v{tmp}")
        e(f"v_lshlrev_b32 v{tmp}, 2, v{tmp}")
        e(f"s_lshl_b32 s{S_T0}, s{S_WG}, 9")
        e(f"s_add_u32 s{S_T0}, s{S_T0}, {0x3000000 + role*256}")
        e(f"buffer_store_dword v{vreg}, v{tmp}, {sr(S_WS,4)}, s{S_T0} offen")
        e(f"s_add_u32 s{S_T0}, s{S_T0}, 0x200000")
        e(f"buffer_store_dword v{self.st2[vreg]}, v{tmp}, {sr(S_WS,4)}, s{S_T0} offen")
        e("s_waitcnt vmcnt(0)")

    def stouch_wq(self, item, k0, k1, step):
        e = self.e
        if k0 >= k1:
            return
        e(f"s_lshl_b32 s{S_T0}, s{S_W}, 14")
        e(f"s_lshr_b32 s{S_T1}, s{S_B}, 4")
        e(f"s_lshl_b32 s{S_T1}, s{S_T1}, 13")
        e(f"s_add_u32 s{S_T0}, s{S_T0}, s{S_T1}")
        e(f"s_and_b32 s{S_T1}, s{S_B}, 15")
        e(f"s_lshl_b32 s{S_T1}, s{S_T1}, 6")
        e(f"s_add_u32 s{S_T0}, s{S_T0}, s{S_T1}")
        cur = 0
        for k in range(k0, k1, step):
            if k // 8 != cur:
                e(f"s_add_u32 s{S_T0}, s{S_T0}, {(k // 8 - cur)*8*65536}")
                cur = k // 8
            e(f"s_buffer_load_dword s{S_JUNK + k % 4}, {sr(S_WQ,4)}, s{S_T0} offset:{(k % 8)*65536 + item*1024}")

    def stouch_wo(self, item, k0, k1):
        e = self.e
        e(f"s_lshl_b32 s{S_T0}, s{S_W}, 11")
        e(f"s_lshl_b32 s{S_T1}, s{S_B}, 6")
        e(f"s_add_u32 s{S_T0}, s{S_T0}, s{S_T1}")
        for k in range(k0, k1):
            e(f"s_buffer_load_dword s{S_JUNK + k % 4}, {sr(S_WO,4)}, s{S_T0} offset:{k*8192 + item*458752}")

    B_OR = 128
    B_TMP = 132
    B_BF = 32
    B_WT = 160
    B_XR = 164
    B_XR0 = 165
    B_VWQ = 166
    B_VWO = 167
    B_VV = 168
    B_VK = 169
    B_VX = 170
    B_QW = 171
    B_LANE = 172
    B_TA, B_TD = 166, 167
    B_FIN, B_FOUT, B_FAI, B_FAO = 148, 149, 150, 151
    B_VWQ4 = 152
    B_VWO4 = 156
    B_ST = 175

    def setupB(self):
        e = self.e
        e(f"s_mul_i32 s{S_XLDS}, s{S_W}, {2*1088}")
        e(f"s_mul_i32 s{S_XG}, s{S_W}, {16*896}")
        g = self.dma_voffs(self.B_VX, self.B_VK, self.B_VV, self.B_VWO4, self.B_VWQ4, self.B_TMP)
        next(g)
        if not self.flate:
            self.flag_loads()
        for xp in range(2 if self.early else 7):
            for op in self.X_ops(xp, self.xloc(0, xp), "X0", self.xnt):
                op()
        e(f"s_lshl_b32 s{S_WLDS}, s{S_W}, 14")
        e(f"s_add_u32 s{S_WLDS}, s{S_WLDS}, {W_BASE}")
        e(f"s_lshl_b32 s{S_WCOL}, s{S_W}, 8")
        e(f"s_mul_i32 s{S_KLDS}, s{S_W}, {8*1056}")
        e(f"s_lshl_b32 s{S_KG}, s{S_W}, {self.ksh + 4}")
        r1, r2 = 44, 45
        if self.rot:
            e(f"s_and_b32 s{r1}, s{S_B}, 3")
            e(f"s_bfe_u32 s{r2}, s{S_B}, 0x20002")
        else:
            e(f"s_mov_b32 s{r1}, 0")
            e(f"s_mov_b32 s{r2}, 0")
        K = self.kst
        e(f"s_add_u32 s{S_VG}, s{S_W}, s{r1}")
        e(f"s_and_b32 s{S_VG}, s{S_VG}, {K - 1}")
        e(f"s_lshl_b32 s{S_VG}, s{S_VG}, 9")
        e(f"s_lshr_b32 s{S_T0}, s{S_W}, {self.ksh - 9}")
        e(f"s_lshl_b32 s{S_T0}, s{S_T0}, {self.ksh + 6}")
        e(f"s_add_u32 s{S_VG}, s{S_VG}, s{S_T0}")
        for r in range(4):
            e(f"s_add_u32 s{S_T0}, s{r1}, {r}")
            e(f"s_and_b32 s{S_T0}, s{S_T0}, {K - 1}")
            e(f"s_lshl_b32 s{S_T0}, s{S_T0}, 9")
            e(f"s_add_u32 s{S_KR+r}, s{S_KG}, s{S_T0}")
            e(f"s_add_u32 s{S_T0}, s{r2}, {r}")
            e(f"s_and_b32 s{S_T0}, s{S_T0}, 3")
            e(f"s_lshl_b32 s{S_T1}, s{S_T0}, 7")
            e(f"s_add_u32 s{S_VC+r}, s{S_VG}, s{S_T1}")
            e(f"s_mul_i32 s{S_T1}, s{S_T0}, {64*896}")
            e(f"s_add_u32 s{S_WR+r}, s{S_WCOL}, s{S_T1}")
        e(f"s_lshl_b32 s{S_VLB}, s{S_W}, 13")
        next(g)
        for pc in range(1, 4):
            e(f"v_add_u32 v{self.B_VWQ4+pc}, {(16*(pc & 1) + 4*(pc >> 1))*8192 - 1024*pc}, v{self.B_VWQ4}")

    def flag_loads(self):
        e = self.e
        e(f"v_and_b32 v{self.B_FAO}, 3, v0")
        e(f"v_lshlrev_b32 v{self.B_FAI}, 2, v{self.B_FAO}")
        e(f"s_lshl_b32 s{S_T0}, s{S_WG}, 7")
        e(f"s_add_u32 s{S_T0}, s{S_T0}, {FLAG_BASE}")
        e(f"v_add_u32 v{self.B_FAI}, s{S_T0}, v{self.B_FAI}")
        e(f"s_mul_i32 s{S_T1}, s{S_P}, 124")
        e(f"s_sub_u32 s{S_T0}, s{S_T0}, s{S_T1}")
        e(f"v_lshl_add_u32 v{self.B_FAO}, v{self.B_FAO}, 7, s{S_T0}")
        e(f"buffer_load_dword v{self.B_FIN}, v{self.B_FAI}, {sr(S_WS,4)}, 0 offen sc1")
        e(f"buffer_load_dword v{self.B_FOUT}, v{self.B_FAO}, {sr(S_WS,4)}, 0 offen sc1")
        self.vmq += ["F", "F"]

    def setupB2(self):
        e = self.e
        a, b, c = self.B_TMP, self.B_TMP + 1, self.B_TMP + 2
        self.tr_addr(self.B_WT, base_sreg=S_WLDS, t0=a, t1=b, t2=c)
        e(f"v_bfe_u32 v{a}, v0, 3, 1")
        e(f"v_mul_u32_u24 v{self.B_XR0}, 1088, v{a}")
        e(f"v_and_b32 v{a}, 7, v0")
        e(f"v_lshl_add_u32 v{self.B_XR0}, v{a}, 7, v{self.B_XR0}")
        e(f"v_lshrrev_b32 v{a}, 1, v{a}")
        e(f"v_lshrrev_b32 v{b}, 4, v0")
        e(f"v_xor_b32 v{a}, v{a}, v{b}")
        e(f"v_lshl_add_u32 v{self.B_XR0}, v{a}, 4, v{self.B_XR0}")
        e(f"v_add_u32 v{self.B_XR}, {XO_BASE}, v{self.B_XR0}")
        e(f"v_add_u32 v{self.B_XR0}, {KV_SLOT}, v{self.B_XR0}")
        for rb in range(4):
            e(f"s_add_u32 s{S_T0}, s{S_P}, {rb}")
            e(f"s_and_b32 s{S_T0}, s{S_T0}, 3")
            e(f"s_lshl_b32 s{S_T0}, s{S_T0}, 10")
            e(f"s_add_u32 s{S_T0}, s{S_T0}, {XO_BASE}")
            e(f"v_lshl_add_u32 v{self.B_OR+rb}, v0, 4, s{S_T0}")
        e(f"v_lshrrev_b32 v{a}, 5, v0")
        e(f"v_lshlrev_b32 v{a}, 8, v{a}")
        e(f"v_and_b32 v{b}, 15, v0")
        e(f"v_lshl_add_u32 v{a}, v{b}, 4, v{a}")
        e(f"v_bfe_u32 v{b}, v0, 4, 1")
        e(f"v_lshl_add_u32 v{a}, v{b}, 3, v{a}")
        e(f"v_add_u32 v{self.B_QW}, s{S_WLDS}, v{a}")
        e(f"v_mov_b32 v{self.B_LANE}, v0")
        e(f"v_min_u32 v{self.B_TA}, 27, v0")
        e(f"s_mul_i32 s{S_T0}, s{S_W}, 28")
        e(f"v_add_u32 v{self.B_TA}, s{S_T0}, v{self.B_TA}")
        e(f"v_lshlrev_b32 v{self.B_TA}, 12, v{self.B_TA}")
        e(f"s_lshl_b32 s{S_T0}, s{S_B}, 7")
        e(f"v_add_u32 v{self.B_TA}, s{S_T0}, v{self.B_TA}")
        for pc in range(1, 4):
            e(f"v_add_u32 v{self.B_VWO4+pc}, {(16*(pc >> 1) + 8*(pc & 1))*896 - 1024*pc}, v{self.B_VWO4}")

    def xloc(self, item, xp):
        if xp == 0 or (item == 1 and xp % 3 == 0):
            return KV_SLOT + 4 * X_SLOT
        if item == 1:
            return XO_BASE + (xp % 3 - 1) * X_SLOT
        if xp < 5:
            return KV_SLOT + (xp - 1) * X_SLOT
        return XO_BASE + (xp - 5) * X_SLOT

    def dma(self, lds_s, lds_imm, g_s, g_imm, vaddr, srd, tag, nt=False):
        def emit():
            e = self.e
            e(f"s_add_u32 m0, s{lds_s}, {lds_imm}")
            e(f"s_add_u32 s{S_T0}, s{g_s}, {g_imm}")
            e(f"buffer_load_dwordx4 v{vaddr}, {sr(srd,4)}, s{S_T0} offen{' nt' if nt else ''} lds")
            self.vmq.append(tag)
        return emit

    def H_ops(self, n):
        item, ph = n >> 4, n & 15
        slot = n & 1
        ops = []
        if self.noH:
            return ops
        for k in range(8):
            if ph < 8:
                ops.append(self.dma(S_KLDS, slot*KV_SLOT + k*1056, S_KR + (ph & 3), item*262144 + (ph // self.kst)*32768*self.kst + k*1024*self.kst,
                                    self.B_VK, S_K, f"H{n}", nt=True))
            else:
                c, half = (ph - 8) >> 1, ph & 1
                ops.append(self.dma(S_VLB, slot*KV_SLOT + k*1024, S_VC + c, item*262144 + half*131072 + k*4096*self.kst,
                                    self.B_VV, S_V, f"H{n}", nt=True))
        return ops

    def X_ops(self, xp, loc, tag, nt=False):
        return [self.dma(S_XLDS, loc + k*1088, S_XG, k*7168 + xp*128, self.B_VX, S_X, tag, nt=nt) for k in range(2)]

    def W_ops(self, wd, hs):
        ks, cbk = hs >> 1, hs & 1
        ops = []
        if self.noW and wd[:2] != ('Q', 0):
            return ops
        if wd[0] == 'Q':
            _, item, xp = wd
            g = 32*(2*xp + ks)*8192 + item*1024 + cbk*128
            vb, srd, gs = self.B_VWQ4, S_WQ, S_WCOL
        else:
            _, item, c, j = wd
            g = (item*512 + 256*j + 32*ks)*896 + cbk*128
            vb, srd, gs = self.B_VWO4, S_WO, S_WR + c
        for pc in range(4):
            def emit(pc=pc):
                e = self.e
                if pc == 0:
                    e(f"s_add_u32 m0, s{S_WLDS}, {hs*4096}")
                    e(f"s_add_u32 s{S_T0}, s{gs}, {g}")
                e(f"buffer_load_dwordx4 v{vb+pc}, {sr(srd,4)}, s{S_T0} offen offset:{pc*1024}{' nt' if self.wq0nt and wd[:2] == ('Q', 0) else ''} lds")
                self.vmq.append((wd, hs))
            ops.append(emit)
        return ops

    def wo_touch(self, nt):
        ops = []
        for item in self.hto:
            def tch(item=item):
                self.e(f"s_mov_b32 s{S_T0}, {item*458752}")
                self.e(f"buffer_load_dword v{self.B_TD}, v{self.B_TA}, {sr(S_WO,4)}, s{S_T0} offen{' nt' if nt else ''}")
                self.vmq.append("T")
            ops.append(tch)
        return ops

    def vmwait(self, need, extra=""):
        idx = -1
        for i, t in enumerate(self.vmq):
            if t in need:
                idx = i
        if idx < 0:
            if extra:
                self.e(f"s_waitcnt {extra}")
            return
        n = len(self.vmq) - 1 - idx
        assert n <= 63, n
        self.e(f"s_waitcnt vmcnt({n}) {extra}".rstrip())
        self.vmq = self.vmq[idx+1:]

    def barB_(self, name):
        sel = 10 <= self.curn <= 16 or 26 <= self.curn <= 32
        if sel:
            self.stamp(self.B_ST, f"@a{name}{self.curn}")
        self.e("s_barrier")
        if sel:
            self.stamp(self.B_ST, f"@{name}{self.curn}")
        self.barB[self.path].append(name)
        if self.prof != 2 or self.curn in self.fine or self.curn - 1 in self.fine:
            self.stamp(self.B_ST, name + str(self.curn))

    def hs_list(self, wd):
        if wd[0] == 'O' and self.path == 'w3':
            return [0, 2]
        return [0, 1, 2, 3]

    @staticmethod
    def kid(st):
        wd, hs = st
        return (wd[0], wd[1], 2*wd[2] + (hs >> 1)) if wd[0] == 'Q' else ('O', wd[1], 4*wd[2] + 2*wd[3] + (hs >> 1))

    def make_sched(self):
        P = {n: [] for n in range(34)}
        def fill(seq, base, cnt):
            k = 0
            for i, c in enumerate(cnt):
                P[base + i] += seq[k:k + c]
                k += c
            return seq[k:]
        assert not fill([(('Q', 1, xp), hs) for xp in range(7) for hs in range(4)], 0, self.qcnt)
        oseq = lambda it: [(('O', it, k >> 2, (k >> 1) & 1), 2*(k & 1) + cbk) for k in range(16) for cbk in range(2)]
        assert not fill(oseq(0), 10, self.o1cnt)
        P[32] = fill(oseq(1), 26, self.o2cnt)
        self.P = P
        self.ob = {}
        for it, base in ((0, 10), (1, 26)):
            for c in range(4):
                wp = base + 2*c
                use = [i for i, (wd, hs) in enumerate(P[wp]) if wd[:3] == ('O', it, c)]
                for n in range(wp):
                    assert not any(wd[:3] == ('O', it, c) for wd, hs in P[n])
                if use:
                    self.ob[wp] = 'early' if use[0] == 0 else 'late'
        self.xfirst, xlast = {}, {}
        for n in range(9):
            for wd, hs in P[n]:
                self.xfirst.setdefault(wd[2], n)
                xlast[wd[2]] = n
        del self.xfirst[0]
        for xp, n in self.xfirst.items():
            assert n >= 1 and (xp < 3 or xlast[xp - 3] < n - 1), (xp, n)

    def bfi(self, k):
        return k[2] % (4 if k[:2] == ('O', 0) else 3)

    def bfreg(self, k, cb4):
        b = self.bfi(k)
        return vr(self.B_TMP + 4*cb4, 4) if b == 3 else ar(self.B_BF + 16*b + 4*cb4, 4)

    def sched(self, n):
        return [st for st in self.P[n] if not (self.path == 'w3' and st[0][0] == 'O' and st[1] & 1)]

    def bf_reads(self, st):
        wd, hs = st
        k = self.kid(st)
        if k in self.bfl:
            return []
        self.bfl.add(k)
        ks = hs >> 1
        e = self.e
        ops = []
        for cb4 in range(4):
            d = self.bfreg(k, cb4)
            if wd[0] == 'Q':
                loc = self.xloc(wd[1], wd[2])
                reg = self.B_XR if loc >= XO_BASE else self.B_XR0
                off = (loc - XO_BASE if loc >= XO_BASE else loc - KV_SLOT) + cb4*2176 + ks*64
            else:
                reg = self.B_OR + cb4
                off = (2*wd[3] + ks)*4096
            ops.append(lambda d=d, off=off, reg=reg: e(f"ds_read_b128 {d}, v{reg} offset:{off}"))
        return ops

    def w_reads(self, hs, i):
        e = self.e
        ops = []
        for u in range(4):
            for t in range(2):
                d = ar(16*(i & 1) + 4*u + 2*t, 2)
                off = hs*4096 + t*2048
                ops.append(lambda d=d, off=off, u=u: e(f"ds_read_b64_tr_b16 {d}, v{self.B_WT+u} offset:{off}"))
        return ops

    def needs_ob(self, st):
        wd, hs = st
        return wd[0] == 'O' and wd[3] == 0 and hs == 0 and self.curn == (10, 26)[wd[1]] + 2*wd[2]

    def run_steps(self, steps, per_step, preload=(), upfront=()):
        e = self.e
        if self.boost:
            e(f"s_setprio {self.boost}")
        hf = self.hfirst if self.curn not in self.nohf else 0
        for op in upfront[:hf]:
            op()
        upfront = upfront[hf:]
        if self.wpre != steps[0]:
            self.vmwait([steps[0]])
            for op in self.w_reads(steps[0][1], 0):
                op()
        if self.needs_ob(steps[0]):
            for op in upfront:
                op()
            upfront = ()
            self.barB_("OB")
        for op in self.bf_reads(steps[0]):
            op()
        for op in upfront:
            op()
        if self.boost:
            e(f"s_setprio {self.prioB}")
        late = []
        for i, (wd, hs) in enumerate(steps):
            ks, cbk = hs >> 1, hs & 1
            kk = self.kid(steps[i])
            kb = self.bfi(kk)
            others = []
            nx = steps[i+1] if i + 1 < len(steps) else None
            if nx:
                self.vmwait([nx], "lgkmcnt(0)")
                if not self.needs_ob(nx):
                    others += self.bf_reads(nx)
                others += self.w_reads(nx[1], i + 1)
            else:
                e("s_waitcnt lgkmcnt(0)")
                for st in preload:
                    if self.bfi(self.kid(st)) != kb:
                        others += self.bf_reads(st)
                    else:
                        late += self.bf_reads(st)
            others += per_step(i)
            zero = ks == 0 and ((wd[0] == 'Q' and wd[2] == 0) or wd == ('O', 0, 0, 0))
            k = 0
            for u, cb4 in (S22 if self.s22 else [(u, c) for u in range(4) for c in range(4)]):
                d = vr(64*cbk + 16*u + 4*cb4, 4)
                if not (self.noBm and wd[:2] != ('Q', 0)):
                    e(f"v_mfma_f32_16x16x32_bf16 {d}, {ar(16*(i&1)+4*u,4)}, {self.bfreg(kk, cb4)}, {0 if zero else d}")
                if k < len(others):
                    others[k](); k += 1
            while k < len(others):
                others[k](); k += 1
            if nx and self.needs_ob(nx):
                if self.boost:
                    e(f"s_setprio {self.boost}")
                self.barB_("OB")
                for op in self.bf_reads(nx):
                    op()
                if self.boost:
                    e(f"s_setprio {self.prioB}")
        for op in late:
            op()

    def q_ops(self, cbk):
        e = self.e
        t = self.B_TMP
        ops = []
        for u in range(4):
            for cb4 in range(4):
                def op(u=u, cb4=cb4):
                    a = 64*cbk + 16*u + 4*cb4
                    d = t + 2*((4*u + cb4) % 8)
                    e(f"v_cvt_pk_bf16_f32 v{d}, v{a}, v{a+1}")
                    e(f"v_cvt_pk_bf16_f32 v{d+1}, v{a+2}, v{a+3}")
                    off = (cb4*4 + 2*cbk + (u >> 1))*1024 + (u & 1)*512
                    e(f"ds_write_b64 v{self.B_QW}, {vr(d,2)} offset:{off}")
                ops.append(op)
        return ops

    def q_write(self, cbks=(0, 1)):
        e = self.e
        e("s_nop 7" if cbks == (0, 1) else "s_nop 3")
        for cbk in cbks:
            for op in self.q_ops(cbk):
                op()
        e("s_waitcnt lgkmcnt(0)")

    def periodB(self, n):
        e = self.e
        self.curn = n
        steps = self.sched(n)
        nxt = self.sched(n + 1) if n < 32 else []
        self.vmwait([f"H{n}"] + [f"X1_{xp}" for xp, m in self.xfirst.items() if m == n])
        self.barB_("KV0" if n == 0 else "KV")
        hx = []
        if n + 1 <= 31 and not (n == 0 and self.h1h):
            hx += self.H_ops(n + 1)[self.hdone.get(n + 1, 0):]
        for xp, m in self.xfirst.items():
            if m == n + 1 and not self.xpark:
                hx += self.X_ops(xp, self.xloc(1, xp), f"X1_{xp}", self.x2nt)
        if n == 0:
            for st in steps:
                for op in self.W_ops(*st):
                    op()
        if not steps:
            for op in hx:
                op()
        if n == 8 and not steps:
            self.q_write()
        if n in (9, 25):
            self.barB_("QB2")
        todo = list(nxt[:len({hs for _, hs in nxt})])
        pre = []
        for it, base in ((0, 10), (1, 26)):
            for c in range(4):
                if n + 1 == (base + 2*c + 2 if c < 3 else (26 if it == 0 else -1)):
                    rest = [st for m in range(n + 1, 33) for st in self.sched(m) if st[0][:3] == ('O', it, c) and not st[1] & 1]
                    pre += rest
        if steps:
            def per(i):
                if n == 32:
                    rest = [st for st in steps[i+1:] if st[1] == steps[i][1]]
                    if self.tailov and self.path == 'main' and i == len(steps) - 2:
                        return [self.pub_setup]
                    if self.tailov and self.path == 'main' and i == len(steps) - 1:
                        return [lambda: None]*3 + self.pub_ops(0)
                    return self.W_ops(*rest[0]) if rest else []
                free = {hs for _, hs in steps[:i+1-self.lag]} | ({0, 1, 2, 3} - {hs for _, hs in steps})
                r = []
                if inter and i < 2:
                    nh = (len(hx) + 1)//2 if (i == 0 and len(steps) > 2) else len(hx)
                    r += hx[:nh]
                    del hx[:nh]
                while todo and todo[0][1] in free and i >= self.rin:
                    r += self.W_ops(*todo.pop(0))
                if n == 8 and i == len(steps) - 1:
                    r += self.q_ops(0)
                return r
            a_epi = n in (10, 12, 14, 16, 26, 28, 30)
            inter = self.hint and a_epi and not self.needs_ob(steps[0])
            last_k = self.kid(steps[-1])
            newk = [self.kid(st) for st in pre if self.kid(st) not in self.bfl and self.kid(st) not in map(self.kid, steps)]
            live = {self.kid(st) for m in range(n + 1, 33) for st in self.sched(m) if self.kid(st) in self.bfl or self.kid(st) in map(self.kid, steps)}
            bufs = [self.bfi(k) for k in newk] + [self.bfi(k) for k in live]
            assert len(bufs) == len(set(bufs)), (n, newk, live)
            self.run_steps(steps, per, pre, [] if inter else hx)
            if n == 8:
                self.q_write((1,))
        else:
            assert all(self.kid(st) in self.bfl for st in pre)
        for st in todo:
            for op in self.W_ops(*st):
                op()
        if pre:
            e("s_waitcnt lgkmcnt(0)")
        if self.fre and n < 32:
            e("s_barrier")
            self.barB[self.path].append("FR")
            if n + 2 <= 31:
                k = "H%d" % (n + 1)
                after = len(self.vmq) - 1 - max([i for i, t in enumerate(self.vmq) if t == k], default=-1)
                if self.path == 'main':
                    self.hdone[n + 2] = max(0, min(8, (self.cap - 4*after)//4))
                for op in self.H_ops(n + 2)[:self.hdone[n + 2]]:
                    op()
        if self.pre_rd and nxt and n + 1 in (12, 14, 16, 28, 30, 32) and self.kid(nxt[0]) in self.bfl:
            self.vmwait([f"H{n+1}", nxt[0]])
            for op in self.w_reads(nxt[0][1], 0):
                op()
            self.wpre = nxt[0]

    def epilogue_v1(self):
        e = self.e
        t = self.B_TMP
        e("s_nop 7")
        e(f"v_lshlrev_b32 v{t}, 4, v{self.B_LANE}")
        e(f"s_lshl_b32 s{S_T1}, s{S_WG}, 17")
        e(f"s_lshl_b32 s{S_T0}, s{S_W}, 15")
        e(f"s_add_u32 s{S_T1}, s{S_T1}, s{S_T0}")
        for cbk in range(1 if self.path == 'w3' else 2):
            for u in range(4):
                e(f"s_add_u32 s{S_T0}, s{S_T1}, {(cbk*4+u)*4096}")
                for cb4 in range(4):
                    e(f"buffer_store_dwordx4 {vr(64*cbk+16*u+4*cb4,4)}, v{t}, {sr(S_WS,4)}, s{S_T0} offen offset:{cb4*1024}")

    def pub_setup(self):
        e = self.e
        slot = 32768 if self.f32 else 16384
        e(f"v_lshlrev_b32 v{self.B_TMP}, 4, v{self.B_LANE}")
        e(f"s_and_b32 s{S_T1}, s{S_WG}, 0xfc")
        e(f"s_mul_i32 s{S_T1}, s{S_T1}, {4*slot}")
        e(f"s_mul_i32 s{S_T0}, s{S_W}, {slot // 4}")
        e(f"s_add_u32 s{S_T1}, s{S_T1}, s{S_T0}")
        e(f"s_mul_i32 s2, s{S_P}, {slot}")
        e(f"s_add_u32 s2, s2, s{S_T1}")
        for rb in (1, 2, 3):
            e(f"s_add_u32 s{S_T0}, s{S_P}, {rb}")
            e(f"s_and_b32 s{S_T0}, s{S_T0}, 3")
            e(f"s_mul_i32 s{S_T0}, s{S_T0}, {4*slot}")
            e(f"s_add_u32 s{S_KR+rb}, s{S_T0}, s2")

    def pub_ops(self, cbk):
        e = self.e
        L16, D, fl = self.B_TMP, self.B_TMP + 4, self.pfl
        ops = []
        if self.f32:
            for u in range(4):
                for rb in (1, 2, 3):
                    def op(u=u, rb=rb):
                        e(f"s_add_u32 s{S_T0}, s{S_KR+rb}, {cbk*4096}")
                        e(f"buffer_store_dwordx4 {vr(64*cbk+16*u+4*rb,4)}, v{L16}, {sr(S_WS,4)}, s{S_T0} offen offset:{u*1024} {fl}")
                    ops.append(op)
            return ops
        n = 0
        for u2 in range(2):
            for rb in (1, 2, 3):
                d = D + 4*(n % 3); n += 1
                a0 = 64*cbk + 32*u2 + 4*rb
                ops.append(lambda d=d, a0=a0: (e(f"v_cvt_pk_bf16_f32 v{d}, v{a0}, v{a0+1}"), e(f"v_cvt_pk_bf16_f32 v{d+1}, v{a0+2}, v{a0+3}")))
                ops.append(lambda d=d, a0=a0, rb=rb, u2=u2: (e(f"v_cvt_pk_bf16_f32 v{d+2}, v{a0+16}, v{a0+17}"), e(f"v_cvt_pk_bf16_f32 v{d+3}, v{a0+18}, v{a0+19}"),
                           e(f"buffer_store_dwordx4 {vr(d,4)}, v{L16}, {sr(S_WS,4)}, s{S_KR+rb} offen offset:{(2*cbk+u2)*1024} {fl}")))
        return ops

    def epilogue_fused(self):
        e = self.e
        t = self.B_TMP
        L16, OA = t, t + 1
        D = t + 4
        ncbk = 1 if self.path == 'w3' else 2
        slot = 32768 if self.f32 else 16384
        self.stamp(self.B_ST)
        ov = self.tailov and ncbk == 2
        if not ov:
            self.pub_setup()
        e("s_nop 7")
        for cbk in range(1 if ov else 0, ncbk):
            for op in self.pub_ops(cbk):
                op()
        e(f"v_and_b32 v{OA}, 15, v{self.B_LANE}")
        e(f"v_mul_u32_u24 v{OA}, 1792, v{OA}")
        e(f"v_lshrrev_b32 v{t+2}, 4, v{self.B_LANE}")
        e(f"v_lshl_add_u32 v{OA}, v{t+2}, 3, v{OA}")
        e("s_waitcnt vmcnt(0)")
        e("s_barrier")
        self.stamp(self.B_ST)
        if self.path == 'main':
            e(f"s_cmp_eq_u32 s{S_W}, 0")
            e("s_cbranch_scc0 L_nopoll")
            e(f"v_add_u32 v{self.B_FOUT}, 1, v{self.B_FOUT}")
            e("s_mov_b64 exec, 15")
            e(f"buffer_store_dword v{self.B_FOUT}, v{self.B_FAO}, {sr(S_WS,4)}, 0 offen sc1")
            e(f"s_mov_b32 s{S_CH}, 0")
            e.lab("L_poll")
            e(f"buffer_load_dword v{t+2}, v{self.B_FAI}, {sr(S_WS,4)}, 0 offen sc1")
            e(f"s_add_u32 s{S_CH}, s{S_CH}, 1")
            e("s_waitcnt vmcnt(0)")
            e(f"v_cmp_eq_u32 vcc, v{t+2}, v{self.B_FIN}")
            e("s_nop 0")
            e("s_cbranch_vccz L_polled")
            e(f"s_cmp_lt_u32 s{S_CH}, 0x20000")
            e("s_cbranch_scc1 L_poll")
            e.lab("L_polled")
            e("s_mov_b64 exec, -1")
            e.lab("L_nopoll")
        e("s_barrier")
        self.stamp(self.B_ST)
        e(f"s_mul_i32 s2, s{S_P}, {4*slot}")
        e(f"s_add_u32 s2, s2, s{S_T1}")
        for rb in (1, 2, 3):
            e(f"s_add_u32 s{S_T0}, s{S_P}, {rb}")
            e(f"s_and_b32 s{S_T0}, s{S_T0}, 3")
            e(f"s_mul_i32 s{S_T0}, s{S_T0}, {slot}")
            e(f"s_add_u32 s{S_T0}, s{S_T0}, s2")
            for cbk in range(ncbk):
                if self.f32:
                    if cbk:
                        e(f"s_add_u32 s{S_T0}, s{S_T0}, 4096")
                    for u in range(4):
                        e(f"buffer_load_dwordx4 {vr(64*cbk+16*u+4*rb,4)}, v{L16}, {sr(S_WS,4)}, s{S_T0} offen offset:{u*1024} {self.lfl}")
                else:
                    for u2 in range(2):
                        e(f"buffer_load_dwordx4 {vr(64*cbk+32*u2+4*rb,4)}, v{L16}, {sr(S_WS,4)}, s{S_T0} offen offset:{(2*cbk+u2)*1024} {self.lfl}")
        e(f"s_mul_i32 s2, s{S_B}, {64*1792}")
        e(f"s_mul_i32 s3, s{S_P}, {16*1792}")
        e(f"s_add_u32 s2, s2, s3")
        e(f"s_mul_i32 s3, s{S_BR}, 896")
        e(f"s_add_u32 s2, s2, s3")
        e(f"s_add_u32 s2, s2, s{S_WCOL}")
        e("s_waitcnt vmcnt(0)")
        for cbk in range(ncbk):
            for u in range(4):
                a = 64*cbk + 16*u
                for rb in (1, 2, 3):
                    if self.f32:
                        for r in range(4):
                            e(f"v_add_f32 v{a+r}, v{a+r}, v{a+4*rb+r}")
                    else:
                        src = 64*cbk + 32*(u >> 1) + 4*rb + 2*(u & 1)
                        for h in range(2):
                            e(f"v_lshlrev_b32 v{D+2*h}, 16, v{src+h}")
                            e(f"v_and_b32 v{D+2*h+1}, 0xffff0000, v{src+h}")
                        e(f"v_pk_add_f32 {vr(a,2)}, {vr(a,2)}, {vr(D,2)}")
                        e(f"v_pk_add_f32 {vr(a+2,2)}, {vr(a+2,2)}, {vr(D+2,2)}")
                e(f"v_cvt_pk_bf16_f32 v{a}, v{a}, v{a+1}")
                e(f"v_cvt_pk_bf16_f32 v{a+1}, v{a+2}, v{a+3}")
                e(f"buffer_store_dwordx2 {vr(a,2)}, v{OA}, {sr(S_OUT,4)}, s2 offen offset:{cbk*128+u*32} {self.ofl}".rstrip())

    def endB(self):
        e = self.e
        if self.fuse:
            self.epilogue_fused()
        else:
            self.epilogue_v1()
        if self.prof:
            e("s_waitcnt vmcnt(0)")
            self.stamp(self.B_ST)
            if self.path == 'main':
                e(f"s_cmp_eq_u32 s{S_W}, 0")
                e("s_cbranch_scc0 L_end")
                self.prof_store(self.B_ST, 1, 0)
        e("s_endpgm")

    def streamB(self):
        e = self.e
        e.lab("L_B")
        self.vmq = []
        self.deferred = []
        self.path = 'main'
        self.barB = {'main': [], 'w3': []}
        self.stamp(self.B_ST)
        self.setupB()
        for hs in range(4):
            for op in self.W_ops(('Q', 0, 0), hs):
                op()
        self.setupB2()
        if self.early:
            for xp in range(2, 7):
                for op in self.X_ops(xp, self.xloc(0, xp), "X0b", self.xnt):
                    op()
        if self.flate:
            self.flag_loads()
        self.stamp(self.B_ST)
        self.vmwait(["X0"])
        self.barB_("HB")
        steps = [(('Q', 0, h), hs) for h in range(7) for hs in range(4)]
        H0 = self.H_ops(0)
        if self.h1h:
            assert self.early and self.hdef is None and not self.hto
            H0 = H0 + self.H_ops(1)
        def per(i):
            if i % 2 == 1 and self.prof != 2:
                self.stamp(self.B_ST, f"h{i}")
            if i == 6 and self.early:
                assert "X0b" not in self.vmq
                return self.W_ops(*steps[i + 4]) + [lambda: self.barB_("HB2")]
            if i == 23 and self.h1h:
                return self.W_ops(*steps[i + 4]) + [lambda: self.barB_("HB3")]
            if i >= 24 and self.h1h:
                return H0[4*(i - 24):4*(i - 24) + 4]
            if i + 4 < 28:
                return self.W_ops(*steps[i + 4])
            if self.hdef is not None:
                tt = self.wo_touch(False)
                return (tt if self.hdef == i else []) + H0[2*(i - 24):2*(i - 24) + 2] + (tt if self.hdef == i + 1 == 28 else [])
            return (self.wo_touch(True) if i == 24 else []) + H0[2*(i - 24):2*(i - 24) + 2]
        def per2(i):
            return per(i) + (self.q_ops(0) if self.qov and i == 27 else [])
        self.run_steps(steps, per2)
        self.q_write((1,) if self.qov else (0, 1))
        for op in (self.wo_touch(False) if self.hdef is None else []):
            op()
        self.barB_("QB1")
        for n in range(9):
            self.periodB(n)
        e(f"s_cmp_eq_u32 s{S_W}, 3")
        e("s_cbranch_scc1 L_B3")
        save = list(self.vmq)
        save_bfl = set(self.bfl)
        assert not self.deferred
        self.barB['w3'] = list(self.barB['main'])
        for n in range(9, 33):
            self.periodB(n)
        self.endB()
        e.lab("L_B3")
        self.path = 'w3'
        self.vmq = save
        self.bfl = save_bfl
        self.wpre = None
        self.deferred = []
        for n in range(9, 33):
            self.periodB(n)
        self.endB()

    def reduce_kernel(self):
        e = self.e
        e(".globl red_kernel")
        e(".p2align 8")
        e(".type red_kernel,@function")
        e.lab("red_kernel")
        e("s_cmp_ge_u32 s2, 1792")
        e("s_cbranch_scc1 L_rend")
        e("s_load_dwordx2 s[4:5], s[0:1], 96")
        e("s_load_dwordx2 s[8:9], s[0:1], 80")
        e("s_mul_hi_u32 s12, s2, 153391690")
        e("s_mul_i32 s13, s12, 28")
        e("s_sub_u32 s13, s2, s13")
        e("s_and_b32 s14, s12, 1")
        e("s_lshr_b32 s15, s12, 1")
        e("s_lshl_b32 s16, s15, 3")
        e("s_lshl_b32 s17, s14, 2")
        e("s_add_u32 s16, s16, s17")
        e("s_lshl_b32 s16, s16, 17")
        e("s_lshl_b32 s17, s13, 12")
        e("s_add_u32 s16, s16, s17")
        e("v_lshlrev_b32 v1, 4, v0")
        e("s_mov_b32 s6, 67108864")
        e("s_mov_b32 s7, 0x20000")
        e("s_mov_b32 s10, 3670016")
        e("s_mov_b32 s11, 0x20000")
        e("s_waitcnt lgkmcnt(0)")
        for p in range(4):
            e(f"buffer_load_dwordx4 {vr(4+4*p,4)}, v1, s[4:7], s16 offen")
            e("s_add_u32 s16, s16, 131072")
        e("v_lshrrev_b32 v2, 6, v0")
        e("v_lshlrev_b32 v2, 4, v2")
        e("v_and_b32 v3, 15, v0")
        e("v_add_u32 v2, v2, v3")
        e("v_mul_u32_u24 v2, 1792, v2")
        e("v_bfe_u32 v3, v0, 4, 2")
        e("v_lshl_add_u32 v2, v3, 3, v2")
        e("s_mul_i32 s15, s15, 114688")
        e("s_mul_i32 s14, s14, 896")
        e("s_add_u32 s15, s15, s14")
        e("s_lshl_b32 s13, s13, 5")
        e("s_add_u32 s15, s15, s13")
        e("s_waitcnt vmcnt(0)")
        for r in range(4):
            e(f"v_add_f32 v{4+r}, v{4+r}, v{8+r}")
            e(f"v_add_f32 v{12+r}, v{12+r}, v{16+r}")
            e(f"v_add_f32 v{4+r}, v{4+r}, v{12+r}")
        e("v_cvt_pk_bf16_f32 v4, v4, v5")
        e("v_cvt_pk_bf16_f32 v5, v6, v7")
        e("buffer_store_dwordx2 v[4:5], v2, s[8:11], s15 offen")
        e.lab("L_rend")
        e("s_endpgm")

    def build(self):
        e = self.e
        out = [HEADER.rstrip()]
        if self.fuse:
            out.append(f"; @launch grid=(256,1,1) block=(512,1,1) lds={LDS_BYTES}")
        else:
            out.append(f"; @launch kernel={NAME}_kernel grid=(256,1,1) block=(512,1,1) lds={LDS_BYTES}")
            out.append(f"; @launch kernel=red_kernel grid=(1792,1,1) block=(256,1,1) lds=0")
        out.append('.amdgcn_target "amdgcn-amd-amdhsa--gfx950"')
        out.append(".text")
        out.append(f".globl {NAME}_kernel")
        out.append(".p2align 8")
        out.append(f".type {NAME}_kernel,@function")
        out.append(f"{NAME}_kernel:")
        self.prologue()
        self.streamB()
        self.path = None
        e.lab("L_A")
        self.streamA()
        e.lab("L_end")
        e("s_endpgm")
        if not self.fuse:
            self.reduce_kernel()
        assert self.barA == self.barB['main'] == self.barB['w3'], (self.barA, self.barB)
        if self.prof:
            out.insert(1, f"; NST {44 if self.prof == 4 else len(self.barA)+2} {len(self.namesB)} " + " ".join(self.namesB))
        out.append(e.text())
        out.append('.section .rodata,"a"')
        def kd(name, v, s, acc):
            return f""".p2align 6
.amdhsa_kernel {name}
  .amdhsa_next_free_vgpr {v}
  .amdhsa_next_free_sgpr {s}
  .amdhsa_accum_offset {acc}
  .amdhsa_group_segment_fixed_size 0
  .amdhsa_kernarg_size 104
  .amdhsa_user_sgpr_count 2
  .amdhsa_user_sgpr_kernarg_segment_ptr 1
  .amdhsa_system_sgpr_workgroup_id_x 1
.end_amdhsa_kernel"""
        out.append(kd(f"{NAME}_kernel", 256, 96, 176))
        if not self.fuse:
            out.append(kd("red_kernel", 24, 32, 24))
        return "\n".join(out) + "\n"


if __name__ == "__main__":
    kw = {}
    path = None
    for a in sys.argv[1:]:
        if "=" in a:
            k, v = a.split("=")
            kw[k] = eval(v)
        else:
            path = a
    txt = Gen(**kw).build()
    open(path or f"cdna_kernels/{NAME}.s", "w").write(txt)
    print("lines", txt.count("\n"), "bytes", len(txt))
```
